```python
import torch

def _softmax(x, axis=-1):
    return torch.softmax(x, dim=axis)

def _gelu(x):
    return torch.nn.functional.gelu(x, approximate='tanh')

def _silu(x):
    return torch.nn.functional.silu(x)

def _sigmoid(x):
    return torch.sigmoid(x)

def _layernorm(x, axis=-1, eps=1e-05):
    m = x.mean(dim=axis, keepdim=True)
    v = x.var(dim=axis, keepdim=True, unbiased=False)
    return (x - m) / torch.sqrt(v + eps)

def _scatter_add(tgt, idx, src, axis=0):
    return tgt.clone().index_add_(axis, idx, src)

def _segment_sum(src, seg, n):
    out = torch.zeros((n,) + src.shape[1:], dtype=src.dtype)
    return out.index_add_(0, seg, src)

def _pad(x, pw):
    flat = tuple((v for pair in reversed(pw) for v in pair))
    return torch.nn.functional.pad(x, flat)
kernel_name = 'parallel_sum__linear_kernel_hedgehog__mixer_gmlp__prompt'

def setup_inputs():

    _w = lambda a: (lambda t: t.to(torch.bfloat16) if t.is_floating_point() else t)(torch.as_tensor(a))

    def _A_setup():
        B, S, D, H = (1, 2048, 576, 32)
        Dh = D // H
        return {'x': _w((lambda *s: torch.randn(*s, dtype=torch.bfloat16) * 0.05)(B, S, D)), 'wqkv': _w((lambda *s: torch.randn(*s, dtype=torch.bfloat16) * 0.4)(D, 3 * D)), 'w_phi': _w((lambda *s: torch.randn(*s, dtype=torch.bfloat16) * 0.4)(H, Dh, Dh) * Dh ** (-0.5)), 'wo': _w((lambda *s: torch.randn(*s, dtype=torch.bfloat16) * 0.4)(D, D))}
    _A_in = _A_setup()

    def _B_setup():
        B, S, D, F = (1, 2048, 576, 4608)
        Fh = F // 2
        return {'x': _w((lambda *s: torch.randn(*s, dtype=torch.bfloat16) * 0.05)(B, S, D)), 'w_in': _w((lambda *s: torch.randn(*s, dtype=torch.bfloat16) * 0.4)(D, 2 * Fh)), 'w_sp': _w(0.01 * (lambda *s: torch.randn(*s, dtype=torch.bfloat16) * 0.4)(S, S)), 'b_sp': _w(1.0 + 0.01 * (lambda *s: torch.randn(*s, dtype=torch.bfloat16) * 0.05)(S)), 'w_out': _w((lambda *s: torch.randn(*s, dtype=torch.bfloat16) * 0.05)(Fh, D))}
    _B_in = _B_setup()
    return {'A_x': _A_in['x'], 'A_wqkv': _A_in['wqkv'], 'A_w_phi': _A_in['w_phi'], 'A_wo': _A_in['wo'], 'B_x': _B_in['x'], 'B_w_in': _B_in['w_in'], 'B_w_sp': _B_in['w_sp'], 'B_b_sp': _B_in['b_sp'], 'B_w_out': _B_in['w_out']}

def reference(A_x, A_wqkv, A_w_phi, A_wo, B_x, B_w_in, B_w_sp, B_b_sp, B_w_out):

    def _A_ref(x, wqkv, w_phi, wo):
        B, S, D = x.shape
        H = 32
        Dh = D // H
        qkv = (lambda x, *d: x.permute(*d))((x @ wqkv).reshape(B, S, 3, H, Dh), 2, 0, 3, 1, 4)
        q, k, v = (qkv[0], qkv[1], qkv[2])
        pq = torch.einsum('bhsd,hdf->bhsf', q, w_phi)
        pk = torch.einsum('bhsd,hdf->bhsf', k, w_phi)
        phi_q = torch.concatenate([_softmax(pq, axis=-1), _softmax(-pq, axis=-1)], axis=-1)
        phi_k = torch.concatenate([_softmax(pk, axis=-1), _softmax(-pk, axis=-1)], axis=-1)
        kv = torch.einsum('bhsf,bhsd->bhfd', phi_k, v)
        z = torch.einsum('bhsf->bhf', phi_k)
        num = torch.einsum('bhqf,bhfd->bhqd', phi_q, kv)
        den = torch.einsum('bhqf,bhf->bhq', phi_q, z)[..., None] + 1e-06
        o = num / den
        return (lambda x, *d: x.permute(*d))(o, 0, 2, 1, 3).reshape(B, S, D) @ wo

    def _B_ref(x, w_in, w_sp, b_sp, w_out):
        B, S, D = x.shape
        F = w_in.shape[-1]
        Fh = F // 2
        z = _gelu(torch.einsum('bsd,df->bsf', x, w_in))
        z1 = z[..., :Fh].clone()
        z2 = _layernorm(z[..., Fh:], axis=-1)
        g = torch.einsum('ts,bsf->btf', w_sp, z2) + b_sp[None, :, None]
        return torch.einsum('bsf,fd->bsd', z1 * g, w_out)
    x = A_x
    xn = _layernorm(x, axis=-1)
    return x + _A_ref(xn, A_wqkv, A_w_phi, A_wo) + _B_ref(xn, B_w_in, B_w_sp, B_b_sp, B_w_out)
```

```python
class Asm:
    def __init__(self):
        self.lines = []
        self.uid = 0
    def e(self, s=""):
        for l in s.split("\n"):
            if not l.strip(): continue
            self.lines.append("    " + l.strip() if l.strip() and not l.strip().endswith(":") else l.strip())
    def label(self, n):
        self.lines.append(n + ":")
    def newlabel(self, p="L"):
        self.uid += 1
        return f"{p}_{self.uid}"
    def text(self):
        return "\n".join(self.lines) + "\n"

HEADER = '.amdgcn_target "amdgcn-amd-amdhsa--gfx950"\n.text\n'

def kernel_begin(name):
    return f".globl {name}\n.p2align 8\n.type {name},@function\n{name}:\n"

def kernel_desc(name, vgpr, sgpr, accum, extra=""):
    return (f".p2align 6\n.amdhsa_kernel {name}\n  .amdhsa_next_free_vgpr {vgpr}\n  .amdhsa_next_free_sgpr {sgpr}\n"
            f"  .amdhsa_accum_offset {accum}\n  .amdhsa_group_segment_fixed_size 0\n  .amdhsa_kernarg_size 96\n"
            f"  .amdhsa_user_sgpr_count 2\n  .amdhsa_user_sgpr_kernarg_segment_ptr 1\n"
            f"  .amdhsa_system_sgpr_workgroup_id_x 1\n{extra}.end_amdhsa_kernel\n")

def stamp_begin(a):
    a.e("s_memrealtime s[90:91]\ns_memtime s[92:93]")

def stamp_mid(a, i):
    a.e(f"s_memtime s[{80+2*i}:{81+2*i}]")

def stamp_end(a, kidx, wave_sreg, nmid=0):
    from layout import STAMP, KA_WS
    a.e(f"""
    s_waitcnt vmcnt(0)
    s_memtime s[94:95]
    s_memrealtime s[96:97]
    s_load_dwordx2 s[98:99], s[0:1], {KA_WS}
    s_waitcnt lgkmcnt(0)
    s_add_u32 s76, s98, {STAMP + kidx*65536}
    s_addc_u32 s77, s99, 0
    s_mov_b32 s78, 65536
    s_mov_b32 s79, 0x20000
    s_sub_u32 s94, s94, s92
    v_mov_b32 v0, s90
    v_mov_b32 v1, s96
    v_mov_b32 v2, s94
    s_getreg_b32 s95, hwreg(HW_REG_XCC_ID)
    v_mov_b32 v3, s92
    """)
    for i in range(4):
        if i < nmid:
            a.e(f"s_sub_u32 s95, s{80+2*i}, s92\nv_mov_b32 v{4+i}, s95")
        else:
            a.e(f"v_mov_b32 v{4+i}, 0")
    a.e(f"""
    s_lshl_b32 s95, s2, 3
    s_add_u32 s95, s95, {wave_sreg}
    s_lshl_b32 s95, s95, 5
    v_mov_b32 v8, s95
    s_mov_b64 exec, 1
    buffer_store_dwordx4 v[0:3], v8, s[76:79], 0 offen
    buffer_store_dwordx4 v[4:7], v8, s[76:79], 0 offen offset:16
    """)
```

```python
import sys
from asmlib import *
def assemble(parts, path, header_comment=""):
    s = header_comment + "".join(p[0] for p in parts) + HEADER + "".join(p[1] for p in parts)
    s += '.section .rodata,"a"\n' + "".join(p[2] for p in parts)
    open(path, "w").write(s)
if __name__ == "__main__":
    from k2 import gen_k2
    from k3 import gen_k3
    assemble([gen_k2(stamp=True)], "t_k2.s")
    assemble([gen_k3(stamp=True)], "t_k3.s")
    assemble([gen_k2(stamp=True), gen_k3(stamp=True)], "t_k23.s")
    assemble([gen_k2(stamp=2)], "t_k2s.s")
```

```python
import math, os
from asmlib import *
from sched import Sched
from layout import *
from k1common import *
from k3 import srd
ABL = os.environ.get('ABL', '').split(',')

GK1 = -2.0 * math.sqrt(2.0 / math.pi) * LOG2E
GK2 = GK1 * 0.044715

RING = 0
XR = 98304
CSO = XR + 51200
PRM = CSO + 2048
Z_LDS = PRM + 2048
PER_MFMA = int(os.environ.get('PM', 6))

def gen_zpath(a, name, stamp):
    X = 112; ACC = [64, 80, 96]; WF = [44, 48, 52, 56]
    NEGMU, R, C1, C2, S1, S2 = 14, 15, 7, 8, 13, 16
    CB = [24, 28]; T = 32; PK = 36
    rowstat_loads(a, 2, 64, 24)
    a.e(f"""
    s_cmp_lt_u32 s3, 6
    s_cselect_b32 s28, s12, s16
    s_cselect_b32 s29, s13, s17
    s_cselect_b32 s30, s14, s18
    s_mov_b32 s31, 0x20000
    s_mov_b32 s45, 3456
    s_cselect_b32 s45, 9216, s45
    s_mul_i32 s39, s33, 384
    s_lshl_b32 s40, s3, 7
    s_add_u32 s39, s39, s40
    s_lshl_b32 s40, s34, 7
    s_sub_u32 s41, s39, 384
    s_cmp_lt_u32 s3, 6
    s_cselect_b32 s40, s41, s40
    s_add_u32 s39, s39, 4608
    s_cmp_lt_u32 s3, 3
    s_cselect_b32 s39, s39, s40
    s_cmp_eq_u32 s3, 7
    s_cselect_b32 s30, 0, s30
    s_mul_i32 s38, s32, 36
    s_mul_i32 s38, s38, s45
    s_add_u32 s39, s39, s38
    s_lshl_b32 s38, s45, 3
    v_lshrrev_b32 v28, 3, v2
    v_mul_lo_u32 v28, v28, s45
    v_and_b32 v30, 7, v2
    v_lshl_add_u32 v28, v30, 4, v28
    v_cmp_gt_u32 vcc, 32, v2
    v_mov_b32 v27, {BIG}
    s_nop 0
    v_cndmask_b32 v29, v27, v28, vcc
    """)
    for i in range(5):
        coop_id = a.vm(f"buffer_load_dwordx4 {vr(72+4*i)}, v{28 if i < 4 else 29}, s[28:31], s39 offen")
        if i < 4: a.e(f"s_add_u32 s39, s39, s38")
    a.e(f"""
    s_and_b32 s36, s3, 3                ; rg
    s_lshr_b32 s37, s3, 2               ; p
    v_lshrrev_b32 v28, 3, v2
    v_and_b32 v29, 7, v2                ; pos
    v_bfe_u32 v30, v2, 4, 1
    v_lshlrev_b32 v30, 2, v30
    v_xor_b32 v30, v30, v29
    v_lshlrev_b32 v30, 4, v30           ; chunk*16
    v_mul_u32_u24 v5, 9216, v28
    v_add_u32 v5, v5, v30
    v_mul_u32_u24 v6, 3456, v28
    v_add_u32 v6, v6, v30
    v_lshrrev_b32 v31, 4, v2
    v_xor_b32 v31, v31, v29
    v_mul_u32_u24 v7, 1152, v28
    v_lshl_add_u32 v7, v31, 4, v7
    v_xor_b32 v8, 64, v7
    v_add_u32 v8, {8*1152-1024}, v8
    s_mul_i32 s40, s3, {8*9216}
    s_mul_i32 s41, s33, 384
    s_add_u32 s40, s40, s41
    s_add_u32 s40, s40, 4608            ; w_in base (z2 panel 0)
    s_mul_i32 s41, s3, {8*3456}
    s_lshl_b32 s42, s34, 7
    s_add_u32 s41, s41, s42
    s_lshl_b32 s42, s3, 10              ; w*1024
    s_lshl_b32 s43, s32, 7
    s_lshl_b32 s44, s3, 4
    s_add_u32 s43, s43, s44
    s_mul_i32 s43, s43, 1152            ; x base
    s_lshl_b32 s44, s3, 11
    s_add_u32 s44, s44, {XR}
    """)
    NU = 63
    unit_id = {}; x_id = {}
    def unit_desc(u):
        if u < 18: return (u & 1, u >> 1)
        return (2 + (u - 18) // 9, (u - 18) % 9)
    def issue_unit(u):
        P, c = unit_desc(u)
        a.e(f"s_add_u32 m0, s42, {RING + (u % 12)*8192}")
        if P < 6:
            col = 128*P if P < 3 else 128*(P-3) - 4608
            a.e(f"s_add_u32 s46, s40, {(c*64*9216 + col) & 0xffffffff}")
            unit_id[u] = a.vm(f"buffer_load_dwordx4 v5, s[12:15], s46 offen lds")
        else:
            a.e(f"s_add_u32 s46, s41, {c*64*3456}")
            unit_id[u] = a.vm(f"buffer_load_dwordx4 v6, s[16:19], s46 offen lds")
    def issue_x(c, half):
        a.e(f"s_add_u32 m0, s44, {(c % 3)*16384}")
        a.e(f"s_add_u32 s46, s43, {c*128}")
        if half == 0: a.vm(f"buffer_load_dwordx4 v7, s[8:11], s46 offen lds")
        else: x_id[c] = a.vm(f"buffer_load_dwordx4 v8, s[8:11], s46 offen offset:1024 lds")
    st = {"next": 0}
    pend = []
    def allow_upto(lim):
        while st["next"] < min(lim, NU):
            pend.append(("u", st["next"])); st["next"] += 1
    def dma(n=1):
        for _ in range(n):
            if not pend: return
            k = pend.pop(0)
            if k[0] == "u": issue_unit(k[1])
            else: issue_x(k[1], k[2])
    for c in range(3):
        pend.extend([("x", c, 0), ("x", c, 1)]); allow_upto(2*c + 2)
    allow_upto(12)
    dma(100)
    a.e(f"""
    v_and_b32 v22, 15, v2
    v_lshrrev_b32 v23, 2, v22           ; r
    v_and_b32 v22, 3, v22               ; c
    v_lshrrev_b32 v24, 5, v2            ; h
    v_bfe_u32 v25, v2, 4, 1             ; n half
    v_lshlrev_b32 v1, 3, v24
    v_add_u32 v1, v1, v23
    v_lshlrev_b32 v1, 7, v1             ; (8h + r)*128
    v_lshrrev_b32 v26, 1, v23
    v_xor_b32 v26, s37, v26
    v_lshl_add_u32 v1, v26, 6, v1
    v_lshl_add_u32 v1, v25, 5, v1
    v_lshl_add_u32 v1, v22, 3, v1
    v_add_u32 v3, 49152, v1
    v_and_b32 v32, 31, v2               ; s
    v_bfe_u32 v33, v2, 1, 3             ; swz
    v_xor_b32 v33, v33, v24
    v_lshlrev_b32 v33, 4, v33
    v_lshl_add_u32 v9, v32, 7, v33
    s_lshl_b32 s38, s36, 12
    s_add_u32 s38, s38, {XR}
    v_add_u32 v9, s38, v9
    v_xor_b32 v10, 32, v9
    v_xor_b32 v11, 64, v9
    v_xor_b32 v12, 96, v9
    s_lshl_b32 s38, s37, 7
    s_add_u32 s38, s38, {CSO}
    v_lshlrev_b32 v17, 4, v24
    v_add_u32 v17, s38, v17
    s_mul_i32 s38, s3, 6400
    s_add_u32 s38, s38, {XR}
    v_mul_u32_u24 v19, 200, v32
    v_lshl_add_u32 v19, v24, 3, v19
    v_add_u32 v19, s38, v19
    v_bfe_u32 v20, v2, 4, 1
    v_mul_u32_u24 v20, {72*1024}, v20
    v_and_b32 v34, 15, v2
    v_lshl_add_u32 v34, v24, 4, v34
    v_lshl_add_u32 v20, v34, 4, v20     ; z1 store
    v_lshlrev_b32 v21, 3, v32           ; s*8
    v_lshlrev_b32 v18, 2, v0            ; tid*4
    v_lshlrev_b32 v0, 4, v2
    """)
    a.e(f"""
    s_lshl_b32 s47, s32, 3
    s_lshl_b32 s48, s36, 1
    s_add_u32 s47, s47, s48             ; t16
    s_mul_i32 s47, s47, 72
    s_mul_i32 s48, s33, 6
    s_add_u32 s47, s47, s48
    s_add_u32 s47, s47, s37
    s_lshl_b32 s47, s47, 10
    s_add_u32 s50, s47, {Z1}
    s_add_u32 s51, s50, 2048
    s_add_u32 s52, s50, 4096
    s_lshl_b32 s47, s32, 2
    s_add_u32 s47, s47, s36
    s_lshl_b32 s59, s47, 8
    s_add_u32 s59, s59, {XST}
    s_mul_i32 s48, s47, 36
    s_lshl_b32 s49, s34, 2
    s_add_u32 s48, s48, s49
    s_lshl_b32 s49, s37, 1
    s_add_u32 s48, s48, s49
    s_lshl_b32 s48, s48, 10
    s_add_u32 s53, s48, {Q}
    s_mul_i32 s54, s47, 144
    s_mul_i32 s48, s33, 12
    s_add_u32 s54, s54, s48
    s_add_u32 s54, s54, s49             ; + 2p
    s_lshl_b32 s54, s54, 10             ; z2t soffset (Z2T = 0)
    s_mul_i32 s55, s32, 24
    s_lshl_b32 s48, s33, 1
    s_add_u32 s48, s48, s37
    s_add_u32 s48, s48, s55
    s_lshl_b32 s48, s48, 10
    s_lshl_b32 s49, s36, 8
    s_add_u32 s48, s48, s49
    s_add_u32 s56, s48, {ST}
    s_lshl_b32 s55, s55, 10
    s_add_u32 s55, s55, s49
    s_add_u32 s55, s55, {ST}
    s_mul_i32 s57, s33, {16*448*4}
    s_add_u32 s57, s57, {CSP}
    s_mul_i32 s47, s32, {448*4}
    s_add_u32 s47, s47, s57
    """)
    assert Z2T == 0
    a.wait(vm=coop_id)
    pub = [rowstat_compute(a, 64, 24)]
    for i in range(5):
        unpack_add(a, 96, 72 + 4*i, 4, i == 0, 24)
    fold8(a, 96, 104)
    a.e(f"""
    s_lshl_b32 s38, s3, 8
    s_add_u32 s47, s47, s38
    v_lshlrev_b32 v24, 1, v0
    v_lshrrev_b32 v26, 6, v18           ; tid >> 4
    v_cmp_gt_u32 vcc, 8, v2
    v_mov_b32 v25, {BIG}
    s_cmp_eq_u32 s3, 7
    s_cselect_b64 vcc, 0, vcc
    v_cndmask_b32 v24, v25, v24, vcc
    """)
    a.vm(f"buffer_store_dwordx4 {vr(96)}, v24, s[20:23], s47 offen sc1")
    pub.append(a.vm(f"buffer_store_dwordx4 {vr(100)}, v24, s[20:23], s47 offen offset:16 sc1"))
    a.e(f"""
    v_mov_b32 v61, {BIG}
    v_cmp_gt_u32 vcc, {448*4}, v18
    s_nop 1
    v_cndmask_b32 v61, v61, v18, vcc
    v_add_u32 v18, {CSO}, v18
    """)
    def wread(buf, u, j):
        pos = u % 12
        b = (1, 3)[pos // 6]; off = (pos % 6)*8192 + j*2048
        a.lg(f"ds_read_b64_tr_b16 {vr(buf,2)}, v{b} offset:{off}")
        return a.lg(f"ds_read_b64_tr_b16 {vr(buf+2,2)}, v{b} offset:{off+512}")
    def barrier(vmid, lgid=None):
        a.wait(vm=vmid, lg=lgid)
        a.e("s_barrier")
    sig = {}
    def signal(tag, ids, addr_code):
        if tag in sig or ids is None or max(ids) > a.vm_done: return
        lb = a.newlabel(name + "_sig")
        a.e(f"s_cmp_eq_u32 s3, 0\ns_cbranch_scc0 {lb}")
        if tag == "coop": epoch_fetch(a, name, 60, 4)
        a.e(addr_code)
        a.e(f"""
        v_mov_b32 v22, s69
        buffer_store_dword v22, v23, s[20:23], 0 offen sc1
        s_mov_b64 exec, -1
        """)
        a.label(lb)
        sig[tag] = True
    SIG1 = f"""
    s_lshl_b32 s38, s2, 2
    s_add_u32 s38, s38, {FLX}
    s_lshl_b32 s39, s33, 4
    s_add_u32 s39, s39, s32
    s_lshl_b32 s39, s39, 2
    s_add_u32 s39, s39, {FLC}
    v_mov_b32 v23, s39
    v_writelane_b32 v23, s38, 0
    s_mov_b64 exec, 3
    """
    SIG2 = f"""
    s_lshl_b32 s39, s32, 4
    s_add_u32 s39, s39, s33
    s_lshl_b32 s39, s39, 2
    s_add_u32 s39, s39, {FLS}
    v_mov_b32 v23, s39
    s_mov_b64 exec, 1
    """
    def areads(c, j):
        xr = X + (4*c + j)*4
        a.lg(f"ds_read_b128 {vr(xr)}, v{9+j} offset:{(c%3)*16384}")
        wread(WF[2*(j&1)], 2*c, j)
        return wread(WF[2*(j&1)+1], 2*c+1, j)
    barrier(max(x_id[0], unit_id[1]), a.lg_n - 1)
    if stamp == 1: stamp_mid(a, 0)
    rid = areads(0, 0)
    a.e(f"""
    s_cmp_eq_u32 s3, 0
    s_cselect_b32 s38, 0, {BIG}
    v_mov_b32 v4, s38
    """)
    pub.append(a.vm("buffer_load_dword v60, v4, s[24:27], 0 offen sc1"))
    a.e(f"""
    v_and_b32 v62, 15, v2
    v_lshlrev_b32 v62, 2, v62
    s_lshl_b32 s38, s32, 6
    s_add_u32 s38, s38, {FLX}
    s_lshl_b32 s39, s33, 6
    s_add_u32 s39, s39, {FLC}
    v_and_b32 v63, 16, v2
    v_cmp_eq_u32 vcc, 0, v63
    v_mov_b32 v63, s39
    v_mov_b32 v22, s38
    v_cndmask_b32 v63, v63, v22, vcc
    v_add_u32 v62, v62, v63
    v_add_u32 v62, v62, v4
    """)
    brid = {}
    for c in range(9):
        for j in range(4):
            a.wait(lg=rid)
            if j == 3:
                if c < 8:
                    need = [x_id[c+1], unit_id[2*c+3]]
                    if c == 6:
                        a.wait(vm=fl_id)
                        flags_check(a, name, 63, 62, "0", True)
                    barrier(max(need), a.lg_n - 1)
                    signal("coop", pub, SIG1)
                    rid = areads(c+1, 0)
                else:
                    a.flush()
                    barrier(unit_id[20], a.lg_n - 1)
                    brid[0] = wread(WF[0], 18, 0)
                    brid[1] = wread(WF[1], 18, 1)
                if c + 3 < 9: pend.extend([("x", c+3, 0), ("x", c+3, 1)])
                allow_upto(2*c + 2 + 12)
            else:
                rid = areads(c, j+1)
            xr = X + (4*c + j)*4
            first = (c == 0 and j == 0)
            for P in range(2):
                mfma(a, vr(ACC[P],16), vr(WF[2*(j&1)+P]), vr(xr), "0" if first else vr(ACC[P], 16))
                if P == 0: dma(1)
                else: a.pump(PER_MFMA)
            if c == 5 and j == 3:
                assert "coop" in sig
                fl_id = a.vm("buffer_load_dword v63, v62, s[20:23], 0 offen sc1")
            if c == 6 and j == 3:
                a.vm(f"buffer_load_dwordx2 {vr(NEGMU,2)}, v21, s[20:23], s59 offen sc1")
                for k in range(16):
                    if k % 2 == 0 and k: a.e(f"s_add_u32 s57, s57, {2*448*4}")
                    a.vm(f"buffer_load_dword v{96+k}, v61, s[20:23], s57 offen offset:{(k%2)*448*4} sc1", "csp")
            if c == 8 and j == 0:
                a.add("w", None, "csp")
                for k in range(8): a.addv(f"v_add_f32 v{96+k}, v{96+k}, v{104+k}")
                for k in range(4): a.addv(f"v_add_f32 v{96+k}, v{96+k}, v{100+k}")
                a.addv(f"""
                v_add_f32 v96, v96, v98
                v_add_f32 v97, v97, v99
                v_mul_f32 v{C2}, v{R}, v{R}
                v_add_f32 v96, v96, v97
                v_mul_f32 v{C1}, {f2u(GK1)}, v{R}
                v_mul_f32 v{C2}, v{C2}, v{R}
                """)
                a.add("lg", f"ds_write_b32 v18, v96")
                a.addv(f"""
                v_mul_f32 v{C2}, {f2u(GK2)}, v{C2}
                v_mov_b32 v{S1}, 0
                v_mov_b32 v{S2}, 0
                """)
    if stamp: stamp_mid(a, 1 if stamp == 1 else 0)
    def epilogue(P):
        if "nofill" in ABL: return
        acc = ACC[P % 3]
        kind = "z2" if P < 3 else ("z1" if P < 6 else "q")
        a.add("lg", f"ds_read_b128 {vr(CB[0])}, v17 offset:{P*256}", ("cs", P, 0))
        for g in range(4):
            if g < 3:
                a.add("lg", f"ds_read_b128 {vr(CB[(g+1)&1])}, v17 offset:{P*256 + (g+1)*32}", ("cs", P, g+1))
            a.add("w", None, ("cs", P, g))
            cb = CB[g & 1]; A = acc + 4*g
            for r in range(4): a.addv(f"v_fmac_f32 v{A+r}, v{NEGMU}, v{cb+r}")
            if kind == "q":
                for r in range(4): a.addv(f"v_mul_f32 v{A+r}, v{R}, v{A+r}")
                pk = PK + 2*g
            else:
                for r in range(4): a.addv(f"v_mul_f32 v{T+r}, v{A+r}, v{A+r}")
                for r in range(4): a.addv(f"v_fma_f32 v{T+r}, v{T+r}, v{C2}, v{C1}")
                for r in range(4): a.addv(f"v_mul_f32 v{T+r}, v{T+r}, v{A+r}")
                for r in range(4): a.addv(f"v_exp_f32 v{T+r}, v{T+r}")
                for r in range(4): a.addv(f"v_add_f32 v{T+r}, 1.0, v{T+r}")
                for r in range(4): a.addv(f"v_rcp_f32 v{T+r}, v{T+r}")
                if kind == "z1":
                    for r in range(4): a.addv(f"v_mul_f32 v{A+r}, v{R}, v{A+r}")
                for r in range(4): a.addv(f"v_mul_f32 v{A+r}, v{A+r}, v{T+r}")
                if kind == "z2":
                    for r in range(4):
                        a.addv(f"v_add_f32 v{S1}, v{S1}, v{A+r}")
                        a.addv(f"v_fmac_f32 v{S2}, v{A+r}, v{A+r}")
                    pk = PK + 2*(g & 1)
                else:
                    pk = PK + (g & 1)*4 + (g >> 1)*2
            a.addv(f"v_cvt_pk_bf16_f32 v{pk}, v{A}, v{A+1}")
            a.addv(f"v_cvt_pk_bf16_f32 v{pk+1}, v{A+2}, v{A+3}")
            if kind == "z2":
                a.add("lg", f"ds_write_b64 v19, {vr(pk,2)} offset:{P*64 + g*16}")
            elif kind == "z1" and g >= 2:
                a.add("vm", f"buffer_store_dwordx4 {vr(PK + (g&1)*4)}, v20, s[20:23], s{50 + P - 3} offen offset:{(g&1)*512}")
            elif kind == "q" and (g & 1):
                a.add("vm", f"buffer_store_dwordx4 {vr(PK + (g>>1)*4)}, v0, s[20:23], s53 offen offset:{(g>>1)*1024}")
        a.addv("s_nop 0")
        a.add("mark", None, ("done", P))
    def publish():
        a.addv(f"""
        v_mov_b32 v{T}, v{S1}
        v_mov_b32 v{T+1}, v{S2}
        s_nop 1
        v_permlane32_swap_b32 v{S1}, v{T}
        v_permlane32_swap_b32 v{S2}, v{T+1}
        s_nop 1
        v_add_f32 v{T}, v{S1}, v{T}
        v_add_f32 v{T+1}, v{S2}, v{T+1}
        v_mul_f32 v{T}, v{R}, v{T}
        v_mul_f32 v{T+1}, v{R}, v{T+1}
        v_mul_f32 v{T+1}, v{R}, v{T+1}
        """)
        a.add("vm", f"buffer_store_dwordx2 {vr(T,2)}, v21, s[20:23], s56 offen sc1", "ststore")
        a.addv("s_nop 0")
    def panel(P, last):
        u0 = 18 + 9*(P - 2)
        acc = ACC[P % 3]
        base = 36*(P - 2)
        if P >= 3: a.flush_to(("done", P - 3))
        for i in range(36):
            gi = base + i
            a.wait(lg=brid[gi])
            n = i + 2
            if n < 36 or not last:
                if n % 12 == 0:
                    dma(100)
                    barrier(unit_id[u0 + n//4 + 2], brid[gi+1])
                    signal("z2", [a.keys["ststore"][1]] if "ststore" in a.keys else None, SIG2)
                    allow_upto(u0 + n//4 + 12)
                brid[gi+2] = wread(WF[(gi+2) % 4], u0 + n//4, n % 4)
            mfma(a, vr(acc,16), vr(WF[gi % 4]), vr(X + 4*i), "0" if i == 0 else vr(acc, 16))
            if i % 4 == 3: dma(1)
            if i >= 1 or P == 2:
                a.pump(PER_MFMA)
    epilogue(0); epilogue(1)
    panel(2, False)
    if stamp == 2: stamp_mid(a, 1)
    a.addv("s_nop 3"); epilogue(2); publish()
    panel(3, False)
    a.addv("s_nop 3"); epilogue(3)
    panel(4, False)
    if stamp == 2: stamp_mid(a, 2)
    a.addv("s_nop 3"); epilogue(4)
    lq = name + "_noq"; lt = name + "_ztail"
    FLAG2 = f"""
    v_lshrrev_b32 v62, 2, v0
    v_min_u32 v62, 44, v62
    v_add_u32 v62, v62, v4
    s_lshl_b32 s38, s32, 6
    s_add_u32 s49, s38, {FLS}
    buffer_load_dword v63, v62, s[20:23], s49 offen sc1
    """
    def finish(P):
        if stamp == 2: stamp_mid(a, 3)
        a.wait_all(vm=False)
        a.e("s_barrier")
        if "z2" not in sig:
            a.flush_to_key("ststore")
            a.wait_key("ststore")
            a.e("s_barrier")
            signal("z2", [a.keys["ststore"][1]], SIG2)
        repack_loads(a, name, P)
        a.e(FLAG2)
        a.flush()
        a.e("s_nop 7")
        epilogue(P); a.flush()
    a.e(f"s_cmp_eq_u32 s18, 0\ns_cbranch_scc1 {lq}")
    snap = a.snapshot(); saved = [dict(d) for d in (st, brid, unit_id, sig)]; pend_s = list(pend)
    panel(5, False)
    a.addv("s_nop 3"); epilogue(5)
    panel(6, True)
    finish(6)
    a.e(f"s_branch {lt}")
    a.label(lq)
    a.restore(snap)
    for d, s_ in zip((st, brid, unit_id, sig), saved): d.clear(); d.update(s_)
    pend[:] = pend_s
    panel(5, True)
    finish(5)
    a.label(lt)
    if stamp == 1: stamp_mid(a, 2)
    a.e("s_waitcnt vmcnt(0)")
    flags_check(a, name, 63, 62, "s49", True)
    a.e("s_barrier")
    if stamp == 1: stamp_mid(a, 3)
    L = 64
    a.e(f"""
    v_lshrrev_b32 v22, 9, v0            ; h
    v_mul_u32_u24 v22, {12*1024}, v22
    v_add_u32 v22, v22, v21
    v_add_u32 v23, 4096, v22
    v_add_u32 v24, 8192, v22
    """)
    for k in range(12):
        a.e(f"buffer_load_dwordx2 {vr(L+2*k,2)}, v{22 + k//4}, s[20:23], s55 offen offset:{(k%4)*1024} sc1")
    repack_stores(a, name)
    a.e(f"""
    v_lshrrev_b32 v25, 8, v0            ; kg
    v_bfe_u32 v26, v0, 6, 2             ; r
    v_bfe_u32 v27, v0, 4, 2             ; c
    v_lshl_add_u32 v26, v25, 3, v26
    v_mul_u32_u24 v26, 200, v26
    v_lshl_add_u32 v26, v27, 3, v26
    s_mul_i32 s38, s3, 6400
    s_add_u32 s38, s38, {XR}
    v_add_u32 v26, s38, v26
    s_lshl_b32 s39, s3, 8
    s_add_u32 s39, s39, {PRM}
    v_lshrrev_b32 v28, 1, v21
    v_add_u32 v28, s39, v28
    v_lshl_add_u32 v29, v25, 5, s39
    """)
    ZT = 112
    for b in range(6):
        a.e(f"ds_read_b64_tr_b16 {vr(ZT+4*b,2)}, v26 offset:{b*32}")
        a.e(f"ds_read_b64_tr_b16 {vr(ZT+4*b+2,2)}, v26 offset:{b*32 + 800}")
    a.e(f"""
    s_cmp_ge_u32 s60, 720
    s_cbranch_scc1 {name}_w0
    s_waitcnt vmcnt(5)
    s_branch {name}_w1
    """)
    a.label(f"{name}_w0")
    a.e("s_waitcnt vmcnt(0)")
    a.label(f"{name}_w1")
    for k in range(1, 12):
        a.e(f"v_add_f32 v{L}, v{L}, v{L+2*k}")
        a.e(f"v_add_f32 v{L+1}, v{L+1}, v{L+2*k+1}")
    a.e(f"""
    v_mov_b32 v{L+2}, v{L}
    v_mov_b32 v{L+3}, v{L+1}
    s_nop 1
    v_permlane32_swap_b32 v{L}, v{L+2}
    v_permlane32_swap_b32 v{L+1}, v{L+3}
    s_nop 1
    v_add_f32 v{L}, v{L}, v{L+2}
    v_add_f32 v{L+1}, v{L+1}, v{L+3}
    v_mul_f32 v{L}, {f2u(1/2304.)}, v{L}
    v_mul_f32 v{L+1}, {f2u(1/2304.)}, v{L+1}
    v_fma_f32 v{L+1}, -v{L}, v{L}, v{L+1}
    v_max_f32 v{L+1}, 0, v{L+1}
    v_add_f32 v{L+1}, {f2u(1e-5)}, v{L+1}
    v_rsq_f32 v{L+1}, v{L+1}
    s_nop 0
    v_mul_f32 v{L+2}, v{R}, v{L+1}
    v_mul_f32 v{L+3}, -v{L}, v{L+1}
    ds_write_b32 v28, v{L+2}
    ds_write_b32 v28, v{L+3} offset:128
    s_waitcnt lgkmcnt(0)
    ds_read_b128 {vr(L+8)}, v29
    ds_read_b128 {vr(L+12)}, v29 offset:16
    ds_read_b128 {vr(L+16)}, v29 offset:128
    ds_read_b128 {vr(L+20)}, v29 offset:144
    s_waitcnt lgkmcnt(0)
    """)
    for b in range(6):
        for k in range(4):
            z = ZT + 4*b + k; t = 32 + 2*(k & 1)
            a.e(f"v_lshlrev_b32 v{t}, 16, v{z}")
            a.e(f"v_and_b32 v{t+1}, 0xffff0000, v{z}")
            a.e(f"v_fma_f32 v{t}, v{t}, v{L+8+2*k}, v{L+16+2*k}")
            a.e(f"v_fma_f32 v{t+1}, v{t+1}, v{L+9+2*k}, v{L+17+2*k}")
            a.e(f"v_cvt_pk_bf16_f32 v{z}, v{t}, v{t+1}")
        if b % 2 == 0 and b > 0:
            a.e("s_add_u32 s54, s54, 4096")
        a.e(f"buffer_store_dwordx4 {vr(ZT+4*b)}, v0, s[20:23], s54 offen offset:{(b&1)*1024}")

def repack_loads(a, name, tag):
    lb = f"{name}_rp{tag}"
    a.e(f"""
    s_cmp_ge_u32 s60, 720
    s_cbranch_scc1 {lb}
    s_lshr_b32 s61, s60, 3              ; step
    s_and_b32 s62, s60, 7               ; d tile
    s_cmp_lt_u32 s61, 72
    s_cselect_b32 s28, s70, s72
    s_cselect_b32 s29, s71, s73
    s_mov_b32 s30, {D*D*2}
    s_cselect_b32 s30, {F2*D*2}, s30
    s_mov_b32 s31, 0x20000
    s_mov_b32 s63, {8*1152}
    s_cselect_b32 s63, {16*1152}, s63           ; j2 stride
    s_mov_b32 s64, {2*1152}                     ; j1 stride
    s_mov_b32 s65, {18*1152}
    s_cselect_b32 s65, {8*1152}, s65            ; k1 stride
    s_mov_b32 s66, {4*1152}                     ; k0 stride
    s_mul_i32 s67, s61, {32*1152}
    s_sub_u32 s68, s61, 72
    s_mul_i32 s68, s68, {36*1152}
    s_cmp_lt_u32 s61, 72
    s_cselect_b32 s67, s67, s68
    s_sub_u32 s68, s61, 88
    s_mul_i32 s68, s68, {288*1152}
    s_add_u32 s68, s68, {16*1152}
    s_cmp_ge_u32 s61, 88
    s_cselect_b32 s67, s68, s67
    s_cselect_b32 s63, {36*1152}, s63
    s_cselect_b32 s64, {18*1152}, s64
    s_cselect_b32 s65, {144*1152}, s65
    s_cselect_b32 s66, {72*1152}, s66
    s_mul_i32 s68, s62, 144
    s_add_u32 s67, s67, s68
    v_lshrrev_b32 v180, 9, v0
    v_mul_lo_u32 v180, v180, s64
    v_bfe_u32 v181, v0, 8, 1
    v_mul_u32_u24 v181, 1152, v181
    v_add_u32 v180, v180, v181
    v_and_b32 v181, 0xf0, v0
    v_add_u32 v180, v180, v181
    v_mov_b32 v182, {BIG}
    v_cmp_gt_u32 vcc, 144, v181
    s_lshl_b32 s48, s3, 13
    s_nop 0
    v_cndmask_b32 v180, v182, v180, vcc
    """)
    for i in range(8):
        j2, k1, k0 = i >> 2, (i >> 1) & 1, i & 1
        a.e(f"s_add_u32 m0, s48, {RING + i*1024}")
        a.e(f"s_mov_b32 s68, s67")
        if j2: a.e("s_add_u32 s68, s68, s63")
        if k1: a.e("s_add_u32 s68, s68, s65")
        if k0: a.e("s_add_u32 s68, s68, s66")
        a.e(f"buffer_load_dwordx4 v180, s[28:31], s68 offen lds")
    a.label(lb)

def repack_stores(a, name):
    lb = f"{name}_rps"
    a.e(f"""
    s_cmp_ge_u32 s60, 720
    s_cbranch_scc1 {lb}
    v_lshrrev_b32 v181, 6, v0
    v_lshlrev_b32 v181, 8, v181
    v_bfe_u32 v182, v0, 4, 2
    v_lshl_add_u32 v181, v182, 3, v181
    v_add_u32 v181, s48, v181
    """)
    for i in range(5):
        a.e(f"ds_read_b64_tr_b16 {vr(160+4*i,2)}, v181 offset:{RING + 32*i}")
        a.e(f"ds_read_b64_tr_b16 {vr(162+4*i,2)}, v181 offset:{RING + 32*i + 4096}")
    a.e(f"""
    s_mul_i32 s68, s62, 90
    s_add_u32 s68, s68, s61
    s_mul_i32 s68, s68, 4608
    s_add_u32 s68, s68, {WP}
    v_lshrrev_b32 v181, 8, v0
    v_lshlrev_b32 v181, 7, v181
    v_and_b32 v182, 0x70, v0
    v_add_u32 v181, v181, v182
    v_add_u32 v181, 4096, v181
    v_and_b32 v182, 0x80, v0
    v_cmp_eq_u32 vcc, 0, v182
    v_mov_b32 v182, {BIG}
    s_nop 0
    v_cndmask_b32 v181, v182, v181, vcc
    s_waitcnt lgkmcnt(0)
    """)
    for i in range(4):
        a.e(f"buffer_store_dwordx4 v[{160+4*i}:{163+4*i}], v0, s[20:23], s68 offen offset:{1024*i}")
    a.e(f"buffer_store_dwordx4 v[176:179], v181, s[20:23], s68 offen")
    a.label(lb)

def gen_k1(name="k1_kernel", stamp=False, attn=True):
    a = Sched()
    a.e(f"""
    s_cmp_ge_u32 s2, 256
    s_cbranch_scc1 {name}_end
    """)
    if stamp: stamp_begin(a)
    a.e(f"""
    s_load_dwordx4 s[4:7], s[0:1], {KA_X}         ; x, wqkv
    s_load_dwordx2 s[74:75], s[0:1], {KA_WPHI}
    s_load_dwordx2 s[72:73], s[0:1], {KA_WO}
    s_load_dwordx2 s[28:29], s[0:1], {KA_WIN}
    s_load_dwordx2 s[70:71], s[0:1], {KA_WOUT}
    s_load_dwordx4 s[64:67], s[0:1], {KA_DBG}
    v_lshrrev_b32 v1, 6, v0
    v_and_b32 v2, 63, v0
    v_readfirstlane_b32 s3, v1
    s_and_b32 s30, s2, 7
    s_lshr_b32 s31, s2, 3               ; l
    s_and_b32 s35, s30, 1
    s_lshr_b32 s30, s30, 1              ; j
    s_waitcnt lgkmcnt(0)
    """)
    srd(a, 24, 64, 65, 256)
    epoch_publish(a, name)
    srd(a, 8, 4, 5, S*D*2)
    srd(a, 16, 6, 7, D*1728*2)
    srd(a, 12, 28, 29, D*4608*2)
    srd(a, 20, 66, 67, WS_USED)
    a.e(f"""
    s_cmp_ge_u32 s31, 24
    s_cbranch_scc1 {name}_attn
    s_lshl_b32 s32, s35, 3
    s_and_b32 s33, s31, 7
    s_add_u32 s32, s32, s33             ; rt
    s_mul_i32 s33, s30, 3
    s_lshr_b32 s34, s31, 3
    s_add_u32 s33, s33, s34             ; zg
    s_lshr_b32 s34, s33, 2
    s_sub_u32 s34, s33, s34             ; qi
    s_and_b32 s36, s33, 3
    s_cmp_eq_u32 s36, 3
    s_cselect_b32 s18, 0, s18
    s_cselect_b32 s34, 0, s34
    s_mul_i32 s60, s33, 16
    s_add_u32 s60, s60, s32
    s_lshl_b32 s60, s60, 2
    s_add_u32 s60, s60, s3
    s_cmp_ge_u32 s3, 4
    s_cselect_b32 s60, 720, s60
    """)
    gen_zpath(a, name, stamp)
    if stamp: stamp_end(a, 1, "s3", 4)
    a.e("s_endpgm")
    a.label(f"{name}_attn")
    from k1a import gen_attn, A_LDS
    b = Sched(); b.uid = 1000
    gen_attn(b, name, stamp, attn)
    a.lines += b.lines
    lds = max(Z_LDS, A_LDS)
    a.label(f"{name}_end")
    a.e("s_endpgm")
    launch = f"; @launch kernel={name} grid=(256,1,1) block=(512,1,1) lds={lds}\n"
    return launch, kernel_begin(name) + a.text(), kernel_desc(name, 256, 102, 256)
```

```python
import os
from k1common import *
XRA = 0
WRA = 98304
PHI = 40960
AFO = 147456
CSA = AFO + 13*1024
A_LDS = CSA + 1024
PPH, PV = 328, 152

def gen_attn(a, name, stamp, full=True):
    X = 112; ACC = [48, 64, 80, 96]; WF = [24, 28, 32, 36, 40, 44]
    NEGMU, R = 14, 15
    CSR = [2, 4, 5, 6, 8, 9, 10, 11]
    a.e(f"""
    s_sub_u32 s33, s31, 24
    s_lshl_b32 s32, s35, 2
    s_and_b32 s34, s33, 3
    s_add_u32 s32, s32, s34             ; rt2
    s_lshr_b32 s33, s33, 2
    s_lshl_b32 s34, s30, 1
    s_add_u32 s33, s33, s34             ; G
    s_and_b32 s34, s33, 1               ; G odd
    s_mul_i32 s36, s33, 144
    s_lshl_b32 s37, s34, 4
    s_sub_u32 s37, s36, s37
    s_add_u32 s37, s37, 1152
    s_add_u32 s36, s36, {2304 - 160}
    """)
    rowstat_loads(a, 2, 48, 24)
    def colreg(dst, unit, t):
        a.e(f"""
        v_cmp_gt_u32 vcc, 10, v{unit}
        v_mov_b32 v{dst}, s36
        v_mov_b32 v{t}, s37
        v_cndmask_b32 v{dst}, v{dst}, v{t}, vcc
        v_lshl_add_u32 v{dst}, v{unit}, 4, v{dst}
        """)
    a.e(f"""
    v_and_b32 v26, 3, v2
    s_lshl_b32 s38, s3, 2
    v_add_u32 v27, s38, v26
    """)
    colreg(28, 27, 29)
    a.e(f"""
    v_lshrrev_b32 v30, 2, v2
    v_mul_u32_u24 v30, 3456, v30
    v_add_u32 v28, v28, v30
    v_mov_b32 v31, {BIG}
    s_cmp_lt_u32 s3, 5
    s_cselect_b64 vcc, -1, 0
    v_cndmask_b32 v28, v31, v28, vcc
    v_cmp_gt_u32 vcc, 32, v2
    s_mul_i32 s39, s32, {72*3456}
    s_nop 0
    v_cndmask_b32 v29, v31, v28, vcc
    """)
    for i in range(5):
        coop_id = a.vm(f"buffer_load_dwordx4 {vr(56+4*i)}, v{28 if i < 4 else 29}, s[16:19], s39 offen")
        if i < 4: a.e(f"s_add_u32 s39, s39, {16*3456}")
    a.e(f"""
    s_lshr_b32 s38, s3, 1
    s_lshl_b32 s38, s38, 2
    v_add_u32 v27, s38, v26
    """)
    colreg(5, 27, 29)
    a.e(f"""
    v_add_u32 v5, v5, v30
    v_add_u32 v6, {16*3456 - 1024}, v5
    v_add_u32 v27, 16, v26
    """)
    colreg(7, 27, 29)
    a.e(f"""
    v_add_u32 v7, v7, v30               ; B4 panel
    v_lshrrev_b32 v28, 3, v2
    v_and_b32 v29, 7, v2
    v_lshrrev_b32 v31, 4, v2
    v_xor_b32 v31, v31, v29
    v_mul_u32_u24 v8, 1152, v28
    v_lshl_add_u32 v8, v31, 4, v8
    v_xor_b32 v9, 64, v8
    v_add_u32 v10, {2*(8*1152-1024)}, v8
    v_add_u32 v11, {3*(8*1152-1024)}, v9
    v_add_u32 v9, {8*1152-1024}, v9
    s_and_b32 s40, s3, 1
    s_mul_i32 s40, s40, {32*3456}
    s_lshl_b32 s42, s3, 11
    s_add_u32 s42, s42, {WRA}
    s_lshl_b32 s43, s32, 8
    s_lshl_b32 s44, s3, 5
    s_add_u32 s43, s43, s44
    s_lshl_b32 s59, s43, 3
    s_add_u32 s59, s59, {XST}
    s_mul_i32 s43, s43, 1152
    s_lshl_b32 s44, s3, 12
    s_mul_i32 s41, s3, {16*3456}
    s_lshl_b32 s48, s3, 10
    """)
    wid = {}; xid = {}; pend = []
    def issue(k):
        if k[0] == "x":
            c, i = k[1], k[2]
            a.e(f"s_add_u32 m0, s44, {XRA + (c%3)*32768}\ns_add_u32 s46, s43, {c*128}")
            xid[c] = a.vm(f"buffer_load_dwordx4 v{8+i}, s[8:11], s46 offen offset:{i*1024} lds")
        elif k[0] == "w":
            c, i = k[1], k[2]
            a.e(f"s_add_u32 m0, s42, {(c%3)*16384}\ns_add_u32 s46, s40, {c*64*3456}")
            wid[c] = a.vm(f"buffer_load_dwordx4 v{5+i}, s[16:19], s46 offen offset:{i*1024} lds")
        else:
            i = k[1]
            a.e(f"s_add_u32 m0, s48, {XRA + i*8192}\ns_add_u32 s46, s41, {i*128*3456}")
            if i < 4:
                wid[("b4", i)] = a.vm(f"buffer_load_dwordx4 v7, s[16:19], s46 offen lds")
            else:
                a.e("v_add_u32 v22, s46, v7")
                wid[("b4", i)] = a.vm(f"buffer_load_dwordx4 v22, s[16:19], 0 offen lds")
    def push(c):
        pend.extend([("x", c, 0), ("x", c, 1), ("w", c, 0), ("x", c, 2), ("x", c, 3), ("w", c, 1)])
    def dma(n=1):
        for _ in range(n):
            if pend: issue(pend.pop(0))
    for c in range(3): push(c)
    dma(100)
    a.e(f"""
    s_mov_b32 s28, s74
    s_mov_b32 s29, s75
    s_mov_b32 s30, {32*18*18*2}
    s_mov_b32 s31, 0x20000
    v_lshrrev_b32 v24, 5, v2            ; h'
    v_bfe_u32 v25, v2, 3, 2             ; g
    v_and_b32 v26, 3, v2                ; r
    v_lshl_add_u32 v25, v25, 2, v26     ; n = 4g + r
    s_lshr_b32 s38, s3, 1               ; i
    s_and_b32 s39, s3, 1
    s_lshl_b32 s39, s39, 4
    s_lshl_b32 s45, s38, 1
    s_sub_u32 s39, s39, s45
    s_lshl_b32 s45, s34, 3
    s_sub_u32 s39, s39, s45             ; D0 = 16t - 2i - 8(G&1)
    v_lshlrev_b32 v27, 2, v24
    v_add_u32 v28, s39, v27
    s_lshl_b32 s46, s33, 2
    s_add_u32 s38, s38, s46
    s_mul_i32 s38, s38, 648
    v_lshlrev_b32 v29, 1, v25
    v_add_u32 v29, s38, v29
    v_lshrrev_b32 v30, 1, v25           ; i' = n>>1
    s_lshl_b32 s47, s3, 4
    s_sub_u32 s47, s47, s45
    v_add_u32 v31, s47, v27
    v_mul_u32_u24 v32, 18, v30
    v_sub_u32 v31, v31, v32
    v_cmp_lt_u32 vcc, 7, v25
    v_mov_b32 v33, 1000
    s_cmp_ge_u32 s3, 5
    s_cselect_b64 vcc, -1, vcc
    v_cndmask_b32 v31, v31, v33, vcc
    v_add_u32 v30, s46, v30
    v_mul_u32_u24 v30, 648, v30
    v_and_b32 v32, 1, v25
    v_lshl_add_u32 v30, v32, 1, v30
    v_add_u32 v30, 32, v30
    v_mov_b32 v33, {BIG}
    """)
    AFL = 208
    for f, (db, vf) in enumerate(((28, 29), (31, 30))):
        for j in range(8):
            a.e(f"""
            v_add_u32 v34, {8*(j>>2) + (j&3)}, v{db}
            v_cmp_gt_u32 vcc, 18, v34
            v_mul_u32_u24 v34, 36, v34
            v_add_u32 v34, v34, v{vf}
            v_cndmask_b32 v34, v33, v34, vcc
            """)
            af_id = a.vm(f"buffer_load_ushort v{AFL + 8*f + j}, v34, s[28:31], 0 offen")
    a.e(f"""
    v_and_b32 v22, 15, v2
    v_lshrrev_b32 v23, 2, v22           ; r
    v_and_b32 v22, 3, v22               ; c
    v_bfe_u32 v25, v2, 4, 1             ; n half
    v_lshl_add_u32 v1, v24, 3, v23      ; 8h + r
    v_mov_b32 v12, v1
    v_lshlrev_b32 v1, 6, v1
    v_lshl_add_u32 v1, v25, 5, v1
    v_lshl_add_u32 v3, v22, 3, v1
    v_add_u32 v1, {WRA}, v3
    v_and_b32 v32, 31, v2               ; s
    v_bfe_u32 v33, v2, 1, 3
    v_xor_b32 v33, v33, v24
    v_lshlrev_b32 v33, 4, v33
    v_lshl_add_u32 v16, v32, 7, v33
    v_add_u32 v16, s44, v16
    v_xor_b32 v17, 32, v16
    v_xor_b32 v18, 64, v16
    v_xor_b32 v19, 96, v16
    v_lshlrev_b32 v21, 3, v32           ; s*8
    v_lshlrev_b32 v20, 2, v0            ; tid*4
    v_lshlrev_b32 v0, 4, v2
    s_mul_i32 s57, s33, {8*160*4}
    s_add_u32 s57, s57, {CSPA}
    s_mul_i32 s47, s32, {160*4}
    s_add_u32 s47, s47, s57
    s_lshl_b32 s38, s3, 7
    s_add_u32 s47, s47, s38
    """)
    a.wait(vm=coop_id)
    pub = [rowstat_compute(a, 48, 24)]
    for i in range(5):
        unpack_add(a, 80, 56 + 4*i, 4, i == 0, 24)
    a.e("s_nop 1")
    for k in range(8):
        a.e(f"v_add_f32_dpp v{80+k}, v{80+k}, v{80+k} row_ror:4 row_mask:0xf bank_mask:0xf")
    fold8(a, 80, 88)
    a.e(f"""
    v_lshlrev_b32 v24, 1, v0
    v_cmp_gt_u32 vcc, 4, v2
    v_mov_b32 v25, {BIG}
    s_cmp_ge_u32 s3, 5
    s_cselect_b64 vcc, 0, vcc
    v_cndmask_b32 v24, v25, v24, vcc
    """)
    a.vm(f"buffer_store_dwordx4 {vr(80)}, v24, s[20:23], s47 offen sc1")
    pub.append(a.vm(f"buffer_store_dwordx4 {vr(84)}, v24, s[20:23], s47 offen offset:16 sc1"))
    a.e(f"""
    s_cmp_eq_u32 s3, 0
    s_cselect_b32 s38, 0, {BIG}
    v_mov_b32 v4, s38
    """)
    pub.append(a.vm("buffer_load_dword v14, v4, s[24:27], 0 offen sc1"))
    a.wait(vm=af_id)
    a.e(f"""
    v_bfe_u32 v24, v2, 2, 1
    v_mov_b32 v25, 0x80008000
    v_mul_lo_u32 v24, v24, v25
    """)
    for f in range(2):
        for k in range(4):
            a.e(f"v_lshl_or_b32 v{240+4*f+k}, v{AFL+8*f+2*k+1}, 16, v{AFL+8*f+2*k}")
            a.e(f"v_xor_b32 v{240+4*f+k}, v{240+4*f+k}, v24")
    a.e(f"""
    s_add_u32 s38, s48, {AFO}
    v_add_u32 v25, s38, v0
    s_min_u32 s39, s3, 4
    s_lshl_b32 s39, s39, 10
    s_add_u32 s38, s39, {AFO + 8192}
    v_add_u32 v26, s38, v0
    s_mul_i32 s45, s33, {13*1024}
    s_add_u32 s45, s45, {AF}
    s_add_u32 s39, s39, s45
    s_add_u32 s45, s45, s48
    v_mov_b32 v27, {BIG}
    s_cmp_eq_u32 s32, 0
    s_cselect_b64 vcc, -1, 0
    v_cndmask_b32 v28, v27, v0, vcc
    s_cmp_ge_u32 s3, 5
    s_cselect_b64 vcc, 0, vcc
    v_cndmask_b32 v29, v27, v0, vcc
    """)
    a.lg(f"ds_write_b128 v25, {vr(240)}")
    lbw = name + "_afw"
    a.e(f"s_cmp_ge_u32 s3, 5\ns_cbranch_scc1 {lbw}\nds_write_b128 v26, {vr(244)}")
    a.label(lbw)
    a.vm(f"buffer_store_dwordx4 {vr(240)}, v28, s[20:23], s45 offen")
    a.e("s_add_u32 s39, s39, 8192")
    a.vm(f"buffer_store_dwordx4 {vr(244)}, v29, s[20:23], s39 offen")
    a.e(f"""
    v_lshrrev_b32 v22, 2, v0
    s_lshl_b32 s38, s32, 7
    s_add_u32 s38, s38, {FLX}
    v_add_u32 v23, s38, v22
    v_and_b32 v22, 28, v22
    s_lshl_b32 s39, s33, 6
    s_add_u32 s39, s39, {FLC + 12*64}
    v_add_u32 v22, s39, v22
    v_cmp_gt_u32 vcc, 32, v2
    s_lshl_b32 s49, s32, 2
    s_add_u32 s49, s49, s39
    v_cndmask_b32 v22, v22, v23, vcc
    v_add_u32 v22, v22, v4
    v_cmp_gt_u32 vcc, {160*4}, v20
    v_mov_b32 v23, {BIG}
    s_waitcnt lgkmcnt(0)
    v_cndmask_b32 v23, v23, v20, vcc
    v_min_u32 v20, {255*4}, v20
    v_add_u32 v20, {CSA}, v20
    """)
    def barrier(vmid):
        a.wait(vm=vmid, lg=a.lg_n - 1)
        a.e("s_barrier")
    sig = {}
    def signal():
        if sig or max(pub) > a.vm_done: return
        lb = a.newlabel(name + "_asig")
        a.e(f"s_cmp_eq_u32 s3, 0\ns_cbranch_scc0 {lb}")
        epoch_fetch(a, name, 14, 4)
        a.e(f"""
        s_lshl_b32 s38, s2, 2
        s_add_u32 s38, s38, {FLX}
        v_mov_b32 v15, s49
        v_writelane_b32 v15, s38, 0
        s_mov_b64 exec, 3
        v_mov_b32 v14, s69
        buffer_store_dword v14, v15, s[20:23], 0 offen sc1
        s_mov_b64 exec, -1
        """)
        a.label(lb)
        sig[1] = 1
    seq = [(c, j, b) for c in range(9) for j in range(4) for b in range(4)]
    rid = {}
    def rd(n):
        c, j, b = seq[n]
        if b == 0:
            xr = X + (4*c + j)*4
            if c % 3 < 2:
                a.lg(f"ds_read_b128 {vr(xr)}, v{16+j} offset:{(c%3)*32768}")
            else:
                a.e(f"v_add_u32 v13, 65536, v{16+j}")
                a.lg(f"ds_read_b128 {vr(xr)}, v13")
        w = WF[n % 6]
        off = (c % 3)*16384 + b*4096 + j*1024
        a.lg(f"ds_read_b64_tr_b16 {vr(w,2)}, v1 offset:{off}")
        rid[n] = a.lg(f"ds_read_b64_tr_b16 {vr(w+2,2)}, v1 offset:{off+256}")
    AH = 3
    barrier(max(xid[0], wid[0]))
    if stamp: stamp_mid(a, 0)
    for n in range(AH): rd(n)
    b4 = {}
    def rd4(i):
        w = WF[i % 4]
        a.lg(f"ds_read_b64_tr_b16 {vr(w,2)}, v3 offset:{i*1024}")
        b4[i] = a.lg(f"ds_read_b64_tr_b16 {vr(w+2,2)}, v3 offset:{i*1024+256}")
    for n, (c, j, b) in enumerate(seq):
        a.wait(lg=rid[n])
        m = n + AH
        if m < len(seq):
            if m % 16 == 0:
                c1 = m // 16
                dma(100)
                if c1 == 7:
                    a.wait(vm=fl_id)
                    flags_check(a, name, 14, 22, "0", True)
                barrier(max(xid[c1], wid[c1]))
                signal()
                if c1 + 2 < 9: push(c1 + 2)
                if c1 == 7: pend.extend([("b4", i) for i in range(4)])
                if c1 == 8: pend.append(("b4", 4))
                if c1 == 7:
                    a.vm(f"buffer_load_dwordx2 {vr(NEGMU,2)}, v21, s[20:23], s59 offen sc1")
                    for k in range(8):
                        a.vm(f"buffer_load_dword v{CSR[k]}, v23, s[20:23], s57 offen offset:{(k%4)*640} sc1", "csp")
                        if k == 3: a.e(f"s_add_u32 s57, s57, 2560")
            rd(m)
        a.e(f"{MF32} {vr(ACC[b],16)}, {vr(WF[n % 6])}, {vr(X + (4*c+j)*4)}, " + ("0" if n < 4 else vr(ACC[b],16)))
        if n % 2 == 1: dma(1)
        if n == 16*6 + 4:
            assert sig
            fl_id = a.vm("buffer_load_dword v14, v22, s[20:23], 0 offen sc1")
    if stamp: stamp_mid(a, 1)
    dma(100)
    a.wait_key("csp")
    for k in range(4): a.e(f"v_add_f32 v{CSR[k]}, v{CSR[k]}, v{CSR[4+k]}")
    a.e("v_add_f32 v4, v4, v2\nv_add_f32 v6, v6, v5\nv_add_f32 v4, v4, v6")
    a.lg("ds_write_b32 v20, v4")
    barrier(wid[("b4", 4)])
    a.e(f"""
    v_lshrrev_b32 v4, 9, v0
    v_lshlrev_b32 v4, 4, v4
    v_add_u32 v4, {CSA}, v4
    v_add_u32 v5, {AFO}, v0
    v_lshrrev_b32 v6, 3, v21
    s_lshl_b32 s38, s3, 5
    v_add_u32 v6, s38, v6
    v_lshrrev_b32 v8, 9, v0             ; h / sign
    v_mul_u32_u24 v7, {PV}, v6
    v_lshl_add_u32 v7, v8, 3, v7
    v_mul_u32_u24 v6, {PPH}, v6
    v_mul_u32_u24 v8, 40, v8
    v_add_u32 v6, v6, v8
    v_add_u32 v6, {PHI}, v6
    """)
    CB = [16, 8]
    def conv(b, acc, emit_now):
        for g in range(4):
            cb = CB[g & 1]; A = acc + 4*g
            a.add("lg", f"ds_read_b128 {vr(cb)}, v4 offset:{b*128 + g*32}", ("cs", b, g))
            a.add("w", None, ("cs", b, g))
            for r in range(4): a.addv(f"v_fmac_f32 v{A+r}, v{NEGMU}, v{cb+r}")
            for r in range(4): a.addv(f"v_mul_f32 v{A+r}, v{R}, v{A+r}")
            a.addv(f"v_cvt_pk_bf16_f32 v{acc+2*g}, v{A}, v{A+1}")
            a.addv(f"v_cvt_pk_bf16_f32 v{acc+2*g+1}, v{A+2}, v{A+3}")
        if emit_now: a.flush()
    rd4(0); rd4(1)
    conv(3, ACC[3], True)
    for k in range(8): a.e(f"v_mov_b32 v{40+k}, v{96+k}")
    conv(0, ACC[0], False); conv(1, ACC[1], False); conv(2, ACC[2], False)
    for i in range(36):
        a.wait(lg=b4[i])
        if i + 2 < 36: rd4(i + 2)
        mfma(a, vr(ACC[3],16), vr(WF[i % 4]), vr(X + 4*i), "0" if i == 0 else vr(ACC[3],16))
        a.pump(6)
    a.flush()
    if stamp: stamp_mid(a, 2)
    KB = [48, 52, 64, 68, 80]
    AFR = 112
    P = [164, 180, 196, 212]; PT = 228
    for f in range(13):
        a.lg(f"ds_read_b128 {vr(AFR+4*f)}, v5 offset:{f*1024}", ("af", f))
    for st_ in range(5):
        a.wait_key(("af", 8 + st_))
        a.e(f"{MF32} {vr(PT,16)}, {vr(AFR+4*(8+st_))}, {vr(KB[st_])}, " + ("0" if st_ == 0 else vr(PT,16)))
    for i in range(4):
        for t in range(2):
            a.e(f"{MF32} {vr(P[i],16)}, {vr(AFR+4*(2*i+t))}, {vr(KB[i+t])}, " + ("0" if t == 0 else vr(P[i],16)))
    conv(4, ACC[3], True)
    a.e(f"s_mov_b32 s45, {f2u(LOG2E)}")
    for i in range(4):
        vals = [P[i] + k for k in range(16)] + [PT + 2*i, PT + 2*i + 1]
        softmax18(a, vals, 24, 28)
        for k in range(4):
            a.lg(f"ds_write_b64 v6, {vr(28+2*k,2)} offset:{i*80 + 8*k}")
        a.lg(f"ds_write_b32 v6, v36 offset:{i*80 + 32}")
    a.wait_all(vm=False)
    a.e("s_barrier")
    vq = [(84, 0), (86, 8)] + [(40 + 2*g, 16 + 8*g) for g in range(4)] + [(96 + 2*g, 48 + 8*g) for g in range(3)]
    for reg, cv in vq:
        a.lg(f"ds_write_b64 v7, {vr(reg,2)} offset:{2*cv}")
    a.e(f"""
    v_mov_b32 v24, {ONES}
    v_mov_b32 v25, {ONES}
    v_lshrrev_b32 v26, 9, v0
    v_lshlrev_b32 v26, 3, v26
    v_sub_u32 v26, v7, v26
    """)
    a.lg("ds_write_b64 v26, v[24:25] offset:144")
    a.e(f"""
    s_lshr_b32 s38, s3, 1               ; i
    s_and_b32 s39, s38, 1
    s_mul_i32 s40, s38, 36
    s_lshl_b32 s39, s39, 2
    s_sub_u32 s40, s40, s39
    v_bfe_u32 v24, v0, 4, 2             ; c
    v_bfe_u32 v25, v0, 8, 1             ; n half
    v_lshlrev_b32 v26, 3, v24
    v_lshl_add_u32 v26, v25, 5, v26
    v_add_u32 v27, s40, v26
    v_cmp_eq_u32 vcc, 40, v26
    v_mov_b32 v28, 144
    v_mul_u32_u24 v29, {PV}, v12
    v_cndmask_b32 v27, v27, v28, vcc
    v_add_u32 v27, v27, v29
    v_mul_u32_u24 v29, {PPH}, v12
    v_add_u32 v29, v29, v26
    s_mul_i32 s41, s3, 40
    s_add_u32 s41, s41, {PHI}
    v_add_u32 v29, s41, v29
    v_add_u32 v30, {128*PPH}, v29
    """)
    a.wait_all(vm=False)
    a.e("s_barrier")
    kid = {}
    for ks in range(16):
        r = 112 + 8*ks
        a.lg(f"ds_read_b64_tr_b16 {vr(r,2)}, v27 offset:{16*ks*PV}")
        a.lg(f"ds_read_b64_tr_b16 {vr(r+2,2)}, v27 offset:{(16*ks+4)*PV}")
        vb = 29 + ks // 8; o = (16*(ks % 8))*PPH
        a.lg(f"ds_read_b64_tr_b16 {vr(r+4,2)}, v{vb} offset:{o}")
        kid[ks] = a.lg(f"ds_read_b64_tr_b16 {vr(r+6,2)}, v{vb} offset:{o + 4*PPH}")
        if ks >= 2:
            k2 = ks - 2
            a.wait(lg=kid[k2])
            a.e(f"{MF32} {vr(48,16)}, {vr(112+8*k2)}, {vr(116+8*k2)}, " + ("0" if k2 == 0 else vr(48,16)))
    for k2 in (14, 15):
        a.wait(lg=kid[k2])
        a.e(f"{MF32} {vr(48,16)}, {vr(112+8*k2)}, {vr(116+8*k2)}, {vr(48,16)}")
    a.e(f"""
    s_lshl_b32 s38, s32, 6
    s_lshl_b32 s39, s33, 3
    s_add_u32 s38, s38, s39
    s_add_u32 s38, s38, s3
    s_mul_i32 s38, s38, 1920
    s_add_u32 s38, s38, {KVP}
    v_lshrrev_b32 v24, 9, v0
    v_mul_u32_u24 v24, 320, v24
    v_lshrrev_b32 v25, 1, v21
    v_add_u32 v24, v24, v25
    v_cmp_gt_u32 vcc, 80, v25
    v_mov_b32 v26, {BIG}
    s_nop 0
    v_cndmask_b32 v24, v26, v24, vcc
    s_nop 7
    """)
    for g in range(3):
        for r in range(4):
            a.e(f"buffer_store_dword v{48+4*g+r}, v24, s[20:23], s38 offen offset:{(8*g+r)*80}")
    if stamp: stamp_end(a, 1, "s3", 3)

def softmax18(a, vals, t, out):
    m, sm = t, t + 1
    a.e(f"v_max3_f32 v{m}, v{vals[0]}, v{vals[1]}, v{vals[2]}")
    a.e(f"v_max3_f32 v{sm}, v{vals[3]}, v{vals[4]}, v{vals[5]}")
    for k in range(6, 18, 4):
        a.e(f"v_max3_f32 v{m}, v{m}, v{vals[k]}, v{vals[k+1]}")
        a.e(f"v_max3_f32 v{sm}, v{sm}, v{vals[k+2]}, v{vals[k+3]}")
    a.e(f"v_max_f32 v{m}, v{m}, v{sm}")
    a.e(f"v_mul_f32 v{m}, s45, v{m}")
    for v in vals: a.e(f"v_fma_f32 v{v}, v{v}, s45, -v{m}")
    for v in vals: a.e(f"v_exp_f32 v{v}, v{v}")
    a.e(f"v_add_f32 v{sm}, v{vals[0]}, v{vals[1]}")
    a.e(f"v_add_f32 v{t+2}, v{vals[2]}, v{vals[3]}")
    for k in range(4, 18, 2):
        a.e(f"v_add_f32 v{sm}, v{sm}, v{vals[k]}")
        a.e(f"v_add_f32 v{t+2}, v{t+2}, v{vals[k+1]}")
    a.e(f"v_add_f32 v{sm}, v{sm}, v{t+2}")
    a.e(f"v_rcp_f32 v{sm}, v{sm}")
    a.e("s_nop 0")
    for v in vals: a.e(f"v_mul_f32 v{v}, v{v}, v{sm}")
    for k in range(9):
        a.e(f"v_cvt_pk_bf16_f32 v{out+k}, v{vals[2*k]}, v{vals[2*k+1]}")
```

```python
import math, struct
from asmlib import *
from layout import *
def f2u(x): return struct.unpack("<I", struct.pack("<f", x))[0]
LOG2E = math.log2(math.e)
ONES = 0x3f803f80
MF32 = "v_mfma_f32_32x32x16_bf16"
BIG = 0x40000000
def vr(b, n=4): return f"v[{b}:{b+n-1}]"

def mfma(a, d, x, y, c):
    a.e("s_setprio 1")
    a.e(f"{MF32} {d}, {x}, {y}, {c}")
    a.e("s_setprio 0")

def epoch_publish(a, name):
    lb = name + "_ep"
    a.e(f"""
    s_or_b32 s38, s2, s3
    s_cmp_eq_u32 s38, 0
    s_cbranch_scc0 {lb}
    s_memrealtime s[38:39]
    s_waitcnt lgkmcnt(0)
    s_or_b32 s38, s38, 1
    v_mov_b32 v10, s38
    v_mov_b32 v11, 0
    s_mov_b64 exec, 1
    buffer_store_dword v10, v11, s[24:27], 0 offen sc1
    s_mov_b64 exec, -1
    """)
    a.label(lb)

def epoch_fetch(a, name, vtmp, vzero):
    lp = a.newlabel(name + "_epl"); ok = a.newlabel(name + "_epk")
    a.e(f"""
    v_readfirstlane_b32 s69, v{vtmp}
    s_mov_b32 s58, 400000
    """)
    a.label(lp)
    a.e(f"""
    s_cmp_lg_u32 s69, 0
    s_cbranch_scc1 {ok}
    s_sub_u32 s58, s58, 1
    s_cmp_eq_u32 s58, 0
    s_cbranch_scc1 {ok}
    s_sleep 4
    buffer_load_dword v{vtmp}, v{vzero}, s[24:27], 0 offen sc1
    s_waitcnt vmcnt(0)
    v_readfirstlane_b32 s69, v{vtmp}
    s_branch {lp}
    """)
    a.label(ok)

def flags_check(a, name, vflag, vaddr, soff, wave0=False):
    lp = a.newlabel(name + "_fl"); ok = a.newlabel(name + "_fk")
    if wave0: a.e(f"s_cmp_eq_u32 s3, 0\ns_cbranch_scc0 {ok}")
    a.e("s_mov_b32 s58, 400000")
    a.label(lp)
    a.e(f"""
    v_cmp_ne_u32 vcc, s69, v{vflag}
    s_sub_u32 s58, s58, 1
    s_cmp_eq_u32 s58, 0
    s_cbranch_scc1 {ok}
    s_cmp_eq_u64 vcc, 0
    s_cbranch_scc1 {ok}
    s_sleep 4
    buffer_load_dword v{vflag}, v{vaddr}, s[20:23], {soff} offen sc1
    s_waitcnt vmcnt(0)
    s_branch {lp}
    """)
    a.label(ok)

def rowstat_loads(a, lane, R0, tmp):
    a.e(f"""
    s_lshl_b32 s38, s2, 3
    s_add_u32 s38, s38, s3
    s_mul_i32 s39, s38, 1152
    v_lshlrev_b32 v{tmp}, 4, v{lane}
    v_cmp_gt_u32 vcc, 8, v{lane}
    v_mov_b32 v{tmp+1}, {BIG}
    s_nop 0
    v_cndmask_b32 v{tmp+1}, v{tmp+1}, v{tmp}, vcc
    """)
    a.vm(f"buffer_load_dwordx4 {vr(R0)}, v{tmp}, s[8:11], s39 offen")
    return a.vm(f"buffer_load_dwordx4 {vr(R0+4)}, v{tmp+1}, s[8:11], s39 offen offset:1024")

def wave_sum(a, regs, tmp):
    for ctl in ("row_shr:1", "row_shr:2", "row_shr:4", "row_shr:8"):
        a.e("s_nop 1")
        for r in regs:
            a.e(f"v_add_f32_dpp v{r}, v{r}, v{r} {ctl} row_mask:0xf bank_mask:0xf bound_ctrl:0")
    a.e("s_nop 1")
    for r in regs:
        a.e(f"v_add_f32_dpp v{r}, v{r}, v{r} row_bcast:15 row_mask:0xa bank_mask:0xf")
    a.e("s_nop 1")
    for r in regs:
        a.e(f"v_add_f32_dpp v{r}, v{r}, v{r} row_bcast:31 row_mask:0xc bank_mask:0xf")

def rowstat_compute(a, R0, t):
    a.e(f"v_mov_b32 v{t}, 0\nv_mov_b32 v{t+1}, 0\ns_mov_b32 s45, {ONES}")
    for k in range(8):
        a.e(f"v_dot2c_f32_bf16 v{t}, s45, v{R0+k}")
        a.e(f"v_dot2c_f32_bf16 v{t+1}, v{R0+k}, v{R0+k}")
    a.e("s_nop 2")
    wave_sum(a, [t, t+1], None)
    a.e(f"""
    v_mul_f32 v{t}, {f2u(-1/576.)}, v{t}
    v_mul_f32 v{t+1}, {f2u(1/576.)}, v{t+1}
    v_fma_f32 v{t+1}, -v{t}, v{t}, v{t+1}
    v_max_f32 v{t+1}, 0, v{t+1}
    v_add_f32 v{t+1}, {f2u(1e-5)}, v{t+1}
    v_rsq_f32 v{t+1}, v{t+1}
    s_lshl_b32 s38, s2, 6
    s_lshl_b32 s39, s3, 3
    s_add_u32 s38, s38, s39
    s_add_u32 s38, s38, {XST}
    v_mov_b32 v{t+2}, 0
    s_mov_b32 exec_lo, 0
    s_mov_b32 exec_hi, 0x80000000
    """)
    i = a.vm(f"buffer_store_dwordx2 {vr(t,2)}, v{t+2}, s[20:23], s38 offen sc1")
    a.e("s_mov_b64 exec, -1")
    return i

def unpack_add(a, dst, src, nreg, first, t):
    for k in range(nreg):
        if first:
            a.e(f"v_lshlrev_b32 v{dst+2*k}, 16, v{src+k}")
            a.e(f"v_and_b32 v{dst+2*k+1}, 0xffff0000, v{src+k}")
        else:
            a.e(f"v_lshlrev_b32 v{t}, 16, v{src+k}")
            a.e(f"v_and_b32 v{t+1}, 0xffff0000, v{src+k}")
            a.e(f"v_add_f32 v{dst+2*k}, v{dst+2*k}, v{t}")
            a.e(f"v_add_f32 v{dst+2*k+1}, v{dst+2*k+1}, v{t+1}")

def fold8(a, R, T, n=8):
    a.e("s_nop 1")
    for k in range(n):
        a.e(f"v_add_f32_dpp v{R+k}, v{R+k}, v{R+k} row_ror:8 row_mask:0xf bank_mask:0xf")
    for op in ("v_permlane16_swap_b32", "v_permlane32_swap_b32"):
        for k in range(n): a.e(f"v_mov_b32 v{T+k}, v{R+k}")
        a.e("s_nop 1")
        for k in range(n): a.e(f"{op} v{R+k}, v{T+k}")
        a.e("s_nop 1")
        for k in range(n): a.e(f"v_add_f32 v{R+k}, v{R+k}, v{T+k}")
```

```python
from asmlib import *
from layout import *
from k3 import srd
from k1common import *
from k1a import softmax18

SLOT = 34 * 1024
NSLOT = 4

def tile_ids(a):
    a.e("""
    s_and_b32 s10, s2, 7
    s_lshr_b32 s11, s2, 3
    s_and_b32 s32, s10, 1
    s_lshl_b32 s32, s32, 3
    s_and_b32 s33, s11, 7
    s_add_u32 s32, s32, s33             ; ti
    s_lshr_b32 s33, s10, 1
    s_lshl_b32 s33, s33, 2
    s_lshr_b32 s34, s11, 3
    s_add_u32 s33, s33, s34             ; fj
    """)

KVI = NSLOT * SLOT

def gen_loader(a, name, hi):
    n = 8 if hi else 9
    def issue(slot):
        base = slot * SLOT
        a.e(f"s_add_u32 m0, s39, {base}")
        a.e("s_nop 0")
        for i in range(4):
            a.e(f"buffer_load_dwordx4 v{4+i}, s[12:15], s36 offen offset:{i*1024} lds")
        a.e(f"s_add_u32 m0, s40, {base}")
        a.e("s_add_u32 s36, s36, 128")
        for i in range(3 if hi else 4):
            a.e(f"buffer_load_dwordx4 v3, s[16:19], s37 offen offset:{i*1024} lds")
        a.e(f"s_add_u32 m0, s41, {base}")
        a.e(f"s_add_u32 s37, s37, {2*144*1024}")
        a.e(f"buffer_load_dwordx4 v3, s[16:19], s38 offen lds")
        a.e(f"s_add_u32 s38, s38, {2*144*1024}")
    fb0 = 5 if hi else 0
    fbx = 8 if hi else 4
    a.e(f"""
    s_and_b32 s42, s3, 1
    s_mul_i32 s43, s33, 9
    s_and_b32 s44, s33, 1
    s_add_u32 s45, s43, s44
    s_mul_i32 s46, s42, 144
    s_add_u32 s37, s45, s46
    s_add_u32 s37, s37, {fb0}
    s_lshl_b32 s37, s37, 10
    """)
    if hi:
        a.e(f"""
        s_cmp_eq_u32 s44, 0
        s_cselect_b32 s47, 8, 0
        s_add_u32 s38, s43, s47             ; g8
        s_add_u32 s38, s38, s46
        s_lshl_b32 s38, s38, 10
        """)
    else:
        a.e(f"s_add_u32 s38, s37, 4096")
    a.e(f"""
    s_mul_i32 s40, s42, {9*1024}
    s_add_u32 s41, s40, {fbx*1024}
    s_add_u32 s40, s40, {fb0*1024}
    s_lshl_b32 s39, s3, 12
    s_add_u32 s39, s39, {18*1024}
    """)
    for s in range(3):
        issue(s)
    lp = f"{name}_ld{int(hi)}"
    a.e("s_mov_b32 s48, 0")
    a.label(lp)
    for u in range(4):
        a.e(f"s_waitcnt vmcnt({2*n})")
        a.e("s_barrier")
        issue((u + 3) % 4)
    a.e(f"""
    s_add_u32 s48, s48, 1
    s_cmp_lt_u32 s48, 6
    s_cbranch_scc1 {lp}
    """)
    for u in range(3):
        a.e(f"s_waitcnt vmcnt({2*n})\ns_barrier")
        issue((u + 3) % 4)
    side_loads(a)
    a.e(f"s_waitcnt vmcnt({2*n + 16})\ns_barrier")
    issue(2)
    a.e(f"s_waitcnt vmcnt({2*n + 16})\ns_barrier")
    issue(3)
    a.e(f"s_waitcnt vmcnt({2*n})\ns_branch {name}_side{int(hi)}")

def side_loads(a):
    a.e(f"""
    s_and_b32 s50, s2, 7
    s_lshr_b32 s51, s2, 3               ; head
    s_mul_i32 s52, s51, 3840
    s_add_u32 s52, s52, {KVP}
    v_lshlrev_b32 v9, 4, v0
    v_subrev_u32 v9, 4096, v9           ; (tid - 256)*16
    v_cmp_gt_u32 vcc, 3840, v9
    v_mov_b32 v10, {BIG}
    s_lshr_b32 s53, s51, 2
    s_mul_i32 s53, s53, 13
    v_cndmask_b32 v10, v10, v9, vcc
    s_and_b32 s54, s51, 3               ; i
    s_lshl_b32 s55, s54, 1
    s_add_u32 s55, s55, s53
    s_lshl_b32 s55, s55, 10
    s_add_u32 s55, s55, {AF}
    s_add_u32 s56, s53, s54
    s_lshl_b32 s56, s56, 10
    s_add_u32 s56, s56, {AF + 8192}
    s_lshl_b32 s57, s50, 3
    s_lshl_b32 s58, s3, 1
    s_add_u32 s57, s57, s58
    s_mul_i32 s58, s57, 36
    s_lshr_b32 s59, s51, 3
    s_add_u32 s59, s59, s51
    s_add_u32 s58, s58, s59
    s_lshl_b32 s58, s58, 10
    s_add_u32 s58, s58, {Q}
    """)
    for k in range(2):
        a.e(f"buffer_load_dwordx4 {vr(16+4*k)}, v3, s[20:23], s55 offen offset:{k*1024}")
        a.e(f"buffer_load_dwordx4 {vr(24+4*k)}, v3, s[20:23], s56 offen offset:{k*1024}")
        a.e(f"buffer_load_dwordx4 {vr(32+4*k)}, v3, s[20:23], s58 offen offset:{k*1024}")
    a.e(f"s_add_u32 s58, s58, {36*1024}")
    for k in range(2):
        a.e(f"buffer_load_dwordx4 {vr(40+4*k)}, v3, s[20:23], s58 offen offset:{k*1024}")
    for k in range(8):
        a.e(f"buffer_load_dwordx4 {vr(48+4*k)}, v10, s[20:23], s52 offen")
        if k < 7: a.e(f"s_add_u32 s52, s52, {32*3840}")

def gen_side(a, name):
    P = [80, 112]; PT = [96, 128]; PH = [144, 156]
    for hi in (0, 1):
        a.label(f"{name}_side{hi}")
        a.e(f"s_mov_b32 s49, {hi}")
        if hi == 0: a.e(f"s_branch {name}_sidec")
    a.label(f"{name}_sidec")
    a.e("s_barrier")
    for b in range(2):
        for t in range(2):
            a.e(f"{MF32} {vr(P[b],16)}, {vr(16+4*t)}, {vr(32+8*b+4*t)}, " + ("0" if t == 0 else vr(P[b],16)))
            a.e(f"{MF32} {vr(PT[b],16)}, {vr(24+4*t)}, {vr(32+8*b+4*t)}, " + ("0" if t == 0 else vr(PT[b],16)))
    for k in range(1, 8):
        for r in range(4):
            a.e(f"v_add_f32 v{48+r}, v{48+r}, v{48+4*k+r}")
    a.e(f"""
    v_cvt_pk_bf16_f32 v48, v48, v49
    v_cvt_pk_bf16_f32 v49, v50, v51
    v_lshrrev_b32 v9, 1, v9
    v_add_u32 v9, {KVI}, v9
    ds_write_b64 v9, v[48:49]
    s_mov_b32 s45, {f2u(LOG2E)}
    """)
    for i in range(1, 4):
        a.e(f"s_cmp_eq_u32 s54, {i}\ns_cselect_b64 vcc, -1, 0")
        for b in range(2):
            a.e(f"v_cndmask_b32 v{PT[b]}, v{PT[b]}, v{PT[b]+2*i}, vcc")
            a.e(f"v_cndmask_b32 v{PT[b]+1}, v{PT[b]+1}, v{PT[b]+2*i+1}, vcc")
    lb = f"{name}_sw"
    a.e(f"""
    s_cmp_eq_u32 s49, 0
    s_cbranch_scc1 {lb}a
    s_waitcnt vmcnt(8)
    """)
    a.label(lb + "a")
    a.e("s_waitcnt vmcnt(9) lgkmcnt(0)\ns_barrier")
    softmax18(a, [P[0] + k for k in range(16)] + [PT[0], PT[0] + 1], 12, PH[0])
    a.e("s_waitcnt vmcnt(0)\ns_barrier")
    a.e(f"""
    v_and_b32 v4, 31, v2
    s_and_b32 s52, s51, 1
    s_lshl_b32 s52, s52, 1
    v_add_u32 v5, s52, v4
    v_min_u32 v5, 23, v5
    v_and_b32 v6, 27, v4
    v_cmp_eq_u32 vcc, 18, v6
    v_mov_b32 v7, 20
    v_lshrrev_b32 v8, 5, v2
    v_cndmask_b32 v5, v5, v7, vcc
    v_mul_u32_u24 v6, 24, v8
    v_add_u32 v5, v5, v6
    v_mul_u32_u24 v5, 40, v5
    v_add_u32 v5, {KVI}, v5
    ds_read_b64 v[48:49], v5
    ds_read_b64 v[50:51], v5 offset:8
    ds_read_b64 v[52:53], v5 offset:16
    ds_read_b64 v[54:55], v5 offset:24
    ds_read_b32 v56, v5 offset:32
    v_mov_b32 v57, 0
    v_mov_b32 v58, 0
    v_mov_b32 v59, 0
    """)
    for b in range(2):
        for k in range(9, 12): a.e(f"v_mov_b32 v{PH[b]+k}, 0")
    def apply(b):
        for st in range(3):
            a.e(f"{MF32} {vr(P[b],16)}, {vr(48+4*st)}, {vr(PH[b]+4*st)}, " + ("0" if st == 0 else vr(P[b],16)))
    a.e("s_waitcnt lgkmcnt(0)")
    apply(0)
    softmax18(a, [P[1] + k for k in range(16)] + [PT[1], PT[1] + 1], 12, PH[1])
    a.e("s_nop 1")
    apply(1)
    a.e(f"""
    v_bfe_u32 v6, v2, 4, 1
    v_mul_u32_u24 v6, {90*1024}, v6
    v_and_b32 v7, 15, v2
    v_lshl_add_u32 v6, v7, 4, v6
    v_lshl_add_u32 v7, v8, 8, v6
    v_cmp_gt_u32 vcc, 32, v2
    v_mov_b32 v9, {BIG}
    s_mul_i32 s57, s57, {2*90*1024}
    v_cndmask_b32 v6, v9, v6, vcc
    s_add_u32 s57, s57, {U}
    s_lshr_b32 s52, s51, 1
    s_lshl_b32 s52, s52, 10
    s_and_b32 s53, s51, 1
    s_lshl_b32 s53, s53, 9
    s_add_u32 s52, s52, s53
    s_add_u32 s52, s52, {72*1024}
    s_add_u32 s52, s52, s57
    s_lshr_b32 s53, s51, 4
    s_lshl_b32 s53, s53, 10
    s_bfe_u32 s55, s51, 0x20002
    s_lshl_b32 s55, s55, 8
    s_add_u32 s53, s53, s55
    s_lshl_b32 s55, s54, 2
    s_add_u32 s53, s53, s55
    s_add_u32 s53, s53, {88*1024}
    s_add_u32 s53, s53, s57
    """)
    for b in range(2):
        A = P[b]
        a.e(f"v_add_f32 v12, {f2u(1e-6)}, v{A+10}\nv_rcp_f32 v12, v12\ns_nop 0")
        for k in range(10): a.e(f"v_mul_f32 v{A+k}, v{A+k}, v12")
        for k in range(5): a.e(f"v_cvt_pk_bf16_f32 v{60+8*b+k}, v{A+2*k}, v{A+2*k+1}")
        a.e(f"buffer_store_dwordx4 {vr(60+8*b)}, v7, s[20:23], s52 offen")
        a.e(f"buffer_store_dword v{64+8*b}, v6, s[20:23], s53 offen")
        if b == 0: a.e(f"s_add_u32 s52, s52, {2*90*1024}\ns_add_u32 s53, s53, {2*90*1024}")
    a.e("s_endpgm")

def gen_k2(name="k2_kernel", stamp=False, side=None):
    a = Asm()
    ACC = 160
    FX, FY = 16, 60
    def acc(fb, tb): r = ACC + (fb*2 + tb)*4; return f"v[{r}:{r+3}]"
    def fa(buf, fb): r = buf + fb*4; return f"v[{r}:{r+3}]"
    def fbr(buf, tb): r = buf + 36 + tb*4; return f"v[{r}:{r+3}]"
    a.e(f"""
    s_cmp_ge_u32 s2, 256
    s_cbranch_scc1 {name}_end
    """)
    if stamp: stamp_begin(a)
    a.e(f"""
    s_load_dwordx2 s[4:5], s[0:1], {KA_WS}
    s_load_dwordx2 s[6:7], s[0:1], {KA_WSP}
    s_load_dwordx2 s[8:9], s[0:1], {KA_BSP}
    v_lshrrev_b32 v1, 6, v0
    v_and_b32 v2, 63, v0
    v_readfirstlane_b32 s3, v1          ; wave
    """)
    tile_ids(a)
    a.e("v_lshlrev_b32 v3, 4, v2             ; lane*16")
    a.e("s_waitcnt lgkmcnt(0)")
    srd(a, 12, 6, 7, S*S*2)
    srd(a, 16, 4, 5, Z2T_BYTES, Z2T)
    a.e(f"""
    s_cmp_lt_u32 s3, 4
    s_cbranch_scc1 {name}_compute
    s_sub_u32 s3, s3, 4
    s_mov_b32 s20, s4
    s_mov_b32 s21, s5
    s_mov_b32 s22, {WS_USED}
    s_mov_b32 s23, 0x20000
    v_lshrrev_b32 v8, 3, v2
    v_and_b32 v9, 7, v2                 ; position
    v_lshrrev_b32 v10, 4, v2
    v_xor_b32 v9, v9, v10
    v_lshlrev_b32 v8, 12, v8
    v_lshl_add_u32 v4, v9, 4, v8
    v_xor_b32 v9, 4, v9
    v_lshl_add_u32 v5, v9, 4, v8
    v_add_u32 v6, {2*(32768-1024)}, v4
    v_add_u32 v7, {3*(32768-1024)}, v5
    v_add_u32 v5, {(32768-1024)}, v5
    s_lshl_b32 s36, s32, 7
    s_lshl_b32 s37, s3, 5
    s_add_u32 s36, s36, s37
    s_lshl_b32 s36, s36, 12
    s_cmp_ge_u32 s3, 2
    s_cbranch_scc1 {name}_ldhi
    """)
    gen_loader(a, name, False)
    a.label(f"{name}_ldhi")
    gen_loader(a, name, True)
    gen_side(a, name)
    a.label(f"{name}_compute")
    srd(a, 20, 4, 5, Z1_BYTES, Z1)
    srd(a, 24, 4, 5, U_BYTES, U)
    srd(a, 28, 8, 9, S*2)
    a.e(f"""
    v_mov_b32 v4, v3
    v_add_u32 v5, {2*SLOT}, v3
    v_and_b32 v10, 15, v2               ; t
    v_lshrrev_b32 v11, 4, v2            ; kg
    v_lshrrev_b32 v12, 1, v10           ; swz
    v_xor_b32 v12, v12, v11
    v_lshlrev_b32 v12, 4, v12
    v_lshl_add_u32 v6, v10, 7, v12
    s_lshl_b32 s36, s3, 12
    s_add_u32 s36, s36, {18*1024}
    v_add_u32 v6, s36, v6
    v_xor_b32 v7, 64, v6
    v_add_u32 v8, {2*SLOT}, v6
    v_add_u32 v9, {2*SLOT}, v7
    """)
    a.e(f"""
    s_lshl_b32 s37, s32, 7
    s_lshl_b32 s38, s3, 5
    s_add_u32 s37, s37, s38
    s_lshl_b32 s38, s37, 1
    v_lshlrev_b32 v12, 1, v10
    buffer_load_ushort v13, v12, s[28:31], s38 offen
    buffer_load_ushort v14, v12, s[28:31], s38 offen offset:32
    """)
    if side is not None:
        side(a)
    for r in range(ACC, ACC + 72):
        a.e(f"v_mov_b32 v{r}, 0")
    def reads(buf, slot, kh):
        L = []
        sa = (slot & 1) * SLOT
        va = "v4" if slot < 2 else "v5"
        vb = f"v{6 + kh + (0 if slot < 2 else 2)}"
        for tb in range(2):
            L.append(f"ds_read_b128 {fbr(buf,tb)}, {vb} offset:{sa + tb*2048}")
        for fb in range(9):
            L.append(f"ds_read_b128 {fa(buf,fb)}, {va} offset:{sa + (kh*9+fb)*1024}")
        return L
    def phase(cbuf, R, first=False):
        R = list(R)
        if first:
            for r in R: a.e(r)
            return
        k = 0
        for fb in range(9):
            for tb in range(2):
                if R and k < 11:
                    a.e(R.pop(0))
                a.e(f"v_mfma_f32_16x16x32_bf16 {acc(fb,tb)}, {fa(cbuf,fb)}, {fbr(cbuf,tb)}, {acc(fb,tb)}")
                k += 1
    def stage(slot, first=False):
        a.e("s_barrier")
        phase(FY, reads(FX, slot, 0), first)
        a.e("s_waitcnt lgkmcnt(0)")
        phase(FX, reads(FY, slot, 1))
        a.e("s_waitcnt lgkmcnt(0)")
    stage(0, first=True)
    if stamp: stamp_mid(a, 0)
    for u in range(1, 4): stage(u)
    a.e("s_mov_b32 s48, 0")
    lp = f"{name}_cl"
    a.label(lp)
    if stamp == 2:
        a.e("s_memtime s[60:61]\ns_memrealtime s[62:63]\ns_waitcnt lgkmcnt(0)\ns_mov_b32 m0, s48\ns_nop 0\nv_writelane_b32 v250, s60, m0\nv_writelane_b32 v251, s62, m0")
    for u in range(4): stage(u)
    a.e(f"""
    s_add_u32 s48, s48, 1
    s_cmp_lt_u32 s48, 6
    s_cbranch_scc1 {lp}
    """)
    ZR = 104
    a.e(f"""
    s_lshr_b32 s40, s37, 4
    s_mul_i32 s41, s33, 9
    s_and_b32 s42, s33, 1
    s_add_u32 s43, s41, s42
    s_lshr_b32 s43, s43, 1              ; st0
    s_add_u32 s44, s41, 8
    s_cmp_eq_u32 s42, 0
    s_cselect_b32 s44, s44, s41
    s_lshr_b32 s44, s44, 1              ; st8
    s_lshl_b32 s42, s42, 3              ; half*8
    s_mul_i32 s45, s40, 72
    s_add_u32 s46, s45, s44
    s_add_u32 s45, s45, s43
    s_lshl_b32 s45, s45, 10
    s_lshl_b32 s46, s46, 10
    s_add_u32 s46, s46, s42
    s_add_u32 s52, s45, {72*1024}
    s_add_u32 s53, s46, {72*1024}
    s_mul_i32 s54, s40, 90
    s_add_u32 s55, s54, s44
    s_add_u32 s54, s54, s43
    s_lshl_b32 s54, s54, 10
    s_lshl_b32 s55, s55, 10
    s_add_u32 s55, s55, s42
    s_add_u32 s56, s54, {90*1024}
    s_add_u32 s57, s55, {90*1024}
    """)
    for tb in range(2):
        sm, ss = ("s45", "s46") if tb == 0 else ("s52", "s53")
        for i in range(4):
            r = ZR + tb*18 + i*4
            a.e(f"buffer_load_dwordx4 v[{r}:{r+3}], v3, s[20:23], {sm} offen offset:{i*1024}")
        r = ZR + tb*18 + 16
        a.e(f"buffer_load_dwordx2 v[{r}:{r+1}], v3, s[20:23], {ss} offen")
    for u in range(4): stage(u)
    phase(FY, [])
    if stamp: stamp_mid(a, 1)
    a.e("s_waitcnt vmcnt(0)")
    a.e("v_lshlrev_b32 v13, 16, v13\nv_lshlrev_b32 v14, 16, v14\ns_nop 7")
    T = 16
    for tb in range(2):
        sm, ss = ("s54", "s55") if tb == 0 else ("s56", "s57")
        for i in range(5):
            nfb = 2 if i < 4 else 1
            zr = ZR + tb*18 + i*4
            t0 = T + (i % 2) * 8
            for k in range(nfb):
                fb = 2*i + k
                ar = ACC + (fb*2 + tb)*4
                for p in range(2):
                    z = zr + 2*k + p
                    a.e(f"v_add_f32 v{ar+2*p}, v{ar+2*p}, v{13+tb}")
                    a.e(f"v_add_f32 v{ar+2*p+1}, v{ar+2*p+1}, v{13+tb}")
                    a.e(f"v_lshlrev_b32 v{t0}, 16, v{z}")
                    a.e(f"v_and_b32 v{t0+1}, 0xffff0000, v{z}")
                    a.e(f"v_mul_f32 v{t0}, v{t0}, v{ar+2*p}")
                    a.e(f"v_mul_f32 v{t0+1}, v{t0+1}, v{ar+2*p+1}")
                    a.e(f"v_cvt_pk_bf16_f32 v{z}, v{t0}, v{t0+1}")
            if i < 4:
                a.e(f"buffer_store_dwordx4 v[{zr}:{zr+3}], v3, s[24:27], {sm} offen offset:{i*1024}")
            else:
                a.e(f"buffer_store_dwordx2 v[{zr}:{zr+1}], v3, s[24:27], {ss} offen")
    if stamp: stamp_mid(a, 2)
    if stamp == 2:
        a.e(f"""
        s_add_u32 s60, s4, {STAMP + 8*65536}
        s_addc_u32 s61, s5, 0
        s_mov_b32 s62, 1048576
        s_mov_b32 s63, 0x20000
        s_lshl_b32 s64, s2, 2
        s_add_u32 s64, s64, s3
        s_lshl_b32 s64, s64, 9
        v_lshlrev_b32 v252, 2, v2
        buffer_store_dword v250, v252, s[60:63], s64 offen
        buffer_store_dword v251, v252, s[60:63], s64 offen offset:256
        """)
    if stamp:
        stamp_end(a, 2, "s3", 3)
    a.label(f"{name}_end")
    a.e("s_endpgm")
    launch = f"; @launch kernel={name} grid=(256,1,1) block=(512,1,1) lds={NSLOT*SLOT + 2048}\n"
    return launch, kernel_begin(name) + a.text(), kernel_desc(name, 256, 102, 256)
```

```python
from asmlib import *
from layout import *

def srd(a, s, base_lo, base_hi, nbytes, add=0):
    if add:
        a.e(f"s_add_u32 s{s}, s{base_lo}, {add}")
        a.e(f"s_addc_u32 s{s+1}, s{base_hi}, 0")
    else:
        a.e(f"s_mov_b32 s{s}, s{base_lo}")
        a.e(f"s_mov_b32 s{s+1}, s{base_hi}")
    a.e(f"s_mov_b32 s{s+2}, {nbytes}")
    a.e(f"s_mov_b32 s{s+3}, 0x20000")

def gen_k3(name="k3_kernel", DEPTH=4, stamp=False):
    a = Asm()
    NST = 23
    ACC = 160
    BUF = 16
    assert BUF + DEPTH*36 <= ACC
    def acc(tb, i): r = ACC + (tb*5 + i)*4; return f"v[{r}:{r+3}]"
    def fu(b, tb): r = BUF + b*36 + tb*4; return f"v[{r}:{r+3}]"
    def fw(b, i): r = BUF + b*36 + 16 + i*4; return f"v[{r}:{r+3}]"
    a.e(f"""
    s_cmp_ge_u32 s2, 256
    s_cbranch_scc1 {name}_end
    """)
    if stamp: stamp_begin(a)
    a.e(f"""
    s_load_dwordx2 s[4:5], s[0:1], {KA_WS}
    s_load_dwordx2 s[6:7], s[0:1], {KA_X}
    s_load_dwordx2 s[8:9], s[0:1], {KA_OUT}
    v_lshrrev_b32 v1, 6, v0
    v_and_b32 v2, 63, v0
    v_readfirstlane_b32 s3, v1          ; wave
    s_and_b32 s10, s2, 7                ; xcd
    s_lshr_b32 s11, s2, 3               ; local 0..31
    s_and_b32 s32, s10, 3
    s_lshl_b32 s32, s32, 3
    s_and_b32 s33, s11, 7
    s_add_u32 s32, s32, s33             ; ti 0..31
    s_lshr_b32 s33, s10, 2
    s_lshl_b32 s33, s33, 2
    s_lshr_b32 s34, s11, 3
    s_add_u32 s33, s33, s34             ; c 0..7
    v_lshlrev_b32 v3, 4, v2             ; lane*16
    v_add_u32 v4, {90*1024}, v3
    v_add_u32 v5, {2*90*1024}, v3
    v_add_u32 v6, {3*90*1024}, v3
    v_lshrrev_b32 v7, 4, v2
    v_lshlrev_b32 v7, 3, v7
    v_and_b32 v8, 7, v2
    v_add_u32 v7, v7, v8
    v_lshlrev_b32 v7, 4, v7
    v_add_u32 v7, 4096, v7
    s_mul_i32 s36, s32, {4*90}
    s_add_u32 s36, s36, s3
    s_lshl_b32 s36, s36, 10             ; U soffset
    s_mul_i32 s37, s33, 90
    s_add_u32 s37, s37, s3
    s_mul_i32 s37, s37, 4608
    s_waitcnt lgkmcnt(0)
    """)
    srd(a, 12, 4, 5, U_BYTES, U)
    srd(a, 16, 4, 5, WP_BYTES, WP)
    srd(a, 20, 6, 7, S*D*2)
    srd(a, 24, 8, 9, S*D*2)
    uoff = ["v3", "v4", "v5", "v6"]
    def loads(b, st):
        L = []
        for tb in range(4):
            L.append(f"buffer_load_dwordx4 {fu(b,tb)}, {uoff[tb]}, s[12:15], s36 offen")
        for i in range(4):
            L.append(f"buffer_load_dwordx4 {fw(b,i)}, v3, s[16:19], s37 offen offset:{i*1024}")
        L.append(f"buffer_load_dwordx4 {fw(b,4)}, v7, s[16:19], s37 offen")
        return L
    def advance(st_next):
        a.e(f"s_add_u32 s36, s36, 4096")
        a.e(f"s_add_u32 s37, s37, {4*4608}")
        if st_next == NST - 1:
            a.e("s_cmp_ge_u32 s3, 2")
            a.e("s_cselect_b32 s14, 0, s14")
            a.e("s_cselect_b32 s18, 0, s18")
    for st in range(DEPTH):
        for l in loads(st, st): a.e(l)
        advance(st + 1)
    a.e(f"""
    s_lshl_b32 s38, s32, 6
    s_lshl_b32 s39, s3, 4
    s_add_u32 s38, s38, s39
    s_mul_i32 s38, s38, 1152
    s_mul_i32 s39, s33, 144
    s_add_u32 s38, s38, s39
    v_and_b32 v9, 15, v2
    v_mul_u32_u24 v9, 1152, v9
    v_lshrrev_b32 v10, 4, v2
    v_lshlrev_b32 v10, 3, v10
    v_add_u32 v9, v9, v10
    """)
    XR = 240
    for i in range(5):
        a.e(f"buffer_load_dwordx2 v[{XR+2*i}:{XR+2*i+1}], v9, s[20:23], s38 offen offset:{32*i}")
    nx = 5
    for r in range(ACC, ACC + 80):
        a.e(f"v_mov_b32 v{r}, 0")
    for st in range(NST):
        b = st % DEPTH
        remaining = min(DEPTH - 1, NST - 1 - st)
        extra = nx if st < DEPTH else 0
        a.e(f"s_waitcnt vmcnt({remaining*9 + extra})")
        if stamp and st == 0: stamp_mid(a, 0)
        nxt = st + DEPTH
        L = loads(b, nxt) if nxt < NST else []
        for i in range(5):
            for tb in range(4):
                a.e(f"v_mfma_f32_16x16x32_bf16 {acc(tb,i)}, {fw(b,i)}, {fu(b,tb)}, {acc(tb,i)}")
                if L and i == 4:
                    a.e(L[tb])
            if L:
                a.e(L[4 + i])
        if L:
            advance(nxt + 1)
    if stamp: stamp_mid(a, 1)
    a.e(f"""
    s_mul_i32 s40, s3, {20*1024}
    v_add_u32 v11, s40, v3
    s_mul_i32 s41, s3, {5*1024}
    v_add_u32 v12, s41, v3
    v_add_u32 v13, {40*1024}, v12
    s_nop 7
    """)
    for tb in range(4):
        for i in range(5):
            a.e(f"ds_write_b128 v11, {acc(tb,i)} offset:{(tb*5+i)*1024}")
    a.e("s_waitcnt lgkmcnt(0)\ns_barrier")
    for src in range(4):
        for i in range(5):
            r = BUF + (src*5 + i)*4
            a.e(f"ds_read_b128 v[{r}:{r+3}], v{12 + src//2} offset:{(src%2)*20*1024 + i*1024}")
    a.e("s_waitcnt vmcnt(0)")
    XF = 100
    for i in range(5):
        for p in range(2):
            a.e(f"v_lshlrev_b32 v{XF+4*i+2*p}, 16, v{XR+2*i+p}")
            a.e(f"v_and_b32 v{XF+4*i+2*p+1}, 0xffff0000, v{XR+2*i+p}")
    for src in range(4):
        a.e(f"s_waitcnt lgkmcnt({(3-src)*5})")
        for k in range(20):
            a.e(f"v_add_f32 v{XF+k}, v{XF+k}, v{BUF+src*20+k}")
    for i in range(5):
        a.e(f"v_cvt_pk_bf16_f32 v{XR+2*i}, v{XF+4*i}, v{XF+4*i+1}")
        a.e(f"v_cvt_pk_bf16_f32 v{XR+2*i+1}, v{XF+4*i+2}, v{XF+4*i+3}")
    if stamp: stamp_mid(a, 2)
    for i in range(4):
        a.e(f"buffer_store_dwordx2 v[{XR+2*i}:{XR+2*i+1}], v9, s[24:27], s38 offen offset:{32*i}")
    a.e("s_mov_b64 exec, 0xffffffff")
    a.e(f"buffer_store_dwordx2 v[{XR+8}:{XR+9}], v9, s[24:27], s38 offen offset:128")
    if stamp:
        stamp_end(a, 3, "s3", 3)
    a.label(f"{name}_end")
    a.e("s_endpgm")
    launch = f"; @launch kernel={name} grid=(256,1,1) block=(256,1,1) lds={80*1024}\n"
    return launch, kernel_begin(name) + a.text(), kernel_desc(name, 256, 102, 256)
```

```python
S, D, F2, H = 2048, 576, 2304, 32
Z2T = 0x0000000
Z1  = 0x0A00000
U   = 0x1400000
WP  = 0x2000000
Q   = 0x2400000
KVP = 0x2700000
AF  = 0x2800000
ST  = 0x2900000
WS_USED = 0x2A00000
Z2T_BYTES = 64*144*1024
Z1_BYTES = 128*72*1024
U_BYTES = 128*90*1024
WP_BYTES = 8*90*4608
Q_BYTES = 64*36*1024
KVP_BYTES = 8*32*2*24*80
AF_BYTES = 8*13*1024
ST_BYTES = 16*24*128*8
KA_X, KA_WQKV, KA_WPHI, KA_WO, KA_BX, KA_WIN, KA_WSP, KA_BSP, KA_WOUT, KA_OUT, KA_DBG, KA_WS = [8*i for i in range(12)]

def k3_slot_channel(step, kg, j):
    if step < 72:
        return 32*step + 16*(j >> 2) + 4*kg + (j & 3)
    st = step - 72
    if st < 16:
        head = 2*st + (kg >> 1); hh = kg & 1
        return F2 + 18*head + 8*(j >> 2) + 4*hh + (j & 3)
    head = 16*(st - 16) + 4*kg + (j >> 1)
    return F2 + 18*head + 16 + (j & 1)
STAMP = 0x8000000
XST = 0x2980000
CSP = 0x2990000
CSPA = CSP + 12*16*448*4
FLX = 0x29F0000
FLC = FLX + 1024
FLS = FLC + 2048
```

```python
from asmlib import Asm
import copy

class Sched(Asm):
    def __init__(self):
        super().__init__()
        self.vm_n = 0; self.lg_n = 0
        self.vm_done = -1; self.lg_done = -1
        self.keys = {}
        self.fill = []
        self.marks = set()
    def vm(self, s, key=None):
        self.e(s); i = self.vm_n; self.vm_n += 1
        if key is not None: self.keys[key] = ("vm", i)
        return i
    def lg(self, s, key=None):
        self.e(s); i = self.lg_n; self.lg_n += 1
        if key is not None: self.keys[key] = ("lg", i)
        return i
    def wait(self, vm=None, lg=None):
        parts = []
        if vm is not None and vm > self.vm_done:
            n = min(self.vm_n - 1 - vm, 63)
            parts.append(f"vmcnt({n})"); self.vm_done = self.vm_n - 1 - n
        if lg is not None and lg > self.lg_done:
            n = min(self.lg_n - 1 - lg, 15)
            parts.append(f"lgkmcnt({n})"); self.lg_done = self.lg_n - 1 - n
        if parts:
            self.e("s_waitcnt " + " ".join(parts))
            return True
        return False
    def wait_key(self, key):
        k, i = self.keys[key]
        return self.wait(**{k: i})
    def wait_all(self, vm=True, lg=True):
        self.wait(vm=self.vm_n - 1 if vm else None, lg=self.lg_n - 1 if lg else None)
    def snapshot(self):
        return (self.vm_n, self.lg_n, self.vm_done, self.lg_done, dict(self.keys), list(self.fill))
    def restore(self, s):
        self.vm_n, self.lg_n, self.vm_done, self.lg_done = s[:4]
        self.keys = dict(s[4]); self.fill = list(s[5])
    def add(self, kind, text=None, key=None):
        self.fill.append((kind, text, key))
    def addv(self, text):
        for l in text.strip().split("\n"):
            l = l.strip()
            if not l: continue
            op = l.split()[0]
            self.fill.append(("t" if op in ("v_exp_f32", "v_rcp_f32", "v_rsq_f32", "v_log_f32", "v_sqrt_f32") else "v", l, None))
    def fill_cost(self):
        return sum(2 if k == "t" else (0 if k in ("raw", "mark") else 1) for k, _, _ in self.fill)
    def pump(self, budget):
        while self.fill and budget > 0:
            k, t, key = self.fill.pop(0)
            if k == "v": self.e(t); budget -= 1
            elif k == "t": self.e(t); budget -= 2
            elif k == "raw": self.e(t)
            elif k == "lg": self.lg(t, key)
            elif k == "vm": self.vm(t, key)
            elif k == "w": self.wait_key(key)
            elif k == "call": t(self)
            elif k == "mark": self.marks.add(key)
    def flush(self):
        self.pump(1 << 30)
    def flush_to(self, mark):
        if not any(k == "mark" and key == mark for k, _, key in self.fill): return
        while mark not in self.marks or any(k == "mark" and key == mark for k, _, key in self.fill):
            self.pump(1)
    def flush_to_key(self, key):
        while any(kk == key for _, _, kk in self.fill):
            self.pump(1)
```

```python
import sys, os
sys.path.insert(0, "dev")
from build import assemble
from k1 import gen_k1
from k2 import gen_k2
from k3 import gen_k3
what = sys.argv[1]
if what == "k1z": assemble([gen_k1(stamp=int(os.environ.get('ST', 1)), attn=False)], "dev/" + (sys.argv[2] if len(sys.argv) > 2 else "t_k1z.s"))
if what == "k1": assemble([gen_k1(stamp=int(os.environ.get("ST", 1)))], "dev/" + (sys.argv[2] if len(sys.argv) > 2 else "t_k1.s"))
if what == "all": assemble([gen_k1(stamp=True), gen_k2(stamp=True), gen_k3(stamp=True)], "dev/" + (sys.argv[2] if len(sys.argv) > 2 else "t_all.s"))
if what == "final":
    hdr = "".join(l for l in open("parallel_sum__linear_kernel_hedgehog__mixer_gmlp__prompt.s.ref") if l.startswith(";") and "@launch" not in l and "Override" not in l and "grid=ceil" not in l)
    assemble([gen_k1(), gen_k2(), gen_k3()], "parallel_sum__linear_kernel_hedgehog__mixer_gmlp__prompt.s", hdr)
if what == "var":
    hdr = "".join(l for l in open("parallel_sum__linear_kernel_hedgehog__mixer_gmlp__prompt.s.ref") if l.startswith(";") and "@launch" not in l and "Override" not in l and "grid=ceil" not in l)
    assemble([gen_k1(), gen_k2(), gen_k3()], "dev/" + sys.argv[2], hdr)
if what == "diag":
    assemble([gen_k1(stamp=1), gen_k2(stamp=1), gen_k3(stamp=9)], "dev/" + sys.argv[2])
```

```python
import math, os
from asmlib import *
from sched import Sched
from layout import *
from k1common import *
from k3 import srd
ABL = os.environ.get('ABL', '').split(',')

GK1 = -2.0 * math.sqrt(2.0 / math.pi) * LOG2E
GK2 = GK1 * 0.044715

RING = 0
XR = 98304
CSO = XR + 51200
PRM = CSO + 2048
Z_LDS = PRM + 2048
PER_MFMA = int(os.environ.get('PM', 6))

def gen_zpath(a, name, stamp):
    X = 112; ACC = [64, 80, 96]; WF = [44, 48, 52, 56]
    NEGMU, R, C1, C2, S1, S2 = 14, 15, 7, 8, 13, 16
    CB = [24, 28]; T = 32; PK = 36
    rowstat_loads(a, 2, 64, 24)
    a.e(f"""
    s_cmp_lt_u32 s3, 6
    s_cselect_b32 s28, s12, s16
    s_cselect_b32 s29, s13, s17
    s_cselect_b32 s30, s14, s18
    s_mov_b32 s31, 0x20000
    s_mov_b32 s45, 3456
    s_cselect_b32 s45, 9216, s45
    s_mul_i32 s39, s33, 384
    s_lshl_b32 s40, s3, 7
    s_add_u32 s39, s39, s40
    s_lshl_b32 s40, s34, 7
    s_sub_u32 s41, s39, 384
    s_cmp_lt_u32 s3, 6
    s_cselect_b32 s40, s41, s40
    s_add_u32 s39, s39, 4608
    s_cmp_lt_u32 s3, 3
    s_cselect_b32 s39, s39, s40
    s_cmp_eq_u32 s3, 7
    s_cselect_b32 s30, 0, s30
    s_mul_i32 s38, s32, 36
    s_mul_i32 s38, s38, s45
    s_add_u32 s39, s39, s38
    s_lshl_b32 s38, s45, 3
    v_lshrrev_b32 v28, 3, v2
    v_mul_lo_u32 v28, v28, s45
    v_and_b32 v30, 7, v2
    v_lshl_add_u32 v28, v30, 4, v28
    v_cmp_gt_u32 vcc, 32, v2
    v_mov_b32 v27, {BIG}
    s_nop 0
    v_cndmask_b32 v29, v27, v28, vcc
    """)
    for i in range(5):
        coop_id = a.vm(f"buffer_load_dwordx4 {vr(72+4*i)}, v{28 if i < 4 else 29}, s[28:31], s39 offen")
        if i < 4: a.e(f"s_add_u32 s39, s39, s38")
    a.e(f"""
    s_and_b32 s36, s3, 3                ; rg
    s_lshr_b32 s37, s3, 2               ; p
    v_lshrrev_b32 v28, 3, v2
    v_and_b32 v29, 7, v2                ; pos
    v_bfe_u32 v30, v2, 4, 1
    v_lshlrev_b32 v30, 2, v30
    v_xor_b32 v30, v30, v29
    v_lshlrev_b32 v30, 4, v30           ; chunk*16
    v_mul_u32_u24 v5, 9216, v28
    v_add_u32 v5, v5, v30
    v_mul_u32_u24 v6, 3456, v28
    v_add_u32 v6, v6, v30
    v_lshrrev_b32 v31, 4, v2
    v_xor_b32 v31, v31, v29
    v_mul_u32_u24 v7, 1152, v28
    v_lshl_add_u32 v7, v31, 4, v7
    v_xor_b32 v8, 64, v7
    v_add_u32 v8, {8*1152-1024}, v8
    s_mul_i32 s40, s3, {8*9216}
    s_mul_i32 s41, s33, 384
    s_add_u32 s40, s40, s41
    s_add_u32 s40, s40, 4608            ; w_in base (z2 panel 0)
    s_mul_i32 s41, s3, {8*3456}
    s_lshl_b32 s42, s34, 7
    s_add_u32 s41, s41, s42
    s_lshl_b32 s42, s3, 10              ; w*1024
    s_lshl_b32 s43, s32, 7
    s_lshl_b32 s44, s3, 4
    s_add_u32 s43, s43, s44
    s_mul_i32 s43, s43, 1152            ; x base
    s_lshl_b32 s44, s3, 11
    s_add_u32 s44, s44, {XR}
    """)
    NU = 63
    unit_id = {}; x_id = {}
    def unit_desc(u):
        if u < 18: return (u & 1, u >> 1)
        return (2 + (u - 18) // 9, (u - 18) % 9)
    def issue_unit(u):
        P, c = unit_desc(u)
        a.e(f"s_add_u32 m0, s42, {RING + (u % 12)*8192}")
        if P < 6:
            col = 128*P if P < 3 else 128*(P-3) - 4608
            a.e(f"s_add_u32 s46, s40, {(c*64*9216 + col) & 0xffffffff}")
            unit_id[u] = a.vm(f"buffer_load_dwordx4 v5, s[12:15], s46 offen lds")
        else:
            a.e(f"s_add_u32 s46, s41, {c*64*3456}")
            unit_id[u] = a.vm(f"buffer_load_dwordx4 v6, s[16:19], s46 offen lds")
    def issue_x(c, half):
        a.e(f"s_add_u32 m0, s44, {(c % 3)*16384}")
        a.e(f"s_add_u32 s46, s43, {c*128}")
        if half == 0: a.vm(f"buffer_load_dwordx4 v7, s[8:11], s46 offen lds")
        else: x_id[c] = a.vm(f"buffer_load_dwordx4 v8, s[8:11], s46 offen offset:1024 lds")
    st = {"next": 0}
    pend = []
    def allow_upto(lim):
        while st["next"] < min(lim, NU):
            pend.append(("u", st["next"])); st["next"] += 1
    def dma(n=1):
        for _ in range(n):
            if not pend: return
            k = pend.pop(0)
            if k[0] == "u": issue_unit(k[1])
            else: issue_x(k[1], k[2])
    for c in range(3):
        pend.extend([("x", c, 0), ("x", c, 1)]); allow_upto(2*c + 2)
    allow_upto(12)
    dma(100)
    a.e(f"""
    v_and_b32 v22, 15, v2
    v_lshrrev_b32 v23, 2, v22           ; r
    v_and_b32 v22, 3, v22               ; c
    v_lshrrev_b32 v24, 5, v2            ; h
    v_bfe_u32 v25, v2, 4, 1             ; n half
    v_lshlrev_b32 v1, 3, v24
    v_add_u32 v1, v1, v23
    v_lshlrev_b32 v1, 7, v1             ; (8h + r)*128
    v_lshrrev_b32 v26, 1, v23
    v_xor_b32 v26, s37, v26
    v_lshl_add_u32 v1, v26, 6, v1
    v_lshl_add_u32 v1, v25, 5, v1
    v_lshl_add_u32 v1, v22, 3, v1
    v_add_u32 v3, 49152, v1
    v_and_b32 v32, 31, v2               ; s
    v_bfe_u32 v33, v2, 1, 3             ; swz
    v_xor_b32 v33, v33, v24
    v_lshlrev_b32 v33, 4, v33
    v_lshl_add_u32 v9, v32, 7, v33
    s_lshl_b32 s38, s36, 12
    s_add_u32 s38, s38, {XR}
    v_add_u32 v9, s38, v9
    v_xor_b32 v10, 32, v9
    v_xor_b32 v11, 64, v9
    v_xor_b32 v12, 96, v9
    s_lshl_b32 s38, s37, 7
    s_add_u32 s38, s38, {CSO}
    v_lshlrev_b32 v17, 4, v24
    v_add_u32 v17, s38, v17
    s_mul_i32 s38, s3, 6400
    s_add_u32 s38, s38, {XR}
    v_mul_u32_u24 v19, 200, v32
    v_lshl_add_u32 v19, v24, 3, v19
    v_add_u32 v19, s38, v19
    v_bfe_u32 v20, v2, 4, 1
    v_mul_u32_u24 v20, {72*1024}, v20
    v_and_b32 v34, 15, v2
    v_lshl_add_u32 v34, v24, 4, v34
    v_lshl_add_u32 v20, v34, 4, v20     ; z1 store
    v_lshlrev_b32 v21, 3, v32           ; s*8
    v_lshlrev_b32 v18, 2, v0            ; tid*4
    v_lshlrev_b32 v0, 4, v2
    """)
    a.e(f"""
    s_lshl_b32 s47, s32, 3
    s_lshl_b32 s48, s36, 1
    s_add_u32 s47, s47, s48             ; t16
    s_mul_i32 s47, s47, 72
    s_mul_i32 s48, s33, 6
    s_add_u32 s47, s47, s48
    s_add_u32 s47, s47, s37
    s_lshl_b32 s47, s47, 10
    s_add_u32 s50, s47, {Z1}
    s_add_u32 s51, s50, 2048
    s_add_u32 s52, s50, 4096
    s_lshl_b32 s47, s32, 2
    s_add_u32 s47, s47, s36
    s_lshl_b32 s59, s47, 8
    s_add_u32 s59, s59, {XST}
    s_mul_i32 s48, s47, 36
    s_lshl_b32 s49, s34, 2
    s_add_u32 s48, s48, s49
    s_lshl_b32 s49, s37, 1
    s_add_u32 s48, s48, s49
    s_lshl_b32 s48, s48, 10
    s_add_u32 s53, s48, {Q}
    s_mul_i32 s54, s47, 144
    s_mul_i32 s48, s33, 12
    s_add_u32 s54, s54, s48
    s_add_u32 s54, s54, s49             ; + 2p
    s_lshl_b32 s54, s54, 10             ; z2t soffset (Z2T = 0)
    s_mul_i32 s55, s32, 24
    s_lshl_b32 s48, s33, 1
    s_add_u32 s48, s48, s37
    s_add_u32 s48, s48, s55
    s_lshl_b32 s48, s48, 10
    s_lshl_b32 s49, s36, 8
    s_add_u32 s48, s48, s49
    s_add_u32 s56, s48, {ST}
    s_lshl_b32 s55, s55, 10
    s_add_u32 s55, s55, s49
    s_add_u32 s55, s55, {ST}
    s_mul_i32 s57, s33, {16*448*4}
    s_add_u32 s57, s57, {CSP}
    s_mul_i32 s47, s32, {448*4}
    s_add_u32 s47, s47, s57
    """)
    assert Z2T == 0
    a.wait(vm=coop_id)
    pub = [rowstat_compute(a, 64, 24)]
    for i in range(5):
        unpack_add(a, 96, 72 + 4*i, 4, i == 0, 24)
    fold8(a, 96, 104)
    a.e(f"""
    s_lshl_b32 s38, s3, 8
    s_add_u32 s47, s47, s38
    v_lshlrev_b32 v24, 1, v0
    v_lshrrev_b32 v26, 6, v18           ; tid >> 4
    v_cmp_gt_u32 vcc, 8, v2
    v_mov_b32 v25, {BIG}
    s_cmp_eq_u32 s3, 7
    s_cselect_b64 vcc, 0, vcc
    v_cndmask_b32 v24, v25, v24, vcc
    """)
    a.vm(f"buffer_store_dwordx4 {vr(96)}, v24, s[20:23], s47 offen sc1")
    pub.append(a.vm(f"buffer_store_dwordx4 {vr(100)}, v24, s[20:23], s47 offen offset:16 sc1"))
    a.e(f"""
    v_mov_b32 v61, {BIG}
    v_cmp_gt_u32 vcc, {448*4}, v18
    s_nop 1
    v_cndmask_b32 v61, v61, v18, vcc
    v_add_u32 v18, {CSO}, v18
    """)
    def wread(buf, u, j):
        pos = u % 12
        b = (1, 3)[pos // 6]; off = (pos % 6)*8192 + j*2048
        a.lg(f"ds_read_b64_tr_b16 {vr(buf,2)}, v{b} offset:{off}")
        return a.lg(f"ds_read_b64_tr_b16 {vr(buf+2,2)}, v{b} offset:{off+512}")
    def barrier(vmid, lgid=None):
        a.wait(vm=vmid, lg=lgid)
        a.e("s_barrier")
    sig = {}
    def signal(tag, ids, addr_code):
        if tag in sig or ids is None or max(ids) > a.vm_done: return
        lb = a.newlabel(name + "_sig")
        a.e(f"s_cmp_eq_u32 s3, 0\ns_cbranch_scc0 {lb}")
        if tag == "coop": epoch_fetch(a, name, 60, 4)
        a.e(addr_code)
        a.e(f"""
        v_mov_b32 v22, s69
        buffer_store_dword v22, v23, s[20:23], 0 offen sc1
        s_mov_b64 exec, -1
        """)
        a.label(lb)
        sig[tag] = True
    SIG1 = f"""
    s_lshl_b32 s38, s2, 2
    s_add_u32 s38, s38, {FLX}
    s_lshl_b32 s39, s33, 4
    s_add_u32 s39, s39, s32
    s_lshl_b32 s39, s39, 2
    s_add_u32 s39, s39, {FLC}
    v_mov_b32 v23, s39
    v_writelane_b32 v23, s38, 0
    s_mov_b64 exec, 3
    """
    SIG2 = f"""
    s_lshl_b32 s39, s32, 4
    s_add_u32 s39, s39, s33
    s_lshl_b32 s39, s39, 2
    s_add_u32 s39, s39, {FLS}
    v_mov_b32 v23, s39
    s_mov_b64 exec, 1
    """
    def areads(c, j):
        xr = X + (4*c + j)*4
        a.lg(f"ds_read_b128 {vr(xr)}, v{9+j} offset:{(c%3)*16384}")
        wread(WF[2*(j&1)], 2*c, j)
        return wread(WF[2*(j&1)+1], 2*c+1, j)
    barrier(max(x_id[0], unit_id[1]), a.lg_n - 1)
    if stamp == 1: stamp_mid(a, 0)
    rid = areads(0, 0)
    a.e(f"""
    s_cmp_eq_u32 s3, 0
    s_cselect_b32 s38, 0, {BIG}
    v_mov_b32 v4, s38
    """)
    pub.append(a.vm("buffer_load_dword v60, v4, s[24:27], 0 offen sc1"))
    a.e(f"""
    v_and_b32 v62, 15, v2
    v_lshlrev_b32 v62, 2, v62
    s_lshl_b32 s38, s32, 6
    s_add_u32 s38, s38, {FLX}
    s_lshl_b32 s39, s33, 6
    s_add_u32 s39, s39, {FLC}
    v_and_b32 v63, 16, v2
    v_cmp_eq_u32 vcc, 0, v63
    v_mov_b32 v63, s39
    v_mov_b32 v22, s38
    v_cndmask_b32 v63, v63, v22, vcc
    v_add_u32 v62, v62, v63
    v_add_u32 v62, v62, v4
    """)
    brid = {}
    for c in range(9):
        for j in range(4):
            a.wait(lg=rid)
            if j == 3:
                if c < 8:
                    need = [x_id[c+1], unit_id[2*c+3]]
                    if c == 6:
                        a.wait(vm=fl_id)
                        flags_check(a, name, 63, 62, "0", True)
                    barrier(max(need), a.lg_n - 1)
                    signal("coop", pub, SIG1)
                    rid = areads(c+1, 0)
                else:
                    a.flush()
                    barrier(unit_id[20], a.lg_n - 1)
                    brid[0] = wread(WF[0], 18, 0)
                    brid[1] = wread(WF[1], 18, 1)
                if c + 3 < 9: pend.extend([("x", c+3, 0), ("x", c+3, 1)])
                allow_upto(2*c + 2 + 12)
            else:
                rid = areads(c, j+1)
            xr = X + (4*c + j)*4
            first = (c == 0 and j == 0)
            for P in range(2):
                mfma(a, vr(ACC[P],16), vr(WF[2*(j&1)+P]), vr(xr), "0" if first else vr(ACC[P], 16))
                if P == 0: dma(1)
                else: a.pump(PER_MFMA)
            if c == 5 and j == 3:
                assert "coop" in sig
                fl_id = a.vm("buffer_load_dword v63, v62, s[20:23], 0 offen sc1")
            if c == 6 and j == 3:
                a.vm(f"buffer_load_dwordx2 {vr(NEGMU,2)}, v21, s[20:23], s59 offen sc1")
                for k in range(16):
                    if k % 2 == 0 and k: a.e(f"s_add_u32 s57, s57, {2*448*4}")
                    a.vm(f"buffer_load_dword v{96+k}, v61, s[20:23], s57 offen offset:{(k%2)*448*4} sc1", "csp")
            if c == 8 and j == 0:
                a.add("w", None, "csp")
                for k in range(8): a.addv(f"v_add_f32 v{96+k}, v{96+k}, v{104+k}")
                for k in range(4): a.addv(f"v_add_f32 v{96+k}, v{96+k}, v{100+k}")
                a.addv(f"""
                v_add_f32 v96, v96, v98
                v_add_f32 v97, v97, v99
                v_mul_f32 v{C2}, v{R}, v{R}
                v_add_f32 v96, v96, v97
                v_mul_f32 v{C1}, {f2u(GK1)}, v{R}
                v_mul_f32 v{C2}, v{C2}, v{R}
                """)
                a.add("lg", f"ds_write_b32 v18, v96")
                a.addv(f"""
                v_mul_f32 v{C2}, {f2u(GK2)}, v{C2}
                v_mov_b32 v{S1}, 0
                v_mov_b32 v{S2}, 0
                """)
    if stamp: stamp_mid(a, 1 if stamp == 1 else 0)
    def epilogue(P):
        if "nofill" in ABL: return
        acc = ACC[P % 3]
        kind = "z2" if P < 3 else ("z1" if P < 6 else "q")
        a.add("lg", f"ds_read_b128 {vr(CB[0])}, v17 offset:{P*256}", ("cs", P, 0))
        for g in range(4):
            if g < 3:
                a.add("lg", f"ds_read_b128 {vr(CB[(g+1)&1])}, v17 offset:{P*256 + (g+1)*32}", ("cs", P, g+1))
            a.add("w", None, ("cs", P, g))
            cb = CB[g & 1]; A = acc + 4*g
            for r in range(4): a.addv(f"v_fmac_f32 v{A+r}, v{NEGMU}, v{cb+r}")
            if kind == "q":
                for r in range(4): a.addv(f"v_mul_f32 v{A+r}, v{R}, v{A+r}")
                pk = PK + 2*g
            else:
                for r in range(4): a.addv(f"v_mul_f32 v{T+r}, v{A+r}, v{A+r}")
                for r in range(4): a.addv(f"v_fma_f32 v{T+r}, v{T+r}, v{C2}, v{C1}")
                for r in range(4): a.addv(f"v_mul_f32 v{T+r}, v{T+r}, v{A+r}")
                for r in range(4): a.addv(f"v_exp_f32 v{T+r}, v{T+r}")
                for r in range(4): a.addv(f"v_add_f32 v{T+r}, 1.0, v{T+r}")
                for r in range(4): a.addv(f"v_rcp_f32 v{T+r}, v{T+r}")
                if kind == "z1":
                    for r in range(4): a.addv(f"v_mul_f32 v{A+r}, v{R}, v{A+r}")
                for r in range(4): a.addv(f"v_mul_f32 v{A+r}, v{A+r}, v{T+r}")
                if kind == "z2":
                    for r in range(4):
                        a.addv(f"v_add_f32 v{S1}, v{S1}, v{A+r}")
                        a.addv(f"v_fmac_f32 v{S2}, v{A+r}, v{A+r}")
                    pk = PK + 2*(g & 1)
                else:
                    pk = PK + (g & 1)*4 + (g >> 1)*2
            a.addv(f"v_cvt_pk_bf16_f32 v{pk}, v{A}, v{A+1}")
            a.addv(f"v_cvt_pk_bf16_f32 v{pk+1}, v{A+2}, v{A+3}")
            if kind == "z2":
                a.add("lg", f"ds_write_b64 v19, {vr(pk,2)} offset:{P*64 + g*16}")
            elif kind == "z1" and g >= 2:
                a.add("vm", f"buffer_store_dwordx4 {vr(PK + (g&1)*4)}, v20, s[20:23], s{50 + P - 3} offen offset:{(g&1)*512} sc1")
            elif kind == "q" and (g & 1):
                a.add("vm", f"buffer_store_dwordx4 {vr(PK + (g>>1)*4)}, v0, s[20:23], s53 offen offset:{(g>>1)*1024} sc1")
        a.addv("s_nop 0")
        a.add("mark", None, ("done", P))
    def publish():
        a.addv(f"""
        v_mov_b32 v{T}, v{S1}
        v_mov_b32 v{T+1}, v{S2}
        s_nop 1
        v_permlane32_swap_b32 v{S1}, v{T}
        v_permlane32_swap_b32 v{S2}, v{T+1}
        s_nop 1
        v_add_f32 v{T}, v{S1}, v{T}
        v_add_f32 v{T+1}, v{S2}, v{T+1}
        v_mul_f32 v{T}, v{R}, v{T}
        v_mul_f32 v{T+1}, v{R}, v{T+1}
        v_mul_f32 v{T+1}, v{R}, v{T+1}
        """)
        a.add("vm", f"buffer_store_dwordx2 {vr(T,2)}, v21, s[20:23], s56 offen sc1", "ststore")
        a.addv("s_nop 0")
    def panel(P, last):
        u0 = 18 + 9*(P - 2)
        acc = ACC[P % 3]
        base = 36*(P - 2)
        if P >= 3: a.flush_to(("done", P - 3))
        for i in range(36):
            gi = base + i
            a.wait(lg=brid[gi])
            n = i + 2
            if n < 36 or not last:
                if n % 12 == 0:
                    dma(100)
                    barrier(unit_id[u0 + n//4 + 2], brid[gi+1])
                    signal("z2", [a.keys["ststore"][1]] if "ststore" in a.keys else None, SIG2)
                    allow_upto(u0 + n//4 + 12)
                brid[gi+2] = wread(WF[(gi+2) % 4], u0 + n//4, n % 4)
            mfma(a, vr(acc,16), vr(WF[gi % 4]), vr(X + 4*i), "0" if i == 0 else vr(acc, 16))
            if i % 4 == 3: dma(1)
            if i >= 1 or P == 2:
                a.pump(PER_MFMA)
    epilogue(0); epilogue(1)
    panel(2, False)
    if stamp == 2: stamp_mid(a, 1)
    a.addv("s_nop 3"); epilogue(2); publish()
    panel(3, False)
    if "k1touch" in os.environ.get("OPT", ""): touch(a)
    a.addv("s_nop 3"); epilogue(3)
    panel(4, False)
    if stamp == 2: stamp_mid(a, 2)
    a.addv("s_nop 3"); epilogue(4)
    lq = name + "_noq"; lt = name + "_ztail"
    FLAG2 = f"""
    v_lshrrev_b32 v62, 2, v0
    v_min_u32 v62, 44, v62
    v_add_u32 v62, v62, v4
    s_lshl_b32 s38, s32, 6
    s_add_u32 s49, s38, {FLS}
    buffer_load_dword v63, v62, s[20:23], s49 offen sc1
    """
    def finish(P):
        if stamp == 2: stamp_mid(a, 3)
        a.wait_all(vm=False)
        a.e("s_barrier")
        if "z2" not in sig:
            a.flush_to_key("ststore")
            a.wait_key("ststore")
            a.e("s_barrier")
            signal("z2", [a.keys["ststore"][1]], SIG2)
        repack_loads(a, name, P)
        a.e(FLAG2)
        a.flush()
        a.e("s_nop 7")
        epilogue(P); a.flush()
    a.e(f"s_cmp_eq_u32 s18, 0\ns_cbranch_scc1 {lq}")
    snap = a.snapshot(); saved = [dict(d) for d in (st, brid, unit_id, sig)]; pend_s = list(pend)
    panel(5, False)
    a.addv("s_nop 3"); epilogue(5)
    panel(6, True)
    finish(6)
    a.e(f"s_branch {lt}")
    a.label(lq)
    a.restore(snap)
    for d, s_ in zip((st, brid, unit_id, sig), saved): d.clear(); d.update(s_)
    pend[:] = pend_s
    panel(5, True)
    finish(5)
    a.label(lt)
    if stamp == 1: stamp_mid(a, 2)
    a.e("s_waitcnt vmcnt(0)")
    flags_check(a, name, 63, 62, "s49", True)
    a.e("s_barrier")
    if stamp == 1: stamp_mid(a, 3)
    L = 64
    a.e(f"""
    v_lshrrev_b32 v22, 9, v0            ; h
    v_mul_u32_u24 v22, {12*1024}, v22
    v_add_u32 v22, v22, v21
    v_add_u32 v23, 4096, v22
    v_add_u32 v24, 8192, v22
    """)
    for k in range(12):
        a.e(f"buffer_load_dwordx2 {vr(L+2*k,2)}, v{22 + k//4}, s[20:23], s55 offen offset:{(k%4)*1024} sc1")
    repack_stores(a, name)
    a.e(f"""
    v_lshrrev_b32 v25, 8, v0            ; kg
    v_bfe_u32 v26, v0, 6, 2             ; r
    v_bfe_u32 v27, v0, 4, 2             ; c
    v_lshl_add_u32 v26, v25, 3, v26
    v_mul_u32_u24 v26, 200, v26
    v_lshl_add_u32 v26, v27, 3, v26
    s_mul_i32 s38, s3, 6400
    s_add_u32 s38, s38, {XR}
    v_add_u32 v26, s38, v26
    s_lshl_b32 s39, s3, 8
    s_add_u32 s39, s39, {PRM}
    v_lshrrev_b32 v28, 1, v21
    v_add_u32 v28, s39, v28
    v_lshl_add_u32 v29, v25, 5, s39
    """)
    ZT = 112
    for b in range(6):
        a.e(f"ds_read_b64_tr_b16 {vr(ZT+4*b,2)}, v26 offset:{b*32}")
        a.e(f"ds_read_b64_tr_b16 {vr(ZT+4*b+2,2)}, v26 offset:{b*32 + 800}")
    a.e(f"""
    s_cmp_ge_u32 s60, 720
    s_cbranch_scc1 {name}_w0
    s_waitcnt vmcnt(5)
    s_branch {name}_w1
    """)
    a.label(f"{name}_w0")
    a.e("s_waitcnt vmcnt(0)")
    a.label(f"{name}_w1")
    for k in range(1, 12):
        a.e(f"v_add_f32 v{L}, v{L}, v{L+2*k}")
        a.e(f"v_add_f32 v{L+1}, v{L+1}, v{L+2*k+1}")
    a.e(f"""
    v_mov_b32 v{L+2}, v{L}
    v_mov_b32 v{L+3}, v{L+1}
    s_nop 1
    v_permlane32_swap_b32 v{L}, v{L+2}
    v_permlane32_swap_b32 v{L+1}, v{L+3}
    s_nop 1
    v_add_f32 v{L}, v{L}, v{L+2}
    v_add_f32 v{L+1}, v{L+1}, v{L+3}
    v_mul_f32 v{L}, {f2u(1/2304.)}, v{L}
    v_mul_f32 v{L+1}, {f2u(1/2304.)}, v{L+1}
    v_fma_f32 v{L+1}, -v{L}, v{L}, v{L+1}
    v_max_f32 v{L+1}, 0, v{L+1}
    v_add_f32 v{L+1}, {f2u(1e-5)}, v{L+1}
    v_rsq_f32 v{L+1}, v{L+1}
    s_nop 0
    v_mul_f32 v{L+2}, v{R}, v{L+1}
    v_mul_f32 v{L+3}, -v{L}, v{L+1}
    ds_write_b32 v28, v{L+2}
    ds_write_b32 v28, v{L+3} offset:128
    s_waitcnt lgkmcnt(0)
    ds_read_b128 {vr(L+8)}, v29
    ds_read_b128 {vr(L+12)}, v29 offset:16
    ds_read_b128 {vr(L+16)}, v29 offset:128
    ds_read_b128 {vr(L+20)}, v29 offset:144
    s_waitcnt lgkmcnt(0)
    """)
    for b in range(6):
        for k in range(4):
            z = ZT + 4*b + k; t = 32 + 2*(k & 1)
            a.e(f"v_lshlrev_b32 v{t}, 16, v{z}")
            a.e(f"v_and_b32 v{t+1}, 0xffff0000, v{z}")
            a.e(f"v_fma_f32 v{t}, v{t}, v{L+8+2*k}, v{L+16+2*k}")
            a.e(f"v_fma_f32 v{t+1}, v{t+1}, v{L+9+2*k}, v{L+17+2*k}")
            a.e(f"v_cvt_pk_bf16_f32 v{z}, v{t}, v{t+1}")
        if b % 2 == 0 and b > 0:
            a.e("s_add_u32 s54, s54, 4096")
        a.e(f"buffer_store_dwordx4 {vr(ZT+4*b)}, v0, s[20:23], s54 offen offset:{(b&1)*1024} sc1")

def touch(a, vt=22):
    a.e(f"""
    s_load_dwordx2 s[62:63], s[0:1], {KA_WSP}
    s_lshl_b32 s38, s2, 2
    s_add_u32 s38, s38, s3
    s_lshl_b32 s39, s2, 1
    s_add_u32 s39, s39, s3
    s_sub_u32 s39, s39, 4
    s_waitcnt lgkmcnt(0)
    s_cmp_lt_u32 s3, 6
    s_cselect_b32 s28, s70, s72
    s_cselect_b32 s29, s71, s73
    s_mov_b32 s30, {D*D*2}
    s_cselect_b32 s30, {F2*D*2}, s30
    s_cselect_b32 s39, s39, s2
    s_cmp_lt_u32 s3, 4
    s_cselect_b32 s28, s62, s28
    s_cselect_b32 s29, s63, s29
    s_cselect_b32 s30, {S*S*2}, s30
    s_cselect_b32 s39, s38, s39
    s_mov_b32 s31, 0x20000
    s_cmp_eq_u32 s3, 7
    s_cselect_b32 s30, 0, s30
    s_lshl_b32 s39, s39, 13
    v_lshlrev_b32 v{vt}, 3, v0
    v_add_u32 v{vt}, s39, v{vt}
    """)
    a.lg_done = a.lg_n - 1
    a.vm(f"buffer_load_dword v{vt}, v{vt}, s[28:31], 0 offen")

def repack_loads(a, name, tag):
    lb = f"{name}_rp{tag}"
    a.e(f"""
    s_cmp_ge_u32 s60, 720
    s_cbranch_scc1 {lb}
    s_lshr_b32 s61, s60, 3              ; step
    s_and_b32 s62, s60, 7               ; d tile
    s_cmp_lt_u32 s61, 72
    s_cselect_b32 s28, s70, s72
    s_cselect_b32 s29, s71, s73
    s_mov_b32 s30, {D*D*2}
    s_cselect_b32 s30, {F2*D*2}, s30
    s_mov_b32 s31, 0x20000
    s_mov_b32 s63, {8*1152}
    s_cselect_b32 s63, {16*1152}, s63           ; j2 stride
    s_mov_b32 s64, {2*1152}                     ; j1 stride
    s_mov_b32 s65, {18*1152}
    s_cselect_b32 s65, {8*1152}, s65            ; k1 stride
    s_mov_b32 s66, {4*1152}                     ; k0 stride
    s_mul_i32 s67, s61, {32*1152}
    s_sub_u32 s68, s61, 72
    s_mul_i32 s68, s68, {36*1152}
    s_cmp_lt_u32 s61, 72
    s_cselect_b32 s67, s67, s68
    s_sub_u32 s68, s61, 88
    s_mul_i32 s68, s68, {288*1152}
    s_add_u32 s68, s68, {16*1152}
    s_cmp_ge_u32 s61, 88
    s_cselect_b32 s67, s68, s67
    s_cselect_b32 s63, {36*1152}, s63
    s_cselect_b32 s64, {18*1152}, s64
    s_cselect_b32 s65, {144*1152}, s65
    s_cselect_b32 s66, {72*1152}, s66
    s_mul_i32 s68, s62, 144
    s_add_u32 s67, s67, s68
    v_lshrrev_b32 v180, 9, v0
    v_mul_lo_u32 v180, v180, s64
    v_bfe_u32 v181, v0, 8, 1
    v_mul_u32_u24 v181, 1152, v181
    v_add_u32 v180, v180, v181
    v_and_b32 v181, 0xf0, v0
    v_add_u32 v180, v180, v181
    v_mov_b32 v182, {BIG}
    v_cmp_gt_u32 vcc, 144, v181
    s_lshl_b32 s48, s3, 13
    s_nop 0
    v_cndmask_b32 v180, v182, v180, vcc
    """)
    for i in range(8):
        j2, k1, k0 = i >> 2, (i >> 1) & 1, i & 1
        a.e(f"s_add_u32 m0, s48, {RING + i*1024}")
        a.e(f"s_mov_b32 s68, s67")
        if j2: a.e("s_add_u32 s68, s68, s63")
        if k1: a.e("s_add_u32 s68, s68, s65")
        if k0: a.e("s_add_u32 s68, s68, s66")
        a.e(f"buffer_load_dwordx4 v180, s[28:31], s68 offen lds")
    a.label(lb)

def repack_stores(a, name):
    lb = f"{name}_rps"
    a.e(f"""
    s_cmp_ge_u32 s60, 720
    s_cbranch_scc1 {lb}
    v_lshrrev_b32 v181, 6, v0
    v_lshlrev_b32 v181, 8, v181
    v_bfe_u32 v182, v0, 4, 2
    v_lshl_add_u32 v181, v182, 3, v181
    v_add_u32 v181, s48, v181
    """)
    for i in range(5):
        a.e(f"ds_read_b64_tr_b16 {vr(160+4*i,2)}, v181 offset:{RING + 32*i}")
        a.e(f"ds_read_b64_tr_b16 {vr(162+4*i,2)}, v181 offset:{RING + 32*i + 4096}")
    a.e(f"""
    s_mul_i32 s68, s62, 90
    s_add_u32 s68, s68, s61
    s_mul_i32 s68, s68, 4608
    s_add_u32 s68, s68, {WP}
    v_lshrrev_b32 v181, 8, v0
    v_lshlrev_b32 v181, 7, v181
    v_and_b32 v182, 0x70, v0
    v_add_u32 v181, v181, v182
    v_add_u32 v181, 4096, v181
    v_and_b32 v182, 0x80, v0
    v_cmp_eq_u32 vcc, 0, v182
    v_mov_b32 v182, {BIG}
    s_nop 0
    v_cndmask_b32 v181, v182, v181, vcc
    s_waitcnt lgkmcnt(0)
    """)
    for i in range(4):
        a.e(f"buffer_store_dwordx4 v[{160+4*i}:{163+4*i}], v0, s[20:23], s68 offen offset:{1024*i} sc1")
    a.e(f"buffer_store_dwordx4 v[176:179], v181, s[20:23], s68 offen sc1")
    a.label(lb)

def gen_k1(name="k1_kernel", stamp=False, attn=True):
    a = Sched()
    a.e(f"""
    s_cmp_ge_u32 s2, 256
    s_cbranch_scc1 {name}_end
    """)
    if stamp: stamp_begin(a)
    a.e(f"""
    s_load_dwordx4 s[4:7], s[0:1], {KA_X}         ; x, wqkv
    s_load_dwordx2 s[74:75], s[0:1], {KA_WPHI}
    s_load_dwordx2 s[72:73], s[0:1], {KA_WO}
    s_load_dwordx2 s[28:29], s[0:1], {KA_WIN}
    s_load_dwordx2 s[70:71], s[0:1], {KA_WOUT}
    s_load_dwordx4 s[64:67], s[0:1], {KA_DBG}
    v_lshrrev_b32 v1, 6, v0
    v_and_b32 v2, 63, v0
    v_readfirstlane_b32 s3, v1
    s_and_b32 s30, s2, 7
    s_lshr_b32 s31, s2, 3               ; l
    s_and_b32 s35, s30, 1
    s_lshr_b32 s30, s30, 1              ; j
    s_waitcnt lgkmcnt(0)
    """)
    srd(a, 24, 64, 65, 256)
    epoch_publish(a, name)
    srd(a, 8, 4, 5, S*D*2)
    srd(a, 16, 6, 7, D*1728*2)
    srd(a, 12, 28, 29, D*4608*2)
    srd(a, 20, 66, 67, WS_USED)
    a.e(f"""
    s_cmp_ge_u32 s31, 24
    s_cbranch_scc1 {name}_attn
    s_lshl_b32 s32, s35, 3
    s_and_b32 s33, s31, 7
    s_add_u32 s32, s32, s33             ; rt
    s_mul_i32 s33, s30, 3
    s_lshr_b32 s34, s31, 3
    s_add_u32 s33, s33, s34             ; zg
    s_lshr_b32 s34, s33, 2
    s_sub_u32 s34, s33, s34             ; qi
    s_and_b32 s36, s33, 3
    s_cmp_eq_u32 s36, 3
    s_cselect_b32 s18, 0, s18
    s_cselect_b32 s34, 0, s34
    s_mul_i32 s60, s33, 16
    s_add_u32 s60, s60, s32
    s_lshl_b32 s60, s60, 2
    s_add_u32 s60, s60, s3
    s_cmp_ge_u32 s3, 4
    s_cselect_b32 s60, 720, s60
    """)
    gen_zpath(a, name, stamp)
    if stamp: stamp_end(a, 1, "s3", 4)
    a.e("s_endpgm")
    a.label(f"{name}_attn")
    from k1a import gen_attn, A_LDS
    b = Sched(); b.uid = 1000
    gen_attn(b, name, stamp, attn)
    a.lines += b.lines
    lds = max(Z_LDS, A_LDS)
    a.label(f"{name}_end")
    a.e("s_endpgm")
    launch = f"; @launch kernel={name} grid=(256,1,1) block=(512,1,1) lds={lds}\n"
    return launch, kernel_begin(name) + a.text(), kernel_desc(name, 256, 102, 256)
```

```python
import os
from k1common import *
XRA = 0
WRA = 98304
PHI = 40960
AFO = 147456
CSA = AFO + 13*1024
A_LDS = CSA + 1024
PPH, PV = 328, 152

def gen_attn(a, name, stamp, full=True):
    X = 112; ACC = [48, 64, 80, 96]; WF = [24, 28, 32, 36, 40, 44]
    NEGMU, R = 14, 15
    CSR = [2, 4, 5, 6, 8, 9, 10, 11]
    a.e(f"""
    s_sub_u32 s33, s31, 24
    s_lshl_b32 s32, s35, 2
    s_and_b32 s34, s33, 3
    s_add_u32 s32, s32, s34             ; rt2
    s_lshr_b32 s33, s33, 2
    s_lshl_b32 s34, s30, 1
    s_add_u32 s33, s33, s34             ; G
    s_and_b32 s34, s33, 1               ; G odd
    s_mul_i32 s36, s33, 144
    s_lshl_b32 s37, s34, 4
    s_sub_u32 s37, s36, s37
    s_add_u32 s37, s37, 1152
    s_add_u32 s36, s36, {2304 - 160}
    """)
    rowstat_loads(a, 2, 48, 24)
    def colreg(dst, unit, t):
        a.e(f"""
        v_cmp_gt_u32 vcc, 10, v{unit}
        v_mov_b32 v{dst}, s36
        v_mov_b32 v{t}, s37
        v_cndmask_b32 v{dst}, v{dst}, v{t}, vcc
        v_lshl_add_u32 v{dst}, v{unit}, 4, v{dst}
        """)
    a.e(f"""
    v_and_b32 v26, 3, v2
    s_lshl_b32 s38, s3, 2
    v_add_u32 v27, s38, v26
    """)
    colreg(28, 27, 29)
    a.e(f"""
    v_lshrrev_b32 v30, 2, v2
    v_mul_u32_u24 v30, 3456, v30
    v_add_u32 v28, v28, v30
    v_mov_b32 v31, {BIG}
    s_cmp_lt_u32 s3, 5
    s_cselect_b64 vcc, -1, 0
    v_cndmask_b32 v28, v31, v28, vcc
    v_cmp_gt_u32 vcc, 32, v2
    s_mul_i32 s39, s32, {72*3456}
    s_nop 0
    v_cndmask_b32 v29, v31, v28, vcc
    """)
    for i in range(5):
        coop_id = a.vm(f"buffer_load_dwordx4 {vr(56+4*i)}, v{28 if i < 4 else 29}, s[16:19], s39 offen")
        if i < 4: a.e(f"s_add_u32 s39, s39, {16*3456}")
    a.e(f"""
    s_lshr_b32 s38, s3, 1
    s_lshl_b32 s38, s38, 2
    v_add_u32 v27, s38, v26
    """)
    colreg(5, 27, 29)
    a.e(f"""
    v_add_u32 v5, v5, v30
    v_add_u32 v6, {16*3456 - 1024}, v5
    v_add_u32 v27, 16, v26
    """)
    colreg(7, 27, 29)
    a.e(f"""
    v_add_u32 v7, v7, v30               ; B4 panel
    v_lshrrev_b32 v28, 3, v2
    v_and_b32 v29, 7, v2
    v_lshrrev_b32 v31, 4, v2
    v_xor_b32 v31, v31, v29
    v_mul_u32_u24 v8, 1152, v28
    v_lshl_add_u32 v8, v31, 4, v8
    v_xor_b32 v9, 64, v8
    v_add_u32 v10, {2*(8*1152-1024)}, v8
    v_add_u32 v11, {3*(8*1152-1024)}, v9
    v_add_u32 v9, {8*1152-1024}, v9
    s_and_b32 s40, s3, 1
    s_mul_i32 s40, s40, {32*3456}
    s_lshl_b32 s42, s3, 11
    s_add_u32 s42, s42, {WRA}
    s_lshl_b32 s43, s32, 8
    s_lshl_b32 s44, s3, 5
    s_add_u32 s43, s43, s44
    s_lshl_b32 s59, s43, 3
    s_add_u32 s59, s59, {XST}
    s_mul_i32 s43, s43, 1152
    s_lshl_b32 s44, s3, 12
    s_mul_i32 s41, s3, {16*3456}
    s_lshl_b32 s48, s3, 10
    """)
    wid = {}; xid = {}; pend = []
    def issue(k):
        if k[0] == "x":
            c, i = k[1], k[2]
            a.e(f"s_add_u32 m0, s44, {XRA + (c%3)*32768}\ns_add_u32 s46, s43, {c*128}")
            xid[c] = a.vm(f"buffer_load_dwordx4 v{8+i}, s[8:11], s46 offen offset:{i*1024} lds")
        elif k[0] == "w":
            c, i = k[1], k[2]
            a.e(f"s_add_u32 m0, s42, {(c%3)*16384}\ns_add_u32 s46, s40, {c*64*3456}")
            wid[c] = a.vm(f"buffer_load_dwordx4 v{5+i}, s[16:19], s46 offen offset:{i*1024} lds")
        else:
            i = k[1]
            a.e(f"s_add_u32 m0, s48, {XRA + i*8192}\ns_add_u32 s46, s41, {i*128*3456}")
            if i < 4:
                wid[("b4", i)] = a.vm(f"buffer_load_dwordx4 v7, s[16:19], s46 offen lds")
            else:
                a.e("v_add_u32 v22, s46, v7")
                wid[("b4", i)] = a.vm(f"buffer_load_dwordx4 v22, s[16:19], 0 offen lds")
    def push(c):
        pend.extend([("x", c, 0), ("x", c, 1), ("w", c, 0), ("x", c, 2), ("x", c, 3), ("w", c, 1)])
    def dma(n=1):
        for _ in range(n):
            if pend: issue(pend.pop(0))
    for c in range(3): push(c)
    dma(100)
    a.e(f"""
    s_mov_b32 s28, s74
    s_mov_b32 s29, s75
    s_mov_b32 s30, {32*18*18*2}
    s_mov_b32 s31, 0x20000
    v_lshrrev_b32 v24, 5, v2            ; h'
    v_bfe_u32 v25, v2, 3, 2             ; g
    v_and_b32 v26, 3, v2                ; r
    v_lshl_add_u32 v25, v25, 2, v26     ; n = 4g + r
    s_lshr_b32 s38, s3, 1               ; i
    s_and_b32 s39, s3, 1
    s_lshl_b32 s39, s39, 4
    s_lshl_b32 s45, s38, 1
    s_sub_u32 s39, s39, s45
    s_lshl_b32 s45, s34, 3
    s_sub_u32 s39, s39, s45             ; D0 = 16t - 2i - 8(G&1)
    v_lshlrev_b32 v27, 2, v24
    v_add_u32 v28, s39, v27
    s_lshl_b32 s46, s33, 2
    s_add_u32 s38, s38, s46
    s_mul_i32 s38, s38, 648
    v_lshlrev_b32 v29, 1, v25
    v_add_u32 v29, s38, v29
    v_lshrrev_b32 v30, 1, v25           ; i' = n>>1
    s_lshl_b32 s47, s3, 4
    s_sub_u32 s47, s47, s45
    v_add_u32 v31, s47, v27
    v_mul_u32_u24 v32, 18, v30
    v_sub_u32 v31, v31, v32
    v_cmp_lt_u32 vcc, 7, v25
    v_mov_b32 v33, 1000
    s_cmp_ge_u32 s3, 5
    s_cselect_b64 vcc, -1, vcc
    v_cndmask_b32 v31, v31, v33, vcc
    v_add_u32 v30, s46, v30
    v_mul_u32_u24 v30, 648, v30
    v_and_b32 v32, 1, v25
    v_lshl_add_u32 v30, v32, 1, v30
    v_add_u32 v30, 32, v30
    v_mov_b32 v33, {BIG}
    """)
    AFL = 208
    for f, (db, vf) in enumerate(((28, 29), (31, 30))):
        for j in range(8):
            a.e(f"""
            v_add_u32 v34, {8*(j>>2) + (j&3)}, v{db}
            v_cmp_gt_u32 vcc, 18, v34
            v_mul_u32_u24 v34, 36, v34
            v_add_u32 v34, v34, v{vf}
            v_cndmask_b32 v34, v33, v34, vcc
            """)
            af_id = a.vm(f"buffer_load_ushort v{AFL + 8*f + j}, v34, s[28:31], 0 offen")
    a.e(f"""
    v_and_b32 v22, 15, v2
    v_lshrrev_b32 v23, 2, v22           ; r
    v_and_b32 v22, 3, v22               ; c
    v_bfe_u32 v25, v2, 4, 1             ; n half
    v_lshl_add_u32 v1, v24, 3, v23      ; 8h + r
    v_mov_b32 v12, v1
    v_lshlrev_b32 v1, 6, v1
    v_lshl_add_u32 v1, v25, 5, v1
    v_lshl_add_u32 v3, v22, 3, v1
    v_add_u32 v1, {WRA}, v3
    v_and_b32 v32, 31, v2               ; s
    v_bfe_u32 v33, v2, 1, 3
    v_xor_b32 v33, v33, v24
    v_lshlrev_b32 v33, 4, v33
    v_lshl_add_u32 v16, v32, 7, v33
    v_add_u32 v16, s44, v16
    v_xor_b32 v17, 32, v16
    v_xor_b32 v18, 64, v16
    v_xor_b32 v19, 96, v16
    v_lshlrev_b32 v21, 3, v32           ; s*8
    v_lshlrev_b32 v20, 2, v0            ; tid*4
    v_lshlrev_b32 v0, 4, v2
    s_mul_i32 s57, s33, {8*160*4}
    s_add_u32 s57, s57, {CSPA}
    s_mul_i32 s47, s32, {160*4}
    s_add_u32 s47, s47, s57
    s_lshl_b32 s38, s3, 7
    s_add_u32 s47, s47, s38
    """)
    a.wait(vm=coop_id)
    pub = [rowstat_compute(a, 48, 24)]
    for i in range(5):
        unpack_add(a, 80, 56 + 4*i, 4, i == 0, 24)
    a.e("s_nop 1")
    for k in range(8):
        a.e(f"v_add_f32_dpp v{80+k}, v{80+k}, v{80+k} row_ror:4 row_mask:0xf bank_mask:0xf")
    fold8(a, 80, 88)
    a.e(f"""
    v_lshlrev_b32 v24, 1, v0
    v_cmp_gt_u32 vcc, 4, v2
    v_mov_b32 v25, {BIG}
    s_cmp_ge_u32 s3, 5
    s_cselect_b64 vcc, 0, vcc
    v_cndmask_b32 v24, v25, v24, vcc
    """)
    a.vm(f"buffer_store_dwordx4 {vr(80)}, v24, s[20:23], s47 offen sc1")
    pub.append(a.vm(f"buffer_store_dwordx4 {vr(84)}, v24, s[20:23], s47 offen offset:16 sc1"))
    a.e(f"""
    s_cmp_eq_u32 s3, 0
    s_cselect_b32 s38, 0, {BIG}
    v_mov_b32 v4, s38
    """)
    pub.append(a.vm("buffer_load_dword v14, v4, s[24:27], 0 offen sc1"))
    a.wait(vm=af_id)
    a.e(f"""
    v_bfe_u32 v24, v2, 2, 1
    v_mov_b32 v25, 0x80008000
    v_mul_lo_u32 v24, v24, v25
    """)
    for f in range(2):
        for k in range(4):
            a.e(f"v_lshl_or_b32 v{240+4*f+k}, v{AFL+8*f+2*k+1}, 16, v{AFL+8*f+2*k}")
            a.e(f"v_xor_b32 v{240+4*f+k}, v{240+4*f+k}, v24")
    a.e(f"""
    s_add_u32 s38, s48, {AFO}
    v_add_u32 v25, s38, v0
    s_min_u32 s39, s3, 4
    s_lshl_b32 s39, s39, 10
    s_add_u32 s38, s39, {AFO + 8192}
    v_add_u32 v26, s38, v0
    s_mul_i32 s45, s33, {13*1024}
    s_add_u32 s45, s45, {AF}
    s_add_u32 s39, s39, s45
    s_add_u32 s45, s45, s48
    v_mov_b32 v27, {BIG}
    s_cmp_eq_u32 s32, 0
    s_cselect_b64 vcc, -1, 0
    v_cndmask_b32 v28, v27, v0, vcc
    s_cmp_ge_u32 s3, 5
    s_cselect_b64 vcc, 0, vcc
    v_cndmask_b32 v29, v27, v0, vcc
    """)
    a.lg(f"ds_write_b128 v25, {vr(240)}")
    lbw = name + "_afw"
    a.e(f"s_cmp_ge_u32 s3, 5\ns_cbranch_scc1 {lbw}\nds_write_b128 v26, {vr(244)}")
    a.label(lbw)
    a.vm(f"buffer_store_dwordx4 {vr(240)}, v28, s[20:23], s45 offen sc1")
    a.e("s_add_u32 s39, s39, 8192")
    a.vm(f"buffer_store_dwordx4 {vr(244)}, v29, s[20:23], s39 offen sc1")
    a.e(f"""
    v_lshrrev_b32 v22, 2, v0
    s_lshl_b32 s38, s32, 7
    s_add_u32 s38, s38, {FLX}
    v_add_u32 v23, s38, v22
    v_and_b32 v22, 28, v22
    s_lshl_b32 s39, s33, 6
    s_add_u32 s39, s39, {FLC + 12*64}
    v_add_u32 v22, s39, v22
    v_cmp_gt_u32 vcc, 32, v2
    s_lshl_b32 s49, s32, 2
    s_add_u32 s49, s49, s39
    v_cndmask_b32 v22, v22, v23, vcc
    v_add_u32 v22, v22, v4
    v_cmp_gt_u32 vcc, {160*4}, v20
    v_mov_b32 v23, {BIG}
    s_waitcnt lgkmcnt(0)
    v_cndmask_b32 v23, v23, v20, vcc
    v_min_u32 v20, {255*4}, v20
    v_add_u32 v20, {CSA}, v20
    """)
    def barrier(vmid):
        a.wait(vm=vmid, lg=a.lg_n - 1)
        a.e("s_barrier")
    sig = {}
    def signal():
        if sig or max(pub) > a.vm_done: return
        lb = a.newlabel(name + "_asig")
        a.e(f"s_cmp_eq_u32 s3, 0\ns_cbranch_scc0 {lb}")
        epoch_fetch(a, name, 14, 4)
        a.e(f"""
        s_lshl_b32 s38, s2, 2
        s_add_u32 s38, s38, {FLX}
        v_mov_b32 v15, s49
        v_writelane_b32 v15, s38, 0
        s_mov_b64 exec, 3
        v_mov_b32 v14, s69
        buffer_store_dword v14, v15, s[20:23], 0 offen sc1
        s_mov_b64 exec, -1
        """)
        a.label(lb)
        sig[1] = 1
    seq = [(c, j, b) for c in range(9) for j in range(4) for b in range(4)]
    rid = {}
    def rd(n):
        c, j, b = seq[n]
        if b == 0:
            xr = X + (4*c + j)*4
            if c % 3 < 2:
                a.lg(f"ds_read_b128 {vr(xr)}, v{16+j} offset:{(c%3)*32768}")
            else:
                a.e(f"v_add_u32 v13, 65536, v{16+j}")
                a.lg(f"ds_read_b128 {vr(xr)}, v13")
        w = WF[n % 6]
        off = (c % 3)*16384 + b*4096 + j*1024
        a.lg(f"ds_read_b64_tr_b16 {vr(w,2)}, v1 offset:{off}")
        rid[n] = a.lg(f"ds_read_b64_tr_b16 {vr(w+2,2)}, v1 offset:{off+256}")
    AH = 3
    barrier(max(xid[0], wid[0]))
    if stamp: stamp_mid(a, 0)
    for n in range(AH): rd(n)
    b4 = {}
    def rd4(i):
        w = WF[i % 4]
        a.lg(f"ds_read_b64_tr_b16 {vr(w,2)}, v3 offset:{i*1024}")
        b4[i] = a.lg(f"ds_read_b64_tr_b16 {vr(w+2,2)}, v3 offset:{i*1024+256}")
    for n, (c, j, b) in enumerate(seq):
        a.wait(lg=rid[n])
        m = n + AH
        if m < len(seq):
            if m % 16 == 0:
                c1 = m // 16
                dma(100)
                if c1 == 7:
                    a.wait(vm=fl_id)
                    flags_check(a, name, 14, 22, "0", True)
                barrier(max(xid[c1], wid[c1]))
                signal()
                if c1 + 2 < 9: push(c1 + 2)
                if c1 == 7: pend.extend([("b4", i) for i in range(4)])
                if c1 == 8: pend.append(("b4", 4))
                if c1 == 7:
                    a.vm(f"buffer_load_dwordx2 {vr(NEGMU,2)}, v21, s[20:23], s59 offen sc1")
                    for k in range(8):
                        a.vm(f"buffer_load_dword v{CSR[k]}, v23, s[20:23], s57 offen offset:{(k%4)*640} sc1", "csp")
                        if k == 3: a.e(f"s_add_u32 s57, s57, 2560")
            rd(m)
        a.e(f"{MF32} {vr(ACC[b],16)}, {vr(WF[n % 6])}, {vr(X + (4*c+j)*4)}, " + ("0" if n < 4 else vr(ACC[b],16)))
        if n % 2 == 1: dma(1)
        if n == 16*6 + 4:
            assert sig
            fl_id = a.vm("buffer_load_dword v14, v22, s[20:23], 0 offen sc1")
    if stamp: stamp_mid(a, 1)
    dma(100)
    a.wait_key("csp")
    for k in range(4): a.e(f"v_add_f32 v{CSR[k]}, v{CSR[k]}, v{CSR[4+k]}")
    a.e("v_add_f32 v4, v4, v2\nv_add_f32 v6, v6, v5\nv_add_f32 v4, v4, v6")
    a.lg("ds_write_b32 v20, v4")
    barrier(wid[("b4", 4)])
    a.e(f"""
    v_lshrrev_b32 v4, 9, v0
    v_lshlrev_b32 v4, 4, v4
    v_add_u32 v4, {CSA}, v4
    v_add_u32 v5, {AFO}, v0
    v_lshrrev_b32 v6, 3, v21
    s_lshl_b32 s38, s3, 5
    v_add_u32 v6, s38, v6
    v_lshrrev_b32 v8, 9, v0             ; h / sign
    v_mul_u32_u24 v7, {PV}, v6
    v_lshl_add_u32 v7, v8, 3, v7
    v_mul_u32_u24 v6, {PPH}, v6
    v_mul_u32_u24 v8, 40, v8
    v_add_u32 v6, v6, v8
    v_add_u32 v6, {PHI}, v6
    """)
    CB = [16, 8]
    def conv(b, acc, emit_now):
        for g in range(4):
            cb = CB[g & 1]; A = acc + 4*g
            a.add("lg", f"ds_read_b128 {vr(cb)}, v4 offset:{b*128 + g*32}", ("cs", b, g))
            a.add("w", None, ("cs", b, g))
            for r in range(4): a.addv(f"v_fmac_f32 v{A+r}, v{NEGMU}, v{cb+r}")
            for r in range(4): a.addv(f"v_mul_f32 v{A+r}, v{R}, v{A+r}")
            a.addv(f"v_cvt_pk_bf16_f32 v{acc+2*g}, v{A}, v{A+1}")
            a.addv(f"v_cvt_pk_bf16_f32 v{acc+2*g+1}, v{A+2}, v{A+3}")
        if emit_now: a.flush()
    if "k1touch" in os.environ.get("OPT", ""):
        from k1 import touch
        touch(a)
    rd4(0); rd4(1)
    conv(3, ACC[3], True)
    for k in range(8): a.e(f"v_mov_b32 v{40+k}, v{96+k}")
    conv(0, ACC[0], False); conv(1, ACC[1], False); conv(2, ACC[2], False)
    for i in range(36):
        a.wait(lg=b4[i])
        if i + 2 < 36: rd4(i + 2)
        mfma(a, vr(ACC[3],16), vr(WF[i % 4]), vr(X + 4*i), "0" if i == 0 else vr(ACC[3],16))
        a.pump(6)
    a.flush()
    if stamp: stamp_mid(a, 2)
    KB = [48, 52, 64, 68, 80]
    AFR = 112
    P = [164, 180, 196, 212]; PT = 228
    for f in range(13):
        a.lg(f"ds_read_b128 {vr(AFR+4*f)}, v5 offset:{f*1024}", ("af", f))
    for st_ in range(5):
        a.wait_key(("af", 8 + st_))
        a.e(f"{MF32} {vr(PT,16)}, {vr(AFR+4*(8+st_))}, {vr(KB[st_])}, " + ("0" if st_ == 0 else vr(PT,16)))
    for i in range(4):
        for t in range(2):
            a.e(f"{MF32} {vr(P[i],16)}, {vr(AFR+4*(2*i+t))}, {vr(KB[i+t])}, " + ("0" if t == 0 else vr(P[i],16)))
    conv(4, ACC[3], True)
    a.e(f"s_mov_b32 s45, {f2u(LOG2E)}")
    for i in range(4):
        vals = [P[i] + k for k in range(16)] + [PT + 2*i, PT + 2*i + 1]
        softmax18(a, vals, 24, 28)
        for k in range(4):
            a.lg(f"ds_write_b64 v6, {vr(28+2*k,2)} offset:{i*80 + 8*k}")
        a.lg(f"ds_write_b32 v6, v36 offset:{i*80 + 32}")
    a.wait_all(vm=False)
    a.e("s_barrier")
    vq = [(84, 0), (86, 8)] + [(40 + 2*g, 16 + 8*g) for g in range(4)] + [(96 + 2*g, 48 + 8*g) for g in range(3)]
    for reg, cv in vq:
        a.lg(f"ds_write_b64 v7, {vr(reg,2)} offset:{2*cv}")
    a.e(f"""
    v_mov_b32 v24, {ONES}
    v_mov_b32 v25, {ONES}
    v_lshrrev_b32 v26, 9, v0
    v_lshlrev_b32 v26, 3, v26
    v_sub_u32 v26, v7, v26
    """)
    a.lg("ds_write_b64 v26, v[24:25] offset:144")
    a.e(f"""
    s_lshr_b32 s38, s3, 1               ; i
    s_and_b32 s39, s38, 1
    s_mul_i32 s40, s38, 36
    s_lshl_b32 s39, s39, 2
    s_sub_u32 s40, s40, s39
    v_bfe_u32 v24, v0, 4, 2             ; c
    v_bfe_u32 v25, v0, 8, 1             ; n half
    v_lshlrev_b32 v26, 3, v24
    v_lshl_add_u32 v26, v25, 5, v26
    v_add_u32 v27, s40, v26
    v_cmp_eq_u32 vcc, 40, v26
    v_mov_b32 v28, 144
    v_mul_u32_u24 v29, {PV}, v12
    v_cndmask_b32 v27, v27, v28, vcc
    v_add_u32 v27, v27, v29
    v_mul_u32_u24 v29, {PPH}, v12
    v_add_u32 v29, v29, v26
    s_mul_i32 s41, s3, 40
    s_add_u32 s41, s41, {PHI}
    v_add_u32 v29, s41, v29
    v_add_u32 v30, {128*PPH}, v29
    """)
    a.wait_all(vm=False)
    a.e("s_barrier")
    kid = {}
    for ks in range(16):
        r = 112 + 8*ks
        a.lg(f"ds_read_b64_tr_b16 {vr(r,2)}, v27 offset:{16*ks*PV}")
        a.lg(f"ds_read_b64_tr_b16 {vr(r+2,2)}, v27 offset:{(16*ks+4)*PV}")
        vb = 29 + ks // 8; o = (16*(ks % 8))*PPH
        a.lg(f"ds_read_b64_tr_b16 {vr(r+4,2)}, v{vb} offset:{o}")
        kid[ks] = a.lg(f"ds_read_b64_tr_b16 {vr(r+6,2)}, v{vb} offset:{o + 4*PPH}")
        if ks >= 2:
            k2 = ks - 2
            a.wait(lg=kid[k2])
            a.e(f"{MF32} {vr(48,16)}, {vr(112+8*k2)}, {vr(116+8*k2)}, " + ("0" if k2 == 0 else vr(48,16)))
    for k2 in (14, 15):
        a.wait(lg=kid[k2])
        a.e(f"{MF32} {vr(48,16)}, {vr(112+8*k2)}, {vr(116+8*k2)}, {vr(48,16)}")
    a.e(f"""
    s_lshl_b32 s38, s32, 6
    s_lshl_b32 s39, s33, 3
    s_add_u32 s38, s38, s39
    s_add_u32 s38, s38, s3
    s_mul_i32 s38, s38, 1920
    s_add_u32 s38, s38, {KVP}
    v_lshrrev_b32 v24, 9, v0
    v_mul_u32_u24 v24, 320, v24
    v_lshrrev_b32 v25, 1, v21
    v_add_u32 v24, v24, v25
    v_cmp_gt_u32 vcc, 80, v25
    v_mov_b32 v26, {BIG}
    s_nop 0
    v_cndmask_b32 v24, v26, v24, vcc
    s_nop 7
    """)
    for g in range(3):
        for r in range(4):
            a.e(f"buffer_store_dword v{48+4*g+r}, v24, s[20:23], s38 offen offset:{(8*g+r)*80} sc1")
    if stamp: stamp_end(a, 1, "s3", 3)

def softmax18(a, vals, t, out):
    m, sm = t, t + 1
    a.e(f"v_max3_f32 v{m}, v{vals[0]}, v{vals[1]}, v{vals[2]}")
    a.e(f"v_max3_f32 v{sm}, v{vals[3]}, v{vals[4]}, v{vals[5]}")
    for k in range(6, 18, 4):
        a.e(f"v_max3_f32 v{m}, v{m}, v{vals[k]}, v{vals[k+1]}")
        a.e(f"v_max3_f32 v{sm}, v{sm}, v{vals[k+2]}, v{vals[k+3]}")
    a.e(f"v_max_f32 v{m}, v{m}, v{sm}")
    a.e(f"v_mul_f32 v{m}, s45, v{m}")
    for v in vals: a.e(f"v_fma_f32 v{v}, v{v}, s45, -v{m}")
    for v in vals: a.e(f"v_exp_f32 v{v}, v{v}")
    a.e(f"v_add_f32 v{sm}, v{vals[0]}, v{vals[1]}")
    a.e(f"v_add_f32 v{t+2}, v{vals[2]}, v{vals[3]}")
    for k in range(4, 18, 2):
        a.e(f"v_add_f32 v{sm}, v{sm}, v{vals[k]}")
        a.e(f"v_add_f32 v{t+2}, v{t+2}, v{vals[k+1]}")
    a.e(f"v_add_f32 v{sm}, v{sm}, v{t+2}")
    a.e(f"v_rcp_f32 v{sm}, v{sm}")
    a.e("s_nop 0")
    for v in vals: a.e(f"v_mul_f32 v{v}, v{v}, v{sm}")
    for k in range(9):
        a.e(f"v_cvt_pk_bf16_f32 v{out+k}, v{vals[2*k]}, v{vals[2*k+1]}")
```

```python
import math, struct
from asmlib import *
from layout import *
def f2u(x): return struct.unpack("<I", struct.pack("<f", x))[0]
LOG2E = math.log2(math.e)
ONES = 0x3f803f80
MF32 = "v_mfma_f32_32x32x16_bf16"
BIG = 0x40000000
def vr(b, n=4): return f"v[{b}:{b+n-1}]"

def mfma(a, d, x, y, c):
    import os
    np_ = "noprio" in os.environ.get("ABL", "")
    if not np_: a.e("s_setprio 1")
    a.e(f"{MF32} {d}, {x}, {y}, {c}")
    if not np_: a.e("s_setprio 0")

def epoch_publish(a, name):
    lb = name + "_ep"
    a.e(f"""
    s_or_b32 s38, s2, s3
    s_cmp_eq_u32 s38, 0
    s_cbranch_scc0 {lb}
    s_memrealtime s[38:39]
    s_waitcnt lgkmcnt(0)
    s_or_b32 s38, s38, 1
    v_mov_b32 v10, s38
    v_mov_b32 v11, 0
    s_mov_b64 exec, 1
    buffer_store_dword v10, v11, s[24:27], 0 offen sc1
    s_mov_b64 exec, -1
    """)
    a.label(lb)

def epoch_fetch(a, name, vtmp, vzero):
    lp = a.newlabel(name + "_epl"); ok = a.newlabel(name + "_epk")
    a.e(f"""
    v_readfirstlane_b32 s69, v{vtmp}
    s_mov_b32 s58, 400000
    """)
    a.label(lp)
    a.e(f"""
    s_cmp_lg_u32 s69, 0
    s_cbranch_scc1 {ok}
    s_sub_u32 s58, s58, 1
    s_cmp_eq_u32 s58, 0
    s_cbranch_scc1 {ok}
    s_sleep 4
    buffer_load_dword v{vtmp}, v{vzero}, s[24:27], 0 offen sc1
    s_waitcnt vmcnt(0)
    v_readfirstlane_b32 s69, v{vtmp}
    s_branch {lp}
    """)
    a.label(ok)

def flags_check(a, name, vflag, vaddr, soff, wave0=False):
    lp = a.newlabel(name + "_fl"); ok = a.newlabel(name + "_fk")
    if wave0: a.e(f"s_cmp_eq_u32 s3, 0\ns_cbranch_scc0 {ok}")
    a.e("s_mov_b32 s58, 400000")
    a.label(lp)
    a.e(f"""
    v_cmp_ne_u32 vcc, s69, v{vflag}
    s_sub_u32 s58, s58, 1
    s_cmp_eq_u32 s58, 0
    s_cbranch_scc1 {ok}
    s_cmp_eq_u64 vcc, 0
    s_cbranch_scc1 {ok}
    s_sleep 4
    buffer_load_dword v{vflag}, v{vaddr}, s[20:23], {soff} offen sc1
    s_waitcnt vmcnt(0)
    s_branch {lp}
    """)
    a.label(ok)

def rowstat_loads(a, lane, R0, tmp):
    a.e(f"""
    s_lshl_b32 s38, s2, 3
    s_add_u32 s38, s38, s3
    s_mul_i32 s39, s38, 1152
    v_lshlrev_b32 v{tmp}, 4, v{lane}
    v_cmp_gt_u32 vcc, 8, v{lane}
    v_mov_b32 v{tmp+1}, {BIG}
    s_nop 0
    v_cndmask_b32 v{tmp+1}, v{tmp+1}, v{tmp}, vcc
    """)
    a.vm(f"buffer_load_dwordx4 {vr(R0)}, v{tmp}, s[8:11], s39 offen")
    return a.vm(f"buffer_load_dwordx4 {vr(R0+4)}, v{tmp+1}, s[8:11], s39 offen offset:1024")

def wave_sum(a, regs, tmp):
    for ctl in ("row_shr:1", "row_shr:2", "row_shr:4", "row_shr:8"):
        a.e("s_nop 1")
        for r in regs:
            a.e(f"v_add_f32_dpp v{r}, v{r}, v{r} {ctl} row_mask:0xf bank_mask:0xf bound_ctrl:0")
    a.e("s_nop 1")
    for r in regs:
        a.e(f"v_add_f32_dpp v{r}, v{r}, v{r} row_bcast:15 row_mask:0xa bank_mask:0xf")
    a.e("s_nop 1")
    for r in regs:
        a.e(f"v_add_f32_dpp v{r}, v{r}, v{r} row_bcast:31 row_mask:0xc bank_mask:0xf")

def rowstat_compute(a, R0, t):
    a.e(f"v_mov_b32 v{t}, 0\nv_mov_b32 v{t+1}, 0\ns_mov_b32 s45, {ONES}")
    for k in range(8):
        a.e(f"v_dot2c_f32_bf16 v{t}, s45, v{R0+k}")
        a.e(f"v_dot2c_f32_bf16 v{t+1}, v{R0+k}, v{R0+k}")
    a.e("s_nop 2")
    wave_sum(a, [t, t+1], None)
    a.e(f"""
    v_mul_f32 v{t}, {f2u(-1/576.)}, v{t}
    v_mul_f32 v{t+1}, {f2u(1/576.)}, v{t+1}
    v_fma_f32 v{t+1}, -v{t}, v{t}, v{t+1}
    v_max_f32 v{t+1}, 0, v{t+1}
    v_add_f32 v{t+1}, {f2u(1e-5)}, v{t+1}
    v_rsq_f32 v{t+1}, v{t+1}
    s_lshl_b32 s38, s2, 6
    s_lshl_b32 s39, s3, 3
    s_add_u32 s38, s38, s39
    s_add_u32 s38, s38, {XST}
    v_mov_b32 v{t+2}, 0
    s_mov_b32 exec_lo, 0
    s_mov_b32 exec_hi, 0x80000000
    """)
    i = a.vm(f"buffer_store_dwordx2 {vr(t,2)}, v{t+2}, s[20:23], s38 offen sc1")
    a.e("s_mov_b64 exec, -1")
    return i

def unpack_add(a, dst, src, nreg, first, t):
    for k in range(nreg):
        if first:
            a.e(f"v_lshlrev_b32 v{dst+2*k}, 16, v{src+k}")
            a.e(f"v_and_b32 v{dst+2*k+1}, 0xffff0000, v{src+k}")
        else:
            a.e(f"v_lshlrev_b32 v{t}, 16, v{src+k}")
            a.e(f"v_and_b32 v{t+1}, 0xffff0000, v{src+k}")
            a.e(f"v_add_f32 v{dst+2*k}, v{dst+2*k}, v{t}")
            a.e(f"v_add_f32 v{dst+2*k+1}, v{dst+2*k+1}, v{t+1}")

def fold8(a, R, T, n=8):
    a.e("s_nop 1")
    for k in range(n):
        a.e(f"v_add_f32_dpp v{R+k}, v{R+k}, v{R+k} row_ror:8 row_mask:0xf bank_mask:0xf")
    for op in ("v_permlane16_swap_b32", "v_permlane32_swap_b32"):
        for k in range(n): a.e(f"v_mov_b32 v{T+k}, v{R+k}")
        a.e("s_nop 1")
        for k in range(n): a.e(f"{op} v{R+k}, v{T+k}")
        a.e("s_nop 1")
        for k in range(n): a.e(f"v_add_f32 v{R+k}, v{R+k}, v{T+k}")
```

```python
from asmlib import *
from layout import *
from k3 import srd
from k1common import *
from k1a import softmax18

SLOT = 34 * 1024
NSLOT = 4

def tile_ids(a):
    a.e("""
    s_and_b32 s10, s2, 7
    s_lshr_b32 s11, s2, 3
    s_and_b32 s32, s10, 1
    s_lshl_b32 s32, s32, 3
    s_and_b32 s33, s11, 7
    s_add_u32 s32, s32, s33             ; ti
    s_lshr_b32 s33, s10, 1
    s_lshl_b32 s33, s33, 2
    s_lshr_b32 s34, s11, 3
    s_add_u32 s33, s33, s34             ; fj
    """)

KVI = NSLOT * SLOT

def gen_loader(a, name, hi):
    n = 8 if hi else 9
    def issue(slot):
        base = slot * SLOT
        a.e(f"s_add_u32 m0, s39, {base}")
        a.e("s_nop 0")
        for i in range(4):
            a.e(f"buffer_load_dwordx4 v{4+i}, s[12:15], s36 offen offset:{i*1024} lds")
        a.e(f"s_add_u32 m0, s40, {base}")
        a.e("s_add_u32 s36, s36, 128")
        for i in range(3 if hi else 4):
            a.e(f"buffer_load_dwordx4 v3, s[16:19], s37 offen offset:{i*1024} lds")
        a.e(f"s_add_u32 m0, s41, {base}")
        a.e(f"s_add_u32 s37, s37, {2*144*1024}")
        a.e(f"buffer_load_dwordx4 v3, s[16:19], s38 offen lds")
        a.e(f"s_add_u32 s38, s38, {2*144*1024}")
    fb0 = 5 if hi else 0
    fbx = 8 if hi else 4
    a.e(f"""
    s_and_b32 s42, s3, 1
    s_mul_i32 s43, s33, 9
    s_and_b32 s44, s33, 1
    s_add_u32 s45, s43, s44
    s_mul_i32 s46, s42, 144
    s_add_u32 s37, s45, s46
    s_add_u32 s37, s37, {fb0}
    s_lshl_b32 s37, s37, 10
    """)
    if hi:
        a.e(f"""
        s_cmp_eq_u32 s44, 0
        s_cselect_b32 s47, 8, 0
        s_add_u32 s38, s43, s47             ; g8
        s_add_u32 s38, s38, s46
        s_lshl_b32 s38, s38, 10
        """)
    else:
        a.e(f"s_add_u32 s38, s37, 4096")
    a.e(f"""
    s_mul_i32 s40, s42, {9*1024}
    s_add_u32 s41, s40, {fbx*1024}
    s_add_u32 s40, s40, {fb0*1024}
    s_lshl_b32 s39, s3, 12
    s_add_u32 s39, s39, {18*1024}
    """)
    for s in range(3):
        issue(s)
    lp = f"{name}_ld{int(hi)}"
    a.e("s_mov_b32 s48, 0")
    a.label(lp)
    for u in range(4):
        a.e(f"s_waitcnt vmcnt({2*n})")
        a.e("s_barrier")
        issue((u + 3) % 4)
    a.e(f"""
    s_add_u32 s48, s48, 1
    s_cmp_lt_u32 s48, 6
    s_cbranch_scc1 {lp}
    """)
    for u in range(3):
        a.e(f"s_waitcnt vmcnt({2*n})\ns_barrier")
        issue((u + 3) % 4)
    side_loads(a)
    a.e(f"s_waitcnt vmcnt({2*n + 16})\ns_barrier")
    issue(2)
    a.e(f"s_waitcnt vmcnt({2*n + 16})\ns_barrier")
    issue(3)
    a.e(f"s_waitcnt vmcnt({2*n})\ns_branch {name}_side{int(hi)}")

def side_loads(a):
    a.e(f"""
    s_and_b32 s50, s2, 7
    s_lshr_b32 s51, s2, 3               ; head
    s_mul_i32 s52, s51, 3840
    s_add_u32 s52, s52, {KVP}
    v_lshlrev_b32 v9, 4, v0
    v_subrev_u32 v9, 4096, v9           ; (tid - 256)*16
    v_cmp_gt_u32 vcc, 3840, v9
    v_mov_b32 v10, {BIG}
    s_lshr_b32 s53, s51, 2
    s_mul_i32 s53, s53, 13
    v_cndmask_b32 v10, v10, v9, vcc
    s_and_b32 s54, s51, 3               ; i
    s_lshl_b32 s55, s54, 1
    s_add_u32 s55, s55, s53
    s_lshl_b32 s55, s55, 10
    s_add_u32 s55, s55, {AF}
    s_add_u32 s56, s53, s54
    s_lshl_b32 s56, s56, 10
    s_add_u32 s56, s56, {AF + 8192}
    s_lshl_b32 s57, s50, 3
    s_lshl_b32 s58, s3, 1
    s_add_u32 s57, s57, s58
    s_mul_i32 s58, s57, 36
    s_lshr_b32 s59, s51, 3
    s_add_u32 s59, s59, s51
    s_add_u32 s58, s58, s59
    s_lshl_b32 s58, s58, 10
    s_add_u32 s58, s58, {Q}
    """)
    for k in range(2):
        a.e(f"buffer_load_dwordx4 {vr(16+4*k)}, v3, s[20:23], s55 offen offset:{k*1024}")
        a.e(f"buffer_load_dwordx4 {vr(24+4*k)}, v3, s[20:23], s56 offen offset:{k*1024}")
        a.e(f"buffer_load_dwordx4 {vr(32+4*k)}, v3, s[20:23], s58 offen offset:{k*1024}")
    a.e(f"s_add_u32 s58, s58, {36*1024}")
    for k in range(2):
        a.e(f"buffer_load_dwordx4 {vr(40+4*k)}, v3, s[20:23], s58 offen offset:{k*1024}")
    for k in range(8):
        a.e(f"buffer_load_dwordx4 {vr(48+4*k)}, v10, s[20:23], s52 offen")
        if k < 7: a.e(f"s_add_u32 s52, s52, {32*3840}")

def gen_side(a, name):
    P = [80, 112]; PT = [96, 128]; PH = [144, 156]
    for hi in (0, 1):
        a.label(f"{name}_side{hi}")
        a.e(f"s_mov_b32 s49, {hi}")
        if hi == 0: a.e(f"s_branch {name}_sidec")
    a.label(f"{name}_sidec")
    a.e("s_barrier")
    for b in range(2):
        for t in range(2):
            a.e(f"{MF32} {vr(P[b],16)}, {vr(16+4*t)}, {vr(32+8*b+4*t)}, " + ("0" if t == 0 else vr(P[b],16)))
            a.e(f"{MF32} {vr(PT[b],16)}, {vr(24+4*t)}, {vr(32+8*b+4*t)}, " + ("0" if t == 0 else vr(PT[b],16)))
    for k in range(1, 8):
        for r in range(4):
            a.e(f"v_add_f32 v{48+r}, v{48+r}, v{48+4*k+r}")
    a.e(f"""
    v_cvt_pk_bf16_f32 v48, v48, v49
    v_cvt_pk_bf16_f32 v49, v50, v51
    v_lshrrev_b32 v9, 1, v9
    v_add_u32 v9, {KVI}, v9
    ds_write_b64 v9, v[48:49]
    s_mov_b32 s45, {f2u(LOG2E)}
    """)
    for i in range(1, 4):
        a.e(f"s_cmp_eq_u32 s54, {i}\ns_cselect_b64 vcc, -1, 0")
        for b in range(2):
            a.e(f"v_cndmask_b32 v{PT[b]}, v{PT[b]}, v{PT[b]+2*i}, vcc")
            a.e(f"v_cndmask_b32 v{PT[b]+1}, v{PT[b]+1}, v{PT[b]+2*i+1}, vcc")
    lb = f"{name}_sw"
    a.e(f"""
    s_cmp_eq_u32 s49, 0
    s_cbranch_scc1 {lb}a
    s_waitcnt vmcnt(8)
    """)
    a.label(lb + "a")
    a.e("s_waitcnt vmcnt(9) lgkmcnt(0)\ns_barrier")
    softmax18(a, [P[0] + k for k in range(16)] + [PT[0], PT[0] + 1], 12, PH[0])
    a.e("s_waitcnt vmcnt(0)\ns_barrier")
    a.e(f"""
    v_and_b32 v4, 31, v2
    s_and_b32 s52, s51, 1
    s_lshl_b32 s52, s52, 1
    v_add_u32 v5, s52, v4
    v_min_u32 v5, 23, v5
    v_and_b32 v6, 27, v4
    v_cmp_eq_u32 vcc, 18, v6
    v_mov_b32 v7, 20
    v_lshrrev_b32 v8, 5, v2
    v_cndmask_b32 v5, v5, v7, vcc
    v_mul_u32_u24 v6, 24, v8
    v_add_u32 v5, v5, v6
    v_mul_u32_u24 v5, 40, v5
    v_add_u32 v5, {KVI}, v5
    ds_read_b64 v[48:49], v5
    ds_read_b64 v[50:51], v5 offset:8
    ds_read_b64 v[52:53], v5 offset:16
    ds_read_b64 v[54:55], v5 offset:24
    ds_read_b32 v56, v5 offset:32
    v_mov_b32 v57, 0
    v_mov_b32 v58, 0
    v_mov_b32 v59, 0
    """)
    for b in range(2):
        for k in range(9, 12): a.e(f"v_mov_b32 v{PH[b]+k}, 0")
    def apply(b):
        for st in range(3):
            a.e(f"{MF32} {vr(P[b],16)}, {vr(48+4*st)}, {vr(PH[b]+4*st)}, " + ("0" if st == 0 else vr(P[b],16)))
    a.e("s_waitcnt lgkmcnt(0)")
    apply(0)
    softmax18(a, [P[1] + k for k in range(16)] + [PT[1], PT[1] + 1], 12, PH[1])
    a.e("s_nop 1")
    apply(1)
    a.e(f"""
    v_bfe_u32 v6, v2, 4, 1
    v_mul_u32_u24 v6, {90*1024}, v6
    v_and_b32 v7, 15, v2
    v_lshl_add_u32 v6, v7, 4, v6
    v_lshl_add_u32 v7, v8, 8, v6
    v_cmp_gt_u32 vcc, 32, v2
    v_mov_b32 v9, {BIG}
    s_mul_i32 s57, s57, {2*90*1024}
    v_cndmask_b32 v6, v9, v6, vcc
    s_add_u32 s57, s57, {U}
    s_lshr_b32 s52, s51, 1
    s_lshl_b32 s52, s52, 10
    s_and_b32 s53, s51, 1
    s_lshl_b32 s53, s53, 9
    s_add_u32 s52, s52, s53
    s_add_u32 s52, s52, {72*1024}
    s_add_u32 s52, s52, s57
    s_lshr_b32 s53, s51, 4
    s_lshl_b32 s53, s53, 10
    s_bfe_u32 s55, s51, 0x20002
    s_lshl_b32 s55, s55, 8
    s_add_u32 s53, s53, s55
    s_lshl_b32 s55, s54, 2
    s_add_u32 s53, s53, s55
    s_add_u32 s53, s53, {88*1024}
    s_add_u32 s53, s53, s57
    """)
    for b in range(2):
        A = P[b]
        a.e(f"v_add_f32 v12, {f2u(1e-6)}, v{A+10}\nv_rcp_f32 v12, v12\ns_nop 0")
        for k in range(10): a.e(f"v_mul_f32 v{A+k}, v{A+k}, v12")
        for k in range(5): a.e(f"v_cvt_pk_bf16_f32 v{60+8*b+k}, v{A+2*k}, v{A+2*k+1}")
        a.e(f"buffer_store_dwordx4 {vr(60+8*b)}, v7, s[20:23], s52 offen sc1")
        a.e(f"buffer_store_dword v{64+8*b}, v6, s[20:23], s53 offen sc1")
        if b == 0: a.e(f"s_add_u32 s52, s52, {2*90*1024}\ns_add_u32 s53, s53, {2*90*1024}")
    a.e("s_endpgm")

def gen_k2(name="k2_kernel", stamp=False, side=None):
    a = Asm()
    ACC = 160
    FX, FY = 16, 60
    def acc(fb, tb): r = ACC + (fb*2 + tb)*4; return f"v[{r}:{r+3}]"
    def fa(buf, fb): r = buf + fb*4; return f"v[{r}:{r+3}]"
    def fbr(buf, tb): r = buf + 36 + tb*4; return f"v[{r}:{r+3}]"
    a.e(f"""
    s_cmp_ge_u32 s2, 256
    s_cbranch_scc1 {name}_end
    """)
    if stamp: stamp_begin(a)
    a.e(f"""
    s_load_dwordx2 s[4:5], s[0:1], {KA_WS}
    s_load_dwordx2 s[6:7], s[0:1], {KA_WSP}
    s_load_dwordx2 s[8:9], s[0:1], {KA_BSP}
    v_lshrrev_b32 v1, 6, v0
    v_and_b32 v2, 63, v0
    v_readfirstlane_b32 s3, v1          ; wave
    """)
    tile_ids(a)
    a.e("v_lshlrev_b32 v3, 4, v2             ; lane*16")
    a.e("s_waitcnt lgkmcnt(0)")
    srd(a, 12, 6, 7, S*S*2)
    srd(a, 16, 4, 5, Z2T_BYTES, Z2T)
    a.e(f"""
    s_cmp_lt_u32 s3, 4
    s_cbranch_scc1 {name}_compute
    s_sub_u32 s3, s3, 4
    s_mov_b32 s20, s4
    s_mov_b32 s21, s5
    s_mov_b32 s22, {WS_USED}
    s_mov_b32 s23, 0x20000
    v_lshrrev_b32 v8, 3, v2
    v_and_b32 v9, 7, v2                 ; position
    v_lshrrev_b32 v10, 4, v2
    v_xor_b32 v9, v9, v10
    v_lshlrev_b32 v8, 12, v8
    v_lshl_add_u32 v4, v9, 4, v8
    v_xor_b32 v9, 4, v9
    v_lshl_add_u32 v5, v9, 4, v8
    v_add_u32 v6, {2*(32768-1024)}, v4
    v_add_u32 v7, {3*(32768-1024)}, v5
    v_add_u32 v5, {(32768-1024)}, v5
    s_lshl_b32 s36, s32, 7
    s_lshl_b32 s37, s3, 5
    s_add_u32 s36, s36, s37
    s_lshl_b32 s36, s36, 12
    s_cmp_ge_u32 s3, 2
    s_cbranch_scc1 {name}_ldhi
    """)
    gen_loader(a, name, False)
    a.label(f"{name}_ldhi")
    gen_loader(a, name, True)
    gen_side(a, name)
    a.label(f"{name}_compute")
    srd(a, 20, 4, 5, Z1_BYTES, Z1)
    srd(a, 24, 4, 5, U_BYTES, U)
    srd(a, 28, 8, 9, S*2)
    a.e(f"""
    v_mov_b32 v4, v3
    v_add_u32 v5, {2*SLOT}, v3
    v_and_b32 v10, 15, v2               ; t
    v_lshrrev_b32 v11, 4, v2            ; kg
    v_lshrrev_b32 v12, 1, v10           ; swz
    v_xor_b32 v12, v12, v11
    v_lshlrev_b32 v12, 4, v12
    v_lshl_add_u32 v6, v10, 7, v12
    s_lshl_b32 s36, s3, 12
    s_add_u32 s36, s36, {18*1024}
    v_add_u32 v6, s36, v6
    v_xor_b32 v7, 64, v6
    v_add_u32 v8, {2*SLOT}, v6
    v_add_u32 v9, {2*SLOT}, v7
    """)
    a.e(f"""
    s_lshl_b32 s37, s32, 7
    s_lshl_b32 s38, s3, 5
    s_add_u32 s37, s37, s38
    s_lshl_b32 s38, s37, 1
    v_lshlrev_b32 v12, 1, v10
    buffer_load_ushort v13, v12, s[28:31], s38 offen
    buffer_load_ushort v14, v12, s[28:31], s38 offen offset:32
    """)
    import os
    if "k2touch" in os.environ.get("OPT", ""):
        a.e(f"""
        s_lshl_b32 s39, s2, 2
        s_add_u32 s39, s39, s3
        s_mul_i32 s39, s39, {72*128}
        v_lshlrev_b32 v15, 7, v2
        v_min_u32 v16, {7*128}, v15
        buffer_load_dword v17, v15, s[16:19], s39 offen
        s_add_u32 s39, s39, 8192
        buffer_load_dword v18, v16, s[16:19], s39 offen
        """)
    for r in range(ACC, ACC + 72):
        a.e(f"v_mov_b32 v{r}, 0")
    def reads(buf, slot, kh):
        L = []
        sa = (slot & 1) * SLOT
        va = "v4" if slot < 2 else "v5"
        vb = f"v{6 + kh + (0 if slot < 2 else 2)}"
        for tb in range(2):
            L.append(f"ds_read_b128 {fbr(buf,tb)}, {vb} offset:{sa + tb*2048}")
        for fb in range(9):
            L.append(f"ds_read_b128 {fa(buf,fb)}, {va} offset:{sa + (kh*9+fb)*1024}")
        return L
    def phase(cbuf, R, first=False):
        R = list(R)
        if first:
            for r in R: a.e(r)
            return
        k = 0
        for fb in range(9):
            for tb in range(2):
                if R and k < 11:
                    a.e(R.pop(0))
                a.e(f"v_mfma_f32_16x16x32_bf16 {acc(fb,tb)}, {fa(cbuf,fb)}, {fbr(cbuf,tb)}, {acc(fb,tb)}")
                k += 1
    def stage(slot, first=False):
        a.e("s_barrier")
        phase(FY, reads(FX, slot, 0), first)
        a.e("s_waitcnt lgkmcnt(0)")
        phase(FX, reads(FY, slot, 1))
        a.e("s_waitcnt lgkmcnt(0)")
    stage(0, first=True)
    if stamp: stamp_mid(a, 0)
    for u in range(1, 4): stage(u)
    a.e("s_mov_b32 s48, 0")
    lp = f"{name}_cl"
    a.label(lp)
    if stamp == 2:
        a.e("s_memtime s[60:61]\ns_memrealtime s[62:63]\ns_waitcnt lgkmcnt(0)\ns_mov_b32 m0, s48\ns_nop 0\nv_writelane_b32 v250, s60, m0\nv_writelane_b32 v251, s62, m0")
    for u in range(4): stage(u)
    a.e(f"""
    s_add_u32 s48, s48, 1
    s_cmp_lt_u32 s48, 6
    s_cbranch_scc1 {lp}
    """)
    ZR = 104
    a.e(f"""
    s_lshr_b32 s40, s37, 4
    s_mul_i32 s41, s33, 9
    s_and_b32 s42, s33, 1
    s_add_u32 s43, s41, s42
    s_lshr_b32 s43, s43, 1              ; st0
    s_add_u32 s44, s41, 8
    s_cmp_eq_u32 s42, 0
    s_cselect_b32 s44, s44, s41
    s_lshr_b32 s44, s44, 1              ; st8
    s_lshl_b32 s42, s42, 3              ; half*8
    s_mul_i32 s45, s40, 72
    s_add_u32 s46, s45, s44
    s_add_u32 s45, s45, s43
    s_lshl_b32 s45, s45, 10
    s_lshl_b32 s46, s46, 10
    s_add_u32 s46, s46, s42
    s_add_u32 s52, s45, {72*1024}
    s_add_u32 s53, s46, {72*1024}
    s_mul_i32 s54, s40, 90
    s_add_u32 s55, s54, s44
    s_add_u32 s54, s54, s43
    s_lshl_b32 s54, s54, 10
    s_lshl_b32 s55, s55, 10
    s_add_u32 s55, s55, s42
    s_add_u32 s56, s54, {90*1024}
    s_add_u32 s57, s55, {90*1024}
    """)
    for tb in range(2):
        sm, ss = ("s45", "s46") if tb == 0 else ("s52", "s53")
        for i in range(4):
            r = ZR + tb*18 + i*4
            a.e(f"buffer_load_dwordx4 v[{r}:{r+3}], v3, s[20:23], {sm} offen offset:{i*1024}")
        r = ZR + tb*18 + 16
        a.e(f"buffer_load_dwordx2 v[{r}:{r+1}], v3, s[20:23], {ss} offen")
    for u in range(4): stage(u)
    phase(FY, [])
    if stamp: stamp_mid(a, 1)
    a.e("s_waitcnt vmcnt(0)")
    a.e("v_lshlrev_b32 v13, 16, v13\nv_lshlrev_b32 v14, 16, v14\ns_nop 7")
    T = 16
    for tb in range(2):
        sm, ss = ("s54", "s55") if tb == 0 else ("s56", "s57")
        for i in range(5):
            nfb = 2 if i < 4 else 1
            zr = ZR + tb*18 + i*4
            t0 = T + (i % 2) * 8
            for k in range(nfb):
                fb = 2*i + k
                ar = ACC + (fb*2 + tb)*4
                for p in range(2):
                    z = zr + 2*k + p
                    a.e(f"v_add_f32 v{ar+2*p}, v{ar+2*p}, v{13+tb}")
                    a.e(f"v_add_f32 v{ar+2*p+1}, v{ar+2*p+1}, v{13+tb}")
                    a.e(f"v_lshlrev_b32 v{t0}, 16, v{z}")
                    a.e(f"v_and_b32 v{t0+1}, 0xffff0000, v{z}")
                    a.e(f"v_mul_f32 v{t0}, v{t0}, v{ar+2*p}")
                    a.e(f"v_mul_f32 v{t0+1}, v{t0+1}, v{ar+2*p+1}")
                    a.e(f"v_cvt_pk_bf16_f32 v{z}, v{t0}, v{t0+1}")
            if i < 4:
                a.e(f"buffer_store_dwordx4 v[{zr}:{zr+3}], v3, s[24:27], {sm} offen offset:{i*1024} sc1")
            else:
                a.e(f"buffer_store_dwordx2 v[{zr}:{zr+1}], v3, s[24:27], {ss} offen sc1")
    if stamp: stamp_mid(a, 2)
    if stamp == 2:
        a.e(f"""
        s_add_u32 s60, s4, {STAMP + 8*65536}
        s_addc_u32 s61, s5, 0
        s_mov_b32 s62, 1048576
        s_mov_b32 s63, 0x20000
        s_lshl_b32 s64, s2, 2
        s_add_u32 s64, s64, s3
        s_lshl_b32 s64, s64, 9
        v_lshlrev_b32 v252, 2, v2
        buffer_store_dword v250, v252, s[60:63], s64 offen
        buffer_store_dword v251, v252, s[60:63], s64 offen offset:256
        """)
    if stamp:
        stamp_end(a, 2, "s3", 3)
    a.label(f"{name}_end")
    a.e("s_endpgm")
    launch = f"; @launch kernel={name} grid=(256,1,1) block=(512,1,1) lds={NSLOT*SLOT + 2048}\n"
    return launch, kernel_begin(name) + a.text(), kernel_desc(name, 256, 102, 256)
```

```python
from asmlib import *
from layout import *

def srd(a, s, base_lo, base_hi, nbytes, add=0):
    if add:
        a.e(f"s_add_u32 s{s}, s{base_lo}, {add}")
        a.e(f"s_addc_u32 s{s+1}, s{base_hi}, 0")
    else:
        a.e(f"s_mov_b32 s{s}, s{base_lo}")
        a.e(f"s_mov_b32 s{s+1}, s{base_hi}")
    a.e(f"s_mov_b32 s{s+2}, {nbytes}")
    a.e(f"s_mov_b32 s{s+3}, 0x20000")

def gen_k3(name="k3_kernel", DEPTH=4, stamp=False):
    a = Asm()
    NST = 23
    ACC = 160
    BUF = 16
    assert BUF + DEPTH*36 <= ACC
    def acc(tb, i): r = ACC + (tb*5 + i)*4; return f"v[{r}:{r+3}]"
    def fu(b, tb): r = BUF + b*36 + tb*4; return f"v[{r}:{r+3}]"
    def fw(b, i): r = BUF + b*36 + 16 + i*4; return f"v[{r}:{r+3}]"
    a.e(f"""
    s_cmp_ge_u32 s2, 256
    s_cbranch_scc1 {name}_end
    """)
    if stamp: stamp_begin(a)
    a.e(f"""
    s_load_dwordx2 s[4:5], s[0:1], {KA_WS}
    s_load_dwordx2 s[6:7], s[0:1], {KA_X}
    s_load_dwordx2 s[8:9], s[0:1], {KA_OUT}
    v_lshrrev_b32 v1, 6, v0
    v_and_b32 v2, 63, v0
    v_readfirstlane_b32 s3, v1          ; wave
    s_and_b32 s10, s2, 7                ; xcd
    s_lshr_b32 s11, s2, 3               ; local 0..31
    s_and_b32 s32, s10, 3
    s_lshl_b32 s32, s32, 3
    s_and_b32 s33, s11, 7
    s_add_u32 s32, s32, s33             ; ti 0..31
    s_lshr_b32 s33, s10, 2
    s_lshl_b32 s33, s33, 2
    s_lshr_b32 s34, s11, 3
    s_add_u32 s33, s33, s34             ; c 0..7
    v_lshlrev_b32 v3, 4, v2             ; lane*16
    v_add_u32 v4, {90*1024}, v3
    v_add_u32 v5, {2*90*1024}, v3
    v_add_u32 v6, {3*90*1024}, v3
    v_lshrrev_b32 v7, 4, v2
    v_lshlrev_b32 v7, 3, v7
    v_and_b32 v8, 7, v2
    v_add_u32 v7, v7, v8
    v_lshlrev_b32 v7, 4, v7
    v_add_u32 v7, 4096, v7
    s_mul_i32 s36, s32, {4*90}
    s_add_u32 s36, s36, s3
    s_lshl_b32 s36, s36, 10             ; U soffset
    s_mul_i32 s37, s33, 90
    s_add_u32 s37, s37, s3
    s_mul_i32 s37, s37, 4608
    s_waitcnt lgkmcnt(0)
    """)
    srd(a, 12, 4, 5, U_BYTES, U)
    srd(a, 16, 4, 5, WP_BYTES, WP)
    srd(a, 20, 6, 7, S*D*2)
    srd(a, 24, 8, 9, S*D*2)
    import os
    if "k3touch" in os.environ.get("OPT", ""):
        a.e(f"""
        s_lshl_b32 s39, s2, 2
        s_add_u32 s39, s39, s3
        s_mul_i32 s40, s39, {90*128}
        v_lshlrev_b32 v14, 7, v2
        v_min_u32 v15, {25*128}, v14
        buffer_load_dword v250, v14, s[12:15], s40 offen
        s_add_u32 s40, s40, 8192
        buffer_load_dword v251, v15, s[12:15], s40 offen
        s_mul_i32 s40, s39, {26*128}
        v_add_u32 v15, s40, v15
        buffer_load_dword v252, v15, s[16:19], 0 offen
        """)
    uoff = ["v3", "v4", "v5", "v6"]
    def loads(b, st):
        L = []
        for tb in range(4):
            L.append(f"buffer_load_dwordx4 {fu(b,tb)}, {uoff[tb]}, s[12:15], s36 offen")
        for i in range(4):
            L.append(f"buffer_load_dwordx4 {fw(b,i)}, v3, s[16:19], s37 offen offset:{i*1024}")
        L.append(f"buffer_load_dwordx4 {fw(b,4)}, v7, s[16:19], s37 offen")
        return L
    def advance(st_next):
        a.e(f"s_add_u32 s36, s36, 4096")
        a.e(f"s_add_u32 s37, s37, {4*4608}")
        if st_next == NST - 1:
            a.e("s_cmp_ge_u32 s3, 2")
            a.e("s_cselect_b32 s14, 0, s14")
            a.e("s_cselect_b32 s18, 0, s18")
    for st in range(DEPTH):
        for l in loads(st, st): a.e(l)
        advance(st + 1)
    a.e(f"""
    s_lshl_b32 s38, s32, 6
    s_lshl_b32 s39, s3, 4
    s_add_u32 s38, s38, s39
    s_mul_i32 s38, s38, 1152
    s_mul_i32 s39, s33, 144
    s_add_u32 s38, s38, s39
    v_and_b32 v9, 15, v2
    v_mul_u32_u24 v9, 1152, v9
    v_lshrrev_b32 v10, 4, v2
    v_lshlrev_b32 v10, 3, v10
    v_add_u32 v9, v9, v10
    """)
    XR = 240
    for i in range(5):
        a.e(f"buffer_load_dwordx2 v[{XR+2*i}:{XR+2*i+1}], v9, s[20:23], s38 offen offset:{32*i}")
    nx = 5
    for r in range(ACC, ACC + 80):
        a.e(f"v_mov_b32 v{r}, 0")
    for st in range(NST):
        b = st % DEPTH
        remaining = min(DEPTH - 1, NST - 1 - st)
        extra = nx if st < DEPTH else 0
        a.e(f"s_waitcnt vmcnt({remaining*9 + extra})")
        if stamp and st == 0: stamp_mid(a, 0)
        nxt = st + DEPTH
        L = loads(b, nxt) if nxt < NST else []
        for i in range(5):
            for tb in range(4):
                a.e(f"v_mfma_f32_16x16x32_bf16 {acc(tb,i)}, {fw(b,i)}, {fu(b,tb)}, {acc(tb,i)}")
                if L and i == 4:
                    a.e(L[tb])
            if L:
                a.e(L[4 + i])
        if L:
            advance(nxt + 1)
    if stamp: stamp_mid(a, 1)
    a.e(f"""
    s_mul_i32 s40, s3, {20*1024}
    v_add_u32 v11, s40, v3
    s_mul_i32 s41, s3, {5*1024}
    v_add_u32 v12, s41, v3
    v_add_u32 v13, {40*1024}, v12
    s_nop 7
    """)
    for tb in range(4):
        for i in range(5):
            a.e(f"ds_write_b128 v11, {acc(tb,i)} offset:{(tb*5+i)*1024}")
    a.e("s_waitcnt lgkmcnt(0)\ns_barrier")
    for src in range(4):
        for i in range(5):
            r = BUF + (src*5 + i)*4
            a.e(f"ds_read_b128 v[{r}:{r+3}], v{12 + src//2} offset:{(src%2)*20*1024 + i*1024}")
    a.e("s_waitcnt vmcnt(0)")
    XF = 100
    for i in range(5):
        for p in range(2):
            a.e(f"v_lshlrev_b32 v{XF+4*i+2*p}, 16, v{XR+2*i+p}")
            a.e(f"v_and_b32 v{XF+4*i+2*p+1}, 0xffff0000, v{XR+2*i+p}")
    for src in range(4):
        a.e(f"s_waitcnt lgkmcnt({(3-src)*5})")
        for k in range(20):
            a.e(f"v_add_f32 v{XF+k}, v{XF+k}, v{BUF+src*20+k}")
    for i in range(5):
        a.e(f"v_cvt_pk_bf16_f32 v{XR+2*i}, v{XF+4*i}, v{XF+4*i+1}")
        a.e(f"v_cvt_pk_bf16_f32 v{XR+2*i+1}, v{XF+4*i+2}, v{XF+4*i+3}")
    if stamp: stamp_mid(a, 2)
    for i in range(4):
        a.e(f"buffer_store_dwordx2 v[{XR+2*i}:{XR+2*i+1}], v9, s[24:27], s38 offen offset:{32*i}")
    a.e("s_mov_b64 exec, 0xffffffff")
    a.e(f"buffer_store_dwordx2 v[{XR+8}:{XR+9}], v9, s[24:27], s38 offen offset:128")
    if stamp:
        stamp_end(a, 3, "s3", 3)
    a.label(f"{name}_end")
    a.e("s_endpgm")
    launch = f"; @launch kernel={name} grid=(256,1,1) block=(256,1,1) lds={80*1024}\n"
    return launch, kernel_begin(name) + a.text(), kernel_desc(name, 256, 102, 256)
```

```python
from asmlib import Asm
import copy, os
ABL = os.environ.get('ABL', '').split(',')

class Sched(Asm):
    def __init__(self):
        super().__init__()
        self.vm_n = 0; self.lg_n = 0
        self.vm_done = -1; self.lg_done = -1
        self.keys = {}
        self.fill = []
        self.marks = set()
    def vm(self, s, key=None):
        self.e(s); i = self.vm_n; self.vm_n += 1
        if key is not None: self.keys[key] = ("vm", i)
        return i
    def lg(self, s, key=None):
        self.e(s); i = self.lg_n; self.lg_n += 1
        if key is not None: self.keys[key] = ("lg", i)
        return i
    def wait(self, vm=None, lg=None):
        parts = []
        if vm is not None and vm > self.vm_done:
            n = min(self.vm_n - 1 - vm, 63)
            parts.append(f"vmcnt({n})"); self.vm_done = self.vm_n - 1 - n
        if lg is not None and lg > self.lg_done:
            n = min(self.lg_n - 1 - lg, 15)
            parts.append(f"lgkmcnt({n})"); self.lg_done = self.lg_n - 1 - n
        if parts:
            self.e("s_waitcnt " + " ".join(parts))
            return True
        return False
    def wait_key(self, key):
        k, i = self.keys[key]
        return self.wait(**{k: i})
    def wait_all(self, vm=True, lg=True):
        self.wait(vm=self.vm_n - 1 if vm else None, lg=self.lg_n - 1 if lg else None)
    def snapshot(self):
        return (self.vm_n, self.lg_n, self.vm_done, self.lg_done, dict(self.keys), list(self.fill))
    def restore(self, s):
        self.vm_n, self.lg_n, self.vm_done, self.lg_done = s[:4]
        self.keys = dict(s[4]); self.fill = list(s[5])
    def add(self, kind, text=None, key=None):
        self.fill.append((kind, text, key))
    def addv(self, text):
        for l in text.strip().split("\n"):
            l = l.strip()
            if not l: continue
            op = l.split()[0]
            if "mulfill" in ABL and op.startswith("v_") and op not in ("v_exp_f32", "v_rcp_f32"):
                self.k = getattr(self, "k", 0) + 1
                l = f"v_mul_f32 v{32 + self.k % 4}, v14, v15"
            if "notrans" in ABL and op in ("v_exp_f32", "v_rcp_f32"):
                l = l.replace(op, "v_mov_b32"); op = "v_mov_b32"
            self.fill.append(("t" if op in ("v_exp_f32", "v_rcp_f32", "v_rsq_f32", "v_log_f32", "v_sqrt_f32") else "v", l, None))
    def fill_cost(self):
        return sum(2 if k == "t" else (0 if k in ("raw", "mark") else 1) for k, _, _ in self.fill)
    def pump(self, budget):
        while self.fill and budget > 0:
            k, t, key = self.fill.pop(0)
            if k == "v": self.e(t); budget -= 1
            elif k == "t": self.e(t); budget -= 2
            elif k == "raw": self.e(t)
            elif k == "lg":
                if "nofl" in ABL:
                    if key is not None: self.keys[key] = ("lg", -1)
                else: self.lg(t, key)
            elif k == "vm":
                if "nofv" in ABL and key is None: pass
                else: self.vm(t, key)
            elif k == "w": self.wait_key(key)
            elif k == "call": t(self)
            elif k == "mark": self.marks.add(key)
    def flush(self):
        self.pump(1 << 30)
    def flush_to(self, mark):
        if not any(k == "mark" and key == mark for k, _, key in self.fill): return
        while mark not in self.marks or any(k == "mark" and key == mark for k, _, key in self.fill):
            self.pump(1)
    def flush_to_key(self, key):
        while any(kk == key for _, _, kk in self.fill):
            self.pump(1)
```

```python
import math, os
from asmlib import *
from sched import Sched
from layout import *
from k1common import *
from k3 import srd
ABL = os.environ.get('ABL', '').split(',')

GK1 = -2.0 * math.sqrt(2.0 / math.pi) * LOG2E
GK2 = GK1 * 0.044715

RING = 0
XR = 98304
SP = 208
CSO = XR + 256*SP
PRM = CSO + 4096
Z_LDS = PRM + 2048
TL0 = int(os.environ.get('TL0', 11))
STATM = int(os.environ.get('STATM', 0)); MPS = int(os.environ.get('MPS', 2))
PER_MFMA = int(os.environ.get('PM', 6))

def gen_zpath(a, name, stamp):
    X = 112; ACC = [64, 80]; WF = [44, 48, 52, 56]
    NEGMU, R, C1, C2, S1, S2, TAG = 108, 110, 14, 15, 61, 62, 60
    CB = [24, 28]; T = 32; PK = 36
    a.e(f"""
    v_lshrrev_b32 v28, 3, v2
    v_and_b32 v29, 7, v2                ; pos
    v_lshrrev_b32 v31, 4, v2
    v_xor_b32 v31, v31, v29
    v_mul_u32_u24 v7, 1152, v28
    v_lshl_add_u32 v7, v31, 4, v7
    v_bfe_u32 v30, v2, 4, 1
    v_lshlrev_b32 v30, 2, v30
    v_xor_b32 v30, v30, v29
    v_lshlrev_b32 v30, 4, v30           ; chunk*16
    v_mul_u32_u24 v5, 9216, v28
    v_add_u32 v5, v5, v30
    v_xor_b32 v8, 64, v7
    v_add_u32 v8, {8*1152-1024}, v8
    s_mul_i32 s41, s33, 384
    s_add_u32 s41, s41, 4608            ; column offset of z2 panel 0
    s_mul_i32 s40, s3, {8*9216}
    s_add_u32 s40, s40, s41
    s_lshl_b32 s42, s3, 10              ; w*1024
    s_lshl_b32 s43, s32, 7
    s_lshl_b32 s44, s3, 4
    s_add_u32 s43, s43, s44
    s_mul_i32 s43, s43, 1152            ; x base
    s_lshl_b32 s44, s3, 11
    s_add_u32 s44, s44, {XR}
    """)
    def pcol(P): return 128*P if P < 3 else 128*(P-3) - 4608
    uid = {}; x_id = {}
    def issue8(u):
        P, c = divmod(u, 9)
        a.e(f"s_add_u32 m0, s42, {RING + (u % 12)*8192}")
        a.e(f"s_add_u32 s46, s40, {c*64*9216 + pcol(P)}")
        uid[u] = a.vm(f"buffer_load_dwordx4 v5, s[12:15], s46 offen lds")
    def issue_x(c):
        a.e(f"s_add_u32 m0, s44, {(c % 3)*16384}")
        a.e(f"s_add_u32 s46, s43, {c*128}")
        a.vm(f"buffer_load_dwordx4 v7, s[8:11], s46 offen lds")
        x_id[c] = a.vm(f"buffer_load_dwordx4 v8, s[8:11], s46 offen offset:1024 lds")
    issue_x(0); issue8(0); issue_x(1); issue8(1)
    a.e(f"""
    s_and_b32 s36, s3, 3                ; rg
    s_lshr_b32 s37, s3, 2               ; p
    v_mul_u32_u24 v13, 3456, v28
    v_add_u32 v13, v13, v30
    v_and_b32 v22, 15, v2
    v_lshrrev_b32 v23, 2, v22           ; r
    v_and_b32 v22, 3, v22               ; c
    v_lshrrev_b32 v24, 5, v2            ; h
    v_bfe_u32 v25, v2, 4, 1             ; n half
    v_lshlrev_b32 v1, 3, v24
    v_add_u32 v1, v1, v23
    v_lshlrev_b32 v1, 7, v1             ; (8h + r)*128
    v_lshrrev_b32 v26, 1, v23
    v_xor_b32 v26, s37, v26
    v_lshl_add_u32 v1, v26, 6, v1
    v_lshl_add_u32 v1, v25, 5, v1
    v_lshl_add_u32 v1, v22, 3, v1
    v_add_u32 v3, 49152, v1
    v_and_b32 v32, 31, v2               ; s
    v_bfe_u32 v33, v2, 1, 3             ; swz
    v_xor_b32 v33, v33, v24
    v_lshlrev_b32 v33, 4, v33
    v_lshl_add_u32 v9, v32, 7, v33
    s_lshl_b32 s38, s36, 12
    s_add_u32 s38, s38, {XR}
    v_add_u32 v9, s38, v9
    v_xor_b32 v10, 32, v9
    v_xor_b32 v11, 64, v9
    v_xor_b32 v12, 96, v9
    v_lshlrev_b32 v21, 3, v32           ; s*8
    v_lshlrev_b32 v0, 4, v2
    """)
    assert Z2T == 0
    def wread(a, buf, u, j):
        pos = u % 12
        bb = (1, 3)[pos // 6]; off = (pos % 6)*8192 + j*2048
        a.lg(f"ds_read_b64_tr_b16 {vr(buf,2)}, v{bb} offset:{off}")
        return a.lg(f"ds_read_b64_tr_b16 {vr(buf+2,2)}, v{bb} offset:{off+512}")
    CSR = [80 + 4*k for k in range(7)] + [24 + 4*k for k in range(9)]
    def xst_load(a, tracked=True):
        (a.vm if tracked else a.e)(f"buffer_load_dwordx4 {vr(NEGMU)}, v21, s[20:23], s59 offen" + ("" if tracked else " sc1"))
    def hand_loads(a, k0=0, k1=16, sc=" sc1"):
        if k0 == 0: a.e("s_mov_b32 s45, s57")
        for k in range(k0, k1):
            if k % 2 == 0 and k: a.e(f"s_add_u32 s45, s45, {2*448*8}")
            a.e(f"buffer_load_dwordx4 {vr(CSR[k])}, v63, s[20:23], s45 offen offset:{(k%2)*448*8}{sc}")
    CONSTS = f"""
    v_mul_f32 v{C2}, v{R}, v{R}
    v_mul_f32 v{C1}, {f2u(GK1)}, v{R}
    v_mul_f32 v{C2}, v{C2}, v{R}
    v_mov_b32 v{S1}, 0
    v_mul_f32 v{C2}, {f2u(GK2)}, v{C2}
    v_mov_b32 v{S2}, 0
    v_mov_b32 v7, 0
    v_mov_b32 v8, 0
    v_cvt_pk_bf16_f32 v24, v{NEGMU}, v{NEGMU}
    v_mov_b32 v26, 0
    v_lshlrev_b32 v24, 16, v24
    v_mov_b32 v27, 0
    v_sub_f32 v24, v{NEGMU}, v24
    v_cmp_gt_u32 vcc, 32, v2
    v_cvt_pk_bf16_f32 v24, v{NEGMU}, v24
    v_mov_b32 v30, 0
    v_cndmask_b32 v24, v26, v24, vcc
    v_mov_b32 v31, 0
    v_mov_b32 v25, v24
    """
    rid = {}
    def areads(n):
        c, j = divmod(n, 4)
        a.lg(f"ds_read_b128 {vr(X + 4*n)}, v{9+j} offset:{(c%3)*16384}")
        rid[n] = wread(a, WF[n % 4], c, j)
    a.wait(vm=max(x_id[0], uid[0]))
    a.e("s_barrier")
    if stamp == 1: stamp_mid(a, 0)
    areads(0); areads(1)
    rowstat_loads(a, 2, 80, 32)
    a.e(f"""
    s_cmp_lt_u32 s3, 6
    s_cselect_b32 s28, s12, s16
    s_cselect_b32 s29, s13, s17
    s_cselect_b32 s30, s14, s18
    s_mov_b32 s31, 0x20000
    s_mov_b32 s45, 3456
    s_cselect_b32 s45, 9216, s45
    s_lshl_b32 s39, s3, 7
    s_add_u32 s39, s39, s41
    s_lshl_b32 s47, s34, 7
    s_sub_u32 s48, s39, {4608 + 384}
    s_cmp_lt_u32 s3, 6
    s_cselect_b32 s47, s48, s47
    s_cmp_lt_u32 s3, 3
    s_cselect_b32 s39, s39, s47
    s_cmp_eq_u32 s3, 7
    s_cselect_b32 s30, 0, s30
    s_mul_i32 s38, s32, 36
    s_mul_i32 s38, s38, s45
    s_add_u32 s39, s39, s38
    s_lshl_b32 s38, s45, 3
    v_mul_lo_u32 v26, v28, s45
    v_lshl_add_u32 v26, v29, 4, v26
    v_cmp_gt_u32 vcc, 32, v2
    v_mov_b32 v27, {BIG}
    s_nop 0
    v_cndmask_b32 v27, v27, v26, vcc
    """)
    for i in range(5):
        coop_id = a.vm(f"buffer_load_dwordx4 {vr(92+4*i)}, v{26 if i < 4 else 27}, s[28:31], s39 offen")
        if i < 4: a.e(f"s_add_u32 s39, s39, s38")
    a.e(f"""
    s_cmp_eq_u32 s3, 4
    s_cselect_b32 s38, 0, {BIG}
    v_mov_b32 v4, s38
    """)
    ep_id = a.vm(f"buffer_load_dword v{TAG}, v4, s[24:27], 0 offen sc1")
    issue_x(2); issue8(2)
    a.keys["coop"] = ("vm", coop_id)
    b = Sched()
    b.e(f"""
    s_mul_i32 s57, s33, {16*448*8}
    s_add_u32 s57, s57, {CSP}
    s_mul_i32 s47, s32, {448*8}
    s_add_u32 s47, s47, s57
    s_lshl_b32 s48, s3, 9
    s_add_u32 s47, s47, s48
    v_lshlrev_b32 v40, 6, v29
    v_lshrrev_b32 v41, 4, v2
    v_lshl_add_u32 v40, v41, 3, v40     ; (unit*8 + q)*8
    v_and_b32 v41, 8, v2
    v_cmp_eq_u32 vcc, 0, v41
    v_mov_b32 v41, {BIG}
    s_cmp_eq_u32 s3, 7
    s_cselect_b64 vcc, 0, vcc
    v_cndmask_b32 v42, v41, v40, vcc
    s_mov_b32 s62, 0x00003f80
    s_mov_b32 s63, 0x3f800000
    """)
    rowstat_addr(b, 2, 43, 40)
    a.add_block(b.lines, "x"); b.lines = []
    a.add("gate", None, "c0")
    a.add("w", None, "coop")
    rowstat_compute(b, 80, 36)
    for i in range(5): colsum_add(b, 24, 92 + 4*i, i == 0)
    fold_pairs(b, 24, [8])
    a.add_block(b.lines, "x"); b.lines = []
    a.add("gate")
    a.add("lg", f"ds_read_b32 v{TAG}, v4", "tag")
    a.add("w", None, "tag")
    a.addv(f"v_mov_b32 v37, v{TAG}\nv_mov_b32 v39, v{TAG}\nv_mov_b32 v25, v{TAG}\nv_mov_b32 v29, v{TAG}")
    a.add("vm", f"buffer_store_dwordx4 v[36:39], v43, s[20:23], 0 offen sc1")
    a.add("vm", f"buffer_store_dwordx2 v[24:25], v42, s[20:23], s47 offen sc1")
    a.add("vm", f"buffer_store_dwordx2 v[28:29], v42, s[20:23], s47 offen offset:32 sc1")
    a.addv(f"""
    s_lshl_b32 s49, s37, 8
    s_add_u32 s49, s49, {CSO}
    v_lshrrev_b32 v40, 5, v2
    v_add_u32 v17, s49, v21
    s_mul_i32 s49, s3, {32*SP}
    s_add_u32 s49, s49, {XR}
    v_mul_u32_u24 v19, {SP//8}, v21
    v_lshl_add_u32 v19, v40, 4, v19
    v_add_u32 v19, s49, v19
    v_bfe_u32 v20, v2, 4, 1
    v_mul_u32_u24 v20, {90*1024}, v20
    v_and_b32 v41, 15, v2
    v_lshl_add_u32 v41, v40, 4, v41
    v_lshl_add_u32 v20, v41, 4, v20     ; z1 store
    s_lshl_b32 s49, s36, 10
    v_add_u32 v18, s49, v0
    v_cmp_gt_u32 vcc, {448*8}, v18
    v_mov_b32 v63, {BIG}
    v_lshlrev_b32 v21, 1, v21           ; s*16
    v_cndmask_b32 v63, v63, v18, vcc
    v_add_u32 v18, {CSO}, v18
    """)
    a.addv(f"""
    s_lshl_b32 s47, s32, 3
    s_lshl_b32 s48, s36, 1
    s_add_u32 s47, s47, s48             ; t16
    s_mul_i32 s47, s47, 90
    s_mul_i32 s48, s33, 6
    s_add_u32 s47, s47, s48
    s_add_u32 s47, s47, s37
    s_lshl_b32 s47, s47, 10
    s_add_u32 s50, s47, {U}
    s_add_u32 s51, s50, 2048
    s_add_u32 s52, s50, 4096
    s_lshl_b32 s47, s32, 2
    s_add_u32 s47, s47, s36
    s_lshl_b32 s59, s47, 9
    s_add_u32 s59, s59, {XST}
    s_mul_i32 s48, s47, 36
    s_lshl_b32 s49, s34, 2
    s_add_u32 s48, s48, s49
    s_lshl_b32 s49, s37, 1
    s_add_u32 s48, s48, s49
    s_lshl_b32 s48, s48, 10
    s_add_u32 s53, s48, {Q}
    s_mul_i32 s54, s47, 144
    s_mul_i32 s48, s33, 12
    s_add_u32 s54, s54, s48
    s_add_u32 s54, s54, s49             ; + 2p
    s_lshl_b32 s54, s54, 10             ; z2t soffset (Z2T = 0)
    s_mul_i32 s55, s32, 24
    s_lshl_b32 s48, s33, 1
    s_add_u32 s48, s48, s37
    s_add_u32 s48, s48, s55
    s_lshl_b32 s48, s48, 11
    s_lshl_b32 s49, s36, 9
    s_add_u32 s48, s48, s49
    s_add_u32 s56, s48, {ST}
    s_lshl_b32 s55, s55, 11
    s_add_u32 s55, s55, s49
    s_add_u32 s55, s55, {ST}
    """)
    pend = []; gate_ok = False; HLC = int(os.environ.get('HLC', 4))
    for n in range(36):
        c, j = divmod(n, 4)
        a.wait(lg=rid[n])
        if j == 2:
            for f in pend: f()
            pend = []
            need = [x_id[c+1], uid[c+1]] if c < 8 else [uid[11]]
            if c == 1:
                a.wait(vm=ep_id)
                epoch_share(a, name, 4, TAG, 4, PRM)
            if c == 8: a.flush()
            a.wait(vm=max(need), lg=a.lg_n - 1 if c == 8 else rid[n+1])
            if stamp == 5 and 0 <= (c - TL0) < 8 and (c - TL0) % 2 == 0: stamp_mid(a, (c - TL0) // 2)
            a.e("s_barrier")
            if c == 1:
                a.e(f"v_mov_b32 v4, {PRM}")
                gate_ok = True
            if c == 8:
                assert not a.fill, len(a.fill)
                xst_load(a); a.keys["xst"] = ("vm", a.vm_n - 1)
            if c + 3 < 9: pend.append(lambda c=c: issue_x(c + 3))
            for u in ([c + 3] if c < 6 else range(3*c - 9, 3*c - 6)):
                pend.append(lambda u=u: issue8(u))
        if n + 2 < 36: areads(n + 2)
        a.e(f"{MF32} {vr(ACC[0],16)}, {vr(WF[n % 4])}, {vr(X + 4*n)}, " + ("0" if n == 0 else vr(ACC[0], 16)))
        if pend: pend.pop(0)()
        if n == 33:
            pass
        if gate_ok: a.open_gate()
        if n >= 4: a.open_gate('c0')
        a.pump(28 if n < 12 else 16)
        if n == 34: h0_tail_at = len(a.lines)
    for f in pend: f()
    if stamp in (1, 2): stamp_mid(a, 1 if stamp == 1 else 0)
    a.e(f"""
    s_mul_i32 s40, s36, {16*9216}
    s_add_u32 s40, s40, s41
    s_mul_i32 s41, s36, {16*3456}
    s_lshl_b32 s42, s34, 7
    s_add_u32 s41, s41, s42
    s_lshl_b32 s42, s36, 11
    v_add_u32 v104, {8*9216-1024}, v5
    v_add_u32 v105, {8*3456-1024}, v13
    s_cmp_eq_u32 s37, 0
    s_cbranch_scc0 {name}_p1
    """)
    common = a.snapshot()

    def epilogue(a, P):
        if "nofill" in ABL:
            if P == 2: a.add("vm", f"buffer_store_dwordx2 {vr(T,2)}, v21, s[20:23], s56 offen sc1", "ststore")
            return
        acc = ACC[P % 2]
        kind = "z2" if P < 3 else ("z1" if P < 6 else "q")
        if P == 0 or (P == 1 and a.par == 0):
            a.add("lg", f"ds_read_b64 v[28:29], v17 offset:{P*512}", "cs0")
            a.add("w", None, "cs0")
            a.addv(f"{MF32} {vr(acc,16)}, v[28:31], v[24:27], {vr(acc,16)}\ns_nop 7\ns_nop 3")
        T8 = [T + k for k in range(4)] + [6, 16, 22, 23]
        m = Sched()
        def defer():
            items = list(m.fill); m.fill.clear()
            a.add("call", lambda a_, items=items: a_.mfill.extend(items))
        for gg in range(2):
            A = acc + 8*gg
            if kind == "q":
                for r in range(8): a.addv(f"v_mul_f32 v{A+r}, v{R}, v{A+r}")
            else:
                for r in range(8): a.addv(f"v_mul_f32 v{T8[r]}, v{A+r}, v{A+r}")
                for r in range(8): a.addv(f"v_fma_f32 v{T8[r]}, v{T8[r]}, v{C2}, v{C1}")
                for r in range(8): a.addv(f"v_mul_f32 v{T8[r]}, v{T8[r]}, v{A+r}")
                for r in range(8): a.addv(f"v_exp_f32 v{T8[r]}, v{T8[r]}")
                for r in range(8): a.addv(f"v_add_f32 v{T8[r]}, 1.0, v{T8[r]}")
                for r in range(8): a.addv(f"v_rcp_f32 v{T8[r]}, v{T8[r]}")
                for r in range(8): a.addv(f"v_mul_f32 v{A+r}, v{A+r}, v{T8[r]}")
            for g in (2*gg, 2*gg + 1):
                Ag = acc + 4*g
                pk = PK + 2*g if kind != "z1" else PK + (g & 1)*4 + (g >> 1)*2
                a.addv(f"v_cvt_pk_bf16_f32 v{pk}, v{Ag}, v{Ag+1}")
                a.addv(f"v_cvt_pk_bf16_f32 v{pk+1}, v{Ag+2}, v{Ag+3}")
            if kind == "z2":
                m.add("lg", f"ds_write_b128 v19, {vr(PK + 4*gg)} offset:{P*64 + gg*32}")
                tgt = m if (gg == 0 or STATM == 2) and STATM else a
                for r in range(8):
                    tgt.addv(f"v_add_f32 v{(S1, 7)[r & 1]}, v{(S1, 7)[r & 1]}, v{A+r}")
                    tgt.addv(f"v_fmac_f32 v{(S2, 8)[r & 1]}, v{A+r}, v{A+r}")
            elif kind == "z1" and gg == 1:
                for k in range(2):
                    m.add("vm", f"buffer_store_dwordx4 {vr(PK + k*4)}, v20, s[20:23], s{50 + P - 3} offen offset:{k*512} sc1")
            elif kind == "q":
                m.add("vm", f"buffer_store_dwordx4 {vr(PK + gg*4)}, v0, s[20:23], s53 offen offset:{gg*1024} sc1")
            if P == 2 and gg == 1:
                a.addv(f"""
                v_add_f32 v{S1}, v{S1}, v7
                v_add_f32 v{S2}, v{S2}, v8
                v_mov_b32 v7, v{S1}
                v_mov_b32 v8, v{S2}
                s_nop 1
                v_permlane32_swap_b32 v{S1}, v7
                v_permlane32_swap_b32 v{S2}, v8
                s_nop 1
                v_add_f32 v8, v{S2}, v8
                v_add_f32 v7, v{S1}, v7
                v_mul_f32 v10, v{R}, v8
                v_mul_f32 v8, v{R}, v7
                v_mul_f32 v10, v{R}, v10
                v_mov_b32 v9, v{TAG}
                v_mov_b32 v11, v{TAG}
                """)
                m.add("vm", f"buffer_store_dwordx4 v[8:11], v21, s[20:23], s56 offen sc1")
            defer()
    def issue4(a, u, half, own):
        P, c = divmod(u, 9)
        if half == 0:
            a.e(f"s_add_u32 m0, s42, {RING + (u % 12)*8192}")
            a.e(f"s_add_u32 s46, s40, {(c*64*9216 + pcol(P)) & 0xffffffff}" if P < 6 else f"s_add_u32 s46, s41, {c*64*3456}")
        v = (5, 104)[half] if P < 6 else (13, 105)[half]
        own[u] = a.vm(f"buffer_load_dwordx4 v{v}, s[{12 if P < 6 else 16}:{15 if P < 6 else 19}], s46 offen" + (" offset:1024" if half else "") + " lds")
    AH = int(os.environ.get("AH", 3)); W8 = WF + [96, 100]; NW = 6
    PRIO = int(os.environ.get("PRIO", 1))
    STS = (8, 0)

    class Path:
        def __init__(s, p):
            s.a = Sched(); s.a.uid = 100*(p + 1); s.a.restore(common); s.p = p; s.a.par = p
            s.own = dict(uid); s.hooks = {}; s.pre = {}; s.ahead = None
        def bar(s, H, t, lg=None):
            a = s.a
            if (H, t) in s.pre: s.pre[(H, t)](a)
            k = H // 2 + 1
            if H % 2 == 1 and t < 2: us = range(9*k + 3*t + 3, 9*k + 3*t + 6)
            elif H % 2 == 0 and t == 1: us = range(9*k, 9*k + 3)
            else: us = []
            ids = [s.own[u] for u in us if u in s.own]
            a.wait(vm=max(ids) if ids else None, lg=lg)
            if stamp == 4 and 0 <= 3*H + t - TL0 < 4: stamp_mid(a, 3*H + t - TL0)
            a.e("s_barrier")
            if (H, t) in s.hooks: s.hooks[(H, t)](a)
        def preread(s, P):
            s.ahead = {n: wread(s.a, W8[n], 9*P + n // 4, n % 4) for n in range(AH)}
        def M(s, H, P, N):
            a = s.a; acc = ACC[P % 2]
            if P + 1 >= N: todo = {}
            elif s.p == 0: todo = {0: [(u, h) for u in range(9*P + 9, 9*P + 12) for h in (0, 1)]}
            else: todo = {12*t - AH + 1: [(u, h) for u in range(9*P + 9 + 3*t, 9*P + 12 + 3*t) for h in (0, 1)] for t in (1, 2)}
            q = []
            if PRIO: a.e("s_setprio 1")
            if s.ahead is None: s.preread(P)
            br = dict(s.ahead); s.ahead = None
            for i in range(36):
                a.wait(lg=br[i])
                n = i + AH
                mf = f"{MF32} {vr(acc,16)}, {vr(W8[i % NW])}, {vr(X + 4*i)}, " + ("0" if i == 0 else vr(acc, 16))
                if n in (12, 24):
                    a.e(mf); mf = ""
                    s.bar(H, n // 12 - 1, br[n-1] if s.p == 1 else None)
                if n < 36: br[n] = wread(a, W8[n % NW], 9*P + n // 4, n % 4)
                a.e(mf)
                q += todo.get(i, [])
                if q and (i % (5 if s.p == 0 else 2) == (1 if s.p == 0 else (AH + 1) % 2)): issue4(a, *q.pop(0), s.own)
                elif i % 2 == 0 and i >= 2: a.mpump(2)
                if i == 30 and H > 1: cid = a.lg(f"ds_read_b64 v[28:29], v17 offset:{P*512}")
            assert not q and not a.mfill
            if H > 1:
                a.wait(lg=cid)
                a.e(f"{MF32} {vr(acc,16)}, v[28:31], v[24:27], {vr(acc,16)}")
            if PRIO: a.e("s_setprio 0")
            s.bar(H, 2)
        def V(s, H, nextP, t0=0):
            a = s.a
            tot = a.fill_cost() + (8 if nextP else 0)
            for t in range(t0, 3):
                a.pump(math.ceil(tot / (3 - t0)) if t < 2 else 1 << 30)
                if t == 2 and nextP: s.preread(nextP)
                s.bar(H, t)

    lt = name + "_ztail"
    for p in (0, 1):
        path = Path(p); b = path.a
        def step(k, N):
            path.M(2*k - 1 + p, k, N)
            if 2*k + p <= 2*(N - 1):
                epilogue(b, k - 1)
                if k - 1 == 2 and "k1touch" in os.environ.get("OPT", "k1touch"): b.add("call", touch)
                path.V(2*k + p, k + 1 if k + 1 < N else None)
        def xchk(a):
            a.wait_key("xst")
            tags_retry(a, name, [NEGMU + 1, NEGMU + 3], TAG, 61, lambda a: xst_load(a, False))
        if p == 1:
            b.label(f"{name}_p1")
            hand_loads(b, 0, 6, sc="")
            b.e("s_waitcnt vmcnt(10)"); b.vm_done = uid[14]
            path.bar(1, 0)
            hand_loads(b, 6, 16, sc="")
            b.e("s_waitcnt vmcnt(16)"); b.vm_done = b.vm_n - 1
            path.bar(1, 1)
            b.e("s_waitcnt vmcnt(0)")
            xchk(b)
            tags_retry(b, name, [r + o for r in CSR for o in (1, 3)], TAG, 61, hand_loads, 63)
            for st_ in (8, 4, 2, 1):
                for k in range(st_):
                    for o in (0, 2): b.e(f"v_add_f32 v{CSR[k]+o}, v{CSR[k]+o}, v{CSR[k+st_]+o}")
            b.e(f"""
            v_cvt_pk_bf16_f32 v84, v80, v80
            v_cvt_pk_bf16_f32 v86, v82, v82
            v_lshlrev_b32 v85, 16, v84
            v_lshlrev_b32 v87, 16, v86
            v_sub_f32 v80, v80, v85
            v_sub_f32 v82, v82, v87
            v_cvt_pk_bf16_f32 v85, v80, v80
            v_cvt_pk_bf16_f32 v87, v82, v82
            v_add_u32 v104, {8*9216-1024}, v5
            v_add_u32 v105, {8*3456-1024}, v13
            """)
            b.lg("ds_write_b128 v18, v[84:87]")
            wid_ = b.lg_n - 1
            b.e(CONSTS)
            path.preread(1)
            path.bar(1, 2, wid_)
        else:
            b.add("call", xchk); b.addv(CONSTS)
        for k in range(1, 5): step(k, 7)
        lq = f"{name}_noq{p}"
        b.e(f"s_cmp_eq_u32 s18, 0\ns_cbranch_scc1 {lq}")
        snap = b.snapshot(); own_s = dict(path.own); ah_s = path.ahead
        for N in (7, 6):
            if N == 6:
                b.label(lq); b.restore(snap); path.own = dict(own_s); path.ahead = ah_s
            HL = 2*(N - 1)
            path.pre.clear(); path.hooks.clear()
            if p == 0:
                base = RING + (3 if N == 7 else 6)*8192
                path.hooks[(HL, 0)] = lambda a, N=N, base=base: repack_loads(a, name, N, base)
            for k in range(5, N): step(k, N)
            if stamp == 1: stamp_mid(b, 2)
            b.e("s_nop 7")
            stat_issue(b)
            b.mpump(1000)
            if p == 1: epilogue(b, N - 2); b.flush(); b.mpump(1000)
            epilogue(b, N - 1); b.flush(); b.mpump(1000)
            b.wait_key("stl")
            if not (p == 1 and N == 6): b.e(f"s_branch {lt}")
        a.lines += b.lines
        if getattr(b, 'forced', 0): print('forced flushes', p, b.forced)
    a.label(lt)
    if stamp == 1: stamp_mid(a, 3)
    ZT = 184
    tags_retry(a, name, [113 + 2*k for k in range(24)], TAG, 40, lambda a: stat_issue(a, False))
    a.e(f"""
    v_lshrrev_b32 v25, 8, v0            ; kg
    v_bfe_u32 v26, v0, 6, 2             ; r
    v_bfe_u32 v27, v0, 4, 2             ; c
    v_lshl_add_u32 v26, v25, 3, v26
    v_mul_u32_u24 v26, {SP}, v26
    v_and_b32 v28, 1, v27
    v_lshrrev_b32 v27, 1, v27
    v_lshl_add_u32 v26, v27, 3, v26
    v_lshl_add_u32 v26, v28, 4, v26
    s_mul_i32 s38, s3, {32*SP}
    s_add_u32 s38, s38, {XR}
    v_add_u32 v26, s38, v26
    s_lshl_b32 s39, s3, 8
    s_add_u32 s39, s39, {PRM}
    v_lshrrev_b32 v28, 2, v21
    v_add_u32 v28, s39, v28
    v_lshl_add_u32 v29, v25, 5, s39
    s_waitcnt lgkmcnt(0)
    """)
    for b_ in range(6):
        a.e(f"ds_read_b64_tr_b16 {vr(ZT+4*b_,2)}, v26 offset:{b_*32}")
        a.e(f"ds_read_b64_tr_b16 {vr(ZT+4*b_+2,2)}, v26 offset:{b_*32 + 4*SP}")
    L = 112
    for st_ in (6, 3):
        for k in range(st_):
            a.e(f"v_add_f32 v{L+4*k}, v{L+4*k}, v{L+4*(st_+k)}\nv_add_f32 v{L+4*k+2}, v{L+4*k+2}, v{L+4*(st_+k)+2}")
    a.e(f"""
    v_add_f32 v{L}, v{L}, v{L+4}
    v_add_f32 v{L+1}, v{L+2}, v{L+6}
    v_add_f32 v{L}, v{L}, v{L+8}
    v_add_f32 v{L+1}, v{L+1}, v{L+10}
    v_mov_b32 v{L+2}, v{L}
    v_mov_b32 v{L+3}, v{L+1}
    s_nop 1
    v_permlane32_swap_b32 v{L}, v{L+2}
    v_permlane32_swap_b32 v{L+1}, v{L+3}
    s_nop 1
    v_add_f32 v{L}, v{L}, v{L+2}
    v_add_f32 v{L+1}, v{L+1}, v{L+3}
    v_mul_f32 v{L}, {f2u(1/2304.)}, v{L}
    v_mul_f32 v{L+1}, {f2u(1/2304.)}, v{L+1}
    v_fma_f32 v{L+1}, -v{L}, v{L}, v{L+1}
    v_max_f32 v{L+1}, 0, v{L+1}
    v_add_f32 v{L+1}, {f2u(1e-5)}, v{L+1}
    v_rsq_f32 v{L+1}, v{L+1}
    s_nop 0
    v_mul_f32 v{L+2}, v{R}, v{L+1}
    v_mul_f32 v{L+3}, -v{L}, v{L+1}
    ds_write_b32 v28, v{L+2}
    ds_write_b32 v28, v{L+3} offset:128
    s_waitcnt lgkmcnt(0)
    ds_read_b128 {vr(L+8)}, v29
    ds_read_b128 {vr(L+12)}, v29 offset:16
    ds_read_b128 {vr(L+16)}, v29 offset:128
    ds_read_b128 {vr(L+20)}, v29 offset:144
    s_waitcnt lgkmcnt(0)
    """)
    for b_ in range(6):
        for k in range(4):
            z = ZT + 4*b_ + k; t = 32 + 2*(k & 1)
            a.e(f"v_lshlrev_b32 v{t}, 16, v{z}")
            a.e(f"v_and_b32 v{t+1}, 0xffff0000, v{z}")
            a.e(f"v_fma_f32 v{t}, v{t}, v{L+8+2*k}, v{L+16+2*k}")
            a.e(f"v_fma_f32 v{t+1}, v{t+1}, v{L+9+2*k}, v{L+17+2*k}")
            a.e(f"v_cvt_pk_bf16_f32 v{z}, v{t}, v{t+1}")
        if b_ % 2 == 0 and b_ > 0:
            a.e("s_add_u32 s54, s54, 4096")
        a.e(f"buffer_store_dwordx4 {vr(ZT+4*b_)}, v0, s[20:23], s54 offen offset:{(b_&1)*1024} sc1")
    repack_stores(a, name)
    if stamp == 3:
        a.e(f"""
        s_add_u32 s84, s20, {STAMP + 8*65536}
        s_addc_u32 s85, s21, 0
        s_mov_b32 s86, 0x200000
        s_mov_b32 s87, 0x20000
        s_lshl_b32 s88, s2, 3
        s_add_u32 s88, s88, s3
        s_lshl_b32 s88, s88, 9
        v_writelane_b32 v18, s92, 0
        v_lshlrev_b32 v1, 2, v2
        buffer_store_dword v18, v1, s[84:87], s88 offen
        buffer_store_dword v61, v1, s[84:87], s88 offen offset:256
        """)

def stat_issue(a, tracked=True):
    f = a.vm if tracked else (lambda t, k=None: a.e(t))
    a.e(f"""
    v_lshrrev_b32 v63, 9, v0            ; h
    v_mul_u32_u24 v63, {12*2048}, v63
    v_add_u32 v63, v63, v21
    s_mov_b32 s45, s55
    """)
    for k in range(12):
        if k % 2 == 0 and k: a.e("s_add_u32 s45, s45, 4096")
        f(f"buffer_load_dwordx4 {vr(112+4*k)}, v63, s[20:23], s45 offen offset:{(k%2)*2048}" + ("" if tracked else " sc1"), "stl")

def touch(a, vt=18):
    a.e(f"""
    s_load_dwordx2 s[62:63], s[0:1], {KA_WSP}
    s_lshl_b32 s38, s2, 2
    s_add_u32 s38, s38, s3
    s_lshl_b32 s39, s2, 1
    s_add_u32 s39, s39, s3
    s_sub_u32 s39, s39, 4
    s_waitcnt lgkmcnt(0)
    s_cmp_lt_u32 s3, 6
    s_cselect_b32 s28, s70, s72
    s_cselect_b32 s29, s71, s73
    s_mov_b32 s30, {D*D*2}
    s_cselect_b32 s30, {F2*D*2}, s30
    s_cselect_b32 s39, s39, s2
    s_cmp_lt_u32 s3, 4
    s_cselect_b32 s28, s62, s28
    s_cselect_b32 s29, s63, s29
    s_cselect_b32 s30, {S*S*2}, s30
    s_cselect_b32 s39, s38, s39
    s_mov_b32 s31, 0x20000
    s_cmp_eq_u32 s3, 7
    s_cselect_b32 s30, 0, s30
    s_lshl_b32 s39, s39, 13
    v_lshlrev_b32 v{vt}, 3, v0
    v_add_u32 v{vt}, s39, v{vt}
    """)
    a.lg_done = a.lg_n - 1
    a.vm(f"buffer_load_dword v{vt}, v{vt}, s[28:31], 0 offen")

def repack_loads(a, name, tag, base):
    lb = f"{name}_rp{tag}"
    a.e(f"""
    s_cmp_ge_u32 s60, 720
    s_cbranch_scc1 {lb}
    s_lshr_b32 s61, s60, 3              ; step
    s_and_b32 s62, s60, 7               ; d tile
    s_cmp_lt_u32 s61, 72
    s_cselect_b32 s28, s70, s72
    s_cselect_b32 s29, s71, s73
    s_mov_b32 s30, {D*D*2}
    s_cselect_b32 s30, {F2*D*2}, s30
    s_mov_b32 s31, 0x20000
    s_mov_b32 s63, {8*1152}
    s_cselect_b32 s63, {16*1152}, s63           ; j2 stride
    s_mov_b32 s64, {2*1152}                     ; j1 stride
    s_mov_b32 s65, {18*1152}
    s_cselect_b32 s65, {8*1152}, s65            ; k1 stride
    s_mov_b32 s66, {4*1152}                     ; k0 stride
    s_mul_i32 s67, s61, {32*1152}
    s_sub_u32 s68, s61, 72
    s_mul_i32 s68, s68, {36*1152}
    s_cmp_lt_u32 s61, 72
    s_cselect_b32 s67, s67, s68
    s_sub_u32 s68, s61, 88
    s_mul_i32 s68, s68, {288*1152}
    s_add_u32 s68, s68, {16*1152}
    s_cmp_ge_u32 s61, 88
    s_cselect_b32 s67, s68, s67
    s_cselect_b32 s63, {36*1152}, s63
    s_cselect_b32 s64, {18*1152}, s64
    s_cselect_b32 s65, {144*1152}, s65
    s_cselect_b32 s66, {72*1152}, s66
    s_mul_i32 s68, s62, 144
    s_add_u32 s67, s67, s68
    v_lshrrev_b32 v180, 9, v0
    v_mul_lo_u32 v180, v180, s64
    v_bfe_u32 v181, v0, 8, 1
    v_mul_u32_u24 v181, 1152, v181
    v_add_u32 v180, v180, v181
    v_and_b32 v181, 0xf0, v0
    v_add_u32 v180, v180, v181
    v_mov_b32 v182, {BIG}
    v_cmp_gt_u32 vcc, 144, v181
    s_lshl_b32 s48, s3, 13
    s_add_u32 s48, s48, {base}
    s_nop 0
    v_cndmask_b32 v180, v182, v180, vcc
    """)
    for i in range(8):
        j2, k1, k0 = i >> 2, (i >> 1) & 1, i & 1
        a.e(f"s_add_u32 m0, s48, {i*1024}")
        a.e(f"s_mov_b32 s68, s67")
        if j2: a.e("s_add_u32 s68, s68, s63")
        if k1: a.e("s_add_u32 s68, s68, s65")
        if k0: a.e("s_add_u32 s68, s68, s66")
        a.e(f"buffer_load_dwordx4 v180, s[28:31], s68 offen lds")
    a.label(lb)

def repack_stores(a, name):
    lb = f"{name}_rps"
    a.e(f"""
    s_cmp_ge_u32 s60, 720
    s_cbranch_scc1 {lb}
    v_lshrrev_b32 v181, 6, v0
    v_lshlrev_b32 v181, 8, v181
    v_bfe_u32 v182, v0, 4, 2
    v_lshl_add_u32 v181, v182, 3, v181
    v_add_u32 v181, s48, v181
    """)
    for i in range(5):
        a.e(f"ds_read_b64_tr_b16 {vr(160+4*i,2)}, v181 offset:{32*i}")
        a.e(f"ds_read_b64_tr_b16 {vr(162+4*i,2)}, v181 offset:{32*i + 4096}")
    a.e(f"""
    s_mul_i32 s68, s62, 90
    s_add_u32 s68, s68, s61
    s_mul_i32 s68, s68, 4608
    s_add_u32 s68, s68, {WP}
    v_lshrrev_b32 v181, 8, v0
    v_lshlrev_b32 v181, 7, v181
    v_and_b32 v182, 0x70, v0
    v_add_u32 v181, v181, v182
    v_add_u32 v181, 4096, v181
    v_and_b32 v182, 0x80, v0
    v_cmp_eq_u32 vcc, 0, v182
    v_mov_b32 v182, {BIG}
    s_nop 0
    v_cndmask_b32 v181, v182, v181, vcc
    s_waitcnt lgkmcnt(0)
    """)
    for i in range(4):
        a.e(f"buffer_store_dwordx4 v[{160+4*i}:{163+4*i}], v0, s[20:23], s68 offen offset:{1024*i} sc1")
    a.e(f"buffer_store_dwordx4 v[176:179], v181, s[20:23], s68 offen sc1")
    a.label(lb)

def gen_k1(name="k1_kernel", stamp=False, attn=True):
    a = Sched()
    a.e(f"""
    s_cmp_ge_u32 s2, 256
    s_cbranch_scc1 {name}_end
    """)
    if stamp: stamp_begin(a)
    a.e(f"""
    s_load_dwordx4 s[4:7], s[0:1], {KA_X}         ; x, wqkv
    s_load_dwordx2 s[74:75], s[0:1], {KA_WPHI}
    s_load_dwordx2 s[72:73], s[0:1], {KA_WO}
    s_load_dwordx2 s[28:29], s[0:1], {KA_WIN}
    s_load_dwordx2 s[70:71], s[0:1], {KA_WOUT}
    s_load_dwordx4 s[64:67], s[0:1], {KA_DBG}
    v_lshrrev_b32 v1, 6, v0
    v_and_b32 v2, 63, v0
    v_readfirstlane_b32 s3, v1
    s_and_b32 s30, s2, 7
    s_lshr_b32 s31, s2, 3               ; l
    s_and_b32 s35, s30, 1
    s_lshr_b32 s30, s30, 1              ; j
    s_waitcnt lgkmcnt(0)
    """)
    srd(a, 24, 64, 65, 256)
    epoch_publish(a, name)
    srd(a, 8, 4, 5, S*D*2)
    srd(a, 16, 6, 7, D*1728*2)
    srd(a, 12, 28, 29, D*4608*2)
    srd(a, 20, 66, 67, WS_USED)
    NT = int(os.environ.get("NT", 0))
    if NT:
        a.e(f"""
        s_mul_i32 s38, s2, 5
        s_add_u32 s38, s38, s3
        s_sub_u32 s39, s38, 288
        s_sub_u32 s40, s38, {288+243}
        s_cmp_lt_u32 s38, {288+243}
        s_cselect_b32 s76, s16, s12
        s_cselect_b32 s77, s17, s13
        s_cselect_b32 s78, s18, s14
        s_cselect_b32 s39, s39, s40
        s_cmp_lt_u32 s38, 288
        s_cselect_b32 s76, s8, s76
        s_cselect_b32 s77, s9, s77
        s_cselect_b32 s78, s10, s78
        s_cselect_b32 s39, s38, s39
        s_mov_b32 s79, 0x20000
        s_cmp_ge_u32 s3, 5
        s_cselect_b32 s78, 0, s78
        s_lshl_b32 s39, s39, 13
        v_lshlrev_b32 v63, 7, v2
        v_add_u32 v63, s39, v63
        """)
        a.vm("buffer_load_dword v63, v63, s[76:79], 0 offen")
    a.e(f"""
    s_cmp_ge_u32 s31, 24
    s_cbranch_scc1 {name}_attn
    s_lshl_b32 s32, s35, 3
    s_and_b32 s33, s31, 7
    s_add_u32 s32, s32, s33             ; rt
    s_mul_i32 s33, s30, 3
    s_lshr_b32 s34, s31, 3
    s_add_u32 s33, s33, s34             ; zg
    s_lshr_b32 s34, s33, 2
    s_sub_u32 s34, s33, s34             ; qi
    s_and_b32 s36, s33, 3
    s_cmp_eq_u32 s36, 3
    s_cselect_b32 s18, 0, s18
    s_cselect_b32 s34, 0, s34
    s_mul_i32 s60, s33, 16
    s_add_u32 s60, s60, s32
    s_lshl_b32 s60, s60, 2
    s_add_u32 s60, s60, s3
    s_cmp_ge_u32 s3, 4
    s_cselect_b32 s60, 720, s60
    """)
    gen_zpath(a, name, stamp)
    if stamp: stamp_end(a, 1, "s3", 4)
    a.e("s_endpgm")
    a.label(f"{name}_attn")
    from k1a import gen_attn, A_LDS
    b = Sched(); b.uid = 1000; b.vm_n = 1 if NT else 0
    gen_attn(b, name, stamp, attn)
    a.lines += b.lines
    lds = max(Z_LDS, A_LDS)
    a.label(f"{name}_end")
    a.e("s_endpgm")
    launch = f"; @launch kernel={name} grid=(256,1,1) block=(512,1,1) lds={lds}\n"
    return launch, kernel_begin(name) + a.text(), kernel_desc(name, 256, 102, 256)
```

```python
import os
from k1common import *
from sched import Sched
XRA = 0
WRA = 98304
PHI = 40960
AFO = 147456
CSA = AFO + 14*1024
WPH = AFO + 10*1024
A_LDS = CSA + 1024
PPH, PV = 328, 152

def gen_attn(a, name, stamp, full=True):
    X = 112; ACC = [48, 64, 80, 96]; WF = [24, 28, 32, 36]
    NEGMU, R, TAG = 8, 10, 14

    a.e(f"""
    s_sub_u32 s33, s31, 24
    s_lshl_b32 s32, s35, 2
    s_and_b32 s34, s33, 3
    s_add_u32 s32, s32, s34             ; rt2
    s_lshr_b32 s33, s33, 2
    s_lshl_b32 s34, s30, 1
    s_add_u32 s33, s33, s34             ; G
    s_and_b32 s34, s33, 1               ; G odd
    s_mul_i32 s36, s33, 144
    s_lshl_b32 s37, s34, 4
    s_sub_u32 s37, s36, s37
    s_add_u32 s37, s37, 1152
    s_add_u32 s36, s36, {2304 - 160}
    """)
    def colreg(a, dst, unit, t):
        a.e(f"""
        v_cmp_gt_u32 vcc, 10, v{unit}
        v_mov_b32 v{dst}, s36
        v_mov_b32 v{t}, s37
        v_cndmask_b32 v{dst}, v{dst}, v{t}, vcc
        v_lshl_add_u32 v{dst}, v{unit}, 4, v{dst}
        """)
    a.e(f"""
    v_lshrrev_b32 v28, 3, v2
    v_and_b32 v29, 7, v2
    v_lshrrev_b32 v31, 4, v2
    v_xor_b32 v31, v31, v29
    v_mul_u32_u24 v8, 1152, v28
    v_lshl_add_u32 v8, v31, 4, v8
    v_xor_b32 v9, 64, v8
    v_add_u32 v10, {2*(8*1152-1024)}, v8
    v_add_u32 v11, {3*(8*1152-1024)}, v9
    v_add_u32 v9, {8*1152-1024}, v9
    s_lshl_b32 s43, s32, 8
    s_lshl_b32 s44, s3, 5
    s_add_u32 s43, s43, s44
    s_lshl_b32 s59, s43, 4
    s_add_u32 s59, s59, {XST}
    s_mul_i32 s43, s43, 1152
    s_lshl_b32 s44, s3, 12
    v_and_b32 v26, 3, v2
    v_lshrrev_b32 v30, 2, v2
    v_mul_u32_u24 v30, 3456, v30
    s_lshr_b32 s38, s3, 1
    s_lshl_b32 s38, s38, 2
    v_add_u32 v27, s38, v26
    """)
    colreg(a, 5, 27, 29)
    a.e(f"""
    v_add_u32 v5, v5, v30
    v_add_u32 v6, {16*3456 - 1024}, v5
    s_and_b32 s40, s3, 1
    s_mul_i32 s40, s40, {32*3456}
    s_lshl_b32 s42, s3, 11
    s_add_u32 s42, s42, {WRA}
    """)
    wid = {}; xid = {}; pend = []
    def issue(k):
        if k[0] == "x":
            c, i = k[1], k[2]
            if i == 0: a.e(f"s_add_u32 m0, s44, {XRA + (c%3)*32768}\ns_add_u32 s46, s43, {c*128}")
            xid[c] = a.vm(f"buffer_load_dwordx4 v{8+i}, s[8:11], s46 offen offset:{i*1024} lds")
        elif k[0] == "w":
            c, i = k[1], k[2]
            if i == 0: a.e(f"s_add_u32 m0, s42, {(c%3)*16384}\ns_add_u32 s46, s40, {c*64*3456}")
            wid[c] = a.vm(f"buffer_load_dwordx4 v{5+i}, s[16:19], s46 offen offset:{i*1024} lds")
        else:
            i = k[1]
            a.e(f"s_add_u32 m0, s48, {XRA + i*8192}\ns_add_u32 s46, s41, {i*128*3456}")
            if i < 4:
                wid[("b4", i)] = a.vm(f"buffer_load_dwordx4 v7, s[16:19], s46 offen lds")
            else:
                a.e("v_add_u32 v22, s46, v7")
                wid[("b4", i)] = a.vm(f"buffer_load_dwordx4 v22, s[16:19], 0 offen lds")
    def push(c):
        pend.extend([("x", c, i) for i in range(4)] + [("w", c, 0), ("w", c, 1)])
    def dma(n=1):
        for _ in range(n):
            if pend: issue(pend.pop(0))
    push(0); dma(100)
    a.e(f"""
    s_lshl_b32 s38, s3, 2
    v_add_u32 v27, s38, v26
    """)
    colreg(a, 28, 27, 29)
    a.e(f"""
    v_add_u32 v28, v28, v30
    v_mov_b32 v31, {BIG}
    s_cmp_lt_u32 s3, 5
    s_cselect_b64 vcc, -1, 0
    v_cndmask_b32 v28, v31, v28, vcc
    v_cmp_gt_u32 vcc, 32, v2
    s_mul_i32 s39, s32, {72*3456}
    s_nop 0
    v_cndmask_b32 v29, v31, v28, vcc
    """)
    for i in range(5):
        coop_id = a.vm(f"buffer_load_dwordx4 {vr(216+4*i)}, v{28 if i < 4 else 29}, s[16:19], s39 offen")
        if i < 4: a.e(f"s_add_u32 s39, s39, {16*3456}")
    a.e(f"""
    s_mov_b32 s28, s74
    s_mov_b32 s29, s75
    s_mov_b32 s30, {32*18*18*2}
    s_mov_b32 s31, 0x20000
    s_min_u32 s38, s3, 3
    s_lshl_b32 s38, s38, 10
    s_add_u32 m0, s38, {WPH}
    s_mul_i32 s39, s33, 2592
    s_add_u32 s39, s39, s38
    v_lshlrev_b32 v0, 4, v2
    s_cmp_ge_u32 s3, 3
    s_cselect_b64 vcc, -1, 0
    v_add_u32 v28, s39, v0
    v_cndmask_b32 v28, v28, v31, vcc
    """)
    a.vm("buffer_load_dwordx4 v28, s[28:31], 0 offen lds")
    a.e(f"""
    s_cmp_eq_u32 s3, 0
    s_cselect_b32 s38, 0, {BIG}
    v_mov_b32 v4, s38
    """)
    push(1); dma(100)
    ep_id = a.vm(f"buffer_load_dword v{TAG}, v4, s[24:27], 0 offen sc1")
    a.e(f"""
    v_add_u32 v27, 16, v26
    """)
    colreg(a, 7, 27, 29)
    a.e(f"""
    v_add_u32 v7, v7, v30               ; B4 panel
    s_mul_i32 s41, s3, {16*3456}
    s_lshl_b32 s48, s3, 10
    v_lshrrev_b32 v24, 5, v2
    v_and_b32 v22, 15, v2
    v_lshrrev_b32 v23, 2, v22           ; r
    v_and_b32 v22, 3, v22               ; c
    v_bfe_u32 v25, v2, 4, 1             ; n half
    v_lshl_add_u32 v12, v24, 3, v23     ; 8h + r
    v_lshlrev_b32 v1, 6, v12
    v_lshl_add_u32 v1, v25, 5, v1
    v_lshl_add_u32 v3, v22, 3, v1
    v_add_u32 v1, {WRA}, v3
    v_and_b32 v32, 31, v2               ; s
    v_bfe_u32 v33, v2, 1, 3
    v_xor_b32 v33, v33, v24
    v_lshlrev_b32 v33, 4, v33
    v_lshl_add_u32 v16, v32, 7, v33
    v_add_u32 v16, s44, v16
    v_xor_b32 v17, 32, v16
    v_xor_b32 v18, 64, v16
    v_xor_b32 v19, 96, v16
    v_lshlrev_b32 v21, 3, v32           ; s*8
    """)
    push(2)
    a.keys["coop"] = ("vm", coop_id)
    b = Sched()
    b.e(f"""
    s_mul_i32 s57, s33, {8*160*8}
    s_add_u32 s57, s57, {CSPA}
    s_mul_i32 s47, s32, {160*8}
    s_add_u32 s47, s47, s57
    s_lshl_b32 s50, s3, 8
    s_add_u32 s47, s47, s50
    v_and_b32 v250, 3, v2
    v_lshlrev_b32 v250, 6, v250
    v_lshrrev_b32 v249, 4, v2
    v_lshl_add_u32 v250, v249, 3, v250
    v_and_b32 v249, 12, v2
    v_cmp_eq_u32 vcc, 0, v249
    s_mov_b32 s62, 0x00003f80
    s_mov_b32 s63, 0x3f800000
    v_mov_b32 v249, {BIG}
    s_cmp_ge_u32 s3, 5
    s_cselect_b64 vcc, 0, vcc
    v_cndmask_b32 v250, v249, v250, vcc
    """)
    a.add_block(b.lines, "x"); b.lines = []
    a.add("w", None, "coop")
    for i in range(5): colsum_add(b, 236, 216 + 4*i, i == 0)
    fold_pairs(b, 236, [4, 8])
    a.add_block(b.lines, "x"); b.lines = []
    a.add("gate")
    a.add("lg", f"ds_read_b32 v{TAG}, v4", "tag")
    a.add("w", None, "tag")
    a.addv(f"v_mov_b32 v237, v{TAG}\nv_mov_b32 v241, v{TAG}")
    a.add("vm", f"buffer_store_dwordx2 v[236:237], v250, s[20:23], s47 offen sc1")
    a.add("vm", f"buffer_store_dwordx2 v[240:241], v250, s[20:23], s47 offen offset:32 sc1")
    a.addv(f"""
    s_mul_i32 s50, s3, 160
    v_and_b32 v22, 7, v2
    v_lshrrev_b32 v23, 3, v2
    v_mul_u32_u24 v23, 1280, v23
    v_lshl_add_u32 v23, v22, 3, v23
    v_add_u32 v23, s50, v23
    v_cmp_gt_u32 vcc, 4, v22
    v_mov_b32 v47, {BIG}
    s_lshr_b32 s50, s50, 1
    v_cndmask_b32 v47, v47, v23, vcc
    s_add_u32 s50, s50, {CSA}
    v_lshl_add_u32 v20, v22, 2, s50
    v_lshlrev_b32 v15, 1, v21
    """)
    a.add("mark", None, "sigready")
    a.addv(f"""
    v_lshrrev_b32 v224, 5, v2           ; h'
    v_bfe_u32 v225, v2, 3, 2            ; g
    v_and_b32 v226, 3, v2               ; r
    v_lshl_add_u32 v225, v225, 2, v226  ; n = 4g + r
    s_lshr_b32 s50, s3, 1               ; i
    s_and_b32 s51, s3, 1
    s_lshl_b32 s51, s51, 4
    s_lshl_b32 s52, s50, 1
    s_sub_u32 s51, s51, s52
    s_lshl_b32 s52, s34, 3
    s_sub_u32 s51, s51, s52             ; D0 = 16t - 2i - 8(G&1)
    v_lshlrev_b32 v227, 2, v224
    v_add_u32 v228, s51, v227
    s_mul_i32 s50, s50, 648
    s_add_u32 s50, s50, {WPH}
    v_lshlrev_b32 v229, 1, v225
    v_add_u32 v229, s50, v229
    v_lshrrev_b32 v230, 1, v225         ; i' = n>>1
    s_lshl_b32 s53, s3, 4
    s_sub_u32 s53, s53, s52
    v_add_u32 v231, s53, v227
    v_mul_u32_u24 v226, 18, v230
    v_sub_u32 v231, v231, v226
    v_cmp_lt_u32 vcc, 7, v225
    v_mov_b32 v227, 1000
    v_mul_u32_u24 v230, 648, v230
    v_cndmask_b32 v231, v231, v227, vcc
    v_and_b32 v226, 1, v225
    v_lshl_add_u32 v230, v226, 1, v230
    v_add_u32 v230, {32 + WPH}, v230
    v_mov_b32 v227, {WPH + 3072}
    """)
    AFL = 232
    for f, (db, vf) in enumerate(((228, 229), (231, 230))):
        for j in range(8):
            a.addv(f"""
            v_add_u32 v226, {8*(j>>2) + (j&3)}, v{db}
            v_cmp_gt_u32 vcc, 18, v226
            v_mul_u32_u24 v226, 36, v226
            v_add_u32 v226, v226, v{vf}
            v_cndmask_b32 v226, v227, v226, vcc
            """)
            a.add("lg", f"ds_read_u16 v{AFL + 8*f + j}, v226", "afl")
    a.addv(f"""
    v_bfe_u32 v224, v2, 2, 1
    v_mov_b32 v225, 0x80008000
    v_mul_lo_u32 v224, v224, v225
    s_add_u32 s50, s48, {AFO}
    v_add_u32 v225, s50, v0
    s_min_u32 s51, s3, 5
    s_lshl_b32 s51, s51, 10
    s_add_u32 s50, s51, {AFO + 8192}
    v_add_u32 v226, s50, v0
    s_mul_i32 s52, s33, {13*1024}
    s_add_u32 s52, s52, {AF}
    s_add_u32 s51, s51, s52
    s_add_u32 s51, s51, 8192
    s_add_u32 s52, s52, s48
    v_mov_b32 v227, {BIG}
    s_cmp_eq_u32 s32, 0
    s_cselect_b64 vcc, -1, 0
    v_cndmask_b32 v228, v227, v0, vcc
    s_cmp_ge_u32 s3, 5
    s_cselect_b64 vcc, 0, vcc
    v_cndmask_b32 v229, v227, v0, vcc
    """)
    a.add("w", None, "afl")
    for f in range(2):
        for k in range(4):
            a.addv(f"v_lshl_or_b32 v{248+4*f+k}, v{AFL+8*f+2*k+1}, 16, v{AFL+8*f+2*k}")
            a.addv(f"v_xor_b32 v{248+4*f+k}, v{248+4*f+k}, v224")
    a.add("gate", None, "af")
    a.add("lg", f"ds_write_b128 v225, {vr(248)}")
    a.add("lg", f"ds_write_b128 v226, {vr(252)}")
    a.add("vm", f"buffer_store_dwordx4 {vr(248)}, v228, s[20:23], s52 offen sc1")
    a.add("vm", f"buffer_store_dwordx4 {vr(252)}, v229, s[20:23], s51 offen sc1")
    a.addv("s_nop 1")
    def barrier(vmid):
        a.wait(vm=vmid, lg=a.lg_n - 1)
        a.e("s_barrier")
    def hand_loads(a, tracked=True):
        f = a.vm if tracked else (lambda t, k=None: a.e(t))
        sc = "" if tracked else " sc1"
        f(f"buffer_load_dwordx4 {vr(NEGMU)}, v15, s[20:23], s59 offen{sc}")
        for k in range(3):
            f(f"buffer_load_dwordx2 {vr(40 + 2*k, 2)}, v{47 if k == 2 else 23}, s[20:23], s57 offen offset:{64*k}{sc}", "csp")
    seq = [(c, j, b) for c in range(9) for j in range(4) for b in range(4)]
    rid = {}
    def rd(n):
        c, j, b = seq[n]
        if b == 0:
            xr = X + (4*c + j)*4
            if c % 3 < 2:
                a.lg(f"ds_read_b128 {vr(xr)}, v{16+j} offset:{(c%3)*32768}")
            else:
                a.e(f"v_add_u32 v13, 65536, v{16+j}")
                a.lg(f"ds_read_b128 {vr(xr)}, v13")
        w = WF[n % 4]
        off = (c % 3)*16384 + b*4096 + j*1024
        a.lg(f"ds_read_b64_tr_b16 {vr(w,2)}, v1 offset:{off}")
        rid[n] = a.lg(f"ds_read_b64_tr_b16 {vr(w+2,2)}, v1 offset:{off+256}")
    AH = 3
    barrier(max(xid[0], wid[0]))
    if stamp: stamp_mid(a, 0)
    for n in range(AH): rd(n)
    b4 = {}
    def rd4(i):
        w = WF[i % 4]
        a.lg(f"ds_read_b64_tr_b16 {vr(w,2)}, v3 offset:{i*1024}")
        b4[i] = a.lg(f"ds_read_b64_tr_b16 {vr(w+2,2)}, v3 offset:{i*1024+256}")
    for n, (c, j, b) in enumerate(seq):
        a.wait(lg=rid[n])
        m = n + AH
        if m < len(seq):
            if m % 16 == 0:
                c1 = m // 16
                dma(100)
                if c1 == 1:
                    a.wait(vm=ep_id)
                    epoch_share(a, name, 0, TAG, 4, CSA + 1020)
                barrier(max(xid[c1], wid[c1]))
                if c1 == 1: a.e(f"v_mov_b32 v4, {CSA + 1020}")
                a.open_gate('af')
                if c1 + 2 < 9: push(c1 + 2)
                if c1 == 7: pend.extend([("b4", i) for i in range(4)])
                if c1 == 8: pend.append(("b4", 4))
                if c1 == 7: hand_loads(a)
            rd(m)
        a.e(f"{MF32} {vr(ACC[b],16)}, {vr(WF[n % 4])}, {vr(X + (4*c+j)*4)}, " + ("0" if n < 4 else vr(ACC[b],16)))
        if n % 2 == 1: dma(1)
        if n + AH >= 16: a.open_gate()
        a.pump(6 if n < 32 else 5)
        if n + AH + 1 == 16*6: assert "sigready" in a.marks
        if n + AH + 1 == 16*7: assert all(k in ('gate', 'lg', 'vm') or t == 's_nop 1' for k, t, _ in a.fill), len(a.fill)
        if n + AH + 1 == 16*8: assert not a.fill
    if stamp: stamp_mid(a, 1)
    dma(100)
    a.wait_key("csp")
    rl = lambda a: hand_loads(a, False)
    tags_retry(a, name, [41, 43, NEGMU + 1, NEGMU + 3], TAG, 4, rl)
    tags_retry(a, name, [45, 45], TAG, 4, rl, 47)
    a.e("v_mov_b32 v41, v42\nv_mov_b32 v42, v44")
    fold8(a, 40, 44, 3)
    a.lg("ds_write_b32 v20, v40")
    a.lg("ds_write_b32 v20, v41 offset:32")
    a.e(f"""
    v_cmp_gt_u32 vcc, {BIG}, v47
    v_mov_b32 v43, {CSA + 1000 - 64}
    s_nop 0
    v_cndmask_b32 v20, v43, v20, vcc
    """)
    a.lg("ds_write_b32 v20, v42 offset:64")
    barrier(wid[("b4", 4)])
    a.e(f"""
    v_lshrrev_b32 v4, 9, v0
    v_lshlrev_b32 v4, 4, v4
    v_add_u32 v4, {CSA}, v4
    v_add_u32 v5, {AFO}, v0
    v_lshrrev_b32 v6, 3, v21
    s_lshl_b32 s38, s3, 5
    v_add_u32 v6, s38, v6
    v_lshrrev_b32 v9, 9, v0             ; h / sign
    v_mul_u32_u24 v7, {PV}, v6
    v_lshl_add_u32 v7, v9, 3, v7
    v_mul_u32_u24 v6, {PPH}, v6
    v_mul_u32_u24 v9, 40, v9
    v_add_u32 v6, v6, v9
    v_add_u32 v6, {PHI}, v6
    """)
    CB = [16, 16]
    def conv(b, acc, emit_now):
        for g in range(4):
            cb = CB[g & 1]; A = acc + 4*g
            a.add("lg", f"ds_read_b128 {vr(cb)}, v4 offset:{b*128 + g*32}", ("cs", b, g))
            a.add("w", None, ("cs", b, g))
            for r in range(4): a.addv(f"v_fmac_f32 v{A+r}, v{NEGMU}, v{cb+r}")
            for r in range(4): a.addv(f"v_mul_f32 v{A+r}, v{R}, v{A+r}")
            a.addv(f"v_cvt_pk_bf16_f32 v{acc+2*g}, v{A}, v{A+1}")
            a.addv(f"v_cvt_pk_bf16_f32 v{acc+2*g+1}, v{A+2}, v{A+3}")
        if emit_now: a.flush()
    if "k1touch" in os.environ.get("OPT", "k1touch"):
        from k1 import touch
        touch(a, 22)
    rd4(0); rd4(1)
    conv(3, ACC[3], True)
    for k in range(8): a.e(f"v_mov_b32 v{40+k}, v{96+k}")
    conv(0, ACC[0], False); conv(1, ACC[1], False); conv(2, ACC[2], False)
    for i in range(36):
        a.wait(lg=b4[i])
        if i + 2 < 36: rd4(i + 2)
        mfma(a, vr(ACC[3],16), vr(WF[i % 4]), vr(X + 4*i), "0" if i == 0 else vr(ACC[3],16))
        a.pump(6)
    a.flush()
    if stamp: stamp_mid(a, 2)
    KB = [48, 52, 64, 68, 80]
    AFR = 112
    P = [164, 180, 196, 212]; PT = 228
    for f in range(13):
        a.lg(f"ds_read_b128 {vr(AFR+4*f)}, v5 offset:{f*1024}", ("af", f))
    for st_ in range(5):
        a.wait_key(("af", 8 + st_))
        a.e(f"{MF32} {vr(PT,16)}, {vr(AFR+4*(8+st_))}, {vr(KB[st_])}, " + ("0" if st_ == 0 else vr(PT,16)))
    for i in range(4):
        for t in range(2):
            a.e(f"{MF32} {vr(P[i],16)}, {vr(AFR+4*(2*i+t))}, {vr(KB[i+t])}, " + ("0" if t == 0 else vr(P[i],16)))
    conv(4, ACC[3], True)
    a.e(f"s_mov_b32 s45, {f2u(LOG2E)}")
    for i in range(4):
        vals = [P[i] + k for k in range(16)] + [PT + 2*i, PT + 2*i + 1]
        softmax18(a, vals, 24, 28)
        for k in range(4):
            a.lg(f"ds_write_b64 v6, {vr(28+2*k,2)} offset:{i*80 + 8*k}")
        a.lg(f"ds_write_b32 v6, v36 offset:{i*80 + 32}")
    a.wait_all(vm=False)
    a.e("s_barrier")
    vq = [(84, 0), (86, 8)] + [(40 + 2*g, 16 + 8*g) for g in range(4)] + [(96 + 2*g, 48 + 8*g) for g in range(3)]
    for reg, cv in vq:
        a.lg(f"ds_write_b64 v7, {vr(reg,2)} offset:{2*cv}")
    a.e(f"""
    v_mov_b32 v24, {ONES}
    v_mov_b32 v25, {ONES}
    v_lshrrev_b32 v26, 9, v0
    v_lshlrev_b32 v26, 3, v26
    v_sub_u32 v26, v7, v26
    """)
    a.lg("ds_write_b64 v26, v[24:25] offset:144")
    a.e(f"""
    s_lshr_b32 s38, s3, 1               ; i
    s_and_b32 s39, s38, 1
    s_mul_i32 s40, s38, 36
    s_lshl_b32 s39, s39, 2
    s_sub_u32 s40, s40, s39
    v_bfe_u32 v24, v0, 4, 2             ; c
    v_bfe_u32 v25, v0, 8, 1             ; n half
    v_lshlrev_b32 v26, 3, v24
    v_lshl_add_u32 v26, v25, 5, v26
    v_add_u32 v27, s40, v26
    v_cmp_eq_u32 vcc, 40, v26
    v_mov_b32 v28, 144
    v_mul_u32_u24 v29, {PV}, v12
    v_cndmask_b32 v27, v27, v28, vcc
    v_add_u32 v27, v27, v29
    v_mul_u32_u24 v29, {PPH}, v12
    v_add_u32 v29, v29, v26
    s_mul_i32 s41, s3, 40
    s_add_u32 s41, s41, {PHI}
    v_add_u32 v29, s41, v29
    v_add_u32 v30, {128*PPH}, v29
    """)
    a.wait_all(vm=False)
    a.e("s_barrier")
    kid = {}
    for ks in range(16):
        r = 112 + 8*ks
        a.lg(f"ds_read_b64_tr_b16 {vr(r,2)}, v27 offset:{16*ks*PV}")
        a.lg(f"ds_read_b64_tr_b16 {vr(r+2,2)}, v27 offset:{(16*ks+4)*PV}")
        vb = 29 + ks // 8; o = (16*(ks % 8))*PPH
        a.lg(f"ds_read_b64_tr_b16 {vr(r+4,2)}, v{vb} offset:{o}")
        kid[ks] = a.lg(f"ds_read_b64_tr_b16 {vr(r+6,2)}, v{vb} offset:{o + 4*PPH}")
        if ks >= 2:
            k2 = ks - 2
            a.wait(lg=kid[k2])
            a.e(f"{MF32} {vr(48,16)}, {vr(112+8*k2)}, {vr(116+8*k2)}, " + ("0" if k2 == 0 else vr(48,16)))
    for k2 in (14, 15):
        a.wait(lg=kid[k2])
        a.e(f"{MF32} {vr(48,16)}, {vr(112+8*k2)}, {vr(116+8*k2)}, {vr(48,16)}")
    a.e(f"""
    s_lshl_b32 s38, s32, 6
    s_lshl_b32 s39, s33, 3
    s_add_u32 s38, s38, s39
    s_add_u32 s38, s38, s3
    s_mul_i32 s38, s38, 1920
    s_add_u32 s38, s38, {KVP}
    v_lshrrev_b32 v24, 9, v0
    v_mul_u32_u24 v24, 320, v24
    v_lshrrev_b32 v25, 1, v21
    v_add_u32 v24, v24, v25
    v_cmp_gt_u32 vcc, 80, v25
    v_mov_b32 v26, {BIG}
    s_nop 0
    v_cndmask_b32 v24, v26, v24, vcc
    s_nop 7
    """)
    for g in range(3):
        for r in range(4):
            a.e(f"buffer_store_dword v{48+4*g+r}, v24, s[20:23], s38 offen offset:{(8*g+r)*80} sc1")
    if stamp: stamp_end(a, 1, "s3", 3)

def softmax18(a, vals, t, out):
    m, sm = t, t + 1
    a.e(f"v_max3_f32 v{m}, v{vals[0]}, v{vals[1]}, v{vals[2]}")
    a.e(f"v_max3_f32 v{sm}, v{vals[3]}, v{vals[4]}, v{vals[5]}")
    for k in range(6, 18, 4):
        a.e(f"v_max3_f32 v{m}, v{m}, v{vals[k]}, v{vals[k+1]}")
        a.e(f"v_max3_f32 v{sm}, v{sm}, v{vals[k+2]}, v{vals[k+3]}")
    a.e(f"v_max_f32 v{m}, v{m}, v{sm}")
    a.e(f"v_mul_f32 v{m}, s45, v{m}")
    for v in vals: a.e(f"v_fma_f32 v{v}, v{v}, s45, -v{m}")
    for v in vals: a.e(f"v_exp_f32 v{v}, v{v}")
    a.e(f"v_add_f32 v{sm}, v{vals[0]}, v{vals[1]}")
    a.e(f"v_add_f32 v{t+2}, v{vals[2]}, v{vals[3]}")
    for k in range(4, 18, 2):
        a.e(f"v_add_f32 v{sm}, v{sm}, v{vals[k]}")
        a.e(f"v_add_f32 v{t+2}, v{t+2}, v{vals[k+1]}")
    a.e(f"v_add_f32 v{sm}, v{sm}, v{t+2}")
    a.e(f"v_rcp_f32 v{sm}, v{sm}")
    a.e("s_nop 0")
    for v in vals: a.e(f"v_mul_f32 v{v}, v{v}, v{sm}")
    for k in range(9):
        a.e(f"v_cvt_pk_bf16_f32 v{out+k}, v{vals[2*k]}, v{vals[2*k+1]}")
```

```python
import math, struct
from asmlib import *
from layout import *
def f2u(x): return struct.unpack("<I", struct.pack("<f", x))[0]
LOG2E = math.log2(math.e)
ONES = 0x3f803f80
MF32 = "v_mfma_f32_32x32x16_bf16"
BIG = 0x40000000
def vr(b, n=4): return f"v[{b}:{b+n-1}]"

def mfma(a, d, x, y, c):
    import os
    np_ = "noprio" in os.environ.get("ABL", "")
    if not np_: a.e("s_setprio 1")
    a.e(f"{MF32} {d}, {x}, {y}, {c}")
    if not np_: a.e("s_setprio 0")

def epoch_publish(a, name):
    lb = name + "_ep"
    a.e(f"""
    s_or_b32 s38, s2, s3
    s_cmp_eq_u32 s38, 0
    s_cbranch_scc0 {lb}
    s_memrealtime s[38:39]
    s_waitcnt lgkmcnt(0)
    s_or_b32 s38, s38, 1
    v_mov_b32 v10, s38
    v_mov_b32 v11, 0
    s_mov_b64 exec, 1
    buffer_store_dword v10, v11, s[24:27], 0 offen sc1
    s_mov_b64 exec, -1
    """)
    a.label(lb)

def epoch_fetch(a, name, vtmp, vzero):
    lp = a.newlabel(name + "_epl"); ok = a.newlabel(name + "_epk")
    a.e(f"""
    v_readfirstlane_b32 s69, v{vtmp}
    s_mov_b32 s58, 400000
    """)
    a.label(lp)
    a.e(f"""
    s_cmp_lg_u32 s69, 0
    s_cbranch_scc1 {ok}
    s_sub_u32 s58, s58, 1
    s_cmp_eq_u32 s58, 0
    s_cbranch_scc1 {ok}
    s_sleep 4
    buffer_load_dword v{vtmp}, v{vzero}, s[24:27], 0 offen sc1
    s_waitcnt vmcnt(0)
    v_readfirstlane_b32 s69, v{vtmp}
    s_branch {lp}
    """)
    a.label(ok)

def tags_retry(a, name, tags, vtag, t, reload, vmask=None):
    lp = a.newlabel(name + "_tg"); ok = a.newlabel(name + "_tk")
    a.e("s_mov_b32 s58, 100000")
    a.label(lp)
    tg = list(tags)
    if len(tg) % 2 == 0: tg.append(tg[-1])
    a.e(f"v_min3_u32 v{t}, v{tg[0]}, v{tg[1]}, v{tg[2]}\nv_max3_u32 v{t+1}, v{tg[0]}, v{tg[1]}, v{tg[2]}" if len(tg) > 1 else "")
    for k in range(3, len(tg), 2):
        a.e(f"v_min3_u32 v{t}, v{t}, v{tg[k]}, v{tg[k+1]}\nv_max3_u32 v{t+1}, v{t+1}, v{tg[k]}, v{tg[k+1]}")
    a.e(f"""
    v_xor_b32 v{t}, v{t}, v{vtag}
    v_xor_b32 v{t+1}, v{t+1}, v{vtag}
    v_or_b32 v{t}, v{t}, v{t+1}
    """)
    if vmask is not None:
        a.e(f"v_lshrrev_b32 v{t+1}, 30, v{vmask}\nv_subrev_u32 v{t+1}, 1, v{t+1}\nv_and_b32 v{t}, v{t}, v{t+1}")
    a.e(f"""
    v_cmp_ne_u32 vcc, 0, v{t}
    s_sub_u32 s58, s58, 1
    s_cmp_eq_u32 s58, 0
    s_cbranch_scc1 {ok}
    s_cmp_eq_u64 vcc, 0
    s_cbranch_scc1 {ok}
    s_sleep 8
    """)
    reload(a)
    a.e(f"s_waitcnt vmcnt(0)\ns_branch {lp}")
    a.label(ok)

def rowstat_loads(a, lane, R0, tmp):
    a.e(f"""
    s_lshl_b32 s38, s32, 7
    s_lshl_b32 s39, s33, 4
    s_add_u32 s38, s38, s39
    s_lshl_b32 s39, s3, 1
    s_add_u32 s61, s38, s39
    s_mul_i32 s39, s61, 1152
    v_lshrrev_b32 v{tmp}, 5, v{lane}
    v_mul_u32_u24 v{tmp}, {1152 - 512}, v{tmp}
    v_lshl_add_u32 v{tmp}, v{lane}, 4, v{tmp}
    v_mov_b32 v{tmp+1}, {BIG}
    s_cmp_lt_u32 s33, 8
    s_cselect_b64 vcc, -1, 0
    v_cndmask_b32 v{tmp}, v{tmp+1}, v{tmp}, vcc
    v_and_b32 v{tmp+2}, 24, v{lane}
    v_cmp_eq_u32 vcc, 0, v{tmp+2}
    """)
    a.vm(f"buffer_load_dwordx4 {vr(R0)}, v{tmp}, s[8:11], s39 offen")
    a.vm(f"buffer_load_dwordx4 {vr(R0+4)}, v{tmp}, s[8:11], s39 offen offset:512")
    a.e(f"v_cndmask_b32 v{tmp+1}, v{tmp+1}, v{tmp}, vcc")
    return a.vm(f"buffer_load_dwordx4 {vr(R0+8)}, v{tmp+1}, s[8:11], s39 offen offset:1024")

def wave_sum(a, regs, tmp):
    for ctl in ("row_shr:1", "row_shr:2", "row_shr:4", "row_shr:8"):
        a.e("s_nop 1")
        for r in regs:
            a.e(f"v_add_f32_dpp v{r}, v{r}, v{r} {ctl} row_mask:0xf bank_mask:0xf bound_ctrl:0")
    a.e("s_nop 1")
    for r in regs:
        a.e(f"v_add_f32_dpp v{r}, v{r}, v{r} row_bcast:15 row_mask:0xa bank_mask:0xf")

def rowstat_compute(a, R0, t):
    a.e(f"v_mov_b32 v{t}, 0\nv_mov_b32 v{t+2}, 0\ns_mov_b32 s45, {ONES}")
    for k in range(12):
        a.e(f"v_dot2c_f32_bf16 v{t}, s45, v{R0+k}")
        a.e(f"v_dot2c_f32_bf16 v{t+2}, v{R0+k}, v{R0+k}")
    a.e("s_nop 2")
    wave_sum(a, [t, t+2], None)
    a.e(f"""
    v_mul_f32 v{t}, {f2u(-1/576.)}, v{t}
    v_mul_f32 v{t+2}, {f2u(1/576.)}, v{t+2}
    v_fma_f32 v{t+2}, -v{t}, v{t}, v{t+2}
    v_max_f32 v{t+2}, 0, v{t+2}
    v_add_f32 v{t+2}, {f2u(1e-5)}, v{t+2}
    v_rsq_f32 v{t+2}, v{t+2}
    """)

def rowstat_addr(a, lane, dst, t):
    a.e(f"""
    s_lshl_b32 s38, s61, 4
    s_add_u32 s38, s38, {XST}
    v_lshrrev_b32 v{t}, 5, v{lane}
    v_lshl_add_u32 v{t}, v{t}, 4, s38
    v_and_b32 v{dst}, 31, v{lane}
    v_cmp_eq_u32 vcc, 31, v{dst}
    v_mov_b32 v{dst}, {BIG}
    s_cmp_lt_u32 s33, 8
    s_cselect_b64 vcc, vcc, 0
    v_cndmask_b32 v{dst}, v{dst}, v{t}, vcc
    """)

def epoch_share(a, name, wave, vtmp, vzero, ldsaddr):
    lb = a.newlabel(name + "_es")
    a.e(f"s_cmp_eq_u32 s3, {wave}\ns_cbranch_scc0 {lb}")
    epoch_fetch(a, name, vtmp, vzero)
    a.e(f"v_mov_b32 v{vzero}, {ldsaddr}\nds_write_b32 v{vzero}, v{vtmp}\ns_waitcnt lgkmcnt(0)")
    a.label(lb)

def unpack_add(a, dst, src, nreg, first, t):
    for k in range(nreg):
        if first:
            a.e(f"v_lshlrev_b32 v{dst+2*k}, 16, v{src+k}")
            a.e(f"v_and_b32 v{dst+2*k+1}, 0xffff0000, v{src+k}")
        else:
            a.e(f"v_lshlrev_b32 v{t}, 16, v{src+k}")
            a.e(f"v_and_b32 v{t+1}, 0xffff0000, v{src+k}")
            a.e(f"v_add_f32 v{dst+2*k}, v{dst+2*k}, v{t}")
            a.e(f"v_add_f32 v{dst+2*k+1}, v{dst+2*k+1}, v{t+1}")

def fold8(a, R, T, n=8):
    a.e("s_nop 1")
    for k in range(n):
        a.e(f"v_add_f32_dpp v{R+k}, v{R+k}, v{R+k} row_ror:8 row_mask:0xf bank_mask:0xf")
    for op in ("v_permlane16_swap_b32", "v_permlane32_swap_b32"):
        for k in range(n): a.e(f"v_mov_b32 v{T+k}, v{R+k}")
        a.e("s_nop 1")
        for k in range(n): a.e(f"{op} v{R+k}, v{T+k}")
        a.e("s_nop 1")
        for k in range(n): a.e(f"v_add_f32 v{R+k}, v{R+k}, v{T+k}")

def colsum_add(a, dst, src, first):
    for k in range(4):
        if first:
            a.e(f"v_lshlrev_b32 v{dst+2*k}, 16, v{src+k}")
            a.e(f"v_and_b32 v{dst+2*k+1}, 0xffff0000, v{src+k}")
        else:
            a.e(f"v_dot2c_f32_bf16 v{dst+2*k}, s62, v{src+k}")
            a.e(f"v_dot2c_f32_bf16 v{dst+2*k+1}, s63, v{src+k}")

def fold_pairs(a, R, rors):
    a.e("s_nop 2")
    for ror in rors:
        for k in range(8):
            a.e(f"v_add_f32_dpp v{R+k}, v{R+k}, v{R+k} row_ror:{ror} row_mask:0xf bank_mask:0xf")
    a.e("s_nop 1")
    for k in range(0, 8, 2): a.e(f"v_permlane16_swap_b32 v{R+k}, v{R+k+1}")
    a.e("s_nop 1")
    for k in range(0, 8, 2): a.e(f"v_add_f32 v{R+k}, v{R+k}, v{R+k+1}")
    a.e("s_nop 1")
    for k in (0, 4): a.e(f"v_permlane32_swap_b32 v{R+k}, v{R+k+2}")
    a.e("s_nop 1")
    for k in (0, 4): a.e(f"v_add_f32 v{R+k}, v{R+k}, v{R+k+2}")
```

```python
from asmlib import *
from layout import *
from k3 import srd
from k1common import *
from k1a import softmax18

SLOT = 34 * 1024
NSLOT = 4

def tile_ids(a):
    a.e("""
    s_and_b32 s10, s2, 7
    s_lshr_b32 s11, s2, 3
    s_and_b32 s32, s10, 1
    s_lshl_b32 s32, s32, 3
    s_and_b32 s33, s11, 7
    s_add_u32 s32, s32, s33             ; ti
    s_lshr_b32 s33, s10, 1
    s_lshl_b32 s33, s33, 2
    s_lshr_b32 s34, s11, 3
    s_add_u32 s33, s33, s34             ; fj
    """)

KVI = NSLOT * SLOT

def gen_loader(a, name, hi):
    n = 8 if hi else 9
    def issue(slot):
        base = slot * SLOT
        a.e(f"s_add_u32 m0, s39, {base}")
        a.e("s_nop 0")
        for i in range(4):
            a.e(f"buffer_load_dwordx4 v{4+i}, s[12:15], s36 offen offset:{i*1024} lds")
        a.e(f"s_add_u32 m0, s40, {base}")
        a.e("s_add_u32 s36, s36, 128")
        for i in range(3 if hi else 4):
            a.e(f"buffer_load_dwordx4 v3, s[16:19], s37 offen offset:{i*1024} lds")
        a.e(f"s_add_u32 m0, s41, {base}")
        a.e(f"s_add_u32 s37, s37, {2*144*1024}")
        a.e(f"buffer_load_dwordx4 v3, s[16:19], s38 offen lds")
        a.e(f"s_add_u32 s38, s38, {2*144*1024}")
    fb0 = 5 if hi else 0
    fbx = 8 if hi else 4
    a.e(f"""
    s_and_b32 s42, s3, 1
    s_mul_i32 s43, s33, 9
    s_and_b32 s44, s33, 1
    s_add_u32 s45, s43, s44
    s_mul_i32 s46, s42, 144
    s_add_u32 s37, s45, s46
    s_add_u32 s37, s37, {fb0}
    s_lshl_b32 s37, s37, 10
    """)
    if hi:
        a.e(f"""
        s_cmp_eq_u32 s44, 0
        s_cselect_b32 s47, 8, 0
        s_add_u32 s38, s43, s47             ; g8
        s_add_u32 s38, s38, s46
        s_lshl_b32 s38, s38, 10
        """)
    else:
        a.e(f"s_add_u32 s38, s37, 4096")
    a.e(f"""
    s_mul_i32 s40, s42, {9*1024}
    s_add_u32 s41, s40, {fbx*1024}
    s_add_u32 s40, s40, {fb0*1024}
    s_lshl_b32 s39, s3, 12
    s_add_u32 s39, s39, {18*1024}
    """)
    for s in range(3):
        issue(s)
    lp = f"{name}_ld{int(hi)}"
    a.e("s_mov_b32 s48, 0")
    a.label(lp)
    for u in range(4):
        a.e(f"s_waitcnt vmcnt({2*n})")
        a.e("s_barrier")
        issue((u + 3) % 4)
    a.e(f"""
    s_add_u32 s48, s48, 1
    s_cmp_lt_u32 s48, 6
    s_cbranch_scc1 {lp}
    """)
    for u in range(3):
        a.e(f"s_waitcnt vmcnt({2*n})\ns_barrier")
        issue((u + 3) % 4)
    side_loads(a)
    a.e(f"s_waitcnt vmcnt({2*n + 16})\ns_barrier")
    issue(2)
    a.e(f"s_waitcnt vmcnt({2*n + 16})\ns_barrier")
    issue(3)
    a.e(f"s_waitcnt vmcnt({2*n})\ns_branch {name}_side{int(hi)}")

def side_loads(a):
    a.e(f"""
    s_and_b32 s50, s2, 7
    s_lshr_b32 s51, s2, 3               ; head
    s_mul_i32 s52, s51, 3840
    s_add_u32 s52, s52, {KVP}
    v_lshlrev_b32 v9, 4, v0
    v_subrev_u32 v9, 4096, v9           ; (tid - 256)*16
    v_cmp_gt_u32 vcc, 3840, v9
    v_mov_b32 v10, {BIG}
    s_lshr_b32 s53, s51, 2
    s_mul_i32 s53, s53, 13
    v_cndmask_b32 v10, v10, v9, vcc
    s_and_b32 s54, s51, 3               ; i
    s_lshl_b32 s55, s54, 1
    s_add_u32 s55, s55, s53
    s_lshl_b32 s55, s55, 10
    s_add_u32 s55, s55, {AF}
    s_add_u32 s56, s53, s54
    s_lshl_b32 s56, s56, 10
    s_add_u32 s56, s56, {AF + 8192}
    s_lshl_b32 s57, s50, 3
    s_lshl_b32 s58, s3, 1
    s_add_u32 s57, s57, s58
    s_mul_i32 s58, s57, 36
    s_lshr_b32 s59, s51, 3
    s_add_u32 s59, s59, s51
    s_add_u32 s58, s58, s59
    s_lshl_b32 s58, s58, 10
    s_add_u32 s58, s58, {Q}
    """)
    for k in range(2):
        a.e(f"buffer_load_dwordx4 {vr(16+4*k)}, v3, s[20:23], s55 offen offset:{k*1024}")
        a.e(f"buffer_load_dwordx4 {vr(24+4*k)}, v3, s[20:23], s56 offen offset:{k*1024}")
        a.e(f"buffer_load_dwordx4 {vr(32+4*k)}, v3, s[20:23], s58 offen offset:{k*1024}")
    a.e(f"s_add_u32 s58, s58, {36*1024}")
    for k in range(2):
        a.e(f"buffer_load_dwordx4 {vr(40+4*k)}, v3, s[20:23], s58 offen offset:{k*1024}")
    for k in range(8):
        a.e(f"buffer_load_dwordx4 {vr(48+4*k)}, v10, s[20:23], s52 offen")
        if k < 7: a.e(f"s_add_u32 s52, s52, {32*3840}")

def gen_side(a, name):
    P = [80, 112]; PT = [96, 128]; PH = [144, 156]
    for hi in (0, 1):
        a.label(f"{name}_side{hi}")
        a.e(f"s_mov_b32 s49, {hi}")
        if hi == 0: a.e(f"s_branch {name}_sidec")
    a.label(f"{name}_sidec")
    a.e("s_barrier")
    for b in range(2):
        for t in range(2):
            a.e(f"{MF32} {vr(P[b],16)}, {vr(16+4*t)}, {vr(32+8*b+4*t)}, " + ("0" if t == 0 else vr(P[b],16)))
            a.e(f"{MF32} {vr(PT[b],16)}, {vr(24+4*t)}, {vr(32+8*b+4*t)}, " + ("0" if t == 0 else vr(PT[b],16)))
    for k in range(1, 8):
        for r in range(4):
            a.e(f"v_add_f32 v{48+r}, v{48+r}, v{48+4*k+r}")
    a.e(f"""
    v_cvt_pk_bf16_f32 v48, v48, v49
    v_cvt_pk_bf16_f32 v49, v50, v51
    v_lshrrev_b32 v9, 1, v9
    v_add_u32 v9, {KVI}, v9
    ds_write_b64 v9, v[48:49]
    s_mov_b32 s45, {f2u(LOG2E)}
    """)
    for i in range(1, 4):
        a.e(f"s_cmp_eq_u32 s54, {i}\ns_cselect_b64 vcc, -1, 0")
        for b in range(2):
            a.e(f"v_cndmask_b32 v{PT[b]}, v{PT[b]}, v{PT[b]+2*i}, vcc")
            a.e(f"v_cndmask_b32 v{PT[b]+1}, v{PT[b]+1}, v{PT[b]+2*i+1}, vcc")
    lb = f"{name}_sw"
    a.e(f"""
    s_cmp_eq_u32 s49, 0
    s_cbranch_scc1 {lb}a
    s_waitcnt vmcnt(8)
    """)
    a.label(lb + "a")
    a.e("s_waitcnt vmcnt(9) lgkmcnt(0)\ns_barrier")
    softmax18(a, [P[0] + k for k in range(16)] + [PT[0], PT[0] + 1], 12, PH[0])
    a.e("s_waitcnt vmcnt(0)\ns_barrier")
    a.e(f"""
    v_and_b32 v4, 31, v2
    s_and_b32 s52, s51, 1
    s_lshl_b32 s52, s52, 1
    v_add_u32 v5, s52, v4
    v_min_u32 v5, 23, v5
    v_and_b32 v6, 27, v4
    v_cmp_eq_u32 vcc, 18, v6
    v_mov_b32 v7, 20
    v_lshrrev_b32 v8, 5, v2
    v_cndmask_b32 v5, v5, v7, vcc
    v_mul_u32_u24 v6, 24, v8
    v_add_u32 v5, v5, v6
    v_mul_u32_u24 v5, 40, v5
    v_add_u32 v5, {KVI}, v5
    ds_read_b64 v[48:49], v5
    ds_read_b64 v[50:51], v5 offset:8
    ds_read_b64 v[52:53], v5 offset:16
    ds_read_b64 v[54:55], v5 offset:24
    ds_read_b32 v56, v5 offset:32
    v_mov_b32 v57, 0
    v_mov_b32 v58, 0
    v_mov_b32 v59, 0
    """)
    for b in range(2):
        for k in range(9, 12): a.e(f"v_mov_b32 v{PH[b]+k}, 0")
    def apply(b):
        for st in range(3):
            a.e(f"{MF32} {vr(P[b],16)}, {vr(48+4*st)}, {vr(PH[b]+4*st)}, " + ("0" if st == 0 else vr(P[b],16)))
    a.e("s_waitcnt lgkmcnt(0)")
    apply(0)
    softmax18(a, [P[1] + k for k in range(16)] + [PT[1], PT[1] + 1], 12, PH[1])
    a.e("s_nop 1")
    apply(1)
    a.e(f"""
    v_bfe_u32 v6, v2, 4, 1
    v_mul_u32_u24 v6, {90*1024}, v6
    v_and_b32 v7, 15, v2
    v_lshl_add_u32 v6, v7, 4, v6
    v_lshl_add_u32 v7, v8, 8, v6
    v_cmp_gt_u32 vcc, 32, v2
    v_mov_b32 v9, {BIG}
    s_mul_i32 s57, s57, {2*90*1024}
    v_cndmask_b32 v6, v9, v6, vcc
    s_add_u32 s57, s57, {U}
    s_lshr_b32 s52, s51, 1
    s_lshl_b32 s52, s52, 10
    s_and_b32 s53, s51, 1
    s_lshl_b32 s53, s53, 9
    s_add_u32 s52, s52, s53
    s_add_u32 s52, s52, {72*1024}
    s_add_u32 s52, s52, s57
    s_lshr_b32 s53, s51, 4
    s_lshl_b32 s53, s53, 10
    s_bfe_u32 s55, s51, 0x20002
    s_lshl_b32 s55, s55, 8
    s_add_u32 s53, s53, s55
    s_lshl_b32 s55, s54, 2
    s_add_u32 s53, s53, s55
    s_add_u32 s53, s53, {88*1024}
    s_add_u32 s53, s53, s57
    """)
    for b in range(2):
        A = P[b]
        a.e(f"v_add_f32 v12, {f2u(1e-6)}, v{A+10}\nv_rcp_f32 v12, v12\ns_nop 0")
        for k in range(10): a.e(f"v_mul_f32 v{A+k}, v{A+k}, v12")
        for k in range(5): a.e(f"v_cvt_pk_bf16_f32 v{60+8*b+k}, v{A+2*k}, v{A+2*k+1}")
        a.e(f"buffer_store_dwordx4 {vr(60+8*b)}, v7, s[20:23], s52 offen sc1")
        a.e(f"buffer_store_dword v{64+8*b}, v6, s[20:23], s53 offen sc1")
        if b == 0: a.e(f"s_add_u32 s52, s52, {2*90*1024}\ns_add_u32 s53, s53, {2*90*1024}")
    a.e("s_endpgm")

def gen_k2(name="k2_kernel", stamp=False, side=None):
    a = Asm()
    ACC = 160
    FX, FY = 16, 60
    def acc(fb, tb): r = ACC + (fb*2 + tb)*4; return f"v[{r}:{r+3}]"
    def fa(buf, fb): r = buf + fb*4; return f"v[{r}:{r+3}]"
    def fbr(buf, tb): r = buf + 36 + tb*4; return f"v[{r}:{r+3}]"
    a.e(f"""
    s_cmp_ge_u32 s2, 256
    s_cbranch_scc1 {name}_end
    """)
    if stamp: stamp_begin(a)
    a.e(f"""
    s_load_dwordx2 s[4:5], s[0:1], {KA_WS}
    s_load_dwordx2 s[6:7], s[0:1], {KA_WSP}
    s_load_dwordx2 s[8:9], s[0:1], {KA_BSP}
    v_lshrrev_b32 v1, 6, v0
    v_and_b32 v2, 63, v0
    v_readfirstlane_b32 s3, v1          ; wave
    """)
    tile_ids(a)
    a.e("v_lshlrev_b32 v3, 4, v2             ; lane*16")
    a.e("s_waitcnt lgkmcnt(0)")
    srd(a, 12, 6, 7, S*S*2)
    srd(a, 16, 4, 5, Z2T_BYTES, Z2T)
    a.e(f"""
    s_cmp_lt_u32 s3, 4
    s_cbranch_scc1 {name}_compute
    s_sub_u32 s3, s3, 4
    s_mov_b32 s20, s4
    s_mov_b32 s21, s5
    s_mov_b32 s22, {WS_USED}
    s_mov_b32 s23, 0x20000
    v_lshrrev_b32 v8, 3, v2
    v_and_b32 v9, 7, v2                 ; position
    v_lshrrev_b32 v10, 4, v2
    v_xor_b32 v9, v9, v10
    v_lshlrev_b32 v8, 12, v8
    v_lshl_add_u32 v4, v9, 4, v8
    v_xor_b32 v9, 4, v9
    v_lshl_add_u32 v5, v9, 4, v8
    v_add_u32 v6, {2*(32768-1024)}, v4
    v_add_u32 v7, {3*(32768-1024)}, v5
    v_add_u32 v5, {(32768-1024)}, v5
    s_lshl_b32 s36, s32, 7
    s_lshl_b32 s37, s3, 5
    s_add_u32 s36, s36, s37
    s_lshl_b32 s36, s36, 12
    s_cmp_ge_u32 s3, 2
    s_cbranch_scc1 {name}_ldhi
    """)
    gen_loader(a, name, False)
    a.label(f"{name}_ldhi")
    gen_loader(a, name, True)
    gen_side(a, name)
    a.label(f"{name}_compute")
    srd(a, 20, 4, 5, WS_USED - Z1, Z1)
    srd(a, 24, 4, 5, U_BYTES, U)
    srd(a, 28, 8, 9, S*2)
    a.e(f"""
    v_mov_b32 v4, v3
    v_add_u32 v5, {2*SLOT}, v3
    v_and_b32 v10, 15, v2               ; t
    v_lshrrev_b32 v11, 4, v2            ; kg
    v_lshrrev_b32 v12, 1, v10           ; swz
    v_xor_b32 v12, v12, v11
    v_lshlrev_b32 v12, 4, v12
    v_lshl_add_u32 v6, v10, 7, v12
    s_lshl_b32 s36, s3, 12
    s_add_u32 s36, s36, {18*1024}
    v_add_u32 v6, s36, v6
    v_xor_b32 v7, 64, v6
    v_add_u32 v8, {2*SLOT}, v6
    v_add_u32 v9, {2*SLOT}, v7
    """)
    a.e(f"""
    s_lshl_b32 s37, s32, 7
    s_lshl_b32 s38, s3, 5
    s_add_u32 s37, s37, s38
    s_lshl_b32 s38, s37, 1
    v_lshlrev_b32 v12, 1, v10
    buffer_load_ushort v13, v12, s[28:31], s38 offen
    buffer_load_ushort v14, v12, s[28:31], s38 offen offset:32
    s_lshl_b32 s38, s37, 4
    s_add_u32 s38, s38, {XST + 8 - Z1}
    v_lshlrev_b32 v12, 4, v10
    buffer_load_dword v15, v12, s[20:23], s38 offen
    buffer_load_dword v1, v12, s[20:23], s38 offen offset:256
    """)
    import os
    if "k2touch" in os.environ.get("OPT", ""):
        a.e(f"""
        s_lshl_b32 s39, s2, 2
        s_add_u32 s39, s39, s3
        s_mul_i32 s39, s39, {72*128}
        v_lshlrev_b32 v15, 7, v2
        v_min_u32 v16, {7*128}, v15
        buffer_load_dword v17, v15, s[16:19], s39 offen
        s_add_u32 s39, s39, 8192
        buffer_load_dword v18, v16, s[16:19], s39 offen
        """)
    for r in range(ACC, ACC + 72):
        a.e(f"v_mov_b32 v{r}, 0")
    def reads(buf, slot, kh):
        L = []
        sa = (slot & 1) * SLOT
        va = "v4" if slot < 2 else "v5"
        vb = f"v{6 + kh + (0 if slot < 2 else 2)}"
        for tb in range(2):
            L.append(f"ds_read_b128 {fbr(buf,tb)}, {vb} offset:{sa + tb*2048}")
        for fb in range(9):
            L.append(f"ds_read_b128 {fa(buf,fb)}, {va} offset:{sa + (kh*9+fb)*1024}")
        return L
    def phase(cbuf, R, first=False):
        R = list(R)
        if first:
            for r in R: a.e(r)
            return
        k = 0
        for fb in range(9):
            for tb in range(2):
                if R and k < 11:
                    a.e(R.pop(0))
                a.e(f"v_mfma_f32_16x16x32_bf16 {acc(fb,tb)}, {fa(cbuf,fb)}, {fbr(cbuf,tb)}, {acc(fb,tb)}")
                k += 1
    def stage(slot, first=False):
        a.e("s_barrier")
        phase(FY, reads(FX, slot, 0), first)
        a.e("s_waitcnt lgkmcnt(0)")
        phase(FX, reads(FY, slot, 1))
        a.e("s_waitcnt lgkmcnt(0)")
    stage(0, first=True)
    if stamp: stamp_mid(a, 0)
    for u in range(1, 4): stage(u)
    a.e("s_mov_b32 s48, 0")
    lp = f"{name}_cl"
    a.label(lp)
    if stamp == 2:
        a.e("s_memtime s[60:61]\ns_memrealtime s[62:63]\ns_waitcnt lgkmcnt(0)\ns_mov_b32 m0, s48\ns_nop 0\nv_writelane_b32 v250, s60, m0\nv_writelane_b32 v251, s62, m0")
    for u in range(4): stage(u)
    a.e(f"""
    s_add_u32 s48, s48, 1
    s_cmp_lt_u32 s48, 6
    s_cbranch_scc1 {lp}
    """)
    ZR = 104
    a.e(f"""
    s_lshr_b32 s40, s37, 4
    s_mul_i32 s41, s33, 9
    s_and_b32 s42, s33, 1
    s_add_u32 s43, s41, s42
    s_lshr_b32 s43, s43, 1              ; st0
    s_add_u32 s44, s41, 8
    s_cmp_eq_u32 s42, 0
    s_cselect_b32 s44, s44, s41
    s_lshr_b32 s44, s44, 1              ; st8
    s_lshl_b32 s42, s42, 3              ; half*8
    s_mul_i32 s45, s40, 72
    s_add_u32 s46, s45, s44
    s_add_u32 s45, s45, s43
    s_lshl_b32 s45, s45, 10
    s_lshl_b32 s46, s46, 10
    s_add_u32 s46, s46, s42
    s_add_u32 s52, s45, {72*1024}
    s_add_u32 s53, s46, {72*1024}
    s_mul_i32 s54, s40, 90
    s_add_u32 s55, s54, s44
    s_add_u32 s54, s54, s43
    s_lshl_b32 s54, s54, 10
    s_lshl_b32 s55, s55, 10
    s_add_u32 s55, s55, s42
    s_add_u32 s56, s54, {90*1024}
    s_add_u32 s57, s55, {90*1024}
    """)
    for tb in range(2):
        sm, ss = ("s45", "s46") if tb == 0 else ("s52", "s53")
        for i in range(4):
            r = ZR + tb*18 + i*4
            a.e(f"buffer_load_dwordx4 v[{r}:{r+3}], v3, s[20:23], {sm} offen offset:{i*1024}")
        r = ZR + tb*18 + 16
        a.e(f"buffer_load_dwordx2 v[{r}:{r+1}], v3, s[20:23], {ss} offen")
    for u in range(4): stage(u)
    phase(FY, [])
    if stamp: stamp_mid(a, 1)
    a.e("s_waitcnt vmcnt(0)")
    a.e("v_lshlrev_b32 v13, 16, v13\nv_lshlrev_b32 v14, 16, v14\nv_mul_f32 v13, v13, v15\nv_mul_f32 v14, v14, v1\ns_nop 7")
    T = 16
    for tb in range(2):
        sm, ss = ("s54", "s55") if tb == 0 else ("s56", "s57")
        for i in range(5):
            nfb = 2 if i < 4 else 1
            zr = ZR + tb*18 + i*4
            t0 = T + (i % 2) * 8
            for k in range(nfb):
                fb = 2*i + k
                ar = ACC + (fb*2 + tb)*4
                for p in range(2):
                    z = zr + 2*k + p
                    a.e(f"v_fma_f32 v{ar+2*p}, v{ar+2*p}, v{(15, 1)[tb]}, v{13+tb}")
                    a.e(f"v_fma_f32 v{ar+2*p+1}, v{ar+2*p+1}, v{(15, 1)[tb]}, v{13+tb}")
                    a.e(f"v_lshlrev_b32 v{t0}, 16, v{z}")
                    a.e(f"v_and_b32 v{t0+1}, 0xffff0000, v{z}")
                    a.e(f"v_mul_f32 v{t0}, v{t0}, v{ar+2*p}")
                    a.e(f"v_mul_f32 v{t0+1}, v{t0+1}, v{ar+2*p+1}")
                    a.e(f"v_cvt_pk_bf16_f32 v{z}, v{t0}, v{t0+1}")
            if i < 4:
                a.e(f"buffer_store_dwordx4 v[{zr}:{zr+3}], v3, s[24:27], {sm} offen offset:{i*1024} sc1")
            else:
                a.e(f"buffer_store_dwordx2 v[{zr}:{zr+1}], v3, s[24:27], {ss} offen sc1")
    if stamp: stamp_mid(a, 2)
    if stamp == 2:
        a.e(f"""
        s_add_u32 s60, s4, {STAMP + 8*65536}
        s_addc_u32 s61, s5, 0
        s_mov_b32 s62, 1048576
        s_mov_b32 s63, 0x20000
        s_lshl_b32 s64, s2, 2
        s_add_u32 s64, s64, s3
        s_lshl_b32 s64, s64, 9
        v_lshlrev_b32 v252, 2, v2
        buffer_store_dword v250, v252, s[60:63], s64 offen
        buffer_store_dword v251, v252, s[60:63], s64 offen offset:256
        """)
    if stamp:
        stamp_end(a, 2, "s3", 3)
    a.label(f"{name}_end")
    a.e("s_endpgm")
    launch = f"; @launch kernel={name} grid=(256,1,1) block=(512,1,1) lds={NSLOT*SLOT + 2048}\n"
    return launch, kernel_begin(name) + a.text(), kernel_desc(name, 256, 102, 256)
```

```python
S, D, F2, H = 2048, 576, 2304, 32
Z2T = 0x0000000
Z1  = 0x0A00000
U   = 0x1400000
WP  = 0x2000000
Q   = 0x2400000
KVP = 0x2700000
AF  = 0x2800000
ST  = 0x2900000
WS_USED = 0x2B00000
Z2T_BYTES = 64*144*1024
Z1_BYTES = 128*72*1024
U_BYTES = 128*90*1024
WP_BYTES = 8*90*4608
Q_BYTES = 64*36*1024
KVP_BYTES = 8*32*2*24*80
AF_BYTES = 8*13*1024
ST_BYTES = 16*24*128*8
KA_X, KA_WQKV, KA_WPHI, KA_WO, KA_BX, KA_WIN, KA_WSP, KA_BSP, KA_WOUT, KA_OUT, KA_DBG, KA_WS = [8*i for i in range(12)]

def k3_slot_channel(step, kg, j):
    if step < 72:
        return 32*step + 16*(j >> 2) + 4*kg + (j & 3)
    st = step - 72
    if st < 16:
        head = 2*st + (kg >> 1); hh = kg & 1
        return F2 + 18*head + 8*(j >> 2) + 4*hh + (j & 3)
    head = 16*(st - 16) + 4*kg + (j >> 1)
    return F2 + 18*head + 16 + (j & 1)
STAMP = 0x8000000
XST = 0x29E0000
CSP = 0x2A00000
CSPA = CSP + 12*16*448*8
```

```python
from asmlib import Asm
import copy, os
ABL = os.environ.get('ABL', '').split(',')

class Sched(Asm):
    def __init__(self):
        super().__init__()
        self.vm_n = 0; self.lg_n = 0
        self.vm_done = -1; self.lg_done = -1
        self.keys = {}
        self.fill = []
        self.marks = set()
        self.mfill = []
    def vm(self, s, key=None):
        self.e(s); i = self.vm_n; self.vm_n += 1
        if key is not None: self.keys[key] = ("vm", i)
        return i
    def lg(self, s, key=None):
        self.e(s); i = self.lg_n; self.lg_n += 1
        if key is not None: self.keys[key] = ("lg", i)
        return i
    def wait(self, vm=None, lg=None):
        parts = []
        if vm is not None and vm > self.vm_done:
            n = min(self.vm_n - 1 - vm, 63)
            parts.append(f"vmcnt({n})"); self.vm_done = self.vm_n - 1 - n
        if lg is not None and lg > self.lg_done:
            n = min(self.lg_n - 1 - lg, 15)
            parts.append(f"lgkmcnt({n})"); self.lg_done = self.lg_n - 1 - n
        if parts:
            self.e("s_waitcnt " + " ".join(parts))
            return True
        return False
    def wait_key(self, key):
        k, i = self.keys[key]
        return self.wait(**{k: i})
    def wait_all(self, vm=True, lg=True):
        self.wait(vm=self.vm_n - 1 if vm else None, lg=self.lg_n - 1 if lg else None)
    def snapshot(self):
        return (self.vm_n, self.lg_n, self.vm_done, self.lg_done, dict(self.keys), list(self.fill), list(self.mfill))
    def restore(self, s):
        self.vm_n, self.lg_n, self.vm_done, self.lg_done = s[:4]
        self.keys = dict(s[4]); self.fill = list(s[5]); self.mfill = list(s[6])
    def add(self, kind, text=None, key=None):
        self.fill.append((kind, text, key))
    def addv(self, text):
        for l in text.strip().split("\n"):
            l = l.strip()
            if not l: continue
            op = l.split()[0]
            if "mulfill" in ABL and op.startswith("v_") and op not in ("v_exp_f32", "v_rcp_f32"):
                self.k = getattr(self, "k", 0) + 1
                l = f"v_mul_f32 v{32 + self.k % 4}, v14, v15"
            if "notrans" in ABL and op in ("v_exp_f32", "v_rcp_f32"):
                l = l.replace(op, "v_mov_b32"); op = "v_mov_b32"
            if op.startswith("s_cmp"):
                self.fill.append(("raw", l, None)); continue
            self.fill.append(("t" if op in ("v_exp_f32", "v_rcp_f32", "v_rsq_f32", "v_log_f32", "v_sqrt_f32") else "v", l, None))
    def fill_cost(self):
        return sum(2 if k == "t" else (1 if k == "v" else 0) for k, _, _ in self.fill)
    def pump(self, budget):
        while self.fill and budget > 0:
            if self.fill[0][0] == "gate": return
            k, t, key = self.fill.pop(0)
            if k in ("v", "t"): self.protect(t)
            if k == "v": self.e(t); budget -= 1
            elif k == "t": self.e(t); budget -= 2
            elif k == "raw": self.e(t)
            elif k == "lg":
                if "nofl" in ABL:
                    if key is not None: self.keys[key] = ("lg", -1)
                else: self.lg(t, key)
            elif k == "vm":
                if "nofv" in ABL and key is None: pass
                else: self.vm(t, key)
            elif k == "w": self.wait_key(key)
            elif k == "call": t(self)
            elif k == "mark": self.marks.add(key)
    def flush(self):
        self.pump(1 << 30)
    def flush_to(self, mark):
        if not any(k == "mark" and key == mark for k, _, key in self.fill): return
        while mark not in self.marks or any(k == "mark" and key == mark for k, _, key in self.fill):
            self.pump(1)
    def flush_to_key(self, key):
        while any(kk == key for _, _, kk in self.fill):
            self.pump(1)
    def add_block(self, lines, tag):
        n = 0
        for l in lines:
            l = l.strip()
            if l.startswith("buffer_"):
                n += 1
                self.fill.append(("vm", l, f"{tag}{min(n, 2)}" if n < 3 else f"{tag}2"))
            elif l.startswith("s_mov_b32 exec") or l.startswith("s_mov_b64 exec"):
                self.fill.append(("raw", l, None))
            else:
                self.addv(l)
    def open_gate(self, key=None):
        if self.fill and self.fill[0][0] == "gate" and self.fill[0][2] == key: self.fill.pop(0)
    def mpump(self, budget):
        keep = self.fill; self.fill = self.mfill
        n = 0
        while self.fill and budget > 0:
            mem = self.fill[0][0] in ("lg", "vm")
            self.pump1()
            budget -= 2 if mem else 1
        self.mfill = self.fill; self.fill = keep
    def pump1(self):
        k, t, key = self.fill.pop(0)
        if k == "lg": self.lg(t, key)
        elif k == "vm": self.vm(t, key)
        elif k == "w": self.wait_key(key)
        else: self.e(t)
    def protect(self, t):
        import re
        m = re.match(r"v_\w+ v(\d+),", t)
        if not m or not self.mfill: return
        d = int(m.group(1))
        def reads(x):
            if not x[1]: return False
            for a, b in re.findall(r"v\[(\d+):(\d+)\]", x[1]):
                if int(a) <= d <= int(b): return True
            return any(int(r) == d for r in re.findall(r"\bv(\d+)\b", x[1]))
        if any(reads(x) for x in self.mfill):
            self.forced = getattr(self, "forced", 0) + 1
            while any(reads(x) for x in self.mfill): self.mpump(1)
            self.e("s_nop 1")
```

```python
from asmlib import *
from layout import *
from k3 import srd
from k1common import *
from k1a import softmax18

SLOT = 34 * 1024
NSLOT = 4

def tile_ids(a):
    a.e("""
    s_and_b32 s10, s2, 7
    s_lshr_b32 s11, s2, 3
    s_and_b32 s32, s10, 1
    s_lshl_b32 s32, s32, 3
    s_and_b32 s33, s11, 7
    s_add_u32 s32, s32, s33             ; ti
    s_lshr_b32 s33, s10, 1
    s_lshl_b32 s33, s33, 2
    s_lshr_b32 s34, s11, 3
    s_add_u32 s33, s33, s34             ; fj
    """)

KVI = NSLOT * SLOT

def gen_loader(a, name, hi):
    n = 8 if hi else 9
    import os
    ROT = os.environ.get("ROT", "L")
    LM = int(os.environ.get("LM", 3)); LD = int(os.environ.get("LD", 4))
    def issue(slot):
        base = slot * SLOT
        if "L" in ROT:
            a.e(f"""
            s_and_b32 s63, s60, {LM}
            s_cmp_eq_u32 s63, s62
            s_cselect_b32 s63, {LD}, 0
            s_add_u32 s63, s63, s60
            """)
        else:
            a.e("s_xor_b32 s63, s60, s62")
        a.e(f"""
        s_add_u32 s63, s63, s61
        s_and_b32 s63, s63, 31
        s_lshl_b32 s64, s63, 7
        s_add_u32 s64, s64, s36
        s_add_u32 m0, s39, {base}
        s_mul_i32 s63, s63, {2*144*1024}
        """)
        for i in range(4):
            a.e(f"buffer_load_dwordx4 v{4+i}, s[12:15], s64 offen offset:{i*1024} lds")
        a.e(f"s_add_u32 m0, s40, {base}")
        a.e("s_add_u32 s64, s63, s37")
        for i in range(3 if hi else 4):
            a.e(f"buffer_load_dwordx4 v3, s[16:19], s64 offen offset:{i*1024} lds")
        a.e(f"s_add_u32 m0, s41, {base}")
        a.e("s_add_u32 s64, s63, s38")
        a.e(f"buffer_load_dwordx4 v3, s[16:19], s64 offen lds")
        a.e(f"s_add_u32 s60, s60, 1")
    a.e("s_mov_b32 s60, 0\ns_mov_b32 s61, 0\ns_mov_b32 s62, 0")
    if "L" in ROT: a.e(f"s_add_u32 s62, s32, s33\ns_and_b32 s62, s62, {LM}")
    if "x4" in ROT: a.e("s_lshl_b32 s61, s10, 2")
    if "w" in ROT: a.e("s_add_u32 s62, s32, s33\ns_and_b32 s62, s62, 3")
    if "t" in ROT: a.e("s_add_u32 s62, s32, s33\ns_and_b32 s62, s62, 1")
    fb0 = 5 if hi else 0
    fbx = 8 if hi else 4
    a.e(f"""
    s_and_b32 s42, s3, 1
    s_mul_i32 s43, s33, 9
    s_and_b32 s44, s33, 1
    s_add_u32 s45, s43, s44
    s_mul_i32 s46, s42, 144
    s_add_u32 s37, s45, s46
    s_add_u32 s37, s37, {fb0}
    s_lshl_b32 s37, s37, 10
    """)
    if hi:
        a.e(f"""
        s_cmp_eq_u32 s44, 0
        s_cselect_b32 s47, 8, 0
        s_add_u32 s38, s43, s47             ; g8
        s_add_u32 s38, s38, s46
        s_lshl_b32 s38, s38, 10
        """)
    else:
        a.e(f"s_add_u32 s38, s37, 4096")
    a.e(f"""
    s_mul_i32 s40, s42, {9*1024}
    s_add_u32 s41, s40, {fbx*1024}
    s_add_u32 s40, s40, {fb0*1024}
    s_lshl_b32 s39, s3, 12
    s_add_u32 s39, s39, {18*1024}
    """)
    for s in range(3):
        issue(s)
    lp = f"{name}_ld{int(hi)}"
    a.e("s_mov_b32 s48, 0")
    a.label(lp)
    for u in range(4):
        a.e(f"s_waitcnt vmcnt({2*n})")
        a.e("s_barrier")
        issue((u + 3) % 4)
    a.e(f"""
    s_add_u32 s48, s48, 1
    s_cmp_lt_u32 s48, 6
    s_cbranch_scc1 {lp}
    """)
    for u in range(3):
        a.e(f"s_waitcnt vmcnt({2*n})\ns_barrier")
        issue((u + 3) % 4)
    side_loads(a)
    a.e(f"s_waitcnt vmcnt({2*n + 16})\ns_barrier")
    issue(2)
    a.e(f"s_waitcnt vmcnt({2*n + 16})\ns_barrier")
    issue(3)
    a.e(f"s_waitcnt vmcnt({2*n})\ns_branch {name}_side{int(hi)}")

def side_loads(a):
    a.e(f"""
    s_and_b32 s50, s2, 7
    s_lshr_b32 s51, s2, 3               ; head
    s_mul_i32 s52, s51, 3840
    s_add_u32 s52, s52, {KVP}
    v_lshlrev_b32 v9, 4, v0
    v_subrev_u32 v9, 4096, v9           ; (tid - 256)*16
    v_cmp_gt_u32 vcc, 3840, v9
    v_mov_b32 v10, {BIG}
    s_lshr_b32 s53, s51, 2
    s_mul_i32 s53, s53, 13
    v_cndmask_b32 v10, v10, v9, vcc
    s_and_b32 s54, s51, 3               ; i
    s_lshl_b32 s55, s54, 1
    s_add_u32 s55, s55, s53
    s_lshl_b32 s55, s55, 10
    s_add_u32 s55, s55, {AF}
    s_add_u32 s56, s53, s54
    s_lshl_b32 s56, s56, 10
    s_add_u32 s56, s56, {AF + 8192}
    s_lshl_b32 s57, s50, 3
    s_lshl_b32 s58, s3, 1
    s_add_u32 s57, s57, s58
    s_mul_i32 s58, s57, 36
    s_lshr_b32 s59, s51, 3
    s_add_u32 s59, s59, s51
    s_add_u32 s58, s58, s59
    s_lshl_b32 s58, s58, 10
    s_add_u32 s58, s58, {Q}
    """)
    for k in range(2):
        a.e(f"buffer_load_dwordx4 {vr(16+4*k)}, v3, s[20:23], s55 offen offset:{k*1024}")
        a.e(f"buffer_load_dwordx4 {vr(24+4*k)}, v3, s[20:23], s56 offen offset:{k*1024}")
        a.e(f"buffer_load_dwordx4 {vr(32+4*k)}, v3, s[20:23], s58 offen offset:{k*1024}")
    a.e(f"s_add_u32 s58, s58, {36*1024}")
    for k in range(2):
        a.e(f"buffer_load_dwordx4 {vr(40+4*k)}, v3, s[20:23], s58 offen offset:{k*1024}")
    for k in range(8):
        a.e(f"buffer_load_dwordx4 {vr(48+4*k)}, v10, s[20:23], s52 offen")
        if k < 7: a.e(f"s_add_u32 s52, s52, {32*3840}")

def gen_side(a, name):
    P = [80, 112]; PT = [96, 128]; PH = [144, 156]
    for hi in (0, 1):
        a.label(f"{name}_side{hi}")
        a.e(f"s_mov_b32 s49, {hi}")
        if hi == 0: a.e(f"s_branch {name}_sidec")
    a.label(f"{name}_sidec")
    a.e("s_barrier")
    for b in range(2):
        for t in range(2):
            a.e(f"{MF32} {vr(P[b],16)}, {vr(16+4*t)}, {vr(32+8*b+4*t)}, " + ("0" if t == 0 else vr(P[b],16)))
            a.e(f"{MF32} {vr(PT[b],16)}, {vr(24+4*t)}, {vr(32+8*b+4*t)}, " + ("0" if t == 0 else vr(PT[b],16)))
    for k in range(1, 8):
        for r in range(4):
            a.e(f"v_add_f32 v{48+r}, v{48+r}, v{48+4*k+r}")
    a.e(f"""
    v_cvt_pk_bf16_f32 v48, v48, v49
    v_cvt_pk_bf16_f32 v49, v50, v51
    v_lshrrev_b32 v9, 1, v9
    v_add_u32 v9, {KVI}, v9
    ds_write_b64 v9, v[48:49]
    s_mov_b32 s45, {f2u(LOG2E)}
    """)
    for i in range(1, 4):
        a.e(f"s_cmp_eq_u32 s54, {i}\ns_cselect_b64 vcc, -1, 0")
        for b in range(2):
            a.e(f"v_cndmask_b32 v{PT[b]}, v{PT[b]}, v{PT[b]+2*i}, vcc")
            a.e(f"v_cndmask_b32 v{PT[b]+1}, v{PT[b]+1}, v{PT[b]+2*i+1}, vcc")
    lb = f"{name}_sw"
    a.e(f"""
    s_cmp_eq_u32 s49, 0
    s_cbranch_scc1 {lb}a
    s_waitcnt vmcnt(8)
    """)
    a.label(lb + "a")
    a.e("s_waitcnt vmcnt(9) lgkmcnt(0)\ns_barrier")
    softmax18(a, [P[0] + k for k in range(16)] + [PT[0], PT[0] + 1], 12, PH[0])
    a.e("s_waitcnt vmcnt(0)\ns_barrier")
    a.e(f"""
    v_and_b32 v4, 31, v2
    s_and_b32 s52, s51, 1
    s_lshl_b32 s52, s52, 1
    v_add_u32 v5, s52, v4
    v_min_u32 v5, 23, v5
    v_and_b32 v6, 27, v4
    v_cmp_eq_u32 vcc, 18, v6
    v_mov_b32 v7, 20
    v_lshrrev_b32 v8, 5, v2
    v_cndmask_b32 v5, v5, v7, vcc
    v_mul_u32_u24 v6, 24, v8
    v_add_u32 v5, v5, v6
    v_mul_u32_u24 v5, 40, v5
    v_add_u32 v5, {KVI}, v5
    ds_read_b64 v[48:49], v5
    ds_read_b64 v[50:51], v5 offset:8
    ds_read_b64 v[52:53], v5 offset:16
    ds_read_b64 v[54:55], v5 offset:24
    ds_read_b32 v56, v5 offset:32
    v_mov_b32 v57, 0
    v_mov_b32 v58, 0
    v_mov_b32 v59, 0
    """)
    for b in range(2):
        for k in range(9, 12): a.e(f"v_mov_b32 v{PH[b]+k}, 0")
    def apply(b):
        for st in range(3):
            a.e(f"{MF32} {vr(P[b],16)}, {vr(48+4*st)}, {vr(PH[b]+4*st)}, " + ("0" if st == 0 else vr(P[b],16)))
    a.e("s_waitcnt lgkmcnt(0)")
    apply(0)
    softmax18(a, [P[1] + k for k in range(16)] + [PT[1], PT[1] + 1], 12, PH[1])
    a.e("s_nop 1")
    apply(1)
    a.e(f"""
    v_bfe_u32 v6, v2, 4, 1
    v_mul_u32_u24 v6, {90*1024}, v6
    v_and_b32 v7, 15, v2
    v_lshl_add_u32 v6, v7, 4, v6
    v_lshl_add_u32 v7, v8, 8, v6
    v_cmp_gt_u32 vcc, 32, v2
    v_mov_b32 v9, {BIG}
    s_mul_i32 s57, s57, {2*90*1024}
    v_cndmask_b32 v6, v9, v6, vcc
    s_add_u32 s57, s57, {U}
    s_lshr_b32 s52, s51, 1
    s_lshl_b32 s52, s52, 10
    s_and_b32 s53, s51, 1
    s_lshl_b32 s53, s53, 9
    s_add_u32 s52, s52, s53
    s_add_u32 s52, s52, {72*1024}
    s_add_u32 s52, s52, s57
    s_lshr_b32 s53, s51, 4
    s_lshl_b32 s53, s53, 10
    s_bfe_u32 s55, s51, 0x20002
    s_lshl_b32 s55, s55, 8
    s_add_u32 s53, s53, s55
    s_lshl_b32 s55, s54, 2
    s_add_u32 s53, s53, s55
    s_add_u32 s53, s53, {88*1024}
    s_add_u32 s53, s53, s57
    """)
    for b in range(2):
        A = P[b]
        a.e(f"v_add_f32 v12, {f2u(1e-6)}, v{A+10}\nv_rcp_f32 v12, v12\ns_nop 0")
        for k in range(10): a.e(f"v_mul_f32 v{A+k}, v{A+k}, v12")
        for k in range(5): a.e(f"v_cvt_pk_bf16_f32 v{60+8*b+k}, v{A+2*k}, v{A+2*k+1}")
        a.e(f"buffer_store_dwordx4 {vr(60+8*b)}, v7, s[20:23], s52 offen")
        a.e(f"buffer_store_dword v{64+8*b}, v6, s[20:23], s53 offen")
        if b == 0: a.e(f"s_add_u32 s52, s52, {2*90*1024}\ns_add_u32 s53, s53, {2*90*1024}")
    a.e("s_endpgm")

def gen_k2(name="k2_kernel", stamp=False, side=None):
    import os
    a = Asm()
    ACC = 160
    FX, FY = 16, 60
    def acc(fb, tb): r = ACC + (fb*2 + tb)*4; return f"v[{r}:{r+3}]"
    def fa(buf, fb): r = buf + fb*4; return f"v[{r}:{r+3}]"
    def fbr(buf, tb): r = buf + 36 + tb*4; return f"v[{r}:{r+3}]"
    a.e(f"""
    s_cmp_ge_u32 s2, 256
    s_cbranch_scc1 {name}_end
    """)
    if stamp: stamp_begin(a)
    a.e(f"""
    s_load_dwordx2 s[4:5], s[0:1], {KA_WS}
    s_load_dwordx2 s[6:7], s[0:1], {KA_WSP}
    s_load_dwordx2 s[8:9], s[0:1], {KA_BSP}
    v_lshrrev_b32 v1, 6, v0
    v_and_b32 v2, 63, v0
    v_readfirstlane_b32 s3, v1          ; wave
    """)
    tile_ids(a)
    a.e("v_lshlrev_b32 v3, 4, v2             ; lane*16")
    a.e("s_waitcnt lgkmcnt(0)")
    srd(a, 12, 6, 7, S*S*2)
    srd(a, 16, 4, 5, Z2T_BYTES, Z2T)
    a.e(f"""
    s_cmp_lt_u32 s3, 4
    s_cbranch_scc1 {name}_compute
    s_sub_u32 s3, s3, 4
    s_mov_b32 s20, s4
    s_mov_b32 s21, s5
    s_mov_b32 s22, {WS_USED}
    s_mov_b32 s23, 0x20000
    v_lshrrev_b32 v8, 3, v2
    v_and_b32 v9, 7, v2                 ; position
    v_lshrrev_b32 v10, 4, v2
    v_xor_b32 v9, v9, v10
    v_lshlrev_b32 v8, 12, v8
    v_lshl_add_u32 v4, v9, 4, v8
    v_xor_b32 v9, 4, v9
    v_lshl_add_u32 v5, v9, 4, v8
    v_add_u32 v6, {2*(32768-1024)}, v4
    v_add_u32 v7, {3*(32768-1024)}, v5
    v_add_u32 v5, {(32768-1024)}, v5
    s_lshl_b32 s36, s32, 7
    s_lshl_b32 s37, s3, 5
    s_add_u32 s36, s36, s37
    s_lshl_b32 s36, s36, 12
    s_cmp_ge_u32 s3, 2
    s_cbranch_scc1 {name}_ldhi
    """)
    gen_loader(a, name, False)
    a.label(f"{name}_ldhi")
    gen_loader(a, name, True)
    gen_side(a, name)
    a.label(f"{name}_compute")
    srd(a, 20, 4, 5, WS_USED - Z1, Z1)
    srd(a, 24, 4, 5, U_BYTES, U)
    srd(a, 28, 8, 9, S*2)
    a.e(f"""
    v_mov_b32 v4, v3
    v_add_u32 v5, {2*SLOT}, v3
    v_and_b32 v10, 15, v2               ; t
    v_lshrrev_b32 v11, 4, v2            ; kg
    v_lshrrev_b32 v12, 1, v10           ; swz
    v_xor_b32 v12, v12, v11
    v_lshlrev_b32 v12, 4, v12
    v_lshl_add_u32 v6, v10, 7, v12
    s_lshl_b32 s36, s3, 12
    s_add_u32 s36, s36, {18*1024}
    v_add_u32 v6, s36, v6
    v_xor_b32 v7, 64, v6
    v_add_u32 v8, {2*SLOT}, v6
    v_add_u32 v9, {2*SLOT}, v7
    """)
    a.e(f"""
    s_lshl_b32 s37, s32, 7
    s_lshl_b32 s38, s3, 5
    s_add_u32 s37, s37, s38
    s_lshl_b32 s38, s37, 1
    v_lshlrev_b32 v12, 1, v10
    buffer_load_ushort v13, v12, s[28:31], s38 offen
    buffer_load_ushort v14, v12, s[28:31], s38 offen offset:32
    s_lshl_b32 s38, s37, 4
    s_add_u32 s38, s38, {XST + 8 - Z1}
    v_lshlrev_b32 v12, 4, v10
    buffer_load_dword v15, v12, s[20:23], s38 offen
    buffer_load_dword v1, v12, s[20:23], s38 offen offset:256
    """)
    import os
    if "k2touch" in os.environ.get("OPT", ""):
        a.e(f"""
        s_lshl_b32 s39, s2, 2
        s_add_u32 s39, s39, s3
        s_mul_i32 s39, s39, {72*128}
        v_lshlrev_b32 v15, 7, v2
        v_min_u32 v16, {7*128}, v15
        buffer_load_dword v17, v15, s[16:19], s39 offen
        s_add_u32 s39, s39, 8192
        buffer_load_dword v18, v16, s[16:19], s39 offen
        """)
    for r in range(ACC, ACC + 72):
        a.e(f"v_mov_b32 v{r}, 0")
    def reads(buf, slot, kh):
        L = []
        sa = (slot & 1) * SLOT
        va = "v4" if slot < 2 else "v5"
        vb = f"v{6 + kh + (0 if slot < 2 else 2)}"
        for tb in range(2):
            L.append(f"ds_read_b128 {fbr(buf,tb)}, {vb} offset:{sa + tb*2048}")
        for fb in range(9):
            L.append(f"ds_read_b128 {fa(buf,fb)}, {va} offset:{sa + (kh*9+fb)*1024}")
        return L
    def phase(cbuf, R, first=False):
        R = list(R)
        if first:
            for r in R: a.e(r)
            return
        k = 0
        for fb in range(9):
            for tb in range(2):
                if R and k < 11:
                    a.e(R.pop(0))
                a.e(f"v_mfma_f32_16x16x32_bf16 {acc(fb,tb)}, {fa(cbuf,fb)}, {fbr(cbuf,tb)}, {acc(fb,tb)}")
                k += 1
    PF = int(os.environ.get("PF", 0))
    if PF:
        a.e(f"""
        s_lshr_b32 s58, s11, 3
        s_lshl_b32 s58, s58, 5
        s_lshl_b32 s59, s3, 3
        s_add_u32 s58, s58, s59
        s_lshl_b32 s59, s32, 7
        s_add_u32 s58, s58, s59
        s_lshl_b32 s58, s58, 12
        v_lshrrev_b32 v232, 2, v2
        v_lshlrev_b32 v232, 12, v232
        v_and_b32 v233, 3, v2
        v_lshl_add_u32 v232, v233, 7, v232
        v_cmp_gt_u32 vcc, 32, v2
        v_mov_b32 v234, 0x40000000
        s_and_b32 s59, s11, 7
        v_cndmask_b32 v232, v234, v232, vcc
        s_mul_i32 s59, s59, {144*1024}
        s_mul_i32 s65, s33, {9*1024}
        s_add_u32 s59, s59, s65
        s_mul_i32 s65, s3, {18*128}
        s_add_u32 s59, s59, s65
        v_cmp_gt_u32 vcc, 18, v2
        v_lshlrev_b32 v233, 7, v2
        s_mov_b32 s66, 0
        v_cndmask_b32 v233, v234, v233, vcc
        """)
    early = [True]
    def pf():
        a.e(f"""
        s_lshl_b32 s67, s66, 9
        s_add_u32 s67, s67, s58
        buffer_load_dword v235, v232, s[12:15], s67 offen
        s_mul_i32 s67, s66, {8*144*1024}
        s_add_u32 s67, s67, s59
        buffer_load_dword v236, v233, s[16:19], s67 offen
        s_add_u32 s66, s66, 1
        """)
    if PF:
        a.e("s_mov_b32 s66, 1")
    def stage(slot, first=False, last=False):
        a.e("s_barrier")
        if PF and (slot == 0 or (early[0] and slot < PF)):
            a.e(f"s_cmp_ge_u32 s66, 8\ns_cbranch_scc1 {name}_npf{a.uid}")
            pf()
            a.label(f"{name}_npf{a.uid}"); a.uid += 1
        phase(FY, reads(FX, slot, 0), first)
        a.e("s_waitcnt lgkmcnt(0)")
        phase(FX, reads(FY, slot, 1))
        a.e("s_waitcnt lgkmcnt(0)")
    stage(0, first=True)
    if stamp: stamp_mid(a, 0)
    for u in range(1, 4): stage(u)
    early[0] = False
    a.e("s_mov_b32 s48, 0")
    lp = f"{name}_cl"
    a.label(lp)
    if stamp == 2:
        a.e("s_memtime s[60:61]\ns_memrealtime s[62:63]\ns_waitcnt lgkmcnt(0)\ns_mov_b32 m0, s48\ns_nop 0\nv_writelane_b32 v250, s60, m0\nv_writelane_b32 v251, s62, m0")
    for u in range(4): stage(u)
    a.e(f"""
    s_add_u32 s48, s48, 1
    s_cmp_lt_u32 s48, 6
    s_cbranch_scc1 {lp}
    """)
    ZR = 104
    a.e(f"""
    s_lshr_b32 s40, s37, 4
    s_mul_i32 s41, s33, 9
    s_and_b32 s42, s33, 1
    s_add_u32 s43, s41, s42
    s_lshr_b32 s43, s43, 1              ; st0
    s_add_u32 s44, s41, 8
    s_cmp_eq_u32 s42, 0
    s_cselect_b32 s44, s44, s41
    s_lshr_b32 s44, s44, 1              ; st8
    s_lshl_b32 s42, s42, 3              ; half*8
    s_mul_i32 s54, s40, 90
    s_add_u32 s55, s54, s44
    s_add_u32 s54, s54, s43
    s_lshl_b32 s54, s54, 10
    s_lshl_b32 s55, s55, 10
    s_add_u32 s55, s55, s42
    s_add_u32 s56, s54, {90*1024}
    s_add_u32 s57, s55, {90*1024}
    """)
    for tb in range(2):
        sm, ss = ("s54", "s55") if tb == 0 else ("s56", "s57")
        for i in range(4):
            r = ZR + tb*18 + i*4
            a.e(f"buffer_load_dwordx4 v[{r}:{r+3}], v3, s[24:27], {sm} offen offset:{i*1024}")
        r = ZR + tb*18 + 16
        a.e(f"buffer_load_dwordx2 v[{r}:{r+1}], v3, s[24:27], {ss} offen")
    for u in range(4): stage(u)
    phase(FY, [])
    if stamp: stamp_mid(a, 1)
    a.e("s_waitcnt vmcnt(0)")
    a.e("v_lshlrev_b32 v13, 16, v13\nv_lshlrev_b32 v14, 16, v14\nv_mul_f32 v13, v13, v15\nv_mul_f32 v14, v14, v1\ns_nop 7")
    T = 16
    for tb in range(2):
        sm, ss = ("s54", "s55") if tb == 0 else ("s56", "s57")
        for i in range(5):
            nfb = 2 if i < 4 else 1
            zr = ZR + tb*18 + i*4
            t0 = T + (i % 2) * 8
            for k in range(nfb):
                fb = 2*i + k
                ar = ACC + (fb*2 + tb)*4
                for p in range(2):
                    z = zr + 2*k + p
                    a.e(f"v_fma_f32 v{ar+2*p}, v{ar+2*p}, v{(15, 1)[tb]}, v{13+tb}")
                    a.e(f"v_fma_f32 v{ar+2*p+1}, v{ar+2*p+1}, v{(15, 1)[tb]}, v{13+tb}")
                    a.e(f"v_lshlrev_b32 v{t0}, 16, v{z}")
                    a.e(f"v_and_b32 v{t0+1}, 0xffff0000, v{z}")
                    a.e(f"v_mul_f32 v{t0}, v{t0}, v{ar+2*p}")
                    a.e(f"v_mul_f32 v{t0+1}, v{t0+1}, v{ar+2*p+1}")
                    a.e(f"v_cvt_pk_bf16_f32 v{z}, v{t0}, v{t0+1}")
            if i < 4:
                a.e(f"buffer_store_dwordx4 v[{zr}:{zr+3}], v3, s[24:27], {sm} offen offset:{i*1024} sc1")
            else:
                a.e(f"buffer_store_dwordx2 v[{zr}:{zr+1}], v3, s[24:27], {ss} offen")
    if stamp: stamp_mid(a, 2)
    if stamp == 2:
        a.e(f"""
        s_add_u32 s60, s4, {STAMP + 8*65536}
        s_addc_u32 s61, s5, 0
        s_mov_b32 s62, 1048576
        s_mov_b32 s63, 0x20000
        s_lshl_b32 s64, s2, 2
        s_add_u32 s64, s64, s3
        s_lshl_b32 s64, s64, 9
        v_lshlrev_b32 v252, 2, v2
        buffer_store_dword v250, v252, s[60:63], s64 offen
        buffer_store_dword v251, v252, s[60:63], s64 offen offset:256
        """)
    if stamp:
        stamp_end(a, 2, "s3", 3)
    a.label(f"{name}_end")
    a.e("s_endpgm")
    launch = f"; @launch kernel={name} grid=(256,1,1) block=(512,1,1) lds={NSLOT*SLOT + 2048}\n"
    return launch, kernel_begin(name) + a.text(), kernel_desc(name, 256, 102, 256)
```

```python
from asmlib import *
from layout import *

def srd(a, s, base_lo, base_hi, nbytes, add=0):
    if add:
        a.e(f"s_add_u32 s{s}, s{base_lo}, {add}")
        a.e(f"s_addc_u32 s{s+1}, s{base_hi}, 0")
    else:
        a.e(f"s_mov_b32 s{s}, s{base_lo}")
        a.e(f"s_mov_b32 s{s+1}, s{base_hi}")
    a.e(f"s_mov_b32 s{s+2}, {nbytes}")
    a.e(f"s_mov_b32 s{s+3}, 0x20000")

def gen_k3(name="k3_kernel", DEPTH=4, stamp=False):
    a = Asm()
    NST = 23
    ACC = 160
    BUF = 16
    assert BUF + DEPTH*36 <= ACC
    def acc(tb, i): r = ACC + (tb*5 + i)*4; return f"v[{r}:{r+3}]"
    def fu(b, tb): r = BUF + b*36 + tb*4; return f"v[{r}:{r+3}]"
    def fw(b, i): r = BUF + b*36 + 16 + i*4; return f"v[{r}:{r+3}]"
    a.e(f"""
    s_cmp_ge_u32 s2, 256
    s_cbranch_scc1 {name}_end
    """)
    if stamp: stamp_begin(a)
    a.e(f"""
    s_load_dwordx2 s[4:5], s[0:1], {KA_WS}
    s_load_dwordx2 s[6:7], s[0:1], {KA_X}
    s_load_dwordx2 s[8:9], s[0:1], {KA_OUT}
    v_lshrrev_b32 v1, 6, v0
    v_and_b32 v2, 63, v0
    v_readfirstlane_b32 s3, v1          ; wave
    s_and_b32 s10, s2, 7                ; xcd
    s_lshr_b32 s11, s2, 3               ; local 0..31
    s_and_b32 s32, s10, 3
    s_lshl_b32 s32, s32, 3
    s_and_b32 s33, s11, 7
    s_add_u32 s32, s32, s33             ; ti 0..31
    s_lshr_b32 s33, s10, 2
    s_lshl_b32 s33, s33, 2
    s_lshr_b32 s34, s11, 3
    s_add_u32 s33, s33, s34             ; c 0..7
    v_lshlrev_b32 v3, 4, v2             ; lane*16
    v_add_u32 v4, {90*1024}, v3
    v_add_u32 v5, {2*90*1024}, v3
    v_add_u32 v6, {3*90*1024}, v3
    v_lshrrev_b32 v7, 4, v2
    v_lshlrev_b32 v7, 3, v7
    v_and_b32 v8, 7, v2
    v_add_u32 v7, v7, v8
    v_lshlrev_b32 v7, 4, v7
    v_add_u32 v7, 4096, v7
    s_mul_i32 s36, s32, {4*90}
    s_add_u32 s36, s36, s3
    s_lshl_b32 s36, s36, 10             ; U soffset
    s_mul_i32 s37, s33, 90
    s_add_u32 s37, s37, s3
    s_mul_i32 s37, s37, 4608
    s_waitcnt lgkmcnt(0)
    """)
    srd(a, 12, 4, 5, U_BYTES, U)
    srd(a, 16, 4, 5, WP_BYTES, WP)
    srd(a, 20, 6, 7, S*D*2)
    srd(a, 24, 8, 9, S*D*2)
    import os
    if "k3touch" in os.environ.get("OPT", ""):
        a.e(f"""
        s_lshl_b32 s39, s2, 2
        s_add_u32 s39, s39, s3
        s_mul_i32 s40, s39, {90*128}
        v_lshlrev_b32 v14, 7, v2
        v_min_u32 v15, {25*128}, v14
        buffer_load_dword v250, v14, s[12:15], s40 offen
        s_add_u32 s40, s40, 8192
        buffer_load_dword v251, v15, s[12:15], s40 offen
        s_mul_i32 s40, s39, {26*128}
        v_add_u32 v15, s40, v15
        buffer_load_dword v252, v15, s[16:19], 0 offen
        """)
    uoff = ["v3", "v4", "v5", "v6"]
    def loads(b, st):
        L = []
        for tb in range(4):
            L.append(f"buffer_load_dwordx4 {fu(b,tb)}, {uoff[tb]}, s[12:15], s36 offen")
        for i in range(4):
            L.append(f"buffer_load_dwordx4 {fw(b,i)}, v3, s[16:19], s37 offen offset:{i*1024}")
        L.append(f"buffer_load_dwordx4 {fw(b,4)}, v7, s[16:19], s37 offen")
        return L
    def advance(st_next):
        a.e(f"s_add_u32 s36, s36, 4096")
        a.e(f"s_add_u32 s37, s37, {4*4608}")
        if st_next == NST - 1:
            a.e("s_cmp_ge_u32 s3, 2")
            a.e("s_cselect_b32 s14, 0, s14")
            a.e("s_cselect_b32 s18, 0, s18")
    for st in range(DEPTH):
        for l in loads(st, st): a.e(l)
        advance(st + 1)
    a.e(f"""
    s_lshl_b32 s38, s32, 6
    s_lshl_b32 s39, s3, 4
    s_add_u32 s38, s38, s39
    s_mul_i32 s38, s38, 1152
    s_mul_i32 s39, s33, 144
    s_add_u32 s38, s38, s39
    v_and_b32 v9, 15, v2
    v_mul_u32_u24 v9, 1152, v9
    v_lshrrev_b32 v10, 4, v2
    v_lshlrev_b32 v10, 3, v10
    v_add_u32 v9, v9, v10
    """)
    XR = 240
    for i in range(5):
        a.e(f"buffer_load_dwordx2 v[{XR+2*i}:{XR+2*i+1}], v9, s[20:23], s38 offen offset:{32*i}")
    nx = 5
    for r in range(ACC, ACC + 80):
        a.e(f"v_mov_b32 v{r}, 0")
    for st in range(NST):
        b = st % DEPTH
        remaining = min(DEPTH - 1, NST - 1 - st)
        extra = nx if st < DEPTH else 0
        a.e(f"s_waitcnt vmcnt({remaining*9 + extra})")
        if stamp and st == 0: stamp_mid(a, 0)
        nxt = st + DEPTH
        L = loads(b, nxt) if nxt < NST else []
        for i in range(5):
            for tb in range(4):
                a.e(f"v_mfma_f32_16x16x32_bf16 {acc(tb,i)}, {fw(b,i)}, {fu(b,tb)}, {acc(tb,i)}")
                if L and i == 4:
                    a.e(L[tb])
            if L:
                a.e(L[4 + i])
        if L:
            advance(nxt + 1)
    if stamp: stamp_mid(a, 1)
    a.e(f"""
    s_mul_i32 s40, s3, {20*1024}
    v_add_u32 v11, s40, v3
    s_mul_i32 s41, s3, {5*1024}
    v_add_u32 v12, s41, v3
    v_add_u32 v13, {40*1024}, v12
    s_nop 7
    """)
    for tb in range(4):
        for i in range(5):
            a.e(f"ds_write_b128 v11, {acc(tb,i)} offset:{(tb*5+i)*1024}")
    a.e("s_waitcnt lgkmcnt(0)\ns_barrier")
    for src in range(4):
        for i in range(5):
            r = BUF + (src*5 + i)*4
            a.e(f"ds_read_b128 v[{r}:{r+3}], v{12 + src//2} offset:{(src%2)*20*1024 + i*1024}")
    a.e("s_waitcnt vmcnt(0)")
    XF = 100
    for i in range(5):
        for p in range(2):
            a.e(f"v_lshlrev_b32 v{XF+4*i+2*p}, 16, v{XR+2*i+p}")
            a.e(f"v_and_b32 v{XF+4*i+2*p+1}, 0xffff0000, v{XR+2*i+p}")
    for src in range(4):
        a.e(f"s_waitcnt lgkmcnt({(3-src)*5})")
        for k in range(20):
            a.e(f"v_add_f32 v{XF+k}, v{XF+k}, v{BUF+src*20+k}")
    for i in range(5):
        a.e(f"v_cvt_pk_bf16_f32 v{XR+2*i}, v{XF+4*i}, v{XF+4*i+1}")
        a.e(f"v_cvt_pk_bf16_f32 v{XR+2*i+1}, v{XF+4*i+2}, v{XF+4*i+3}")
    if stamp: stamp_mid(a, 2)
    for i in range(4):
        a.e(f"buffer_store_dwordx2 v[{XR+2*i}:{XR+2*i+1}], v9, s[24:27], s38 offen offset:{32*i}")
    a.e("s_mov_b64 exec, 0xffffffff")
    a.e(f"buffer_store_dwordx2 v[{XR+8}:{XR+9}], v9, s[24:27], s38 offen offset:128")
    if stamp:
        stamp_end(a, 3, "s3", 3)
    if stamp == 9:
        a.e(f"""
        s_or_b32 s40, s2, s3
        s_cmp_eq_u32 s40, 0
        s_cbranch_scc0 {name}_end
        s_load_dwordx2 s[44:45], s[0:1], {KA_DBG}
        s_add_u32 s76, s98, {STAMP}
        s_addc_u32 s77, s99, 0
        s_mov_b32 s78, 0x100000
        s_waitcnt vmcnt(0) lgkmcnt(0)
        s_mov_b32 s46, 256
        s_mov_b32 s47, 0x20000
        s_mov_b64 exec, 0xffff
        v_mbcnt_lo_u32_b32 v1, -1, 0
        v_lshrrev_b32 v2, 2, v1
        v_and_b32 v3, 3, v1             ; word
        v_add_u32 v2, 1, v2
        v_min_u32 v2, 3, v2
        v_lshlrev_b32 v2, 16, v2
        v_lshl_add_u32 v2, v3, 2, v2
        v_cmp_lt_u32 vcc, 11, v1
        v_add_u32 v4, {2*65536 + 16 - 48}, v1
        v_lshl_add_u32 v4, v1, 2, 0
        v_add_u32 v4, {int(__import__('os').environ.get('DK', 2))*65536 + 16 - 48}, v4
        v_cndmask_b32 v2, v2, v4, vcc
        buffer_load_dword v5, v2, s[76:79], 0 offen sc1
        v_lshlrev_b32 v1, 2, v1
        s_waitcnt vmcnt(0)
        buffer_store_dword v5, v1, s[44:47], 0 offen
        """)
    a.label(f"{name}_end")
    a.e("s_endpgm")
    launch = f"; @launch kernel={name} grid=(256,1,1) block=(256,1,1) lds={80*1024}\n"
    return launch, kernel_begin(name) + a.text(), kernel_desc(name, 256, 102, 256)
```

```python
import math, os
from asmlib import *
from sched import Sched
from layout import *
from k1common import *
from k3 import srd
ABL = os.environ.get('ABL', '').split(',')

GK1 = -2.0 * math.sqrt(2.0 / math.pi) * LOG2E
GK2 = GK1 * 0.044715

RING = 0
XR = 98304
SP = 208
CSO = XR + 256*SP
PRM = CSO + 4096
Z_LDS = PRM + 2048
TL0 = int(os.environ.get('TL0', 11))
STATM = int(os.environ.get('STATM', 0)); MPS = int(os.environ.get('MPS', 2))
PER_MFMA = int(os.environ.get('PM', 6))

def gen_zpath(a, name, stamp):
    X = 112; ACC = [64, 80]; WF = [44, 48, 52, 56]
    NEGMU, R, C1, C2, S1, S2, TAG = 108, 110, 14, 15, 61, 62, 60
    CB = [24, 28]; T = 32; PK = 36
    a.e(f"""
    v_lshrrev_b32 v28, 3, v2
    v_and_b32 v29, 7, v2                ; pos
    v_lshrrev_b32 v31, 4, v2
    v_xor_b32 v31, v31, v29
    v_mul_u32_u24 v7, 1152, v28
    v_lshl_add_u32 v7, v31, 4, v7
    v_bfe_u32 v30, v2, 4, 1
    v_lshlrev_b32 v30, 2, v30
    v_xor_b32 v30, v30, v29
    v_lshlrev_b32 v30, 4, v30           ; chunk*16
    v_mul_u32_u24 v5, 9216, v28
    v_add_u32 v5, v5, v30
    v_xor_b32 v8, 64, v7
    v_add_u32 v8, {8*1152-1024}, v8
    s_mul_i32 s41, s33, 384
    s_add_u32 s41, s41, 4608            ; column offset of z2 panel 0
    s_mul_i32 s40, s3, {8*9216}
    s_add_u32 s40, s40, s41
    s_lshl_b32 s42, s3, 10              ; w*1024
    s_lshl_b32 s43, s32, 7
    s_lshl_b32 s44, s3, 4
    s_add_u32 s43, s43, s44
    s_mul_i32 s43, s43, 1152            ; x base
    s_lshl_b32 s44, s3, 11
    s_add_u32 s44, s44, {XR}
    """)
    def pcol(P): return 128*P if P < 3 else 128*(P-3) - 4608
    uid = {}; x_id = {}
    def issue8(u):
        P, c = divmod(u, 9)
        a.e(f"s_add_u32 m0, s42, {RING + (u % 12)*8192}")
        a.e(f"s_add_u32 s46, s40, {c*64*9216 + pcol(P)}")
        uid[u] = a.vm(f"buffer_load_dwordx4 v5, s[12:15], s46 offen lds")
    def issue_x(c):
        a.e(f"s_add_u32 m0, s44, {(c % 3)*16384}")
        a.e(f"s_add_u32 s46, s43, {c*128}")
        a.vm(f"buffer_load_dwordx4 v7, s[8:11], s46 offen lds")
        x_id[c] = a.vm(f"buffer_load_dwordx4 v8, s[8:11], s46 offen offset:1024 lds")
    issue_x(0); issue8(0); issue_x(1); issue8(1)
    a.e(f"""
    s_and_b32 s36, s3, 3                ; rg
    s_lshr_b32 s37, s3, 2               ; p
    v_mul_u32_u24 v13, 3456, v28
    v_add_u32 v13, v13, v30
    v_and_b32 v22, 15, v2
    v_lshrrev_b32 v23, 2, v22           ; r
    v_and_b32 v22, 3, v22               ; c
    v_lshrrev_b32 v24, 5, v2            ; h
    v_bfe_u32 v25, v2, 4, 1             ; n half
    v_lshlrev_b32 v1, 3, v24
    v_add_u32 v1, v1, v23
    v_lshlrev_b32 v1, 7, v1             ; (8h + r)*128
    v_lshrrev_b32 v26, 1, v23
    v_xor_b32 v26, s37, v26
    v_lshl_add_u32 v1, v26, 6, v1
    v_lshl_add_u32 v1, v25, 5, v1
    v_lshl_add_u32 v1, v22, 3, v1
    v_add_u32 v3, 49152, v1
    v_and_b32 v32, 31, v2               ; s
    v_bfe_u32 v33, v2, 1, 3             ; swz
    v_xor_b32 v33, v33, v24
    v_lshlrev_b32 v33, 4, v33
    v_lshl_add_u32 v9, v32, 7, v33
    s_lshl_b32 s38, s36, 12
    s_add_u32 s38, s38, {XR}
    v_add_u32 v9, s38, v9
    v_xor_b32 v10, 32, v9
    v_xor_b32 v11, 64, v9
    v_xor_b32 v12, 96, v9
    v_lshlrev_b32 v21, 3, v32           ; s*8
    v_lshlrev_b32 v0, 4, v2
    """)
    assert Z2T == 0
    def wread(a, buf, u, j):
        pos = u % 12
        bb = (1, 3)[pos // 6]; off = (pos % 6)*8192 + j*2048
        a.lg(f"ds_read_b64_tr_b16 {vr(buf,2)}, v{bb} offset:{off}")
        return a.lg(f"ds_read_b64_tr_b16 {vr(buf+2,2)}, v{bb} offset:{off+512}")
    CSR = [80 + 4*k for k in range(7)] + [24 + 4*k for k in range(9)]
    def xst_load(a, tracked=True):
        (a.vm if tracked else a.e)(f"buffer_load_dwordx4 {vr(NEGMU)}, v21, s[20:23], s59 offen" + ("" if tracked else " sc1"))
    def hand_loads(a, k0=0, k1=16, sc=" sc1"):
        if k0 == 0: a.e("s_mov_b32 s45, s57")
        for k in range(k0, k1):
            if k % 2 == 0 and k: a.e(f"s_add_u32 s45, s45, {2*448*8}")
            a.e(f"buffer_load_dwordx4 {vr(CSR[k])}, v63, s[20:23], s45 offen offset:{(k%2)*448*8}{sc}")
    CONSTS = f"""
    v_mul_f32 v{C2}, v{R}, v{R}
    v_mul_f32 v{C1}, {f2u(GK1)}, v{R}
    v_mul_f32 v{C2}, v{C2}, v{R}
    v_mov_b32 v{S1}, 0
    v_mul_f32 v{C2}, {f2u(GK2)}, v{C2}
    v_mov_b32 v{S2}, 0
    v_mov_b32 v7, 0
    v_mov_b32 v8, 0
    v_cvt_pk_bf16_f32 v24, v{NEGMU}, v{NEGMU}
    v_mov_b32 v26, 0
    v_lshlrev_b32 v24, 16, v24
    v_mov_b32 v27, 0
    v_sub_f32 v24, v{NEGMU}, v24
    v_cmp_gt_u32 vcc, 32, v2
    v_cvt_pk_bf16_f32 v24, v{NEGMU}, v24
    v_mov_b32 v30, 0
    v_cndmask_b32 v24, v26, v24, vcc
    v_mov_b32 v31, 0
    v_mov_b32 v25, v24
    """
    rid = {}
    def areads(n):
        c, j = divmod(n, 4)
        a.lg(f"ds_read_b128 {vr(X + 4*n)}, v{9+j} offset:{(c%3)*16384}")
        rid[n] = wread(a, WF[n % 4], c, j)
    a.wait(vm=max(x_id[0], uid[0]))
    a.e("s_barrier")
    if stamp == 1: stamp_mid(a, 0)
    areads(0); areads(1)
    rowstat_loads(a, 2, 80, 32)
    a.e(f"""
    s_cmp_lt_u32 s3, 6
    s_cselect_b32 s28, s12, s16
    s_cselect_b32 s29, s13, s17
    s_cselect_b32 s30, s14, s18
    s_mov_b32 s31, 0x20000
    s_mov_b32 s45, 3456
    s_cselect_b32 s45, 9216, s45
    s_lshl_b32 s39, s3, 7
    s_add_u32 s39, s39, s41
    s_lshl_b32 s47, s34, 7
    s_sub_u32 s48, s39, {4608 + 384}
    s_cmp_lt_u32 s3, 6
    s_cselect_b32 s47, s48, s47
    s_cmp_lt_u32 s3, 3
    s_cselect_b32 s39, s39, s47
    s_cmp_eq_u32 s3, 7
    s_cselect_b32 s30, 0, s30
    s_mul_i32 s38, s32, 36
    s_mul_i32 s38, s38, s45
    s_add_u32 s39, s39, s38
    s_lshl_b32 s38, s45, 3
    v_mul_lo_u32 v26, v28, s45
    v_lshl_add_u32 v26, v29, 4, v26
    v_cmp_gt_u32 vcc, 32, v2
    v_mov_b32 v27, {BIG}
    s_nop 0
    v_cndmask_b32 v27, v27, v26, vcc
    """)
    for i in range(5):
        coop_id = a.vm(f"buffer_load_dwordx4 {vr(92+4*i)}, v{26 if i < 4 else 27}, s[28:31], s39 offen")
        if i < 4: a.e(f"s_add_u32 s39, s39, s38")
    a.e(f"""
    s_cmp_eq_u32 s3, 4
    s_cselect_b32 s38, 0, {BIG}
    v_mov_b32 v4, s38
    """)
    ep_id = a.vm(f"buffer_load_dword v{TAG}, v4, s[24:27], 0 offen sc1")
    issue_x(2); issue8(2)
    a.keys["coop"] = ("vm", coop_id)
    b = Sched()
    b.e(f"""
    s_mul_i32 s57, s33, {16*448*8}
    s_add_u32 s57, s57, {CSP}
    s_mul_i32 s47, s32, {448*8}
    s_add_u32 s47, s47, s57
    s_lshl_b32 s48, s3, 9
    s_add_u32 s47, s47, s48
    v_lshlrev_b32 v40, 6, v29
    v_lshrrev_b32 v41, 4, v2
    v_lshl_add_u32 v40, v41, 3, v40     ; (unit*8 + q)*8
    v_and_b32 v41, 8, v2
    v_cmp_eq_u32 vcc, 0, v41
    v_mov_b32 v41, {BIG}
    s_cmp_eq_u32 s3, 7
    s_cselect_b64 vcc, 0, vcc
    v_cndmask_b32 v42, v41, v40, vcc
    s_mov_b32 s62, 0x00003f80
    s_mov_b32 s63, 0x3f800000
    """)
    rowstat_addr(b, 2, 43, 40)
    a.add_block(b.lines, "x"); b.lines = []
    a.add("gate", None, "c0")
    a.add("w", None, "coop")
    rowstat_compute(b, 80, 36)
    for i in range(5): colsum_add(b, 24, 92 + 4*i, i == 0)
    fold_pairs(b, 24, [8])
    a.add_block(b.lines, "x"); b.lines = []
    a.add("gate")
    a.add("lg", f"ds_read_b32 v{TAG}, v4", "tag")
    a.add("w", None, "tag")
    a.addv(f"v_mov_b32 v37, v{TAG}\nv_mov_b32 v39, v{TAG}\nv_mov_b32 v25, v{TAG}\nv_mov_b32 v29, v{TAG}")
    a.add("vm", f"buffer_store_dwordx4 v[36:39], v43, s[20:23], 0 offen sc1")
    a.add("vm", f"buffer_store_dwordx2 v[24:25], v42, s[20:23], s47 offen sc1")
    a.add("vm", f"buffer_store_dwordx2 v[28:29], v42, s[20:23], s47 offen offset:32 sc1")
    a.addv(f"""
    s_lshl_b32 s49, s37, 8
    s_add_u32 s49, s49, {CSO}
    v_lshrrev_b32 v40, 5, v2
    v_add_u32 v17, s49, v21
    s_mul_i32 s49, s3, {32*SP}
    s_add_u32 s49, s49, {XR}
    v_mul_u32_u24 v19, {SP//8}, v21
    v_lshl_add_u32 v19, v40, 4, v19
    v_add_u32 v19, s49, v19
    v_bfe_u32 v20, v2, 4, 1
    v_mul_u32_u24 v20, {90*1024}, v20
    v_and_b32 v41, 15, v2
    v_lshl_add_u32 v41, v40, 4, v41
    v_lshl_add_u32 v20, v41, 4, v20     ; z1 store
    s_lshl_b32 s49, s36, 10
    v_add_u32 v18, s49, v0
    v_cmp_gt_u32 vcc, {448*8}, v18
    v_mov_b32 v63, {BIG}
    v_lshlrev_b32 v21, 1, v21           ; s*16
    v_cndmask_b32 v63, v63, v18, vcc
    v_add_u32 v18, {CSO}, v18
    """)
    a.addv(f"""
    s_lshl_b32 s47, s32, 3
    s_lshl_b32 s48, s36, 1
    s_add_u32 s47, s47, s48             ; t16
    s_mul_i32 s47, s47, 90
    s_mul_i32 s48, s33, 6
    s_add_u32 s47, s47, s48
    s_add_u32 s47, s47, s37
    s_lshl_b32 s47, s47, 10
    s_add_u32 s50, s47, {U}
    s_add_u32 s51, s50, 2048
    s_add_u32 s52, s50, 4096
    s_lshl_b32 s47, s32, 2
    s_add_u32 s47, s47, s36
    s_lshl_b32 s59, s47, 9
    s_add_u32 s59, s59, {XST}
    s_mul_i32 s48, s47, 36
    s_lshl_b32 s49, s34, 2
    s_add_u32 s48, s48, s49
    s_lshl_b32 s49, s37, 1
    s_add_u32 s48, s48, s49
    s_lshl_b32 s48, s48, 10
    s_add_u32 s53, s48, {Q}
    s_mul_i32 s54, s47, 144
    s_mul_i32 s48, s33, 12
    s_add_u32 s54, s54, s48
    s_add_u32 s54, s54, s49             ; + 2p
    s_lshl_b32 s54, s54, 10             ; z2t soffset (Z2T = 0)
    s_mul_i32 s55, s32, 24
    s_lshl_b32 s48, s33, 1
    s_add_u32 s48, s48, s37
    s_add_u32 s48, s48, s55
    s_lshl_b32 s48, s48, 11
    s_lshl_b32 s49, s36, 9
    s_add_u32 s48, s48, s49
    s_add_u32 s56, s48, {ST}
    s_lshl_b32 s55, s55, 11
    s_add_u32 s55, s55, s49
    s_add_u32 s55, s55, {ST}
    """)
    pend = []; gate_ok = False; HLC = int(os.environ.get('HLC', 4))
    for n in range(36):
        c, j = divmod(n, 4)
        a.wait(lg=rid[n])
        if j == 2:
            for f in pend: f()
            pend = []
            need = [x_id[c+1], uid[c+1]] if c < 8 else [uid[11]]
            if c == 1:
                a.wait(vm=ep_id)
                epoch_share(a, name, 4, TAG, 4, PRM)
            if c == 8: a.flush()
            a.wait(vm=max(need), lg=a.lg_n - 1 if c == 8 else rid[n+1])
            if stamp == 5 and 0 <= (c - TL0) < 8 and (c - TL0) % 2 == 0: stamp_mid(a, (c - TL0) // 2)
            a.e("s_barrier")
            if c == 1:
                a.e(f"v_mov_b32 v4, {PRM}")
                gate_ok = True
            if c == 8:
                assert not a.fill, len(a.fill)
                xst_load(a); a.keys["xst"] = ("vm", a.vm_n - 1)
            if c + 3 < 9: pend.append(lambda c=c: issue_x(c + 3))
            for u in ([c + 3] if c < 6 else range(3*c - 9, 3*c - 6)):
                pend.append(lambda u=u: issue8(u))
        if n + 2 < 36: areads(n + 2)
        a.e(f"{MF32} {vr(ACC[0],16)}, {vr(WF[n % 4])}, {vr(X + 4*n)}, " + ("0" if n == 0 else vr(ACC[0], 16)))
        if pend: pend.pop(0)()
        if n == 33:
            pass
        if gate_ok: a.open_gate()
        if n >= 4: a.open_gate('c0')
        a.pump(28 if n < 12 else 16)
        if n == 34: h0_tail_at = len(a.lines)
    for f in pend: f()
    if stamp in (1, 2): stamp_mid(a, 1 if stamp == 1 else 0)
    a.e(f"""
    s_mul_i32 s40, s36, {16*9216}
    s_add_u32 s40, s40, s41
    s_mul_i32 s41, s36, {16*3456}
    s_lshl_b32 s42, s34, 7
    s_add_u32 s41, s41, s42
    s_lshl_b32 s42, s36, 11
    v_add_u32 v104, {8*9216-1024}, v5
    v_add_u32 v105, {8*3456-1024}, v13
    s_cmp_eq_u32 s37, 0
    s_cbranch_scc0 {name}_p1
    """)
    common = a.snapshot()

    def epilogue(a, P):
        if "nofill" in ABL:
            if P == 2: a.add("vm", f"buffer_store_dwordx2 {vr(T,2)}, v21, s[20:23], s56 offen sc1", "ststore")
            return
        acc = ACC[P % 2]
        kind = "z2" if P < 3 else ("z1" if P < 6 else "q")
        if P == 0 or (P == 1 and a.par == 0):
            a.add("lg", f"ds_read_b64 v[28:29], v17 offset:{P*512}", "cs0")
            a.add("w", None, "cs0")
            a.addv(f"{MF32} {vr(acc,16)}, v[28:31], v[24:27], {vr(acc,16)}\ns_nop 7\ns_nop 3")
        T8 = [T + k for k in range(4)] + [6, 16, 22, 23]
        m = Sched()
        def defer():
            items = list(m.fill); m.fill.clear()
            a.add("call", lambda a_, items=items: a_.mfill.extend(items))
        for gg in range(2):
            A = acc + 8*gg
            if kind == "q":
                for r in range(8): a.addv(f"v_mul_f32 v{A+r}, v{R}, v{A+r}")
            else:
                for r in range(8): a.addv(f"v_mul_f32 v{T8[r]}, v{A+r}, v{A+r}")
                for r in range(8): a.addv(f"v_fma_f32 v{T8[r]}, v{T8[r]}, v{C2}, v{C1}")
                for r in range(8): a.addv(f"v_mul_f32 v{T8[r]}, v{T8[r]}, v{A+r}")
                for r in range(8): a.addv(f"v_exp_f32 v{T8[r]}, v{T8[r]}")
                for r in range(8): a.addv(f"v_add_f32 v{T8[r]}, 1.0, v{T8[r]}")
                for r in range(8): a.addv(f"v_rcp_f32 v{T8[r]}, v{T8[r]}")
                for r in range(8): a.addv(f"v_mul_f32 v{A+r}, v{A+r}, v{T8[r]}")
            for g in (2*gg, 2*gg + 1):
                Ag = acc + 4*g
                pk = PK + 2*g if kind != "z1" else PK + (g & 1)*4 + (g >> 1)*2
                a.addv(f"v_cvt_pk_bf16_f32 v{pk}, v{Ag}, v{Ag+1}")
                a.addv(f"v_cvt_pk_bf16_f32 v{pk+1}, v{Ag+2}, v{Ag+3}")
            if kind == "z2":
                m.add("lg", f"ds_write_b128 v19, {vr(PK + 4*gg)} offset:{P*64 + gg*32}")
                tgt = m if (gg == 0 or STATM == 2) and STATM else a
                for r in range(8):
                    tgt.addv(f"v_add_f32 v{(S1, 7)[r & 1]}, v{(S1, 7)[r & 1]}, v{A+r}")
                    tgt.addv(f"v_fmac_f32 v{(S2, 8)[r & 1]}, v{A+r}, v{A+r}")
            elif kind == "z1" and gg == 1:
                for k in range(2):
                    m.add("vm", f"buffer_store_dwordx4 {vr(PK + k*4)}, v20, s[20:23], s{50 + P - 3} offen offset:{k*512} sc1")
            elif kind == "q":
                m.add("vm", f"buffer_store_dwordx4 {vr(PK + gg*4)}, v0, s[20:23], s53 offen offset:{gg*1024} sc1")
            if P == 2 and gg == 1:
                a.addv(f"""
                v_add_f32 v{S1}, v{S1}, v7
                v_add_f32 v{S2}, v{S2}, v8
                v_mov_b32 v7, v{S1}
                v_mov_b32 v8, v{S2}
                s_nop 1
                v_permlane32_swap_b32 v{S1}, v7
                v_permlane32_swap_b32 v{S2}, v8
                s_nop 1
                v_add_f32 v8, v{S2}, v8
                v_add_f32 v7, v{S1}, v7
                v_mul_f32 v10, v{R}, v8
                v_mul_f32 v8, v{R}, v7
                v_mul_f32 v10, v{R}, v10
                v_mov_b32 v9, v{TAG}
                v_mov_b32 v11, v{TAG}
                """)
                m.add("vm", f"buffer_store_dwordx4 v[8:11], v21, s[20:23], s56 offen sc1")
            defer()
    def issue4(a, u, half, own):
        P, c = divmod(u, 9)
        if half == 0:
            a.e(f"s_add_u32 m0, s42, {RING + (u % 12)*8192}")
            a.e(f"s_add_u32 s46, s40, {(c*64*9216 + pcol(P)) & 0xffffffff}" if P < 6 else f"s_add_u32 s46, s41, {c*64*3456}")
        v = (5, 104)[half] if P < 6 else (13, 105)[half]
        own[u] = a.vm(f"buffer_load_dwordx4 v{v}, s[{12 if P < 6 else 16}:{15 if P < 6 else 19}], s46 offen" + (" offset:1024" if half else "") + " lds")
    AH = int(os.environ.get("AH", 3)); W8 = WF + [96, 100]; NW = 6
    PRIO = int(os.environ.get("PRIO", 1))
    STS = (8, 0)

    class Path:
        def __init__(s, p):
            s.a = Sched(); s.a.uid = 100*(p + 1); s.a.restore(common); s.p = p; s.a.par = p
            s.own = dict(uid); s.hooks = {}; s.pre = {}; s.ahead = None
        def bar(s, H, t, lg=None):
            a = s.a
            if (H, t) in s.pre: s.pre[(H, t)](a)
            k = H // 2 + 1
            if H % 2 == 1 and t < 2: us = range(9*k + 3*t + 3, 9*k + 3*t + 6)
            elif H % 2 == 0 and t == 1: us = range(9*k, 9*k + 3)
            else: us = []
            ids = [s.own[u] for u in us if u in s.own]
            a.wait(vm=max(ids) if ids else None, lg=lg)
            if stamp == 4 and 0 <= 3*H + t - TL0 < 4: stamp_mid(a, 3*H + t - TL0)
            a.e("s_barrier")
            if (H, t) in s.hooks: s.hooks[(H, t)](a)
        def preread(s, P):
            s.ahead = {n: wread(s.a, W8[n], 9*P + n // 4, n % 4) for n in range(AH)}
        def M(s, H, P, N):
            a = s.a; acc = ACC[P % 2]
            if P + 1 >= N: todo = {}
            elif s.p == 0: todo = {0: [(u, h) for u in range(9*P + 9, 9*P + 12) for h in (0, 1)]}
            else: todo = {12*t - AH + 1: [(u, h) for u in range(9*P + 9 + 3*t, 9*P + 12 + 3*t) for h in (0, 1)] for t in (1, 2)}
            q = []
            if PRIO: a.e("s_setprio 1")
            if s.ahead is None: s.preread(P)
            br = dict(s.ahead); s.ahead = None
            for i in range(36):
                a.wait(lg=br[i])
                n = i + AH
                mf = f"{MF32} {vr(acc,16)}, {vr(W8[i % NW])}, {vr(X + 4*i)}, " + ("0" if i == 0 else vr(acc, 16))
                if n in (12, 24):
                    a.e(mf); mf = ""
                    s.bar(H, n // 12 - 1, br[n-1] if s.p == 1 else None)
                if n < 36: br[n] = wread(a, W8[n % NW], 9*P + n // 4, n % 4)
                a.e(mf)
                q += todo.get(i, [])
                if q and (i % (5 if s.p == 0 else 2) == (1 if s.p == 0 else (AH + 1) % 2)): issue4(a, *q.pop(0), s.own)
                elif i % 2 == 0 and i >= 2: a.mpump(2)
                if i == 30 and H > 1: cid = a.lg(f"ds_read_b64 v[28:29], v17 offset:{P*512}")
            assert not q and not a.mfill
            if H > 1:
                a.wait(lg=cid)
                a.e(f"{MF32} {vr(acc,16)}, v[28:31], v[24:27], {vr(acc,16)}")
            if PRIO: a.e("s_setprio 0")
            s.bar(H, 2)
        def V(s, H, nextP, t0=0):
            a = s.a
            tot = a.fill_cost() + (8 if nextP else 0)
            for t in range(t0, 3):
                a.pump(math.ceil(tot / (3 - t0)) if t < 2 else 1 << 30)
                if t == 2 and nextP: s.preread(nextP)
                s.bar(H, t)

    lt = name + "_ztail"
    for p in (0, 1):
        path = Path(p); b = path.a
        def step(k, N):
            path.M(2*k - 1 + p, k, N)
            if 2*k + p <= 2*(N - 1):
                epilogue(b, k - 1)
                if k - 1 == 2 and "k1touch" in os.environ.get("OPT", "k1touch"): b.add("call", touch)
                path.V(2*k + p, k + 1 if k + 1 < N else None)
        def xchk(a):
            a.wait_key("xst")
            tags_retry(a, name, [NEGMU + 1, NEGMU + 3], TAG, 61, lambda a: xst_load(a, False))
        if p == 1:
            b.label(f"{name}_p1")
            hand_loads(b, 0, 6, sc="")
            b.e("s_waitcnt vmcnt(10)"); b.vm_done = uid[14]
            path.bar(1, 0)
            hand_loads(b, 6, 16, sc="")
            b.e("s_waitcnt vmcnt(16)"); b.vm_done = b.vm_n - 1
            path.bar(1, 1)
            b.e("s_waitcnt vmcnt(0)")
            xchk(b)
            tags_retry(b, name, [r + o for r in CSR for o in (1, 3)], TAG, 61, hand_loads, 63)
            for st_ in (8, 4, 2, 1):
                for k in range(st_):
                    for o in (0, 2): b.e(f"v_add_f32 v{CSR[k]+o}, v{CSR[k]+o}, v{CSR[k+st_]+o}")
            b.e(f"""
            v_cvt_pk_bf16_f32 v84, v80, v80
            v_cvt_pk_bf16_f32 v86, v82, v82
            v_lshlrev_b32 v85, 16, v84
            v_lshlrev_b32 v87, 16, v86
            v_sub_f32 v80, v80, v85
            v_sub_f32 v82, v82, v87
            v_cvt_pk_bf16_f32 v85, v80, v80
            v_cvt_pk_bf16_f32 v87, v82, v82
            v_add_u32 v104, {8*9216-1024}, v5
            v_add_u32 v105, {8*3456-1024}, v13
            """)
            b.lg("ds_write_b128 v18, v[84:87]")
            wid_ = b.lg_n - 1
            b.e(CONSTS)
            path.preread(1)
            path.bar(1, 2, wid_)
        else:
            b.add("call", xchk); b.addv(CONSTS)
        for k in range(1, 5): step(k, 7)
        lq = f"{name}_noq{p}"
        b.e(f"s_cmp_eq_u32 s18, 0\ns_cbranch_scc1 {lq}")
        snap = b.snapshot(); own_s = dict(path.own); ah_s = path.ahead
        for N in (7, 6):
            if N == 6:
                b.label(lq); b.restore(snap); path.own = dict(own_s); path.ahead = ah_s
            HL = 2*(N - 1)
            path.pre.clear(); path.hooks.clear()
            if p == 0:
                base = RING + (3 if N == 7 else 6)*8192
                path.hooks[(HL, 0)] = lambda a, N=N, base=base: repack_loads(a, name, N, base)
            for k in range(5, N): step(k, N)
            if stamp == 1: stamp_mid(b, 2)
            b.e("s_nop 7")
            stat_issue(b)
            b.mpump(1000)
            if p == 1: epilogue(b, N - 2); b.flush(); b.mpump(1000)
            epilogue(b, N - 1); b.flush(); b.mpump(1000)
            b.wait_key("stl")
            if not (p == 1 and N == 6): b.e(f"s_branch {lt}")
        a.lines += b.lines
        if getattr(b, 'forced', 0): print('forced flushes', p, b.forced)
    a.label(lt)
    if stamp == 1: stamp_mid(a, 3)
    ZT = 184
    tags_retry(a, name, [113 + 2*k for k in range(24)], TAG, 40, lambda a: stat_issue(a, False))
    a.e(f"""
    v_lshrrev_b32 v25, 8, v0            ; kg
    v_bfe_u32 v26, v0, 6, 2             ; r
    v_bfe_u32 v27, v0, 4, 2             ; c
    v_lshl_add_u32 v26, v25, 3, v26
    v_mul_u32_u24 v26, {SP}, v26
    v_and_b32 v28, 1, v27
    v_lshrrev_b32 v27, 1, v27
    v_lshl_add_u32 v26, v27, 3, v26
    v_lshl_add_u32 v26, v28, 4, v26
    s_mul_i32 s38, s3, {32*SP}
    s_add_u32 s38, s38, {XR}
    v_add_u32 v26, s38, v26
    s_lshl_b32 s39, s3, 8
    s_add_u32 s39, s39, {PRM}
    v_lshrrev_b32 v28, 2, v21
    v_add_u32 v28, s39, v28
    v_lshl_add_u32 v29, v25, 5, s39
    s_waitcnt lgkmcnt(0)
    """)
    for b_ in range(6):
        a.e(f"ds_read_b64_tr_b16 {vr(ZT+4*b_,2)}, v26 offset:{b_*32}")
        a.e(f"ds_read_b64_tr_b16 {vr(ZT+4*b_+2,2)}, v26 offset:{b_*32 + 4*SP}")
    L = 112
    for st_ in (6, 3):
        for k in range(st_):
            a.e(f"v_add_f32 v{L+4*k}, v{L+4*k}, v{L+4*(st_+k)}\nv_add_f32 v{L+4*k+2}, v{L+4*k+2}, v{L+4*(st_+k)+2}")
    a.e(f"""
    v_add_f32 v{L}, v{L}, v{L+4}
    v_add_f32 v{L+1}, v{L+2}, v{L+6}
    v_add_f32 v{L}, v{L}, v{L+8}
    v_add_f32 v{L+1}, v{L+1}, v{L+10}
    v_mov_b32 v{L+2}, v{L}
    v_mov_b32 v{L+3}, v{L+1}
    s_nop 1
    v_permlane32_swap_b32 v{L}, v{L+2}
    v_permlane32_swap_b32 v{L+1}, v{L+3}
    s_nop 1
    v_add_f32 v{L}, v{L}, v{L+2}
    v_add_f32 v{L+1}, v{L+1}, v{L+3}
    v_mul_f32 v{L}, {f2u(1/2304.)}, v{L}
    v_mul_f32 v{L+1}, {f2u(1/2304.)}, v{L+1}
    v_fma_f32 v{L+1}, -v{L}, v{L}, v{L+1}
    v_max_f32 v{L+1}, 0, v{L+1}
    v_add_f32 v{L+1}, {f2u(1e-5)}, v{L+1}
    v_rsq_f32 v{L+1}, v{L+1}
    s_nop 0
    v_mul_f32 v{L+2}, v{R}, v{L+1}
    v_mul_f32 v{L+3}, -v{L}, v{L+1}
    ds_write_b32 v28, v{L+2}
    ds_write_b32 v28, v{L+3} offset:128
    s_waitcnt lgkmcnt(0)
    ds_read_b128 {vr(L+8)}, v29
    ds_read_b128 {vr(L+12)}, v29 offset:16
    ds_read_b128 {vr(L+16)}, v29 offset:128
    ds_read_b128 {vr(L+20)}, v29 offset:144
    s_waitcnt lgkmcnt(0)
    """)
    for b_ in range(6):
        for k in range(4):
            z = ZT + 4*b_ + k; t = 32 + 2*(k & 1)
            a.e(f"v_lshlrev_b32 v{t}, 16, v{z}")
            a.e(f"v_and_b32 v{t+1}, 0xffff0000, v{z}")
            a.e(f"v_fma_f32 v{t}, v{t}, v{L+8+2*k}, v{L+16+2*k}")
            a.e(f"v_fma_f32 v{t+1}, v{t+1}, v{L+9+2*k}, v{L+17+2*k}")
            a.e(f"v_cvt_pk_bf16_f32 v{z}, v{t}, v{t+1}")
        if b_ % 2 == 0 and b_ > 0:
            a.e("s_add_u32 s54, s54, 4096")
        a.e(f"buffer_store_dwordx4 {vr(ZT+4*b_)}, v0, s[20:23], s54 offen offset:{(b_&1)*1024} sc1")
    repack_stores(a, name)
    if stamp == 3:
        a.e(f"""
        s_add_u32 s84, s20, {STAMP + 8*65536}
        s_addc_u32 s85, s21, 0
        s_mov_b32 s86, 0x200000
        s_mov_b32 s87, 0x20000
        s_lshl_b32 s88, s2, 3
        s_add_u32 s88, s88, s3
        s_lshl_b32 s88, s88, 9
        v_writelane_b32 v18, s92, 0
        v_lshlrev_b32 v1, 2, v2
        buffer_store_dword v18, v1, s[84:87], s88 offen
        buffer_store_dword v61, v1, s[84:87], s88 offen offset:256
        """)

def stat_issue(a, tracked=True):
    f = a.vm if tracked else (lambda t, k=None: a.e(t))
    a.e(f"""
    v_lshrrev_b32 v63, 9, v0            ; h
    v_mul_u32_u24 v63, {12*2048}, v63
    v_add_u32 v63, v63, v21
    s_mov_b32 s45, s55
    """)
    for k in range(12):
        if k % 2 == 0 and k: a.e("s_add_u32 s45, s45, 4096")
        f(f"buffer_load_dwordx4 {vr(112+4*k)}, v63, s[20:23], s45 offen offset:{(k%2)*2048}" + ("" if tracked else " sc1"), "stl")

def touch(a, vt=18):
    a.e(f"""
    s_load_dwordx2 s[62:63], s[0:1], {KA_WSP}
    s_lshl_b32 s38, s2, 2
    s_add_u32 s38, s38, s3
    s_lshl_b32 s39, s2, 1
    s_add_u32 s39, s39, s3
    s_sub_u32 s39, s39, 4
    s_waitcnt lgkmcnt(0)
    s_cmp_lt_u32 s3, 6
    s_cselect_b32 s28, s70, s72
    s_cselect_b32 s29, s71, s73
    s_mov_b32 s30, {D*D*2}
    s_cselect_b32 s30, {F2*D*2}, s30
    s_cselect_b32 s39, s39, s2
    s_cmp_lt_u32 s3, 4
    s_cselect_b32 s28, s62, s28
    s_cselect_b32 s29, s63, s29
    s_cselect_b32 s30, {S*S*2}, s30
    s_cselect_b32 s39, s38, s39
    s_mov_b32 s31, 0x20000
    s_cmp_eq_u32 s3, 7
    s_cselect_b32 s30, 0, s30
    s_lshl_b32 s39, s39, 13
    v_lshlrev_b32 v{vt}, 3, v0
    v_add_u32 v{vt}, s39, v{vt}
    """)
    a.lg_done = a.lg_n - 1
    a.vm(f"buffer_load_dword v{vt}, v{vt}, s[28:31], 0 offen")

def repack_loads(a, name, tag, base):
    lb = f"{name}_rp{tag}"
    a.e(f"""
    s_cmp_ge_u32 s60, 720
    s_cbranch_scc1 {lb}
    s_lshr_b32 s61, s60, 3              ; step
    s_and_b32 s62, s60, 7               ; d tile
    s_cmp_lt_u32 s61, 72
    s_cselect_b32 s28, s70, s72
    s_cselect_b32 s29, s71, s73
    s_mov_b32 s30, {D*D*2}
    s_cselect_b32 s30, {F2*D*2}, s30
    s_mov_b32 s31, 0x20000
    s_mov_b32 s63, {8*1152}
    s_cselect_b32 s63, {16*1152}, s63           ; j2 stride
    s_mov_b32 s64, {2*1152}                     ; j1 stride
    s_mov_b32 s65, {18*1152}
    s_cselect_b32 s65, {8*1152}, s65            ; k1 stride
    s_mov_b32 s66, {4*1152}                     ; k0 stride
    s_mul_i32 s67, s61, {32*1152}
    s_sub_u32 s68, s61, 72
    s_mul_i32 s68, s68, {36*1152}
    s_cmp_lt_u32 s61, 72
    s_cselect_b32 s67, s67, s68
    s_sub_u32 s68, s61, 88
    s_mul_i32 s68, s68, {288*1152}
    s_add_u32 s68, s68, {16*1152}
    s_cmp_ge_u32 s61, 88
    s_cselect_b32 s67, s68, s67
    s_cselect_b32 s63, {36*1152}, s63
    s_cselect_b32 s64, {18*1152}, s64
    s_cselect_b32 s65, {144*1152}, s65
    s_cselect_b32 s66, {72*1152}, s66
    s_mul_i32 s68, s62, 144
    s_add_u32 s67, s67, s68
    v_lshrrev_b32 v180, 9, v0
    v_mul_lo_u32 v180, v180, s64
    v_bfe_u32 v181, v0, 8, 1
    v_mul_u32_u24 v181, 1152, v181
    v_add_u32 v180, v180, v181
    v_and_b32 v181, 0xf0, v0
    v_add_u32 v180, v180, v181
    v_mov_b32 v182, {BIG}
    v_cmp_gt_u32 vcc, 144, v181
    s_lshl_b32 s48, s3, 13
    s_add_u32 s48, s48, {base}
    s_nop 0
    v_cndmask_b32 v180, v182, v180, vcc
    """)
    for i in range(8):
        j2, k1, k0 = i >> 2, (i >> 1) & 1, i & 1
        a.e(f"s_add_u32 m0, s48, {i*1024}")
        a.e(f"s_mov_b32 s68, s67")
        if j2: a.e("s_add_u32 s68, s68, s63")
        if k1: a.e("s_add_u32 s68, s68, s65")
        if k0: a.e("s_add_u32 s68, s68, s66")
        a.e(f"buffer_load_dwordx4 v180, s[28:31], s68 offen lds")
    a.label(lb)

def repack_stores(a, name):
    lb = f"{name}_rps"
    a.e(f"""
    s_cmp_ge_u32 s60, 720
    s_cbranch_scc1 {lb}
    v_lshrrev_b32 v181, 6, v0
    v_lshlrev_b32 v181, 8, v181
    v_bfe_u32 v182, v0, 4, 2
    v_lshl_add_u32 v181, v182, 3, v181
    v_add_u32 v181, s48, v181
    s_and_b32 s63, s62, 1
    s_lshl_b32 s64, s63, 4
    v_add_u32 v182, s64, v181
    s_lshl_b32 s64, s63, 7
    s_sub_u32 s65, 128, s64
    v_add_u32 v181, s65, v181
    """)
    for i in range(4):
        a.e(f"ds_read_b64_tr_b16 {vr(160+4*i,2)}, v182 offset:{32*i}")
        a.e(f"ds_read_b64_tr_b16 {vr(162+4*i,2)}, v182 offset:{32*i + 4096}")
    a.e(f"""
    ds_read_b64_tr_b16 v[176:177], v181
    ds_read_b64_tr_b16 v[178:179], v181 offset:4096
    s_lshr_b32 s68, s62, 1
    s_mul_i32 s68, s68, 90
    s_add_u32 s68, s68, s61
    s_mul_i32 s68, s68, {9*1024}
    s_add_u32 s68, s68, {WP}
    s_add_u32 s65, s68, s64
    s_add_u32 s65, s65, 4096
    s_mul_i32 s63, s63, {5*1024}
    s_add_u32 s68, s68, s63
    v_and_b32 v182, 0x80, v0
    v_cmp_eq_u32 vcc, 0, v182
    v_mov_b32 v182, {BIG}
    s_nop 0
    v_cndmask_b32 v181, v182, v0, vcc
    s_waitcnt lgkmcnt(0)
    """)
    for i in range(4):
        a.e(f"buffer_store_dwordx4 v[{160+4*i}:{163+4*i}], v0, s[20:23], s68 offen offset:{1024*i} sc1")
    a.e(f"buffer_store_dwordx4 v[176:179], v181, s[20:23], s65 offen sc1")
    a.label(lb)

def gen_k1(name="k1_kernel", stamp=False, attn=True):
    a = Sched()
    a.e(f"""
    s_cmp_ge_u32 s2, 256
    s_cbranch_scc1 {name}_end
    """)
    if stamp: stamp_begin(a)
    a.e(f"""
    s_load_dwordx4 s[4:7], s[0:1], {KA_X}         ; x, wqkv
    s_load_dwordx2 s[74:75], s[0:1], {KA_WPHI}
    s_load_dwordx2 s[72:73], s[0:1], {KA_WO}
    s_load_dwordx2 s[28:29], s[0:1], {KA_WIN}
    s_load_dwordx2 s[70:71], s[0:1], {KA_WOUT}
    s_load_dwordx4 s[64:67], s[0:1], {KA_DBG}
    v_lshrrev_b32 v1, 6, v0
    v_and_b32 v2, 63, v0
    v_readfirstlane_b32 s3, v1
    s_and_b32 s30, s2, 7
    s_lshr_b32 s31, s2, 3               ; l
    s_and_b32 s35, s30, 1
    s_lshr_b32 s30, s30, 1              ; j
    s_waitcnt lgkmcnt(0)
    """)
    srd(a, 24, 64, 65, 256)
    epoch_publish(a, name)
    srd(a, 8, 4, 5, S*D*2)
    srd(a, 16, 6, 7, D*1728*2)
    srd(a, 12, 28, 29, D*4608*2)
    srd(a, 20, 66, 67, WS_USED)
    NT = int(os.environ.get("NT", 0))
    if NT:
        a.e(f"""
        s_mul_i32 s38, s2, 5
        s_add_u32 s38, s38, s3
        s_sub_u32 s39, s38, 288
        s_sub_u32 s40, s38, {288+243}
        s_cmp_lt_u32 s38, {288+243}
        s_cselect_b32 s76, s16, s12
        s_cselect_b32 s77, s17, s13
        s_cselect_b32 s78, s18, s14
        s_cselect_b32 s39, s39, s40
        s_cmp_lt_u32 s38, 288
        s_cselect_b32 s76, s8, s76
        s_cselect_b32 s77, s9, s77
        s_cselect_b32 s78, s10, s78
        s_cselect_b32 s39, s38, s39
        s_mov_b32 s79, 0x20000
        s_cmp_ge_u32 s3, 5
        s_cselect_b32 s78, 0, s78
        s_lshl_b32 s39, s39, 13
        v_lshlrev_b32 v63, 7, v2
        v_add_u32 v63, s39, v63
        """)
        a.vm("buffer_load_dword v63, v63, s[76:79], 0 offen")
    a.e(f"""
    s_cmp_ge_u32 s31, 24
    s_cbranch_scc1 {name}_attn
    s_lshl_b32 s32, s35, 3
    s_and_b32 s33, s31, 7
    s_add_u32 s32, s32, s33             ; rt
    s_mul_i32 s33, s30, 3
    s_lshr_b32 s34, s31, 3
    s_add_u32 s33, s33, s34             ; zg
    s_lshr_b32 s34, s33, 2
    s_sub_u32 s34, s33, s34             ; qi
    s_and_b32 s36, s33, 3
    s_cmp_eq_u32 s36, 3
    s_cselect_b32 s18, 0, s18
    s_cselect_b32 s34, 0, s34
    s_mul_i32 s60, s33, 16
    s_add_u32 s60, s60, s32
    s_lshl_b32 s60, s60, 2
    s_add_u32 s60, s60, s3
    s_cmp_ge_u32 s3, 4
    s_cselect_b32 s60, 720, s60
    """)
    gen_zpath(a, name, stamp)
    if stamp: stamp_end(a, 1, "s3", 4)
    a.e("s_endpgm")
    a.label(f"{name}_attn")
    from k1a import gen_attn, A_LDS
    b = Sched(); b.uid = 1000; b.vm_n = 1 if NT else 0
    gen_attn(b, name, stamp, attn)
    a.lines += b.lines
    lds = max(Z_LDS, A_LDS)
    a.label(f"{name}_end")
    a.e("s_endpgm")
    launch = f"; @launch kernel={name} grid=(256,1,1) block=(512,1,1) lds={lds}\n"
    return launch, kernel_begin(name) + a.text(), kernel_desc(name, 256, 102, 256)
```

```python
import os
from asmlib import *
from sched import Sched
from layout import *
from k3 import srd
from k1common import *
from k1a import softmax18
from k2 import tile_ids, side_loads

SLOT = 34 * 1024
KVI = 4 * SLOT
MF16 = "v_mfma_f32_16x16x32_bf16"

def flag_wait(a, name, vflag, vaddr):
    lp = a.newlabel(name + "_fl"); ok = a.newlabel(name + "_fk")
    a.e("s_mov_b32 s58, 200000")
    a.label(lp)
    a.e(f"""
    v_cmp_ne_u32 vcc, s69, v{vflag}
    s_sub_u32 s58, s58, 1
    s_cmp_eq_u32 s58, 0
    s_cbranch_scc1 {ok}
    s_cmp_eq_u64 vcc, 0
    s_cbranch_scc1 {ok}
    s_sleep {int(os.environ.get('SLP', 6))}
    buffer_load_dword v{vflag}, v{vaddr}, s[20:23], 0 offen sc1
    s_waitcnt vmcnt(0)
    s_branch {lp}
    """)
    a.label(ok)

def flag_store(a, name, base, wave=0):
    lb = a.newlabel(name + "_fs")
    a.e(f"""
    s_cmp_eq_u32 s3, {wave}
    s_cbranch_scc0 {lb}
    s_lshl_b32 s58, s2, 7
    s_add_u32 s58, s58, {base}
    v_mov_b32 v12, s69
    v_mov_b32 v13, s69
    v_mov_b32 v14, s69
    v_mov_b32 v15, s69
    s_mov_b64 exec, 0xff
    buffer_store_dwordx4 v[12:15], v3, s[20:23], s58 offen sc1
    s_mov_b64 exec, -1
    """)
    a.label(lb)

def side_pieces(a):
    P = [80, 112]; PT = [96, 128]; PH = [144, 156]
    def p0(a):
        b = Asm(); side_loads(b)
        for l in b.lines:
            (a.vm if "buffer_" in l else a.e)(l)
        a.keys["side"] = ("vm", a.vm_n - 1)
    def p1(a):
        a.wait_key("side")
        for b in range(2):
            for t in range(2):
                a.e(f"{MF32} {vr(P[b],16)}, {vr(16+4*t)}, {vr(32+8*b+4*t)}, " + ("0" if t == 0 else vr(P[b],16)))
                a.e(f"{MF32} {vr(PT[b],16)}, {vr(24+4*t)}, {vr(32+8*b+4*t)}, " + ("0" if t == 0 else vr(PT[b],16)))
        for k in range(1, 8):
            for r in range(4): a.e(f"v_add_f32 v{48+r}, v{48+r}, v{48+4*k+r}")
        a.e(f"""
        v_cvt_pk_bf16_f32 v48, v48, v49
        v_cvt_pk_bf16_f32 v49, v50, v51
        v_lshrrev_b32 v9, 1, v9
        v_add_u32 v9, {KVI}, v9
        ds_write_b64 v9, v[48:49]
        s_mov_b32 s45, {f2u(LOG2E)}
        """)
        for i in range(1, 4):
            a.e(f"s_cmp_eq_u32 s54, {i}\ns_cselect_b64 vcc, -1, 0")
            for b in range(2):
                a.e(f"v_cndmask_b32 v{PT[b]}, v{PT[b]}, v{PT[b]+2*i}, vcc")
                a.e(f"v_cndmask_b32 v{PT[b]+1}, v{PT[b]+1}, v{PT[b]+2*i+1}, vcc")
        a.e("s_waitcnt lgkmcnt(0)")
    def sm(b): return lambda a: softmax18(a, [P[b] + k for k in range(16)] + [PT[b], PT[b] + 1], 12, PH[b])
    def p4(a):
        a.e(f"""
        v_and_b32 v60, 31, v2
        s_and_b32 s52, s51, 1
        s_lshl_b32 s52, s52, 1
        v_add_u32 v61, s52, v60
        v_min_u32 v61, 23, v61
        v_and_b32 v62, 27, v60
        v_cmp_eq_u32 vcc, 18, v62
        v_mov_b32 v63, 20
        v_lshrrev_b32 v8, 5, v2
        v_cndmask_b32 v61, v61, v63, vcc
        v_mul_u32_u24 v62, 24, v8
        v_add_u32 v61, v61, v62
        v_mul_u32_u24 v61, 40, v61
        v_add_u32 v61, {KVI}, v61
        ds_read_b64 v[48:49], v61
        ds_read_b64 v[50:51], v61 offset:8
        ds_read_b64 v[52:53], v61 offset:16
        ds_read_b64 v[54:55], v61 offset:24
        ds_read_b32 v56, v61 offset:32
        v_mov_b32 v57, 0
        v_mov_b32 v58, 0
        v_mov_b32 v59, 0
        """)
        for b in range(2):
            for k in range(9, 12): a.e(f"v_mov_b32 v{PH[b]+k}, 0")
        a.e("s_waitcnt lgkmcnt(0)")
        for b in range(2):
            for st in range(3):
                a.e(f"{MF32} {vr(P[b],16)}, {vr(48+4*st)}, {vr(PH[b]+4*st)}, " + ("0" if st == 0 else vr(P[b],16)))
        a.e(f"""
        v_bfe_u32 v14, v2, 4, 1
        v_mul_u32_u24 v14, {90*1024}, v14
        v_and_b32 v15, 15, v2
        v_lshl_add_u32 v14, v15, 4, v14
        v_lshl_add_u32 v15, v8, 8, v14
        v_cmp_gt_u32 vcc, 32, v2
        v_mov_b32 v9, {BIG}
        s_mul_i32 s57, s57, {2*90*1024}
        v_cndmask_b32 v14, v9, v14, vcc
        s_add_u32 s57, s57, {U}
        s_lshr_b32 s52, s51, 1
        s_lshl_b32 s52, s52, 10
        s_and_b32 s53, s51, 1
        s_lshl_b32 s53, s53, 9
        s_add_u32 s52, s52, s53
        s_add_u32 s52, s52, {72*1024}
        s_add_u32 s52, s52, s57
        s_lshr_b32 s53, s51, 4
        s_lshl_b32 s53, s53, 10
        s_bfe_u32 s55, s51, 0x20002
        s_lshl_b32 s55, s55, 8
        s_add_u32 s53, s53, s55
        s_lshl_b32 s55, s54, 2
        s_add_u32 s53, s53, s55
        s_add_u32 s53, s53, {88*1024}
        s_add_u32 s53, s53, s57
        """)
    def p5(a):
        for b in range(2):
            A = P[b]
            a.e(f"v_add_f32 v12, {f2u(1e-6)}, v{A+10}\nv_rcp_f32 v12, v12\ns_nop 0")
            for k in range(10): a.e(f"v_mul_f32 v{A+k}, v{A+k}, v12")
            for k in range(5): a.e(f"v_cvt_pk_bf16_f32 v{60+8*b+k}, v{A+2*k}, v{A+2*k+1}")
            a.vm(f"buffer_store_dwordx4 {vr(60+8*b)}, v15, s[20:23], s52 offen sc1")
            a.vm(f"buffer_store_dword v{64+8*b}, v14, s[20:23], s53 offen sc1", "ost")
            if b == 0: a.e(f"s_add_u32 s52, s52, {2*90*1024}\ns_add_u32 s53, s53, {2*90*1024}")
    return [p0, None, None, p1, sm(0), sm(1), p4, p5]

def gen_loader(name, hi, stamp):
    a = Sched(); a.uid = 500 + 100*hi
    LM, LD = 3, 4
    lead = "L" in os.environ.get("ROT", "L")
    fb0 = 5 if hi else 0; fbx = 8 if hi else 4; nrun = 3 if hi else 4
    sid = {}
    def issue(s):
        base = (s % 4) * SLOT
        if lead:
            a.e(f"s_cmp_eq_u32 s62, {s & LM}\ns_cselect_b32 s63, {(s + LD) & 31}, {s}")
        else:
            a.e(f"s_mov_b32 s63, {s}")
        a.e(f"""
        s_lshl_b32 s64, s63, 7
        s_add_u32 s64, s64, s36
        s_add_u32 m0, s39, {base}
        s_mul_i32 s63, s63, {2*144*1024}
        """)
        for i in range(4): a.vm(f"buffer_load_dwordx4 v{4+i}, s[12:15], s64 offen offset:{i*1024} lds")
        a.e(f"s_add_u32 m0, s40, {base}\ns_add_u32 s64, s63, s37")
        for i in range(nrun): a.vm(f"buffer_load_dwordx4 v3, s[16:19], s64 offen offset:{i*1024} lds")
        a.e(f"s_add_u32 m0, s41, {base}\ns_add_u32 s64, s63, s38")
        sid[s] = a.vm(f"buffer_load_dwordx4 v3, s[16:19], s64 offen lds")
    a.e(f"""
    s_add_u32 s62, s32, s33
    s_and_b32 s62, s62, {LM}
    s_and_b32 s42, s3, 1
    s_mul_i32 s43, s33, 9
    s_and_b32 s44, s33, 1
    s_add_u32 s45, s43, s44
    s_mul_i32 s46, s42, 144
    s_add_u32 s37, s45, s46
    s_add_u32 s37, s37, {fb0}
    s_lshl_b32 s37, s37, 10
    """)
    if hi:
        a.e("""
        s_cmp_eq_u32 s44, 0
        s_cselect_b32 s47, 8, 0
        s_add_u32 s38, s43, s47             ; g8
        s_add_u32 s38, s38, s46
        s_lshl_b32 s38, s38, 10
        """)
    else:
        a.e("s_add_u32 s38, s37, 4096")
    a.e(f"""
    s_mul_i32 s40, s42, {9*1024}
    s_add_u32 s41, s40, {fbx*1024}
    s_add_u32 s40, s40, {fb0*1024}
    s_lshl_b32 s39, s3, 12
    s_add_u32 s39, s39, {18*1024}
    """)
    for s in range(3): issue(s)
    S0 = 4; SB = int(os.environ.get("SB", 40))
    pieces = side_pieces(a)
    for k, pc in enumerate(pieces[3:]):
        b = Sched(); b.keys["side"] = ("vm", -1); pc(b)
        if k == 3: a.add("gate")
        for l in b.lines:
            l = l.strip()
            if l.startswith("buffer_"): a.add("vm", l, "ost")
            elif l.startswith("ds_") or l.startswith("s_waitcnt"): a.add("raw", l)
            elif l.startswith("v_mfma"): a.add("t", l); a.add("t", "s_nop 0")
            else: a.addv(l)
    osig = None
    for s in range(32):
        need = sid[s]
        if osig == s: need = max(need, a.keys["ost"][1])
        a.wait(vm=need)
        a.e("s_barrier")
        a.open_gate()
        if osig == s: flag_store(a, name, FO)
        if s + 3 < 32: issue(s + 3)
        if s == S0: pieces[0](a)
        if s == S0 + 3: a.wait_key("side")
        if s >= S0 + 3 and a.fill:
            a.pump(SB)
            if not a.fill: osig = s + 3; assert s < 22, s
        if s == 24:
            a.e(f"""
            s_lshr_b32 s70, s33, 2              ; kq
            s_and_b32 s71, s33, 3               ; dj
            """)
            a.e(f"""
            s_mul_i32 s72, s33, 9
            s_and_b32 s73, s33, 1
            s_add_u32 s72, s72, s73
            s_lshr_b32 s72, s72, 1              ; st0
            s_mul_i32 s73, s70, 18
            s_sub_u32 s74, s72, s73
            s_mul_i32 s75, s70, 5
            s_cmp_eq_u32 s70, 3
            s_cselect_b32 s75, 14, s75
            s_add_u32 s75, s75, 72
            s_mul_i32 s76, s71, {90*9*1024}
            s_add_u32 s76, s76, {WP + fb0*1024}
            s_lshl_b32 s77, s32, 3
            s_add_u32 s77, s77, {4 if hi else 0}
            s_mul_i32 s77, s77, {90*1024}
            s_add_u32 s77, s77, {U}
            s_lshl_b32 s78, s42, 10
            s_add_u32 s78, s78, {18*1024 + (8192 if hi else 0)}
            v_add_u32 v16, {90*1024 - 2048}, v3
            v_add_u32 v17, {2*90*1024}, v3
            v_add_u32 v18, {3*90*1024 - 2048}, v3
            v_and_b32 v20, 31, v2
            v_lshlrev_b32 v20, 10, v20
            s_lshr_b32 s58, s32, 1
            s_lshl_b32 s58, s58, 7
            s_add_u32 s58, s58, {FO}
            v_add_u32 v20, s58, v20
            v_and_b32 v21, 3, v2
            v_lshlrev_b32 v21, 13, v21
            s_and_b32 s58, s2, 63
            s_lshl_b32 s58, s58, 7
            s_add_u32 s58, s58, {FU}
            v_add_u32 v21, s58, v21
            """)
            a.vm("buffer_load_dword v22, v20, s[20:23], 0 offen sc1", "fo")
        if s == 28:
            a.wait_key("fo"); flag_wait(a, name, 22, 20)
    def gstep(i):
        def expr(i, d):
            if i < 4: a.e(f"s_add_u32 {d}, s72, {i}")
            elif i < 8: a.e(f"s_add_u32 {d}, s75, {i - 4}")
            elif i == 8: a.e(f"s_add_u32 {d}, s75, 4\ns_cmp_lt_u32 s70, 2\ns_cselect_b32 {d}, {d}, 100")
            elif i < 23: a.e(f"s_cmp_le_u32 s74, {i - 9}\ns_cselect_b32 {d}, {i - 9 + 4}, {i - 9}\ns_add_u32 {d}, {d}, s73")
            else: a.e(f"s_mov_b32 {d}, 100")
        expr(i, "s63"); expr(i + 1, "s65")
        a.e("s_cmp_eq_u32 s42, 0\ns_cselect_b32 s63, s63, s65")
        if i in (8, 22):
            a.e(f"s_cmp_lt_u32 s63, 90\ns_cselect_b32 s26, {WS_USED}, 0\ns_cselect_b32 s63, s63, 0")
    aid = {}; bid = {}
    def issueA(p):
        base = (p % 4) * SLOT; sr = "s[24:27]" if p in (4, 11) else "s[20:23]"
        gstep(2*p)
        a.e(f"s_mul_i32 s64, s63, {9*1024}\ns_add_u32 s64, s64, s76\ns_add_u32 m0, s40, {base}\ns_nop 0")
        for i in range(nrun): a.vm(f"buffer_load_dwordx4 v3, {sr}, s64 offen offset:{i*1024} lds")
        a.e(f"s_add_u32 m0, s41, {base}\ns_add_u32 s64, s64, {nrun*1024}")
        aid[p] = a.vm(f"buffer_load_dwordx4 v3, {sr}, s64 offen lds")
    def issueB(p):
        base = (p % 4) * SLOT; sr = "s[24:27]" if p in (4, 11) else "s[20:23]"
        gstep(2*p)
        a.e(f"s_lshl_b32 s64, s63, 10\ns_add_u32 s64, s64, s77\ns_add_u32 m0, s78, {base}\ns_nop 0")
        a.vm(f"buffer_load_dwordx4 v3, {sr}, s64 offen lds")
        a.vm(f"buffer_load_dwordx4 v16, {sr}, s64 offen offset:2048 lds")
        a.e(f"s_add_u32 m0, s78, {base + 4096}\ns_nop 0")
        a.vm(f"buffer_load_dwordx4 v17, {sr}, s64 offen lds")
        bid[p] = a.vm(f"buffer_load_dwordx4 v18, {sr}, s64 offen offset:2048 lds")
    a.e("s_mov_b32 s24, s20\ns_mov_b32 s25, s21\ns_mov_b32 s27, 0x20000")
    issueA(0); issueA(1); issueA(2); issueB(2)
    for p in range(12):
        a.wait(vm=max(aid[p], bid.get(p, -1)))
        a.e("s_barrier")
        if p == 2:
            flag_store(a, name, FU)
            issueA(5)
            a.e("buffer_load_dword v22, v21, s[20:23], 0 offen sc1\ns_waitcnt vmcnt(0)"); a.vm_done = a.vm_n - 1
            flag_wait(a, name, 22, 21)
            issueB(4); issueB(5)
        elif p == 1: issueA(4)
        elif p + 3 < 12: issueA(p + 3); issueB(p + 3)
    a.e(f"s_add_u32 s3, s3, 4\ns_branch {name}_final")
    return a.lines

def gen_k2f(name="k2_kernel", stamp=False):
    a = Asm()
    ACC = 160; FX, FY = 16, 60
    def acc(fb, tb): r = ACC + (fb*2 + tb)*4; return f"v[{r}:{r+3}]"
    def fa(buf, fb): r = buf + fb*4; return f"v[{r}:{r+3}]"
    def fbr(buf, tb): r = buf + 36 + tb*4; return f"v[{r}:{r+3}]"
    a.e(f"s_cmp_ge_u32 s2, 256\ns_cbranch_scc1 {name}_end")
    if stamp: stamp_begin(a)
    a.e(f"""
    s_load_dwordx2 s[4:5], s[0:1], {KA_WS}
    s_load_dwordx2 s[6:7], s[0:1], {KA_WSP}
    s_load_dwordx2 s[8:9], s[0:1], {KA_BSP}
    v_lshrrev_b32 v1, 6, v0
    v_and_b32 v2, 63, v0
    v_readfirstlane_b32 s3, v1          ; wave
    """)
    tile_ids(a)
    a.e(f"""
    v_lshlrev_b32 v3, 4, v2
    s_waitcnt lgkmcnt(0)
    s_add_u32 s66, s4, {XST + 4}
    s_addc_u32 s67, s5, 0
    s_load_dword s69, s[66:67], 0
    """)
    srd(a, 12, 6, 7, S*S*2)
    srd(a, 16, 4, 5, Z2T_BYTES, Z2T)
    srd(a, 20, 4, 5, WS_USED)
    a.e(f"""
    s_cmp_lt_u32 s3, 4
    s_cbranch_scc1 {name}_compute
    s_sub_u32 s3, s3, 4
    v_lshrrev_b32 v8, 3, v2
    v_and_b32 v9, 7, v2
    v_lshrrev_b32 v10, 4, v2
    v_xor_b32 v9, v9, v10
    v_lshlrev_b32 v8, 12, v8
    v_lshl_add_u32 v4, v9, 4, v8
    v_xor_b32 v9, 4, v9
    v_lshl_add_u32 v5, v9, 4, v8
    v_add_u32 v6, {2*(32768-1024)}, v4
    v_add_u32 v7, {3*(32768-1024)}, v5
    v_add_u32 v5, {(32768-1024)}, v5
    s_lshl_b32 s36, s32, 7
    s_lshl_b32 s37, s3, 5
    s_add_u32 s36, s36, s37
    s_lshl_b32 s36, s36, 12
    s_waitcnt lgkmcnt(0)
    s_cmp_ge_u32 s3, 2
    s_cbranch_scc1 {name}_ldhi
    """)
    a.lines += gen_loader(name, False, stamp)
    a.label(f"{name}_ldhi")
    a.lines += gen_loader(name, True, stamp)
    a.label(f"{name}_compute")
    srd(a, 28, 8, 9, S*2)
    a.e(f"""
    v_mov_b32 v4, v3
    v_add_u32 v5, {2*SLOT}, v3
    v_and_b32 v10, 15, v2               ; t
    v_lshrrev_b32 v11, 4, v2            ; kg
    v_lshrrev_b32 v12, 1, v10           ; swz
    v_xor_b32 v12, v12, v11
    v_lshlrev_b32 v12, 4, v12
    v_lshl_add_u32 v6, v10, 7, v12
    s_lshl_b32 s36, s3, 12
    s_add_u32 s36, s36, {18*1024}
    v_add_u32 v6, s36, v6
    v_xor_b32 v7, 64, v6
    v_add_u32 v8, {2*SLOT}, v6
    v_add_u32 v9, {2*SLOT}, v7
    s_lshl_b32 s37, s32, 7
    s_lshl_b32 s38, s3, 5
    s_add_u32 s37, s37, s38
    s_lshl_b32 s38, s37, 1
    v_lshlrev_b32 v12, 1, v10
    buffer_load_ushort v13, v12, s[28:31], s38 offen
    buffer_load_ushort v14, v12, s[28:31], s38 offen offset:32
    s_lshl_b32 s38, s37, 4
    s_add_u32 s38, s38, {XST + 8}
    v_lshlrev_b32 v12, 4, v10
    buffer_load_dword v15, v12, s[20:23], s38 offen
    buffer_load_dword v1, v12, s[20:23], s38 offen offset:256
    """)
    def reads(buf, slot, kh):
        L = []
        sa = (slot & 1) * SLOT
        va = "v4" if slot < 2 else "v5"
        vb = f"v{6 + kh + (0 if slot < 2 else 2)}"
        for tb in range(2): L.append(f"ds_read_b128 {fbr(buf,tb)}, {vb} offset:{sa + tb*2048}")
        for fb in range(9): L.append(f"ds_read_b128 {fa(buf,fb)}, {va} offset:{sa + (kh*9+fb)*1024}")
        return L
    def phase(cbuf, R, skip=False, zero=False):
        R = list(R)
        if skip:
            for r in R: a.e(r)
            return
        for fb in range(9):
            for tb in range(2):
                if R: a.e(R.pop(0))
                a.e(f"{MF16} {acc(fb,tb)}, {fa(cbuf,fb)}, {fbr(cbuf,tb)}, " + ("0" if zero else acc(fb,tb)))
    def stage(slot, first=False, pre=""):
        a.e(pre)
        a.e("s_barrier")
        phase(FY, reads(FX, slot, 0), skip=first)
        a.e("s_waitcnt lgkmcnt(0)")
        phase(FX, reads(FY, slot, 1), zero=first)
        a.e("s_waitcnt lgkmcnt(0)")
    stage(0, first=True)
    if stamp == 1: stamp_mid(a, 0)
    for u in range(1, 4): stage(u)
    a.e("s_mov_b32 s48, 0")
    lp = f"{name}_cl"
    a.label(lp)
    for u in range(4): stage(u)
    a.e(f"s_add_u32 s48, s48, 1\ns_cmp_lt_u32 s48, 6\ns_cbranch_scc1 {lp}")
    ZR = 104
    a.e(f"""
    s_lshr_b32 s40, s37, 4
    s_mul_i32 s41, s33, 9
    s_and_b32 s42, s33, 1
    s_add_u32 s43, s41, s42
    s_lshr_b32 s43, s43, 1              ; st0
    s_add_u32 s44, s41, 8
    s_cmp_eq_u32 s42, 0
    s_cselect_b32 s44, s44, s41
    s_lshr_b32 s44, s44, 1              ; st8
    s_lshl_b32 s42, s42, 3              ; half*8
    s_mul_i32 s54, s40, 90
    s_add_u32 s55, s54, s44
    s_add_u32 s54, s54, s43
    s_lshl_b32 s54, s54, 10
    s_lshl_b32 s55, s55, 10
    s_add_u32 s55, s55, s42
    s_add_u32 s54, s54, {U}
    s_add_u32 s55, s55, {U}
    s_add_u32 s56, s54, {90*1024}
    s_add_u32 s57, s55, {90*1024}
    """)
    for tb in range(2):
        sm, ss = ("s54", "s55") if tb == 0 else ("s56", "s57")
        for i in range(4):
            r = ZR + tb*18 + i*4
            a.e(f"buffer_load_dwordx4 v[{r}:{r+3}], v3, s[20:23], {sm} offen offset:{i*1024}")
        r = ZR + tb*18 + 16
        a.e(f"buffer_load_dwordx2 v[{r}:{r+1}], v3, s[20:23], {ss} offen sc1")
    for u in range(4): stage(u)
    phase(FY, [])
    if stamp == 1: stamp_mid(a, 1)
    a.e(f"""
    s_waitcnt vmcnt(0)
    v_lshlrev_b32 v13, 16, v13
    v_lshlrev_b32 v14, 16, v14
    v_mul_f32 v13, v13, v15
    v_mul_f32 v14, v14, v1
    v_add_u32 v6, s36, v3
    v_add_u32 v7, 1024, v6
    v_add_u32 v8, {2*SLOT}, v6
    v_add_u32 v9, {2*SLOT}, v7
    s_nop 3
    """)
    T = 16
    for tb in range(2):
        sm, ss = ("s54", "s55") if tb == 0 else ("s56", "s57")
        for i in (4, 0, 1, 2, 3):
            nfb = 2 if i < 4 else 1
            zr = ZR + tb*18 + i*4
            for k in range(nfb):
                ar = ACC + ((2*i + k)*2 + tb)*4
                for p in range(2):
                    z = zr + 2*k + p; t0 = T + 2*((2*k + p) % 4)
                    a.e(f"v_fma_f32 v{ar+2*p}, v{ar+2*p}, v{(15, 1)[tb]}, v{13+tb}")
                    a.e(f"v_fma_f32 v{ar+2*p+1}, v{ar+2*p+1}, v{(15, 1)[tb]}, v{13+tb}")
                    a.e(f"v_lshlrev_b32 v{t0}, 16, v{z}")
                    a.e(f"v_and_b32 v{t0+1}, 0xffff0000, v{z}")
                    a.e(f"v_mul_f32 v{t0}, v{t0}, v{ar+2*p}")
                    a.e(f"v_mul_f32 v{t0+1}, v{t0+1}, v{ar+2*p+1}")
                    a.e(f"v_cvt_pk_bf16_f32 v{z}, v{t0}, v{t0+1}")
            if i < 4:
                a.e(f"buffer_store_dwordx4 v[{zr}:{zr+3}], v3, s[20:23], {sm} offen offset:{i*1024} sc1")
                a.e(f"ds_write_b128 v{6 + (i & 1)}, v[{zr}:{zr+3}] offset:{(i >> 1)*SLOT + tb*2048}")
            else:
                a.e(f"buffer_store_dwordx2 v[{zr}:{zr+1}], v3, s[20:23], {ss} offen sc1")
    if stamp: stamp_mid(a, {1: 2}.get(stamp, 0))
    stage(0, first=True, pre="s_waitcnt lgkmcnt(0)")
    stage(1)
    stage(2, pre="s_waitcnt vmcnt(0)" + ("\ns_memtime s[82:83]" if stamp == 2 else ""))
    stage(3)
    if stamp == 2: stamp_mid(a, 2)
    a.e("s_mov_b32 s48, 0")
    lp = f"{name}_c3"
    a.label(lp)
    for u in range(4):
        stage(u)
        if stamp == 2 and u == 0: a.e(f"s_cmp_eq_u32 s48, 0\ns_cbranch_scc0 {name}_ns\ns_memtime s[86:87]\n{name}_ns:")
    a.e(f"s_add_u32 s48, s48, 1\ns_cmp_lt_u32 s48, 2\ns_cbranch_scc1 {lp}")
    phase(FY, [])
    if stamp in (1, 3): stamp_mid(a, {1: 3}.get(stamp, 1))
    own = f"{name}_own"
    a.e(f"""
    s_lshr_b32 s70, s33, 2              ; kq
    s_and_b32 s71, s33, 3               ; dj
    s_lshl_b32 s40, s32, 2
    s_add_u32 s40, s40, s71
    s_lshl_b32 s40, s40, 2
    s_add_u32 s40, s40, s3
    s_lshl_b32 s40, s40, 2
    s_add_u32 s40, s40, s70
    s_mul_i32 s40, s40, {9*1024}
    s_add_u32 s40, s40, {PX}
    s_nop 1
    s_cmp_eq_u32 s3, s70
    s_cbranch_scc1 {own}
    """)
    for fb in range(9):
        r = ACC + 8*fb; t = 16 + 4*(fb & 1)
        for k in range(4): a.e(f"v_cvt_pk_bf16_f32 v{t+k}, v{r+2*k}, v{r+2*k+1}")
        if fb % 4 == 0 and fb: a.e("s_add_u32 s40, s40, 4096")
        a.e(f"buffer_store_dwordx4 v[{t}:{t+3}], v3, s[20:23], s40 offen offset:{(fb%4)*1024} sc1")
    a.e(f"s_branch {name}_final")
    a.label(own)
    for c in range(18):
        a.e(f"ds_write_b128 v3, v[{ACC+4*c}:{ACC+4*c+3}] offset:{c*1024}")
    a.label(f"{name}_final")
    a.e(f"""
    s_load_dwordx2 s[6:7], s[0:1], {KA_X}
    s_load_dwordx2 s[8:9], s[0:1], {KA_OUT}
    s_lshl_b32 s46, s32, 7
    s_lshl_b32 s47, s70, 5
    s_add_u32 s46, s46, s47
    s_mul_i32 s46, s46, 1152
    s_mul_i32 s47, s71, 288
    s_add_u32 s46, s46, s47
    s_lshl_b32 s47, s3, 5
    s_add_u32 s46, s46, s47
    v_and_b32 v10, 15, v2
    v_mul_u32_u24 v10, 1152, v10
    v_lshrrev_b32 v11, 4, v2
    v_lshl_add_u32 v10, v11, 3, v10
    v_add_u32 v11, {16*1152}, v10
    v_mov_b32 v9, {BIG}
    s_cmp_eq_u32 s3, 0
    s_cselect_b64 vcc, -1, 0
    v_cndmask_b32 v24, v9, v10, vcc
    v_cndmask_b32 v25, v9, v11, vcc
    v_cndmask_b32 v26, v9, v3, vcc
    s_lshl_b32 s41, s3, 11
    v_add_u32 v27, s41, v3
    s_waitcnt lgkmcnt(0)
    """)
    srd(a, 24, 6, 7, S*D*2)
    srd(a, 28, 8, 9, S*D*2)
    XA = [10, 11, 24, 25]
    for k in range(4):
        a.e(f"buffer_load_dwordx2 v[{64+2*k}:{65+2*k}], v{XA[k]}, s[24:27], s46 offen offset:{256*(k >> 1)}")
    a.e(f"""
    s_lshl_b32 s40, s32, 2
    s_add_u32 s40, s40, s71
    s_lshl_b32 s40, s40, 2
    s_add_u32 s40, s40, s70
    s_mul_i32 s40, s40, {4*9*1024}
    s_lshl_b32 s41, s3, 10
    s_add_u32 s40, s40, s41
    s_add_u32 s40, s40, {PX}
    v_and_b32 v20, 3, v2
    v_lshlrev_b32 v20, 8, v20
    s_andn2_b32 s58, s2, 6
    s_lshl_b32 s58, s58, 7
    s_add_u32 s58, s58, {FP}
    v_add_u32 v20, s58, v20
    s_waitcnt vmcnt(4) lgkmcnt(0)
    s_barrier
    """)
    flag_store(a, name, FP, 7)
    for m in range(3):
        a.e(f"s_add_u32 s{42+m}, s70, {m+1}\ns_and_b32 s{42+m}, s{42+m}, 3\ns_mul_i32 s{42+m}, s{42+m}, {9*1024}\ns_add_u32 s{42+m}, s{42+m}, s40")
    for k in range(4):
        a.e(f"ds_read_b128 {vr(72+4*k)}, v27 offset:{1024*(k & 1) + 16384*(k >> 1)}")
    lbp = f"{name}_pp"
    a.e(f"""
    s_cmp_eq_u32 s3, 7
    s_cbranch_scc0 {lbp}
    buffer_load_dword v22, v20, s[20:23], 0 offen sc1
    s_waitcnt vmcnt(0)
    """)
    flag_wait(a, name, 22, 20)
    a.label(lbp)
    a.e("s_barrier")
    if stamp == 3: stamp_mid(a, 2)
    PR = 32
    for m in range(3):
        a.e(f"buffer_load_dwordx4 {vr(PR+4*m)}, v3, s[20:23], s{42+m} offen sc1")
    for m in range(3):
        a.e(f"s_add_u32 s{42+m}, s{42+m}, 8192\nbuffer_load_dwordx4 {vr(PR+12+4*m)}, v26, s[20:23], s{42+m} offen sc1")
    a.e("s_waitcnt lgkmcnt(0)")
    for k in range(4):
        if k == 0: a.e("s_waitcnt vmcnt(3)")
        if k == 2: a.e("s_waitcnt vmcnt(2)")
        if stamp == 3 and k == 0: stamp_mid(a, 3)
        terms = [64 + 2*k] + [PR + 12*(k >> 1) + 4*m + 2*(k & 1) for m in range(3)]
        for z in terms:
            for p in range(2):
                a.e(f"v_lshlrev_b32 v{16+2*p}, 16, v{z+p}\nv_and_b32 v{17+2*p}, 0xffff0000, v{z+p}")
            for r in range(4): a.e(f"v_add_f32 v{72+4*k+r}, v{72+4*k+r}, v{16+r}")
        a.e(f"v_cvt_pk_bf16_f32 v{64+2*k}, v{72+4*k}, v{73+4*k}\nv_cvt_pk_bf16_f32 v{65+2*k}, v{74+4*k}, v{75+4*k}")
        a.e(f"buffer_store_dwordx2 v[{64+2*k}:{65+2*k}], v{XA[k]}, s[28:31], s46 offen offset:{256*(k >> 1)}")
    if stamp: stamp_end(a, 2, "s3", 4)
    a.label(f"{name}_end")
    a.e("s_endpgm")
    launch = f"; @launch kernel={name} grid=(256,1,1) block=(512,1,1) lds={4*SLOT + 2048}\n"
    return launch, kernel_begin(name) + a.text(), kernel_desc(name, 256, 102, 256)
```

```python
S, D, F2, H = 2048, 576, 2304, 32
Z2T = 0x0000000
Z1  = 0x0A00000
U   = 0x1400000
WP  = 0x2000000
Q   = 0x2400000
KVP = 0x2700000
AF  = 0x2800000
ST  = 0x2900000
WS_USED = 0x2B00000
Z2T_BYTES = 64*144*1024
Z1_BYTES = 128*72*1024
U_BYTES = 128*90*1024
WP_BYTES = 8*90*4608
Q_BYTES = 64*36*1024
KVP_BYTES = 8*32*2*24*80
AF_BYTES = 8*13*1024
ST_BYTES = 16*24*128*8
KA_X, KA_WQKV, KA_WPHI, KA_WO, KA_BX, KA_WIN, KA_WSP, KA_BSP, KA_WOUT, KA_OUT, KA_DBG, KA_WS = [8*i for i in range(12)]

def k3_slot_channel(step, kg, j):
    if step < 72:
        return 32*step + 16*(j >> 2) + 4*kg + (j & 3)
    st = step - 72
    if st < 16:
        head = 2*st + (kg >> 1); hh = kg & 1
        return F2 + 18*head + 8*(j >> 2) + 4*hh + (j & 3)
    head = 16*(st - 16) + 4*kg + (j >> 1)
    return F2 + 18*head + 16 + (j & 1)
STAMP = 0x8000000
XST = 0x29E0000
CSP = 0x2A00000
CSPA = CSP + 12*16*448*8
FU = 0x2AD0000
FO = FU + 32768
FP = FO + 32768
F1 = FP + 32768
FZ = F1 + 32768
PX = 0x2B00000
WS_USED = PX + 16*4*16*9*1024
```

```python
import sys, os
sys.path.insert(0, "dev")
from build import assemble
from k1 import gen_k1
from k2 import gen_k2
from k3 import gen_k3
from k2f import gen_k2f
what = sys.argv[1]
if what == "k1z": assemble([gen_k1(stamp=int(os.environ.get('ST', 1)), attn=False)], "dev/" + (sys.argv[2] if len(sys.argv) > 2 else "t_k1z.s"))
if what == "k1": assemble([gen_k1(stamp=int(os.environ.get("ST", 1)))], "dev/" + (sys.argv[2] if len(sys.argv) > 2 else "t_k1.s"))
if what == "all": assemble([gen_k1(stamp=True), gen_k2(stamp=True), gen_k3(stamp=True)], "dev/" + (sys.argv[2] if len(sys.argv) > 2 else "t_all.s"))
if what == "final":
    hdr = "".join(l for l in open("parallel_sum__linear_kernel_hedgehog__mixer_gmlp__prompt.s.ref") if l.startswith(";") and "@launch" not in l and "Override" not in l and "grid=ceil" not in l)
    assemble([gen_k1(), gen_k2(), gen_k3()], "parallel_sum__linear_kernel_hedgehog__mixer_gmlp__prompt.s", hdr)
if what == "var":
    hdr = "".join(l for l in open("parallel_sum__linear_kernel_hedgehog__mixer_gmlp__prompt.s.ref") if l.startswith(";") and "@launch" not in l and "Override" not in l and "grid=ceil" not in l)
    assemble([gen_k1(), gen_k2(), gen_k3()], "dev/" + sys.argv[2], hdr)
if what == "diag":
    assemble([gen_k1(stamp=1), gen_k2(stamp=1), gen_k3(stamp=9)], "dev/" + sys.argv[2])
HDR = "".join(l for l in open("parallel_sum__linear_kernel_hedgehog__mixer_gmlp__prompt.s.ref") if l.startswith(";") and "@launch" not in l and "Override" not in l and "grid=ceil" not in l)
if what == "f": assemble([gen_k1(stamp=1), gen_k2f(stamp=int(os.environ.get('ST2', 1)))], "dev/" + (sys.argv[2] if len(sys.argv) > 2 else "t_f.s"))
if what == "fv": assemble([gen_k1(), gen_k2f()], "dev/" + sys.argv[2], HDR)
KN = "parallel_sum__linear_kernel_hedgehog__mixer_gmlp__prompt_kernel"
if what == "m": assemble([gen_k2f(KN, stamp=int(os.environ.get("ST2", 7)), merged=True)], "dev/" + (sys.argv[2] if len(sys.argv) > 2 else "t_m.s"))
if what == "mv": assemble([gen_k2f(KN, merged=True)], "dev/" + sys.argv[2], HDR)
```

```python
import math, os
from asmlib import *
from sched import Sched
from layout import *
from k1common import *
from k3 import srd
ABL = os.environ.get('ABL', '').split(',')

GK1 = -2.0 * math.sqrt(2.0 / math.pi) * LOG2E
GK2 = GK1 * 0.044715

RING = 0
XR = 98304
SP = 208
CSO = XR + 256*SP
PRM = CSO + 4096
Z_LDS = PRM + 2048
TL0 = int(os.environ.get('TL0', 11))
STATM = int(os.environ.get('STATM', 0)); MPS = int(os.environ.get('MPS', 2))
ZSC = os.environ.get('ZSC', 'sc1')
Z2SC = os.environ.get('Z2SC', 'sc1')
PER_MFMA = int(os.environ.get('PM', 6))

def gen_zpath(a, name, stamp):
    X = 112; ACC = [64, 80]; WF = [44, 48, 52, 56]
    NEGMU, R, C1, C2, S1, S2, TAG = 108, 110, 14, 15, 61, 62, 60
    CB = [24, 28]; T = 32; PK = 36
    a.e(f"""
    v_lshrrev_b32 v28, 3, v2
    v_and_b32 v29, 7, v2                ; pos
    v_lshrrev_b32 v31, 4, v2
    v_xor_b32 v31, v31, v29
    v_mul_u32_u24 v7, 1152, v28
    v_lshl_add_u32 v7, v31, 4, v7
    v_bfe_u32 v30, v2, 4, 1
    v_lshlrev_b32 v30, 2, v30
    v_xor_b32 v30, v30, v29
    v_lshlrev_b32 v30, 4, v30           ; chunk*16
    v_mul_u32_u24 v5, 9216, v28
    v_add_u32 v5, v5, v30
    v_xor_b32 v8, 64, v7
    v_add_u32 v8, {8*1152-1024}, v8
    s_mul_i32 s41, s33, 384
    s_add_u32 s41, s41, 4608            ; column offset of z2 panel 0
    s_mul_i32 s40, s3, {8*9216}
    s_add_u32 s40, s40, s41
    s_lshl_b32 s42, s3, 10              ; w*1024
    s_lshl_b32 s43, s32, 7
    s_lshl_b32 s44, s3, 4
    s_add_u32 s43, s43, s44
    s_mul_i32 s43, s43, 1152            ; x base
    s_lshl_b32 s44, s3, 11
    s_add_u32 s44, s44, {XR}
    """)
    def pcol(P): return 128*P if P < 3 else 128*(P-3) - 4608
    uid = {}; x_id = {}
    def issue8(u):
        P, c = divmod(u, 9)
        a.e(f"s_add_u32 m0, s42, {RING + (u % 12)*8192}")
        a.e(f"s_add_u32 s46, s40, {c*64*9216 + pcol(P)}")
        uid[u] = a.vm(f"buffer_load_dwordx4 v5, s[12:15], s46 offen lds")
    def issue_x(c):
        a.e(f"s_add_u32 m0, s44, {(c % 3)*16384}")
        a.e(f"s_add_u32 s46, s43, {c*128}")
        a.vm(f"buffer_load_dwordx4 v7, s[8:11], s46 offen lds")
        x_id[c] = a.vm(f"buffer_load_dwordx4 v8, s[8:11], s46 offen offset:1024 lds")
    issue_x(0); issue8(0); issue_x(1); issue8(1)
    a.e(f"""
    s_and_b32 s36, s3, 3                ; rg
    s_lshr_b32 s37, s3, 2               ; p
    v_mul_u32_u24 v13, 3456, v28
    v_add_u32 v13, v13, v30
    v_and_b32 v22, 15, v2
    v_lshrrev_b32 v23, 2, v22           ; r
    v_and_b32 v22, 3, v22               ; c
    v_lshrrev_b32 v24, 5, v2            ; h
    v_bfe_u32 v25, v2, 4, 1             ; n half
    v_lshlrev_b32 v1, 3, v24
    v_add_u32 v1, v1, v23
    v_lshlrev_b32 v1, 7, v1             ; (8h + r)*128
    v_lshrrev_b32 v26, 1, v23
    v_xor_b32 v26, s37, v26
    v_lshl_add_u32 v1, v26, 6, v1
    v_lshl_add_u32 v1, v25, 5, v1
    v_lshl_add_u32 v1, v22, 3, v1
    v_add_u32 v3, 49152, v1
    v_and_b32 v32, 31, v2               ; s
    v_bfe_u32 v33, v2, 1, 3             ; swz
    v_xor_b32 v33, v33, v24
    v_lshlrev_b32 v33, 4, v33
    v_lshl_add_u32 v9, v32, 7, v33
    s_lshl_b32 s38, s36, 12
    s_add_u32 s38, s38, {XR}
    v_add_u32 v9, s38, v9
    v_xor_b32 v10, 32, v9
    v_xor_b32 v11, 64, v9
    v_xor_b32 v12, 96, v9
    v_lshlrev_b32 v21, 3, v32           ; s*8
    v_lshlrev_b32 v0, 4, v2
    """)
    assert Z2T == 0
    def wread(a, buf, u, j):
        pos = u % 12
        bb = (1, 3)[pos // 6]; off = (pos % 6)*8192 + j*2048
        a.lg(f"ds_read_b64_tr_b16 {vr(buf,2)}, v{bb} offset:{off}")
        return a.lg(f"ds_read_b64_tr_b16 {vr(buf+2,2)}, v{bb} offset:{off+512}")
    CSR = [80 + 4*k for k in range(7)] + [24 + 4*k for k in range(9)]
    def xst_load(a, tracked=True):
        (a.vm if tracked else a.e)(f"buffer_load_dwordx4 {vr(NEGMU)}, v21, s[20:23], s59 offen" + ("" if tracked else " sc1"))
    def hand_loads(a, k0=0, k1=16, sc=" sc1"):
        if k0 == 0: a.e("s_mov_b32 s45, s57")
        for k in range(k0, k1):
            if k % 2 == 0 and k: a.e(f"s_add_u32 s45, s45, {2*448*8}")
            a.e(f"buffer_load_dwordx4 {vr(CSR[k])}, v63, s[20:23], s45 offen offset:{(k%2)*448*8}{sc}")
    CONSTS = f"""
    v_mul_f32 v{C2}, v{R}, v{R}
    v_mul_f32 v{C1}, {f2u(GK1)}, v{R}
    v_mul_f32 v{C2}, v{C2}, v{R}
    v_mov_b32 v{S1}, 0
    v_mul_f32 v{C2}, {f2u(GK2)}, v{C2}
    v_mov_b32 v{S2}, 0
    v_mov_b32 v7, 0
    v_mov_b32 v8, 0
    v_cvt_pk_bf16_f32 v24, v{NEGMU}, v{NEGMU}
    v_mov_b32 v26, 0
    v_lshlrev_b32 v24, 16, v24
    v_mov_b32 v27, 0
    v_sub_f32 v24, v{NEGMU}, v24
    v_cmp_gt_u32 vcc, 32, v2
    v_cvt_pk_bf16_f32 v24, v{NEGMU}, v24
    v_mov_b32 v30, 0
    v_cndmask_b32 v24, v26, v24, vcc
    v_mov_b32 v31, 0
    v_mov_b32 v25, v24
    """
    rid = {}
    def areads(n):
        c, j = divmod(n, 4)
        a.lg(f"ds_read_b128 {vr(X + 4*n)}, v{9+j} offset:{(c%3)*16384}")
        rid[n] = wread(a, WF[n % 4], c, j)
    a.wait(vm=max(x_id[0], uid[0]))
    a.e("s_barrier")
    if stamp == 1: stamp_mid(a, 0)
    areads(0); areads(1)
    rowstat_loads(a, 2, 80, 32)
    a.e(f"""
    s_cmp_lt_u32 s3, 6
    s_cselect_b32 s28, s12, s16
    s_cselect_b32 s29, s13, s17
    s_cselect_b32 s30, s14, s18
    s_mov_b32 s31, 0x20000
    s_mov_b32 s45, 3456
    s_cselect_b32 s45, 9216, s45
    s_lshl_b32 s39, s3, 7
    s_add_u32 s39, s39, s41
    s_lshl_b32 s47, s34, 7
    s_sub_u32 s48, s39, {4608 + 384}
    s_cmp_lt_u32 s3, 6
    s_cselect_b32 s47, s48, s47
    s_cmp_lt_u32 s3, 3
    s_cselect_b32 s39, s39, s47
    s_cmp_eq_u32 s3, 7
    s_cselect_b32 s30, 0, s30
    s_mul_i32 s38, s32, 36
    s_mul_i32 s38, s38, s45
    s_add_u32 s39, s39, s38
    s_mov_b32 s68, s39
    s_lshl_b32 s38, s45, 3
    v_mul_lo_u32 v26, v28, s45
    v_lshl_add_u32 v26, v29, 4, v26
    v_cmp_gt_u32 vcc, 32, v2
    v_mov_b32 v27, {BIG}
    s_nop 0
    v_cndmask_b32 v27, v27, v26, vcc
    """)
    for i in range(5):
        coop_id = a.vm(f"buffer_load_dwordx4 {vr(92+4*i)}, v{26 if i < 4 else 27}, s[28:31], s39 offen")
        if i < 4: a.e(f"s_add_u32 s39, s39, s38")
    a.e(f"""
    s_cmp_eq_u32 s3, 4
    s_cselect_b32 s38, 0, {BIG}
    v_mov_b32 v4, s38
    """)
    ep_id = a.vm(f"buffer_load_dword v{TAG}, v4, s[24:27], 0 offen sc1")
    issue_x(2); issue8(2)
    a.keys["coop"] = ("vm", coop_id)
    b = Sched()
    b.e(f"""
    s_mul_i32 s57, s33, {16*448*8}
    s_add_u32 s57, s57, {CSP}
    s_mul_i32 s47, s32, {448*8}
    s_add_u32 s47, s47, s57
    s_lshl_b32 s48, s3, 9
    s_add_u32 s47, s47, s48
    v_lshlrev_b32 v40, 6, v29
    v_lshrrev_b32 v41, 4, v2
    v_lshl_add_u32 v40, v41, 3, v40     ; (unit*8 + q)*8
    v_and_b32 v41, 8, v2
    v_cmp_eq_u32 vcc, 0, v41
    v_mov_b32 v41, {BIG}
    s_cmp_eq_u32 s3, 7
    s_cselect_b64 vcc, 0, vcc
    v_cndmask_b32 v42, v41, v40, vcc
    s_mov_b32 s62, 0x00003f80
    s_mov_b32 s63, 0x3f800000
    """)
    rowstat_addr(b, 2, 43, 40)
    a.add_block(b.lines, "x"); b.lines = []
    a.add("gate", None, "c0")
    a.add("w", None, "coop")
    rowstat_compute(b, 80, 36)
    for i in range(5): colsum_add(b, 24, 92 + 4*i, i == 0)
    fold_pairs(b, 24, [8])
    a.add_block(b.lines, "x"); b.lines = []
    a.add("gate")
    a.add("lg", f"ds_read_b32 v{TAG}, v4", "tag")
    a.add("w", None, "tag")
    a.addv(f"v_mov_b32 v37, v{TAG}\nv_mov_b32 v39, v{TAG}\nv_mov_b32 v25, v{TAG}\nv_mov_b32 v29, v{TAG}")
    a.add("vm", f"buffer_store_dwordx4 v[36:39], v43, s[20:23], 0 offen sc1")
    a.add("vm", f"buffer_store_dwordx2 v[24:25], v42, s[20:23], s47 offen sc1")
    a.add("vm", f"buffer_store_dwordx2 v[28:29], v42, s[20:23], s47 offen offset:32 sc1")
    a.addv(f"""
    s_lshl_b32 s49, s37, 8
    s_add_u32 s49, s49, {CSO}
    v_lshrrev_b32 v40, 5, v2
    v_add_u32 v17, s49, v21
    s_mul_i32 s49, s3, {32*SP}
    s_add_u32 s49, s49, {XR}
    v_mul_u32_u24 v19, {SP//8}, v21
    v_lshl_add_u32 v19, v40, 4, v19
    v_add_u32 v19, s49, v19
    v_bfe_u32 v20, v2, 4, 1
    v_mul_u32_u24 v20, {90*1024}, v20
    v_and_b32 v41, 15, v2
    v_lshl_add_u32 v41, v40, 4, v41
    v_lshl_add_u32 v20, v41, 4, v20     ; z1 store
    s_lshl_b32 s49, s36, 10
    v_add_u32 v18, s49, v0
    v_cmp_gt_u32 vcc, {448*8}, v18
    v_mov_b32 v63, {BIG}
    v_lshlrev_b32 v21, 1, v21           ; s*16
    v_cndmask_b32 v63, v63, v18, vcc
    v_add_u32 v18, {CSO}, v18
    """)
    a.addv(f"""
    s_lshl_b32 s47, s32, 3
    s_lshl_b32 s48, s36, 1
    s_add_u32 s47, s47, s48             ; t16
    s_mul_i32 s47, s47, 90
    s_mul_i32 s48, s33, 6
    s_add_u32 s47, s47, s48
    s_add_u32 s47, s47, s37
    s_lshl_b32 s47, s47, 10
    s_add_u32 s50, s47, {U}
    s_add_u32 s51, s50, 2048
    s_add_u32 s52, s50, 4096
    s_lshl_b32 s47, s32, 2
    s_add_u32 s47, s47, s36
    s_lshl_b32 s59, s47, 9
    s_add_u32 s59, s59, {XST}
    s_mul_i32 s48, s47, 36
    s_lshl_b32 s49, s34, 2
    s_add_u32 s48, s48, s49
    s_lshl_b32 s49, s37, 1
    s_add_u32 s48, s48, s49
    s_lshl_b32 s48, s48, 10
    s_add_u32 s53, s48, {Q}
    s_mul_i32 s54, s47, 144
    s_mul_i32 s48, s33, 12
    s_add_u32 s54, s54, s48
    s_add_u32 s54, s54, s49             ; + 2p
    s_lshl_b32 s54, s54, 10             ; z2t soffset (Z2T = 0)
    s_mul_i32 s55, s32, 24
    s_lshl_b32 s48, s33, 1
    s_add_u32 s48, s48, s37
    s_add_u32 s48, s48, s55
    s_lshl_b32 s48, s48, 11
    s_lshl_b32 s49, s36, 9
    s_add_u32 s48, s48, s49
    s_add_u32 s56, s48, {ST}
    s_lshl_b32 s55, s55, 11
    s_add_u32 s55, s55, s49
    s_add_u32 s55, s55, {ST}
    """)
    pend = []; gate_ok = False; HLC = int(os.environ.get('HLC', 4))
    for n in range(36):
        c, j = divmod(n, 4)
        a.wait(lg=rid[n])
        if j == 2:
            for f in pend: f()
            pend = []
            need = [x_id[c+1], uid[c+1]] if c < 8 else [uid[11]]
            if c == 1:
                a.wait(vm=ep_id)
                epoch_share(a, name, 4, TAG, 4, PRM)
            if c == 8: a.flush()
            a.wait(vm=max(need), lg=a.lg_n - 1 if c == 8 else rid[n+1])
            if stamp == 5 and 0 <= (c - TL0) < 8 and (c - TL0) % 2 == 0: stamp_mid(a, (c - TL0) // 2)
            a.e("s_barrier")
            if c == 1:
                a.e(f"v_mov_b32 v4, {PRM}")
                gate_ok = True
            if c == int(os.environ.get("L2C", 99)):
                a.e(f"""
                s_cmp_lt_u32 s3, 6
                s_mov_b32 s45, 3456
                s_cselect_b32 s45, 9216, s45
                s_mul_i32 s38, s45, {8*36}
                s_sub_u32 s39, 0, s38
                s_cmp_lt_u32 s32, 8
                s_cselect_b32 s38, s38, s39
                s_add_u32 s39, s68, s38
                v_min_u32 v40, 35, v2
                v_mul_lo_u32 v40, v40, s45
                """)
                a.vm("buffer_load_dword v41, v40, s[28:31], s39 offen")
            if c == 8:
                assert not a.fill, len(a.fill)
                xst_load(a); a.keys["xst"] = ("vm", a.vm_n - 1)
            if c + 3 < 9: pend.append(lambda c=c: issue_x(c + 3))
            for u in ([c + 3] if c < 6 else range(3*c - 9, 3*c - 6)):
                pend.append(lambda u=u: issue8(u))
        if n + 2 < 36: areads(n + 2)
        a.e(f"{MF32} {vr(ACC[0],16)}, {vr(WF[n % 4])}, {vr(X + 4*n)}, " + ("0" if n == 0 else vr(ACC[0], 16)))
        if pend: pend.pop(0)()
        if n == 33:
            pass
        if gate_ok: a.open_gate()
        if n >= 4: a.open_gate('c0')
        a.pump(28 if n < 12 else 16)
        if n == 34: h0_tail_at = len(a.lines)
    for f in pend: f()
    if stamp in (1, 2): stamp_mid(a, 1 if stamp == 1 else 0)
    a.e(f"""
    s_mul_i32 s40, s36, {16*9216}
    s_add_u32 s40, s40, s41
    s_mul_i32 s41, s36, {16*3456}
    s_lshl_b32 s42, s34, 7
    s_add_u32 s41, s41, s42
    s_lshl_b32 s42, s36, 11
    v_add_u32 v104, {8*9216-1024}, v5
    v_add_u32 v105, {8*3456-1024}, v13
    s_cmp_eq_u32 s37, 0
    s_cbranch_scc0 {name}_p1
    """)
    common = a.snapshot()

    def epilogue(a, P):
        if "nofill" in ABL:
            if P == 2: a.add("vm", f"buffer_store_dwordx2 {vr(T,2)}, v21, s[20:23], s56 offen sc1", "ststore")
            return
        acc = ACC[P % 2]
        kind = "z2" if P < 3 else ("z1" if P < 6 else "q")
        if P == 0 or (P == 1 and a.par == 0):
            a.add("lg", f"ds_read_b64 v[28:29], v17 offset:{P*512}", "cs0")
            a.add("w", None, "cs0")
            a.addv(f"{MF32} {vr(acc,16)}, v[28:31], v[24:27], {vr(acc,16)}\ns_nop 7\ns_nop 3")
        T8 = [T + k for k in range(4)] + [6, 16, 22, 23]
        m = Sched()
        def defer():
            items = list(m.fill); m.fill.clear()
            a.add("call", lambda a_, items=items: a_.mfill.extend(items))
        for gg in range(2):
            A = acc + 8*gg
            if kind == "q":
                for r in range(8): a.addv(f"v_mul_f32 v{A+r}, v{R}, v{A+r}")
            else:
                for r in range(8): a.addv(f"v_mul_f32 v{T8[r]}, v{A+r}, v{A+r}")
                for r in range(8): a.addv(f"v_fma_f32 v{T8[r]}, v{T8[r]}, v{C2}, v{C1}")
                for r in range(8): a.addv(f"v_mul_f32 v{T8[r]}, v{T8[r]}, v{A+r}")
                for r in range(8): a.addv(f"v_exp_f32 v{T8[r]}, v{T8[r]}")
                for r in range(8): a.addv(f"v_add_f32 v{T8[r]}, 1.0, v{T8[r]}")
                for r in range(8): a.addv(f"v_rcp_f32 v{T8[r]}, v{T8[r]}")
                for r in range(8): a.addv(f"v_mul_f32 v{A+r}, v{A+r}, v{T8[r]}")
            for g in (2*gg, 2*gg + 1):
                Ag = acc + 4*g
                pk = PK + 2*g if kind != "z1" else PK + (g & 1)*4 + (g >> 1)*2
                a.addv(f"v_cvt_pk_bf16_f32 v{pk}, v{Ag}, v{Ag+1}")
                a.addv(f"v_cvt_pk_bf16_f32 v{pk+1}, v{Ag+2}, v{Ag+3}")
            if kind == "z2":
                m.add("lg", f"ds_write_b128 v19, {vr(PK + 4*gg)} offset:{P*64 + gg*32}")
                tgt = m if (gg == 0 or STATM == 2) and STATM else a
                for r in range(8):
                    tgt.addv(f"v_add_f32 v{(S1, 7)[r & 1]}, v{(S1, 7)[r & 1]}, v{A+r}")
                    tgt.addv(f"v_fmac_f32 v{(S2, 8)[r & 1]}, v{A+r}, v{A+r}")
            elif kind == "z1" and gg == 1:
                for k in range(2):
                    m.add("vm", f"buffer_store_dwordx4 {vr(PK + k*4)}, v20, s[20:23], s{50 + P - 3} offen offset:{k*512} {ZSC}")
            elif kind == "q":
                m.add("vm", f"buffer_store_dwordx4 {vr(PK + gg*4)}, v0, s[20:23], s53 offen offset:{gg*1024} {ZSC}")
            if P == 2 and gg == 1:
                a.addv(f"""
                v_add_f32 v{S1}, v{S1}, v7
                v_add_f32 v{S2}, v{S2}, v8
                v_mov_b32 v7, v{S1}
                v_mov_b32 v8, v{S2}
                s_nop 1
                v_permlane32_swap_b32 v{S1}, v7
                v_permlane32_swap_b32 v{S2}, v8
                s_nop 1
                v_add_f32 v8, v{S2}, v8
                v_add_f32 v7, v{S1}, v7
                v_mul_f32 v10, v{R}, v8
                v_mul_f32 v8, v{R}, v7
                v_mul_f32 v10, v{R}, v10
                v_mov_b32 v9, v{TAG}
                v_mov_b32 v11, v{TAG}
                """)
                m.add("vm", f"buffer_store_dwordx4 v[8:11], v21, s[20:23], s56 offen sc1")
            defer()
    def issue4(a, u, half, own):
        P, c = divmod(u, 9)
        if half == 0:
            a.e(f"s_add_u32 m0, s42, {RING + (u % 12)*8192}")
            a.e(f"s_add_u32 s46, s40, {(c*64*9216 + pcol(P)) & 0xffffffff}" if P < 6 else f"s_add_u32 s46, s41, {c*64*3456}")
        v = (5, 104)[half] if P < 6 else (13, 105)[half]
        own[u] = a.vm(f"buffer_load_dwordx4 v{v}, s[{12 if P < 6 else 16}:{15 if P < 6 else 19}], s46 offen" + (" offset:1024" if half else "") + " lds")
    AH = int(os.environ.get("AH", 3)); W8 = WF + [96, 100]; NW = 6
    PRIO = int(os.environ.get("PRIO", 1))
    STS = (8, 0)

    class Path:
        def __init__(s, p):
            s.a = Sched(); s.a.uid = 100*(p + 1); s.a.restore(common); s.p = p; s.a.par = p
            s.own = dict(uid); s.hooks = {}; s.pre = {}; s.ahead = None
        def bar(s, H, t, lg=None):
            a = s.a
            if (H, t) in s.pre: s.pre[(H, t)](a)
            k = H // 2 + 1
            if H % 2 == 1 and t < 2: us = range(9*k + 3*t + 3, 9*k + 3*t + 6)
            elif H % 2 == 0 and t == 1: us = range(9*k, 9*k + 3)
            else: us = []
            ids = [s.own[u] for u in us if u in s.own]
            a.wait(vm=max(ids) if ids else None, lg=lg)
            if stamp == 4 and 0 <= 3*H + t - TL0 < 4: stamp_mid(a, 3*H + t - TL0)
            a.e("s_barrier")
            if (H, t) in s.hooks: s.hooks[(H, t)](a)
        def preread(s, P):
            s.ahead = {n: wread(s.a, W8[n], 9*P + n // 4, n % 4) for n in range(AH)}
        def M(s, H, P, N):
            a = s.a; acc = ACC[P % 2]
            if P + 1 >= N: todo = {}
            elif s.p == 0: todo = {0: [(u, h) for u in range(9*P + 9, 9*P + 12) for h in (0, 1)]}
            else: todo = {12*t - AH + 1: [(u, h) for u in range(9*P + 9 + 3*t, 9*P + 12 + 3*t) for h in (0, 1)] for t in (1, 2)}
            q = []
            if PRIO: a.e("s_setprio 1")
            if s.ahead is None: s.preread(P)
            br = dict(s.ahead); s.ahead = None
            for i in range(36):
                a.wait(lg=br[i])
                n = i + AH
                mf = f"{MF32} {vr(acc,16)}, {vr(W8[i % NW])}, {vr(X + 4*i)}, " + ("0" if i == 0 else vr(acc, 16))
                if n in (12, 24):
                    a.e(mf); mf = ""
                    s.bar(H, n // 12 - 1, br[n-1] if s.p == 1 else None)
                if n < 36: br[n] = wread(a, W8[n % NW], 9*P + n // 4, n % 4)
                a.e(mf)
                q += todo.get(i, [])
                if q and (i % (5 if s.p == 0 else 2) == (1 if s.p == 0 else (AH + 1) % 2)): issue4(a, *q.pop(0), s.own)
                elif i % 2 == 0 and i >= 2: a.mpump(2)
                if i == 30 and H > 1: cid = a.lg(f"ds_read_b64 v[28:29], v17 offset:{P*512}")
            assert not q and not a.mfill
            if H > 1:
                a.wait(lg=cid)
                a.e(f"{MF32} {vr(acc,16)}, v[28:31], v[24:27], {vr(acc,16)}")
            if PRIO: a.e("s_setprio 0")
            s.bar(H, 2)
        def V(s, H, nextP, t0=0):
            a = s.a
            tot = a.fill_cost() + (8 if nextP else 0)
            for t in range(t0, 3):
                a.pump(math.ceil(tot / (3 - t0)) if t < 2 else 1 << 30)
                if t == 2 and nextP: s.preread(nextP)
                s.bar(H, t)

    lt = name + "_ztail"
    for p in (0, 1):
        path = Path(p); b = path.a
        def step(k, N):
            path.M(2*k - 1 + p, k, N)
            if 2*k + p <= 2*(N - 1):
                epilogue(b, k - 1)
                path.V(2*k + p, k + 1 if k + 1 < N else None)
        def xchk(a):
            a.wait_key("xst")
            tags_retry(a, name, [NEGMU + 1, NEGMU + 3], TAG, 61, lambda a: xst_load(a, False))
        if p == 1:
            b.label(f"{name}_p1")
            hand_loads(b, 0, 6, sc="")
            b.e("s_waitcnt vmcnt(10)"); b.vm_done = uid[14]
            path.bar(1, 0)
            hand_loads(b, 6, 16, sc="")
            b.e("s_waitcnt vmcnt(16)"); b.vm_done = b.vm_n - 1
            path.bar(1, 1)
            b.e("s_waitcnt vmcnt(0)")
            xchk(b)
            tags_retry(b, name, [r + o for r in CSR for o in (1, 3)], TAG, 61, hand_loads, 63)
            for st_ in (8, 4, 2, 1):
                for k in range(st_):
                    for o in (0, 2): b.e(f"v_add_f32 v{CSR[k]+o}, v{CSR[k]+o}, v{CSR[k+st_]+o}")
            b.e(f"""
            v_cvt_pk_bf16_f32 v84, v80, v80
            v_cvt_pk_bf16_f32 v86, v82, v82
            v_lshlrev_b32 v85, 16, v84
            v_lshlrev_b32 v87, 16, v86
            v_sub_f32 v80, v80, v85
            v_sub_f32 v82, v82, v87
            v_cvt_pk_bf16_f32 v85, v80, v80
            v_cvt_pk_bf16_f32 v87, v82, v82
            v_add_u32 v104, {8*9216-1024}, v5
            v_add_u32 v105, {8*3456-1024}, v13
            """)
            b.lg("ds_write_b128 v18, v[84:87]")
            wid_ = b.lg_n - 1
            b.e(CONSTS)
            path.preread(1)
            path.bar(1, 2, wid_)
        else:
            b.add("call", xchk); b.addv(CONSTS)
        for k in range(1, 5): step(k, 7)
        lq = f"{name}_noq{p}"
        b.e(f"s_cmp_eq_u32 s18, 0\ns_cbranch_scc1 {lq}")
        snap = b.snapshot(); own_s = dict(path.own); ah_s = path.ahead
        for N in (7, 6):
            if N == 6:
                b.label(lq); b.restore(snap); path.own = dict(own_s); path.ahead = ah_s
            HL = 2*(N - 1)
            path.pre.clear(); path.hooks.clear()
            if p == 0:
                base = RING + (3 if N == 7 else 6)*8192
                path.hooks[(HL, 0)] = lambda a, N=N, base=base: repack_loads(a, name, N, base)
            for k in range(5, N): step(k, N)
            if stamp == 1: stamp_mid(b, 2)
            b.e("s_nop 7")
            stat_issue(b)
            b.mpump(1000)
            if p == 1: epilogue(b, N - 2); b.flush(); b.mpump(1000)
            epilogue(b, N - 1); b.flush(); b.mpump(1000)
            b.wait_key("stl")
            if not (p == 1 and N == 6): b.e(f"s_branch {lt}")
        a.lines += b.lines
        if getattr(b, 'forced', 0): print('forced flushes', p, b.forced)
    a.label(lt)
    if stamp == 1: stamp_mid(a, 3)
    ZT = 184
    tags_retry(a, name, [113 + 2*k for k in range(24)], TAG, 40, lambda a: stat_issue(a, False))
    a.e(f"""
    v_lshrrev_b32 v25, 8, v0            ; kg
    v_bfe_u32 v26, v0, 6, 2             ; r
    v_bfe_u32 v27, v0, 4, 2             ; c
    v_lshl_add_u32 v26, v25, 3, v26
    v_mul_u32_u24 v26, {SP}, v26
    v_and_b32 v28, 1, v27
    v_lshrrev_b32 v27, 1, v27
    v_lshl_add_u32 v26, v27, 3, v26
    v_lshl_add_u32 v26, v28, 4, v26
    s_mul_i32 s38, s3, {32*SP}
    s_add_u32 s38, s38, {XR}
    v_add_u32 v26, s38, v26
    s_lshl_b32 s39, s3, 8
    s_add_u32 s39, s39, {PRM}
    v_lshrrev_b32 v28, 2, v21
    v_add_u32 v28, s39, v28
    v_lshl_add_u32 v29, v25, 5, s39
    s_waitcnt lgkmcnt(0)
    """)
    for b_ in range(6):
        a.e(f"ds_read_b64_tr_b16 {vr(ZT+4*b_,2)}, v26 offset:{b_*32}")
        a.e(f"ds_read_b64_tr_b16 {vr(ZT+4*b_+2,2)}, v26 offset:{b_*32 + 4*SP}")
    L = 112
    for st_ in (6, 3):
        for k in range(st_):
            a.e(f"v_add_f32 v{L+4*k}, v{L+4*k}, v{L+4*(st_+k)}\nv_add_f32 v{L+4*k+2}, v{L+4*k+2}, v{L+4*(st_+k)+2}")
    a.e(f"""
    v_add_f32 v{L}, v{L}, v{L+4}
    v_add_f32 v{L+1}, v{L+2}, v{L+6}
    v_add_f32 v{L}, v{L}, v{L+8}
    v_add_f32 v{L+1}, v{L+1}, v{L+10}
    v_mov_b32 v{L+2}, v{L}
    v_mov_b32 v{L+3}, v{L+1}
    s_nop 1
    v_permlane32_swap_b32 v{L}, v{L+2}
    v_permlane32_swap_b32 v{L+1}, v{L+3}
    s_nop 1
    v_add_f32 v{L}, v{L}, v{L+2}
    v_add_f32 v{L+1}, v{L+1}, v{L+3}
    v_mul_f32 v{L}, {f2u(1/2304.)}, v{L}
    v_mul_f32 v{L+1}, {f2u(1/2304.)}, v{L+1}
    v_fma_f32 v{L+1}, -v{L}, v{L}, v{L+1}
    v_max_f32 v{L+1}, 0, v{L+1}
    v_add_f32 v{L+1}, {f2u(1e-5)}, v{L+1}
    v_rsq_f32 v{L+1}, v{L+1}
    s_nop 0
    v_mul_f32 v{L+2}, v{R}, v{L+1}
    v_mul_f32 v{L+3}, -v{L}, v{L+1}
    ds_write_b32 v28, v{L+2}
    ds_write_b32 v28, v{L+3} offset:128
    s_waitcnt lgkmcnt(0)
    ds_read_b128 {vr(L+8)}, v29
    ds_read_b128 {vr(L+12)}, v29 offset:16
    ds_read_b128 {vr(L+16)}, v29 offset:128
    ds_read_b128 {vr(L+20)}, v29 offset:144
    s_waitcnt lgkmcnt(0)
    """)
    for b_ in range(6):
        for k in range(4):
            z = ZT + 4*b_ + k; t = 32 + 2*(k & 1)
            a.e(f"v_lshlrev_b32 v{t}, 16, v{z}")
            a.e(f"v_and_b32 v{t+1}, 0xffff0000, v{z}")
            a.e(f"v_fma_f32 v{t}, v{t}, v{L+8+2*k}, v{L+16+2*k}")
            a.e(f"v_fma_f32 v{t+1}, v{t+1}, v{L+9+2*k}, v{L+17+2*k}")
            a.e(f"v_cvt_pk_bf16_f32 v{z}, v{t}, v{t+1}")
        if b_ % 2 == 0 and b_ > 0:
            a.e("s_add_u32 s54, s54, 4096")
        a.e(f"buffer_store_dwordx4 {vr(ZT+4*b_)}, v0, s[20:23], s54 offen offset:{(b_&1)*1024} {Z2SC}")
    repack_stores(a, name)
    if stamp == 3:
        a.e(f"""
        s_add_u32 s84, s20, {STAMP + 8*65536}
        s_addc_u32 s85, s21, 0
        s_mov_b32 s86, 0x200000
        s_mov_b32 s87, 0x20000
        s_lshl_b32 s88, s2, 3
        s_add_u32 s88, s88, s3
        s_lshl_b32 s88, s88, 9
        v_writelane_b32 v18, s92, 0
        v_lshlrev_b32 v1, 2, v2
        buffer_store_dword v18, v1, s[84:87], s88 offen
        buffer_store_dword v61, v1, s[84:87], s88 offen offset:256
        """)

def stat_issue(a, tracked=True):
    f = a.vm if tracked else (lambda t, k=None: a.e(t))
    a.e(f"""
    v_lshrrev_b32 v63, 9, v0            ; h
    v_mul_u32_u24 v63, {12*2048}, v63
    v_add_u32 v63, v63, v21
    s_mov_b32 s45, s55
    """)
    for k in range(12):
        if k % 2 == 0 and k: a.e("s_add_u32 s45, s45, 4096")
        f(f"buffer_load_dwordx4 {vr(112+4*k)}, v63, s[20:23], s45 offen offset:{(k%2)*2048}" + ("" if tracked else " sc1"), "stl")

def touch(a, vt=22):
    a.e(f"""
    s_load_dwordx2 s[62:63], s[0:1], {KA_WSP}
    s_lshl_b32 s38, s32, 3
    s_add_u32 s38, s38, s33
    s_lshl_b32 s38, s38, 3
    s_add_u32 s38, s38, s3              ; 0..511
    s_sub_u32 s39, s38, 324
    s_cmp_lt_u32 s38, 324
    s_cselect_b32 s28, s70, s72
    s_cselect_b32 s29, s71, s73
    s_mov_b32 s30, {D*D*2}
    s_cselect_b32 s30, {F2*D*2}, s30
    s_cselect_b32 s39, s38, s39
    s_mov_b32 s31, 0x20000
    s_lshl_b32 s39, s39, 13
    v_lshlrev_b32 v{vt}, 3, v0
    v_add_u32 v{vt+1}, s39, v{vt}
    """)
    a.vm(f"buffer_load_dword v{vt+1}, v{vt+1}, s[28:31], 0 offen")
    a.e(f"""
    s_waitcnt lgkmcnt(0)
    s_mov_b32 s28, s62
    s_mov_b32 s29, s63
    s_mov_b32 s30, {S*S*2}
    s_lshl_b32 s39, s38, 14
    """)
    a.lg_done = a.lg_n - 1
    a.vm(f"buffer_load_dword v13, v{vt}, s[28:31], s39 offen")
    a.e("s_add_u32 s39, s39, 8192")
    a.vm(f"buffer_load_dword v15, v{vt}, s[28:31], s39 offen")

def repack_loads(a, name, tag, base):
    lb = f"{name}_rp{tag}"
    a.e(f"""
    s_cmp_ge_u32 s60, 720
    s_cbranch_scc1 {lb}
    s_lshr_b32 s61, s60, 3              ; step
    s_and_b32 s62, s60, 7               ; d tile
    s_cmp_lt_u32 s61, 72
    s_cselect_b32 s28, s70, s72
    s_cselect_b32 s29, s71, s73
    s_mov_b32 s30, {D*D*2}
    s_cselect_b32 s30, {F2*D*2}, s30
    s_mov_b32 s31, 0x20000
    s_mov_b32 s63, {8*1152}
    s_cselect_b32 s63, {16*1152}, s63           ; j2 stride
    s_mov_b32 s64, {2*1152}                     ; j1 stride
    s_mov_b32 s65, {18*1152}
    s_cselect_b32 s65, {8*1152}, s65            ; k1 stride
    s_mov_b32 s66, {4*1152}                     ; k0 stride
    s_mul_i32 s67, s61, {32*1152}
    s_sub_u32 s68, s61, 72
    s_mul_i32 s68, s68, {36*1152}
    s_cmp_lt_u32 s61, 72
    s_cselect_b32 s67, s67, s68
    s_sub_u32 s68, s61, 88
    s_mul_i32 s68, s68, {288*1152}
    s_add_u32 s68, s68, {16*1152}
    s_cmp_ge_u32 s61, 88
    s_cselect_b32 s67, s68, s67
    s_cselect_b32 s63, {36*1152}, s63
    s_cselect_b32 s64, {18*1152}, s64
    s_cselect_b32 s65, {144*1152}, s65
    s_cselect_b32 s66, {72*1152}, s66
    s_mul_i32 s68, s62, 144
    s_add_u32 s67, s67, s68
    v_lshrrev_b32 v180, 9, v0
    v_mul_lo_u32 v180, v180, s64
    v_bfe_u32 v181, v0, 8, 1
    v_mul_u32_u24 v181, 1152, v181
    v_add_u32 v180, v180, v181
    v_and_b32 v181, 0xf0, v0
    v_add_u32 v180, v180, v181
    v_mov_b32 v182, {BIG}
    v_cmp_gt_u32 vcc, 144, v181
    s_lshl_b32 s48, s3, 13
    s_add_u32 s48, s48, {base}
    s_nop 0
    v_cndmask_b32 v180, v182, v180, vcc
    """)
    for i in range(8):
        j2, k1, k0 = i >> 2, (i >> 1) & 1, i & 1
        a.e(f"s_add_u32 m0, s48, {i*1024}")
        a.e(f"s_mov_b32 s68, s67")
        if j2: a.e("s_add_u32 s68, s68, s63")
        if k1: a.e("s_add_u32 s68, s68, s65")
        if k0: a.e("s_add_u32 s68, s68, s66")
        a.e(f"buffer_load_dwordx4 v180, s[28:31], s68 offen lds")
    a.label(lb)

def repack_stores(a, name):
    lb = f"{name}_rps"
    a.e(f"""
    s_cmp_ge_u32 s60, 720
    s_cbranch_scc1 {lb}
    v_lshrrev_b32 v181, 6, v0
    v_lshlrev_b32 v181, 8, v181
    v_bfe_u32 v182, v0, 4, 2
    v_lshl_add_u32 v181, v182, 3, v181
    v_add_u32 v181, s48, v181
    s_and_b32 s63, s62, 1
    s_lshl_b32 s64, s63, 4
    v_add_u32 v182, s64, v181
    s_lshl_b32 s64, s63, 7
    s_sub_u32 s65, 128, s64
    v_add_u32 v181, s65, v181
    """)
    for i in range(4):
        a.e(f"ds_read_b64_tr_b16 {vr(160+4*i,2)}, v182 offset:{32*i}")
        a.e(f"ds_read_b64_tr_b16 {vr(162+4*i,2)}, v182 offset:{32*i + 4096}")
    a.e(f"""
    ds_read_b64_tr_b16 v[176:177], v181
    ds_read_b64_tr_b16 v[178:179], v181 offset:4096
    s_lshr_b32 s68, s62, 1
    s_mul_i32 s68, s68, 90
    s_add_u32 s68, s68, s61
    s_mul_i32 s68, s68, {9*1024}
    s_add_u32 s68, s68, {WP}
    s_add_u32 s65, s68, s64
    s_add_u32 s65, s65, 4096
    s_mul_i32 s63, s63, {5*1024}
    s_add_u32 s68, s68, s63
    v_and_b32 v182, 0x80, v0
    v_cmp_eq_u32 vcc, 0, v182
    v_mov_b32 v182, {BIG}
    s_nop 0
    v_cndmask_b32 v181, v182, v0, vcc
    s_waitcnt lgkmcnt(0)
    """)
    for i in range(4):
        a.e(f"buffer_store_dwordx4 v[{160+4*i}:{163+4*i}], v0, s[20:23], s68 offen offset:{1024*i} sc1")
    a.e(f"buffer_store_dwordx4 v[176:179], v181, s[20:23], s65 offen sc1")
    a.label(lb)

def gen_k1(name="k1_kernel", stamp=False, attn=True):
    a = Sched()
    a.e(f"""
    s_cmp_ge_u32 s2, 256
    s_cbranch_scc1 {name}_end
    """)
    if stamp: stamp_begin(a)
    a.e(f"""
    s_load_dwordx4 s[4:7], s[0:1], {KA_X}         ; x, wqkv
    s_load_dwordx2 s[74:75], s[0:1], {KA_WPHI}
    s_load_dwordx2 s[72:73], s[0:1], {KA_WO}
    s_load_dwordx2 s[28:29], s[0:1], {KA_WIN}
    s_load_dwordx2 s[70:71], s[0:1], {KA_WOUT}
    s_load_dwordx4 s[64:67], s[0:1], {KA_DBG}
    v_lshrrev_b32 v1, 6, v0
    v_and_b32 v2, 63, v0
    v_readfirstlane_b32 s3, v1
    s_and_b32 s30, s2, 7
    s_lshr_b32 s31, s2, 3               ; l
    s_and_b32 s35, s30, 1
    s_lshr_b32 s30, s30, 1              ; j
    s_waitcnt lgkmcnt(0)
    """)
    srd(a, 24, 64, 65, 256)
    epoch_publish(a, name)
    srd(a, 8, 4, 5, S*D*2)
    srd(a, 16, 6, 7, D*1728*2)
    srd(a, 12, 28, 29, D*4608*2)
    srd(a, 20, 66, 67, WS_USED)
    NT = int(os.environ.get("NT", 0))
    if NT:
        a.e(f"""
        s_mul_i32 s38, s2, 5
        s_add_u32 s38, s38, s3
        s_sub_u32 s39, s38, 288
        s_sub_u32 s40, s38, {288+243}
        s_cmp_lt_u32 s38, {288+243}
        s_cselect_b32 s76, s16, s12
        s_cselect_b32 s77, s17, s13
        s_cselect_b32 s78, s18, s14
        s_cselect_b32 s39, s39, s40
        s_cmp_lt_u32 s38, 288
        s_cselect_b32 s76, s8, s76
        s_cselect_b32 s77, s9, s77
        s_cselect_b32 s78, s10, s78
        s_cselect_b32 s39, s38, s39
        s_mov_b32 s79, 0x20000
        s_cmp_ge_u32 s3, 5
        s_cselect_b32 s78, 0, s78
        s_lshl_b32 s39, s39, 13
        v_lshlrev_b32 v63, 7, v2
        v_add_u32 v63, s39, v63
        """)
        a.vm("buffer_load_dword v63, v63, s[76:79], 0 offen")
    a.e(f"""
    s_cmp_ge_u32 s31, 24
    s_cbranch_scc1 {name}_attn
    s_lshl_b32 s32, s35, 3
    s_and_b32 s33, s31, 7
    s_add_u32 s32, s32, s33             ; rt
    s_mul_i32 s33, s30, 3
    s_lshr_b32 s34, s31, 3
    s_add_u32 s33, s33, s34             ; zg
    s_lshr_b32 s34, s33, 2
    s_sub_u32 s34, s33, s34             ; qi
    s_and_b32 s36, s33, 3
    s_cmp_eq_u32 s36, 3
    s_cselect_b32 s18, 0, s18
    s_cselect_b32 s34, 0, s34
    s_mul_i32 s60, s33, 16
    s_add_u32 s60, s60, s32
    s_lshl_b32 s60, s60, 2
    s_add_u32 s60, s60, s3
    s_cmp_ge_u32 s3, 4
    s_cselect_b32 s60, 720, s60
    """)
    gen_zpath(a, name, stamp)
    if os.environ.get("ENDINV"): a.e("s_waitcnt vmcnt(0)\n" + os.environ["ENDINV"])
    if stamp: stamp_end(a, 1, "s3", 4)
    a.e("s_endpgm")
    a.label(f"{name}_attn")
    from k1a import gen_attn, A_LDS
    b = Sched(); b.uid = 1000; b.vm_n = 1 if NT else 0
    gen_attn(b, name, stamp, attn)
    a.lines += b.lines
    lds = max(Z_LDS, A_LDS)
    a.label(f"{name}_end")
    a.e("s_endpgm")
    launch = f"; @launch kernel={name} grid=(256,1,1) block=(512,1,1) lds={lds}\n"
    return launch, kernel_begin(name) + a.text(), kernel_desc(name, 256, 102, 256)
```

```python
import os
from asmlib import *
from sched import Sched
from layout import *
from k3 import srd
from k1common import *
from k1a import softmax18
from k2 import tile_ids

SLOT = 34 * 1024
KVI = 4 * SLOT
OSTG = KVI + 2048
OW = 2560
OIT = int(os.environ.get('OIT', 5))
MF16 = "v_mfma_f32_16x16x32_bf16"

def flag_wait(a, name, vflag, vaddr):
    lp = a.newlabel(name + "_fl"); ok = a.newlabel(name + "_fk")
    a.e("s_mov_b32 s58, 200000")
    a.label(lp)
    a.e(f"""
    v_cmp_ne_u32 vcc, s69, v{vflag}
    s_sub_u32 s58, s58, 1
    s_cmp_eq_u32 s58, 0
    s_cbranch_scc1 {ok}
    s_cmp_eq_u64 vcc, 0
    s_cbranch_scc1 {ok}
    s_sleep {int(os.environ.get('SLP', 6))}
    buffer_load_dword v{vflag}, v{vaddr}, s[20:23], 0 offen sc1
    s_waitcnt vmcnt(0)
    s_branch {lp}
    """)
    a.label(ok)

def flag_store(a, name, base, wave=0):
    lb = a.newlabel(name + "_fs")
    a.e(f"""
    s_cmp_eq_u32 s3, {wave}
    s_cbranch_scc0 {lb}
    s_lshl_b32 s58, s2, 7
    s_add_u32 s58, s58, {base}
    v_mov_b32 v12, s69
    v_mov_b32 v13, s69
    v_mov_b32 v14, s69
    v_mov_b32 v15, s69
    s_mov_b64 exec, 0xff
    buffer_store_dwordx4 v[12:15], v3, s[20:23], s58 offen sc1
    s_mov_b64 exec, -1
    """)
    a.label(lb)

def side_stream(a):
    KV = 104; AFR = 104; QR = [120, 128]; P = 136; PT = 232; PH = 120; KA = 232; T = 248; OUT = 152
    def raw(t):
        for l in t.strip().split("\n"): a.add("raw", l.strip())
    def mf(t): a.add("t", t)
    a.addv(f"""
    s_and_b32 s50, s2, 7
    s_lshr_b32 s51, s2, 3               ; head
    s_mul_i32 s52, s51, 3840
    s_add_u32 s52, s52, {KVP}
    v_lshlrev_b32 v252, 4, v0
    v_cmp_gt_u32 vcc, 3840, v252
    v_mov_b32 v253, {BIG}
    s_lshr_b32 s53, s51, 2
    s_mul_i32 s53, s53, 13
    v_cndmask_b32 v253, v253, v252, vcc
    """)
    for k in range(8):
        a.addv(f"buffer_load_dwordx4 {vr(KV+4*k)}, v253, s[20:23], s52 offen")
        if k < 7: a.addv(f"s_add_u32 s52, s52, {32*3840}")
    a.addv(f"""
    s_and_b32 s54, s51, 3               ; i
    s_lshl_b32 s55, s54, 1
    s_add_u32 s55, s55, s53
    s_lshl_b32 s55, s55, 10
    s_add_u32 s55, s55, {AF}
    s_add_u32 s56, s53, s54
    s_lshl_b32 s56, s56, 10
    s_add_u32 s56, s56, {AF + 8192}
    s_lshl_b32 s57, s50, 3
    s_lshl_b32 s58, s3, 1
    s_add_u32 s57, s57, s58
    s_mul_i32 s58, s57, 36
    s_lshr_b32 s59, s51, 3
    s_add_u32 s59, s59, s51
    s_add_u32 s58, s58, s59
    s_lshl_b32 s58, s58, 10
    s_add_u32 s58, s58, {Q}
    v_lshrrev_b32 v252, 1, v252
    v_add_u32 v252, {KVI}, v252
    s_mov_b32 s45, {f2u(LOG2E)}
    """)
    a.add("gate"); a.add("gate")
    raw("s_waitcnt vmcnt(0)")
    for k in range(1, 8):
        for r in range(4): a.addv(f"v_add_f32 v{KV+r}, v{KV+r}, v{KV+4*k+r}")
    a.addv(f"v_cvt_pk_bf16_f32 v{T}, v{KV}, v{KV+1}\nv_cvt_pk_bf16_f32 v{T+1}, v{KV+2}, v{KV+3}\nds_write_b64 v252, v[{T}:{T+1}]")
    for k in range(2):
        a.addv(f"buffer_load_dwordx4 {vr(AFR+4*k)}, v3, s[20:23], s55 offen offset:{k*1024}")
        a.addv(f"buffer_load_dwordx4 {vr(AFR+8+4*k)}, v3, s[20:23], s56 offen offset:{k*1024}")
        a.addv(f"buffer_load_dwordx4 {vr(QR[0]+4*k)}, v3, s[20:23], s58 offen offset:{k*1024}")
    a.addv(f"s_add_u32 s58, s58, {36*1024}")
    for k in range(2): a.addv(f"buffer_load_dwordx4 {vr(QR[1]+4*k)}, v3, s[20:23], s58 offen offset:{k*1024}")
    a.addv(f"""
    v_and_b32 v248, 31, v2
    s_and_b32 s52, s51, 1
    s_lshl_b32 s52, s52, 1
    v_add_u32 v249, s52, v248
    v_min_u32 v249, 23, v249
    v_and_b32 v250, 27, v248
    v_cmp_eq_u32 vcc, 18, v250
    v_mov_b32 v251, 20
    v_lshrrev_b32 v253, 5, v2
    v_cndmask_b32 v249, v249, v251, vcc
    v_mul_u32_u24 v250, 24, v253
    v_add_u32 v249, v249, v250
    v_mul_u32_u24 v249, 40, v249
    v_add_u32 v252, {KVI}, v249
    v_bfe_u32 v254, v2, 4, 1
    v_mul_u32_u24 v254, {90*1024}, v254
    v_and_b32 v255, 15, v2
    v_lshl_add_u32 v254, v255, 4, v254
    v_lshl_add_u32 v255, v253, 8, v254
    v_cmp_gt_u32 vcc, 32, v2
    v_mov_b32 v248, {BIG}
    s_mul_i32 s57, s57, {2*90*1024}
    v_cndmask_b32 v254, v248, v254, vcc
    s_add_u32 s57, s57, {U}
    s_lshr_b32 s52, s51, 1
    s_lshl_b32 s52, s52, 10
    s_and_b32 s53, s51, 1
    s_lshl_b32 s53, s53, 9
    s_add_u32 s52, s52, s53
    s_add_u32 s52, s52, {72*1024}
    s_add_u32 s52, s52, s57
    s_lshr_b32 s53, s51, 4
    s_lshl_b32 s53, s53, 10
    s_bfe_u32 s55, s51, 0x20002
    s_lshl_b32 s55, s55, 8
    s_add_u32 s53, s53, s55
    s_lshl_b32 s55, s54, 2
    s_add_u32 s53, s53, s55
    s_add_u32 s53, s53, {88*1024}
    s_add_u32 s53, s53, s57
    """)
    a.add("gate")
    raw("s_waitcnt vmcnt(0)")
    for b in range(2):
        for t in range(2):
            mf(f"{MF32} {vr(P,16)}, {vr(AFR+4*t)}, {vr(QR[b]+4*t)}, " + ("0" if t == 0 else vr(P,16)))
            mf(f"{MF32} {vr(PT,16)}, {vr(AFR+8+4*t)}, {vr(QR[b]+4*t)}, " + ("0" if t == 0 else vr(PT,16)))
        a.add("gate", None, "half")
        for i in range(1, 4):
            a.addv(f"s_cmp_eq_u32 s54, {i}\ns_cselect_b64 vcc, -1, 0")
            a.addv(f"v_cndmask_b32 v{PT}, v{PT}, v{PT+2*i}, vcc\nv_cndmask_b32 v{PT+1}, v{PT+1}, v{PT+2*i+1}, vcc")
        a.addv(f"v_mov_b32 v{OUT+6}, v{PT}\nv_mov_b32 v{OUT+7}, v{PT+1}")
        a.addv(f"""
        ds_read_b64 v[{KA}:{KA+1}], v252
        ds_read_b64 v[{KA+2}:{KA+3}], v252 offset:8
        ds_read_b64 v[{KA+4}:{KA+5}], v252 offset:16
        ds_read_b64 v[{KA+6}:{KA+7}], v252 offset:24
        ds_read_b32 v{KA+8}, v252 offset:32
        v_mov_b32 v{KA+9}, 0
        v_mov_b32 v{KA+10}, 0
        v_mov_b32 v{KA+11}, 0
        """)
        ph = PH if b == 1 else 0
        c = Asm()
        dst = 120 if b == 0 else 120
        softmax18(c, [P + k for k in range(16)] + [OUT + 6, OUT + 7], T, 0)
        PHR = [120 + k for k in range(8)] + [244]
        for l in c.lines:
            l = l.strip()
            if l.startswith("v_cvt_pk"):
                k = int(l.split()[1][1:-1]); l = l.replace(f"v{k},", f"v{PHR[k]},", 1)
            a.addv(l)
        a.addv("v_mov_b32 v245, 0\nv_mov_b32 v246, 0\nv_mov_b32 v247, 0")
        a.add("gate", None, "half")
        for st, r in enumerate((120, 124, 244)):
            mf(f"{MF32} {vr(P,16)}, {vr(KA+4*st)}, {vr(r)}, " + ("0" if st == 0 else vr(P,16)))
        a.add("gate", None, "half")
        a.addv(f"v_add_f32 v{T}, {f2u(1e-6)}, v{P+10}\nv_rcp_f32 v{T}, v{T}\ns_nop 0")
        for k in range(10): a.addv(f"v_mul_f32 v{P+k}, v{P+k}, v{T}")
        for k in range(5): a.addv(f"v_cvt_pk_bf16_f32 v{OUT+k}, v{P+2*k}, v{P+2*k+1}")
        a.addv(f"buffer_store_dwordx4 {vr(OUT)}, v255, s[20:23], s52 offen sc1\nbuffer_store_dword v{OUT+4}, v254, s[20:23], s53 offen sc1")
        if b == 0: a.addv(f"s_add_u32 s52, s52, {2*90*1024}\ns_add_u32 s53, s53, {2*90*1024}")

def gen_loader(name, hi, stamp):
    a = Sched(); a.uid = 500 + 100*hi
    LM, LD = 3, 4
    lead = "L" in os.environ.get("ROT", "L")
    fb0 = 5 if hi else 0; fbx = 8 if hi else 4; nrun = 3 if hi else 4
    sid = {}
    def issue(s):
        base = (s % 4) * SLOT
        if lead:
            a.e(f"s_cmp_eq_u32 s62, {s & LM}\ns_cselect_b32 s63, {(s + LD) & 31}, {s}")
        else:
            a.e(f"s_mov_b32 s63, {s}")
        a.e(f"""
        s_lshl_b32 s64, s63, 7
        s_add_u32 s64, s64, s36
        s_add_u32 m0, s39, {base}
        s_mul_i32 s63, s63, {2*144*1024}
        """)
        for i in range(4): a.vm(f"buffer_load_dwordx4 v{4+i}, s[12:15], s64 offen offset:{i*1024} lds")
        a.e(f"s_add_u32 m0, s40, {base}\ns_add_u32 s64, s63, s37")
        for i in range(nrun - (1 if ('even' in os.environ.get('ABL2', '') and not hi) else 0)): a.vm(f"buffer_load_dwordx4 v3, s[16:19], s64 offen offset:{i*1024} lds")
        a.e(f"s_add_u32 m0, s41, {base}\ns_add_u32 s64, s63, s38")
        sid[s] = a.vm(f"buffer_load_dwordx4 v3, s[16:19], s64 offen lds")
    a.e(f"""
    s_add_u32 s62, s32, s33
    s_and_b32 s62, s62, {LM}
    s_and_b32 s42, s3, 1
    s_mul_i32 s43, s33, 9
    s_and_b32 s44, s33, 1
    s_add_u32 s45, s43, s44
    s_mul_i32 s46, s42, 144
    s_add_u32 s37, s45, s46
    s_add_u32 s37, s37, {fb0}
    s_lshl_b32 s37, s37, 10
    """)
    if hi:
        a.e("""
        s_cmp_eq_u32 s44, 0
        s_cselect_b32 s47, 8, 0
        s_add_u32 s38, s43, s47             ; g8
        s_add_u32 s38, s38, s46
        s_lshl_b32 s38, s38, 10
        """)
    else:
        a.e("s_add_u32 s38, s37, 4096")
    a.e(f"""
    s_mul_i32 s40, s42, {9*1024}
    s_add_u32 s41, s40, {fbx*1024}
    s_add_u32 s40, s40, {fb0*1024}
    s_lshl_b32 s39, s3, 12
    s_add_u32 s39, s39, {18*1024}
    """)
    for s in range(3): issue(s)
    for s in range(32):
        need = sid[s]
        if s == 31: need = a.keys["fo"][1]
        a.wait(vm=need)
        a.e("s_barrier")
        if s == 4 + 4*OIT: flag_store(a, name, FO)
        if os.environ.get("LPRIO"): a.e("s_setprio 3")
        if s + 3 < 32: issue(s + 3)
        if os.environ.get("LPRIO"): a.e("s_setprio 0")
        if s == 24:
            a.e(f"""
            s_lshr_b32 s70, s33, 2              ; kq
            s_and_b32 s71, s33, 3               ; dj
            """)
            a.e(f"""
            s_mul_i32 s72, s33, 9
            s_and_b32 s73, s33, 1
            s_add_u32 s72, s72, s73
            s_lshr_b32 s72, s72, 1              ; st0
            s_mul_i32 s73, s70, 18
            s_sub_u32 s74, s72, s73
            s_mul_i32 s75, s70, 5
            s_cmp_eq_u32 s70, 3
            s_cselect_b32 s75, 14, s75
            s_add_u32 s75, s75, 72
            s_mul_i32 s76, s71, {90*9*1024}
            s_add_u32 s76, s76, {WP + fb0*1024}
            s_lshl_b32 s77, s32, 3
            s_add_u32 s77, s77, {4 if hi else 0}
            s_mul_i32 s77, s77, {90*1024}
            s_add_u32 s77, s77, {U}
            s_lshl_b32 s78, s42, 10
            s_add_u32 s78, s78, {18*1024 + (8192 if hi else 0)}
            v_add_u32 v16, {90*1024 - 2048}, v3
            v_add_u32 v17, {2*90*1024}, v3
            v_add_u32 v18, {3*90*1024 - 2048}, v3
            v_and_b32 v20, 31, v2
            v_lshlrev_b32 v20, 10, v20
            s_lshr_b32 s58, s32, 1
            s_lshl_b32 s58, s58, 7
            s_add_u32 s58, s58, {FO}
            v_add_u32 v20, s58, v20
            v_and_b32 v21, 3, v2
            v_lshlrev_b32 v21, 13, v21
            s_and_b32 s58, s2, 63
            s_lshl_b32 s58, s58, 7
            s_add_u32 s58, s58, {FU}
            v_add_u32 v21, s58, v21
            """)
        if s == 29:
            a.vm("buffer_load_dword v22, v20, s[20:23], 0 offen sc1", "fo")
    def gstep(i):
        def expr(i, d):
            if i < 4: a.e(f"s_add_u32 {d}, s72, {i}")
            elif i < 8: a.e(f"s_add_u32 {d}, s75, {i - 4}")
            elif i == 8: a.e(f"s_add_u32 {d}, s75, 4\ns_cmp_lt_u32 s70, 2\ns_cselect_b32 {d}, {d}, 100")
            elif i < 23: a.e(f"s_cmp_le_u32 s74, {i - 9}\ns_cselect_b32 {d}, {i - 9 + 4}, {i - 9}\ns_add_u32 {d}, {d}, s73")
            else: a.e(f"s_mov_b32 {d}, 100")
        expr(i, "s63"); expr(i + 1, "s65")
        a.e("s_cmp_eq_u32 s42, 0\ns_cselect_b32 s63, s63, s65")
        if i in (8, 22):
            a.e(f"s_cmp_lt_u32 s63, 90\ns_cselect_b32 s26, {WS_USED}, 0\ns_cselect_b32 s63, s63, 0")
    aid = {}; bid = {}
    def issueA(p):
        base = (p % 4) * SLOT; sr = "s[24:27]" if p in (4, 11) else "s[20:23]"
        gstep(2*p)
        a.e(f"s_mul_i32 s64, s63, {9*1024}\ns_add_u32 s64, s64, s76\ns_add_u32 m0, s40, {base}\ns_nop 0")
        for i in range(nrun): a.vm(f"buffer_load_dwordx4 v3, {sr}, s64 offen offset:{i*1024} lds")
        a.e(f"s_add_u32 m0, s41, {base}\ns_add_u32 s64, s64, {nrun*1024}")
        aid[p] = a.vm(f"buffer_load_dwordx4 v3, {sr}, s64 offen lds")
    def issueB(p):
        base = (p % 4) * SLOT; sr = "s[24:27]" if p in (4, 11) else "s[20:23]"
        gstep(2*p)
        a.e(f"s_lshl_b32 s64, s63, 10\ns_add_u32 s64, s64, s77\ns_add_u32 m0, s78, {base}\ns_nop 0")
        a.vm(f"buffer_load_dwordx4 v3, {sr}, s64 offen lds")
        a.vm(f"buffer_load_dwordx4 v16, {sr}, s64 offen offset:2048 lds")
        a.e(f"s_add_u32 m0, s78, {base + 4096}\ns_nop 0")
        a.vm(f"buffer_load_dwordx4 v17, {sr}, s64 offen lds")
        bid[p] = a.vm(f"buffer_load_dwordx4 v18, {sr}, s64 offen offset:2048 lds")
    a.e("s_mov_b32 s24, s20\ns_mov_b32 s25, s21\ns_mov_b32 s27, 0x20000")
    issueA(0); issueA(1); issueA(2)
    flag_wait(a, name, 22, 20)
    issueB(2)
    for p in range(12):
        a.wait(vm=max(aid[p], bid.get(p, -1)))
        a.e("s_barrier")
        if p == 2:
            flag_store(a, name, FU)
            issueA(5)
            a.e("buffer_load_dword v22, v21, s[20:23], 0 offen sc1\ns_waitcnt vmcnt(0)"); a.vm_done = a.vm_n - 1
            flag_wait(a, name, 22, 21)
            issueB(4); issueB(5)
        elif p == 1: issueA(4)
        elif p + 3 < 12: issueA(p + 3); issueB(p + 3)
    a.e(f"s_add_u32 s3, s3, 4\ns_branch {name}_final")
    return a.lines

def gen_k2f(name="k2_kernel", stamp=False):
    a = Sched()
    ACC = 160; FX, FY = 16, 60
    def acc(fb, tb): r = ACC + (fb*2 + tb)*4; return f"v[{r}:{r+3}]"
    def fa(buf, fb): r = buf + fb*4; return f"v[{r}:{r+3}]"
    def fbr(buf, tb): r = buf + 36 + tb*4; return f"v[{r}:{r+3}]"
    a.e(f"s_cmp_ge_u32 s2, 256\ns_cbranch_scc1 {name}_end")
    if stamp: stamp_begin(a)
    a.e(f"""
    s_load_dwordx2 s[4:5], s[0:1], {KA_WS}
    s_load_dwordx2 s[6:7], s[0:1], {KA_WSP}
    s_load_dwordx2 s[8:9], s[0:1], {KA_BSP}
    v_lshrrev_b32 v1, 6, v0
    v_and_b32 v2, 63, v0
    v_readfirstlane_b32 s3, v1          ; wave
    """)
    tile_ids(a)
    a.e(f"""
    v_lshlrev_b32 v3, 4, v2
    s_waitcnt lgkmcnt(0)
    s_add_u32 s66, s4, {XST + 4}
    s_addc_u32 s67, s5, 0
    s_load_dword s69, s[66:67], 0
    """)
    srd(a, 12, 6, 7, S*S*2)
    srd(a, 16, 4, 5, Z2T_BYTES, Z2T)
    srd(a, 20, 4, 5, WS_USED)
    a.e(f"""
    s_cmp_lt_u32 s3, 4
    s_cbranch_scc1 {name}_compute
    s_sub_u32 s3, s3, 4
    v_lshrrev_b32 v8, 3, v2
    v_and_b32 v9, 7, v2
    v_lshrrev_b32 v10, 4, v2
    v_xor_b32 v9, v9, v10
    v_lshlrev_b32 v8, 12, v8
    v_lshl_add_u32 v4, v9, 4, v8
    v_xor_b32 v9, 4, v9
    v_lshl_add_u32 v5, v9, 4, v8
    v_add_u32 v6, {2*(32768-1024)}, v4
    v_add_u32 v7, {3*(32768-1024)}, v5
    v_add_u32 v5, {(32768-1024)}, v5
    s_lshl_b32 s36, s32, 7
    s_lshl_b32 s37, s3, 5
    s_add_u32 s36, s36, s37
    s_lshl_b32 s36, s36, 12
    s_waitcnt lgkmcnt(0)
    s_cmp_ge_u32 s3, 2
    s_cbranch_scc1 {name}_ldhi
    """)
    a.lines += gen_loader(name, False, stamp)
    a.label(f"{name}_ldhi")
    a.lines += gen_loader(name, True, stamp)
    a.label(f"{name}_compute")
    srd(a, 28, 8, 9, S*2)
    a.e(f"""
    v_mov_b32 v4, v3
    v_add_u32 v5, {2*SLOT}, v3
    v_and_b32 v10, 15, v2               ; t
    v_lshrrev_b32 v11, 4, v2            ; kg
    v_lshrrev_b32 v12, 1, v10           ; swz
    v_xor_b32 v12, v12, v11
    v_lshlrev_b32 v12, 4, v12
    v_lshl_add_u32 v6, v10, 7, v12
    s_lshl_b32 s36, s3, 12
    s_add_u32 s36, s36, {18*1024}
    v_add_u32 v6, s36, v6
    v_xor_b32 v7, 64, v6
    v_add_u32 v8, {2*SLOT}, v6
    v_add_u32 v9, {2*SLOT}, v7
    s_lshl_b32 s37, s32, 7
    s_lshl_b32 s38, s3, 5
    s_add_u32 s37, s37, s38
    s_lshl_b32 s38, s37, 1
    v_lshlrev_b32 v12, 1, v10
    buffer_load_ushort v13, v12, s[28:31], s38 offen
    buffer_load_ushort v14, v12, s[28:31], s38 offen offset:32
    s_lshl_b32 s38, s37, 4
    s_add_u32 s38, s38, {XST + 8}
    v_lshlrev_b32 v12, 4, v10
    buffer_load_dword v15, v12, s[20:23], s38 offen
    buffer_load_dword v1, v12, s[20:23], s38 offen offset:256
    """)
    def reads(buf, slot, kh):
        L = []
        sa = (slot & 1) * SLOT
        va = "v4" if slot < 2 else "v5"
        vb = f"v{6 + kh + (0 if slot < 2 else 2)}"
        for tb in range(2): L.append(f"ds_read_b128 {fbr(buf,tb)}, {vb} offset:{sa + tb*2048}")
        for fb in range(9):
            if "halfrd" in os.environ.get("ABL2", "") and fb % 2: continue
            if "nord" in os.environ.get("ABL2", ""): continue
            L.append(f"ds_read_b128 {fa(buf,fb)}, {va} offset:{sa + (kh*9+fb)*1024}")
        return L
    def phase(cbuf, R, skip=False, zero=False):
        R = list(R)
        if skip:
            for r in R: a.e(r)
            return
        if "nomf" in os.environ.get("ABL2", ""):
            for r in R: a.e(r)
            R = []
        for fb in range(9):
            for tb in range(2):
                if R: a.e(R.pop(0))
                if "nomf" in os.environ.get("ABL2", "") and fb: continue
                a.e(f"{MF16} {acc(fb,tb)}, {fa(cbuf,fb)}, {fbr(cbuf,tb)}, " + ("0" if zero else acc(fb,tb)))
                if a.fill and (fb*2 + tb) >= 4: a.pump(SB if not R else SB - 1)
    def stage(slot, first=False, pre="", post=None, nobar=False):
        a.e(pre)
        if not nobar: a.e("s_barrier")
        if post: post()
        a.open_gate(); a.open_gate("half")
        phase(FY, reads(FX, slot, 0), skip=first)
        a.e("s_waitcnt lgkmcnt(0)")
        a.open_gate("half")
        phase(FX, reads(FY, slot, 1), zero=first)
        a.e("s_waitcnt lgkmcnt(0)")
    SB = int(os.environ.get("SB", 2))
    side_stream(a)
    stage(0, first=True)
    if stamp == 1: stamp_mid(a, 0)
    NU = 4*int(os.environ.get("NU", 4))
    for u in range(1, NU): stage(u % 4)
    assert not a.fill, len(a.fill)
    a.e(f"s_mov_b32 s48, {NU//4 - 1}")
    lp = f"{name}_cl"
    a.label(lp)
    for u in range(4): stage(u)
    a.e(f"s_add_u32 s48, s48, 1\ns_cmp_lt_u32 s48, 5\ns_cbranch_scc1 {lp}")
    ZR = 104
    a.e("s_waitcnt vmcnt(0)")
    a.e(f"""
    s_lshr_b32 s40, s37, 4
    s_mul_i32 s41, s33, 9
    s_and_b32 s42, s33, 1
    s_add_u32 s43, s41, s42
    s_lshr_b32 s43, s43, 1              ; st0
    s_add_u32 s44, s41, 8
    s_cmp_eq_u32 s42, 0
    s_cselect_b32 s44, s44, s41
    s_lshr_b32 s44, s44, 1              ; st8
    s_lshl_b32 s42, s42, 3              ; half*8
    s_mul_i32 s54, s40, 90
    s_add_u32 s55, s54, s44
    s_add_u32 s54, s54, s43
    s_lshl_b32 s54, s54, 10
    s_lshl_b32 s55, s55, 10
    s_add_u32 s55, s55, s42
    s_add_u32 s54, s54, {U}
    s_add_u32 s55, s55, {U}
    s_add_u32 s56, s54, {90*1024}
    s_add_u32 s57, s55, {90*1024}
    """)
    for tb in range(2):
        sm, ss = ("s54", "s55") if tb == 0 else ("s56", "s57")
        for i in range(4):
            r = ZR + tb*18 + i*4
            a.e(f"buffer_load_dwordx4 v[{r}:{r+3}], v3, s[20:23], {sm} offen offset:{i*1024}")
        r = ZR + tb*18 + 16
        a.e(f"buffer_load_dwordx2 v[{r}:{r+1}], v3, s[20:23], {ss} offen sc1")
    for u in range(8): stage(u % 4)
    phase(FY, [])
    if stamp == 1: stamp_mid(a, 1)
    a.e(f"""
    s_waitcnt vmcnt(0)
    v_lshlrev_b32 v13, 16, v13
    v_lshlrev_b32 v14, 16, v14
    v_mul_f32 v13, v13, v15
    v_mul_f32 v14, v14, v1
    v_add_u32 v6, s36, v3
    v_add_u32 v7, 1024, v6
    v_add_u32 v8, {2*SLOT}, v6
    v_add_u32 v9, {2*SLOT}, v7
    s_nop 3
    """)
    T = 16
    for tb in range(2):
        sm, ss = ("s54", "s55") if tb == 0 else ("s56", "s57")
        for i in (4, 0, 1, 2, 3):
            nfb = 2 if i < 4 else 1
            zr = ZR + tb*18 + i*4
            for k in range(nfb):
                ar = ACC + ((2*i + k)*2 + tb)*4
                for p in range(2):
                    z = zr + 2*k + p; t0 = T + 2*((2*k + p) % 4)
                    a.e(f"v_fma_f32 v{ar+2*p}, v{ar+2*p}, v{(15, 1)[tb]}, v{13+tb}")
                    a.e(f"v_fma_f32 v{ar+2*p+1}, v{ar+2*p+1}, v{(15, 1)[tb]}, v{13+tb}")
                    a.e(f"v_lshlrev_b32 v{t0}, 16, v{z}")
                    a.e(f"v_and_b32 v{t0+1}, 0xffff0000, v{z}")
                    a.e(f"v_mul_f32 v{t0}, v{t0}, v{ar+2*p}")
                    a.e(f"v_mul_f32 v{t0+1}, v{t0+1}, v{ar+2*p+1}")
                    a.e(f"v_cvt_pk_bf16_f32 v{z}, v{t0}, v{t0+1}")
            if i < 4:
                a.e(f"buffer_store_dwordx4 v[{zr}:{zr+3}], v3, s[20:23], {sm} offen offset:{i*1024} sc1")
                a.e(f"ds_write_b128 v{6 + (i & 1)}, v[{zr}:{zr+3}] offset:{(i >> 1)*SLOT + tb*2048}")
            else:
                a.e(f"buffer_store_dwordx2 v[{zr}:{zr+1}], v3, s[20:23], {ss} offen sc1")
    if stamp: stamp_mid(a, {1: 2}.get(stamp, 0))
    stage(0, first=True, pre="s_waitcnt lgkmcnt(0)")
    stage(1)
    stage(2, pre="s_waitcnt vmcnt(0)" + ("\ns_memtime s[82:83]" if stamp == 2 else ""))
    stage(3)
    if stamp == 2: stamp_mid(a, 2)
    a.e("s_mov_b32 s48, 0")
    lp = f"{name}_c3"
    a.label(lp)
    for u in range(4):
        stage(u)
        if stamp == 2 and u == 0: a.e(f"s_cmp_eq_u32 s48, 0\ns_cbranch_scc0 {name}_ns\ns_memtime s[86:87]\n{name}_ns:")
    a.e(f"s_add_u32 s48, s48, 1\ns_cmp_lt_u32 s48, 2\ns_cbranch_scc1 {lp}")
    phase(FY, [])
    if stamp in (1, 3): stamp_mid(a, {1: 3}.get(stamp, 1))
    own = f"{name}_own"
    a.e(f"""
    s_lshr_b32 s70, s33, 2              ; kq
    s_and_b32 s71, s33, 3               ; dj
    s_lshl_b32 s40, s32, 2
    s_add_u32 s40, s40, s71
    s_lshl_b32 s40, s40, 2
    s_add_u32 s40, s40, s3
    s_lshl_b32 s40, s40, 2
    s_add_u32 s40, s40, s70
    s_mul_i32 s40, s40, {9*1024}
    s_add_u32 s40, s40, {PX}
    s_nop 1
    s_cmp_eq_u32 s3, s70
    s_cbranch_scc1 {own}
    """)
    for fb in range(9):
        r = ACC + 8*fb; t = 16 + 4*(fb & 1)
        for k in range(4): a.e(f"v_cvt_pk_bf16_f32 v{t+k}, v{r+2*k}, v{r+2*k+1}")
        if fb % 4 == 0 and fb: a.e("s_add_u32 s40, s40, 4096")
        a.e(f"buffer_store_dwordx4 v[{t}:{t+3}], v3, s[20:23], s40 offen offset:{(fb%4)*1024} sc1")
    a.e(f"s_branch {name}_final")
    a.label(own)
    for c in range(18):
        a.e(f"ds_write_b128 v3, v[{ACC+4*c}:{ACC+4*c+3}] offset:{c*1024}")
    a.label(f"{name}_final")
    a.e(f"""
    s_load_dwordx2 s[6:7], s[0:1], {KA_X}
    s_load_dwordx2 s[8:9], s[0:1], {KA_OUT}
    s_lshl_b32 s46, s32, 7
    s_lshl_b32 s47, s70, 5
    s_add_u32 s46, s46, s47
    s_mul_i32 s46, s46, 1152
    s_mul_i32 s47, s71, 288
    s_add_u32 s46, s46, s47
    s_lshl_b32 s47, s3, 5
    s_add_u32 s46, s46, s47
    v_and_b32 v10, 15, v2
    v_mul_u32_u24 v10, 1152, v10
    v_lshrrev_b32 v11, 4, v2
    v_lshl_add_u32 v10, v11, 3, v10
    v_add_u32 v11, {16*1152}, v10
    v_mov_b32 v9, {BIG}
    s_cmp_eq_u32 s3, 0
    s_cselect_b64 vcc, -1, 0
    v_cndmask_b32 v24, v9, v10, vcc
    v_cndmask_b32 v25, v9, v11, vcc
    v_cndmask_b32 v26, v9, v3, vcc
    s_lshl_b32 s41, s3, 11
    v_add_u32 v27, s41, v3
    s_waitcnt lgkmcnt(0)
    """)
    srd(a, 24, 6, 7, S*D*2)
    srd(a, 28, 8, 9, S*D*2)
    XA = [10, 11, 24, 25]
    for k in range(4):
        a.e(f"buffer_load_dwordx2 v[{64+2*k}:{65+2*k}], v{XA[k]}, s[24:27], s46 offen offset:{256*(k >> 1)}")
    a.e(f"""
    s_lshl_b32 s40, s32, 2
    s_add_u32 s40, s40, s71
    s_lshl_b32 s40, s40, 2
    s_add_u32 s40, s40, s70
    s_mul_i32 s40, s40, {4*9*1024}
    s_lshl_b32 s41, s3, 10
    s_add_u32 s40, s40, s41
    s_add_u32 s40, s40, {PX}
    v_and_b32 v20, 3, v2
    v_lshlrev_b32 v20, 8, v20
    s_andn2_b32 s58, s2, 6
    s_lshl_b32 s58, s58, 7
    s_add_u32 s58, s58, {FP}
    v_add_u32 v20, s58, v20
    s_waitcnt vmcnt(4) lgkmcnt(0)
    s_barrier
    """)
    flag_store(a, name, FP, 7)
    for m in range(3):
        a.e(f"s_add_u32 s{42+m}, s70, {m+1}\ns_and_b32 s{42+m}, s{42+m}, 3\ns_mul_i32 s{42+m}, s{42+m}, {9*1024}\ns_add_u32 s{42+m}, s{42+m}, s40")
    for k in range(4):
        a.e(f"ds_read_b128 {vr(72+4*k)}, v27 offset:{1024*(k & 1) + 16384*(k >> 1)}")
    lbp = f"{name}_pp"
    a.e(f"""
    s_cmp_eq_u32 s3, 7
    s_cbranch_scc0 {lbp}
    buffer_load_dword v22, v20, s[20:23], 0 offen sc1
    s_waitcnt vmcnt(0)
    """)
    flag_wait(a, name, 22, 20)
    a.label(lbp)
    a.e("s_barrier")
    if stamp == 3: stamp_mid(a, 2)
    PR = 32
    for m in range(3):
        a.e(f"buffer_load_dwordx4 {vr(PR+4*m)}, v3, s[20:23], s{42+m} offen sc1")
    for m in range(3):
        a.e(f"s_add_u32 s{42+m}, s{42+m}, 8192\nbuffer_load_dwordx4 {vr(PR+12+4*m)}, v26, s[20:23], s{42+m} offen sc1")
    a.e("s_waitcnt lgkmcnt(0)")
    for k in range(4):
        if k == 0: a.e("s_waitcnt vmcnt(3)")
        if k == 2: a.e("s_waitcnt vmcnt(2)")
        if stamp == 3 and k == 0: stamp_mid(a, 3)
        terms = [64 + 2*k] + [PR + 12*(k >> 1) + 4*m + 2*(k & 1) for m in range(3)]
        for z in terms:
            for p in range(2):
                a.e(f"v_lshlrev_b32 v{16+2*p}, 16, v{z+p}\nv_and_b32 v{17+2*p}, 0xffff0000, v{z+p}")
            for r in range(4): a.e(f"v_add_f32 v{72+4*k+r}, v{72+4*k+r}, v{16+r}")
        a.e(f"v_cvt_pk_bf16_f32 v{64+2*k}, v{72+4*k}, v{73+4*k}\nv_cvt_pk_bf16_f32 v{65+2*k}, v{74+4*k}, v{75+4*k}")
        a.e(f"buffer_store_dwordx2 v[{64+2*k}:{65+2*k}], v{XA[k]}, s[28:31], s46 offen offset:{256*(k >> 1)}")
    if stamp: stamp_end(a, 2, "s3", 4)
    a.label(f"{name}_end")
    a.e("s_endpgm")
    launch = f"; @launch kernel={name} grid=(256,1,1) block=(512,1,1) lds={OSTG}\n"
    return launch, kernel_begin(name) + a.text(), kernel_desc(name, 256, 102, 256)
```

```python
import math, os
from asmlib import *
from sched import Sched
from layout import *
from k1common import *
from k3 import srd
ABL = os.environ.get('ABL', '').split(',')

GK1 = -2.0 * math.sqrt(2.0 / math.pi) * LOG2E
GK2 = GK1 * 0.044715

RING = 0
XR = 98304
SP = 208
CSO = XR + 256*SP
PRM = CSO + 4096
Z_LDS = PRM + 2048
TL0 = int(os.environ.get('TL0', 11))
STATM = int(os.environ.get('STATM', 0)); MPS = int(os.environ.get('MPS', 2))
ZSC = os.environ.get('ZSC', 'sc1')
Z2SC = os.environ.get('Z2SC', 'sc1')
PER_MFMA = int(os.environ.get('PM', 6))

def gen_zpath(a, name, stamp):
    X = 112; ACC = [64, 80]; WF = [44, 48, 52, 56]
    NEGMU, R, C1, C2, S1, S2, TAG = 108, 110, 14, 15, 61, 62, 60
    CB = [24, 28]; T = 32; PK = 36
    a.e(f"""
    v_lshrrev_b32 v28, 3, v2
    v_and_b32 v29, 7, v2                ; pos
    v_lshrrev_b32 v31, 4, v2
    v_xor_b32 v31, v31, v29
    v_mul_u32_u24 v7, 1152, v28
    v_lshl_add_u32 v7, v31, 4, v7
    v_bfe_u32 v30, v2, 4, 1
    v_lshlrev_b32 v30, 2, v30
    v_xor_b32 v30, v30, v29
    v_lshlrev_b32 v30, 4, v30           ; chunk*16
    v_mul_u32_u24 v5, 9216, v28
    v_add_u32 v5, v5, v30
    v_xor_b32 v8, 64, v7
    v_add_u32 v8, {8*1152-1024}, v8
    s_mul_i32 s41, s33, 384
    s_add_u32 s41, s41, 4608            ; column offset of z2 panel 0
    s_mul_i32 s40, s3, {8*9216}
    s_add_u32 s40, s40, s41
    s_lshl_b32 s42, s3, 10              ; w*1024
    s_lshl_b32 s43, s32, 7
    s_lshl_b32 s44, s3, 4
    s_add_u32 s43, s43, s44
    s_mul_i32 s43, s43, 1152            ; x base
    s_lshl_b32 s44, s3, 11
    s_add_u32 s44, s44, {XR}
    """)
    def pcol(P): return 128*P if P < 3 else 128*(P-3) - 4608
    uid = {}; x_id = {}
    def issue8(u):
        P, c = divmod(u, 9)
        a.e(f"s_add_u32 m0, s42, {RING + (u % 12)*8192}")
        a.e(f"s_add_u32 s46, s40, {c*64*9216 + pcol(P)}")
        uid[u] = a.vm(f"buffer_load_dwordx4 v5, s[12:15], s46 offen lds")
    def issue_x(c):
        a.e(f"s_add_u32 m0, s44, {(c % 3)*16384}")
        a.e(f"s_add_u32 s46, s43, {c*128}")
        a.vm(f"buffer_load_dwordx4 v7, s[8:11], s46 offen lds")
        x_id[c] = a.vm(f"buffer_load_dwordx4 v8, s[8:11], s46 offen offset:1024 lds")
    issue_x(0); issue8(0); issue_x(1); issue8(1)
    a.e(f"""
    s_and_b32 s36, s3, 3                ; rg
    s_lshr_b32 s37, s3, 2               ; p
    v_mul_u32_u24 v13, 3456, v28
    v_add_u32 v13, v13, v30
    v_and_b32 v22, 15, v2
    v_lshrrev_b32 v23, 2, v22           ; r
    v_and_b32 v22, 3, v22               ; c
    v_lshrrev_b32 v24, 5, v2            ; h
    v_bfe_u32 v25, v2, 4, 1             ; n half
    v_lshlrev_b32 v1, 3, v24
    v_add_u32 v1, v1, v23
    v_lshlrev_b32 v1, 7, v1             ; (8h + r)*128
    v_lshrrev_b32 v26, 1, v23
    v_xor_b32 v26, s37, v26
    v_lshl_add_u32 v1, v26, 6, v1
    v_lshl_add_u32 v1, v25, 5, v1
    v_lshl_add_u32 v1, v22, 3, v1
    v_add_u32 v3, 49152, v1
    v_and_b32 v32, 31, v2               ; s
    v_bfe_u32 v33, v2, 1, 3             ; swz
    v_xor_b32 v33, v33, v24
    v_lshlrev_b32 v33, 4, v33
    v_lshl_add_u32 v9, v32, 7, v33
    s_lshl_b32 s38, s36, 12
    s_add_u32 s38, s38, {XR}
    v_add_u32 v9, s38, v9
    v_xor_b32 v10, 32, v9
    v_xor_b32 v11, 64, v9
    v_xor_b32 v12, 96, v9
    v_lshlrev_b32 v21, 3, v32           ; s*8
    v_lshlrev_b32 v0, 4, v2
    """)
    assert Z2T == 0
    def wread(a, buf, u, j):
        pos = u % 12
        bb = (1, 3)[pos // 6]; off = (pos % 6)*8192 + j*2048
        a.lg(f"ds_read_b64_tr_b16 {vr(buf,2)}, v{bb} offset:{off}")
        return a.lg(f"ds_read_b64_tr_b16 {vr(buf+2,2)}, v{bb} offset:{off+512}")
    CSR = [80 + 4*k for k in range(7)] + [24 + 4*k for k in range(9)]
    def xst_load(a, tracked=True):
        (a.vm if tracked else a.e)(f"buffer_load_dwordx4 {vr(NEGMU)}, v21, s[20:23], s59 offen" + ("" if tracked else " sc1"))
    def hand_loads(a, k0=0, k1=16, sc=" sc1"):
        if k0 == 0: a.e("s_mov_b32 s45, s57")
        for k in range(k0, k1):
            if k % 2 == 0 and k: a.e(f"s_add_u32 s45, s45, {2*448*8}")
            a.e(f"buffer_load_dwordx4 {vr(CSR[k])}, v63, s[20:23], s45 offen offset:{(k%2)*448*8}{sc}")
    CONSTS = f"""
    v_mul_f32 v{C2}, v{R}, v{R}
    v_mul_f32 v{C1}, {f2u(GK1)}, v{R}
    v_mul_f32 v{C2}, v{C2}, v{R}
    v_mov_b32 v{S1}, 0
    v_mul_f32 v{C2}, {f2u(GK2)}, v{C2}
    v_mov_b32 v{S2}, 0
    v_mov_b32 v7, 0
    v_mov_b32 v8, 0
    v_cvt_pk_bf16_f32 v24, v{NEGMU}, v{NEGMU}
    v_mov_b32 v26, 0
    v_lshlrev_b32 v24, 16, v24
    v_mov_b32 v27, 0
    v_sub_f32 v24, v{NEGMU}, v24
    v_cmp_gt_u32 vcc, 32, v2
    v_cvt_pk_bf16_f32 v24, v{NEGMU}, v24
    v_mov_b32 v30, 0
    v_cndmask_b32 v24, v26, v24, vcc
    v_mov_b32 v31, 0
    v_mov_b32 v25, v24
    """
    rid = {}
    def areads(n):
        c, j = divmod(n, 4)
        a.lg(f"ds_read_b128 {vr(X + 4*n)}, v{9+j} offset:{(c%3)*16384}")
        rid[n] = wread(a, WF[n % 4], c, j)
    a.wait(vm=max(x_id[0], uid[0]))
    a.e("s_barrier")
    if stamp == 1: stamp_mid(a, 0)
    areads(0); areads(1)
    rowstat_loads(a, 2, 80, 32)
    a.e(f"""
    s_cmp_lt_u32 s3, 6
    s_cselect_b32 s28, s12, s16
    s_cselect_b32 s29, s13, s17
    s_cselect_b32 s30, s14, s18
    s_mov_b32 s31, 0x20000
    s_mov_b32 s45, 3456
    s_cselect_b32 s45, 9216, s45
    s_lshl_b32 s39, s3, 7
    s_add_u32 s39, s39, s41
    s_lshl_b32 s47, s34, 7
    s_sub_u32 s48, s39, {4608 + 384}
    s_cmp_lt_u32 s3, 6
    s_cselect_b32 s47, s48, s47
    s_cmp_lt_u32 s3, 3
    s_cselect_b32 s39, s39, s47
    s_cmp_eq_u32 s3, 7
    s_cselect_b32 s30, 0, s30
    s_mul_i32 s38, s32, 36
    s_mul_i32 s38, s38, s45
    s_add_u32 s39, s39, s38
    s_mov_b32 s68, s39
    s_lshl_b32 s38, s45, 3
    v_mul_lo_u32 v26, v28, s45
    v_lshl_add_u32 v26, v29, 4, v26
    v_cmp_gt_u32 vcc, 32, v2
    v_mov_b32 v27, {BIG}
    s_nop 0
    v_cndmask_b32 v27, v27, v26, vcc
    """)
    for i in range(5):
        coop_id = a.vm(f"buffer_load_dwordx4 {vr(92+4*i)}, v{26 if i < 4 else 27}, s[28:31], s39 offen")
        if i < 4: a.e(f"s_add_u32 s39, s39, s38")
    a.e(f"""
    s_cmp_eq_u32 s3, 4
    s_cselect_b32 s38, 0, {BIG}
    v_mov_b32 v4, s38
    """)
    ep_id = a.vm(f"buffer_load_dword v{TAG}, v4, s[24:27], 0 offen sc1")
    issue_x(2); issue8(2)
    a.keys["coop"] = ("vm", coop_id)
    b = Sched()
    b.e(f"""
    s_mul_i32 s57, s33, {16*448*8}
    s_add_u32 s57, s57, {CSP}
    s_mul_i32 s47, s32, {448*8}
    s_add_u32 s47, s47, s57
    s_lshl_b32 s48, s3, 9
    s_add_u32 s47, s47, s48
    v_lshlrev_b32 v40, 6, v29
    v_lshrrev_b32 v41, 4, v2
    v_lshl_add_u32 v40, v41, 3, v40     ; (unit*8 + q)*8
    v_and_b32 v41, 8, v2
    v_cmp_eq_u32 vcc, 0, v41
    v_mov_b32 v41, {BIG}
    s_cmp_eq_u32 s3, 7
    s_cselect_b64 vcc, 0, vcc
    v_cndmask_b32 v42, v41, v40, vcc
    s_mov_b32 s62, 0x00003f80
    s_mov_b32 s63, 0x3f800000
    """)
    rowstat_addr(b, 2, 43, 40)
    a.add_block(b.lines, "x"); b.lines = []
    a.add("gate", None, "c0")
    a.add("w", None, "coop")
    rowstat_compute(b, 80, 36)
    for i in range(5): colsum_add(b, 24, 92 + 4*i, i == 0)
    fold_pairs(b, 24, [8])
    a.add_block(b.lines, "x"); b.lines = []
    a.add("gate")
    a.add("lg", f"ds_read_b32 v{TAG}, v4", "tag")
    a.add("w", None, "tag")
    a.addv(f"v_mov_b32 v37, v{TAG}\nv_mov_b32 v39, v{TAG}\nv_mov_b32 v25, v{TAG}\nv_mov_b32 v29, v{TAG}")
    a.add("vm", f"buffer_store_dwordx4 v[36:39], v43, s[20:23], 0 offen sc1")
    a.add("vm", f"buffer_store_dwordx2 v[24:25], v42, s[20:23], s47 offen sc1")
    a.add("vm", f"buffer_store_dwordx2 v[28:29], v42, s[20:23], s47 offen offset:32 sc1")
    a.addv(f"""
    s_lshl_b32 s49, s37, 8
    s_add_u32 s49, s49, {CSO}
    v_lshrrev_b32 v40, 5, v2
    v_add_u32 v17, s49, v21
    s_mul_i32 s49, s3, {32*SP}
    s_add_u32 s49, s49, {XR}
    v_mul_u32_u24 v19, {SP//8}, v21
    v_lshl_add_u32 v19, v40, 4, v19
    v_add_u32 v19, s49, v19
    v_bfe_u32 v20, v2, 4, 1
    v_mul_u32_u24 v20, {90*1024}, v20
    v_and_b32 v41, 15, v2
    v_lshl_add_u32 v41, v40, 4, v41
    v_lshl_add_u32 v20, v41, 4, v20     ; z1 store
    s_lshl_b32 s49, s36, 10
    v_add_u32 v18, s49, v0
    v_cmp_gt_u32 vcc, {448*8}, v18
    v_mov_b32 v63, {BIG}
    v_lshlrev_b32 v21, 1, v21           ; s*16
    v_cndmask_b32 v63, v63, v18, vcc
    v_add_u32 v18, {CSO}, v18
    """)
    a.addv(f"""
    s_lshl_b32 s47, s32, 3
    s_lshl_b32 s48, s36, 1
    s_add_u32 s47, s47, s48             ; t16
    s_mul_i32 s47, s47, 90
    s_mul_i32 s48, s33, 6
    s_add_u32 s47, s47, s48
    s_add_u32 s47, s47, s37
    s_lshl_b32 s47, s47, 10
    s_add_u32 s50, s47, {U}
    s_add_u32 s51, s50, 2048
    s_add_u32 s52, s50, 4096
    s_lshl_b32 s47, s32, 2
    s_add_u32 s47, s47, s36
    s_lshl_b32 s59, s47, 9
    s_add_u32 s59, s59, {XST}
    s_mul_i32 s48, s47, 36
    s_lshl_b32 s49, s34, 2
    s_add_u32 s48, s48, s49
    s_lshl_b32 s49, s37, 1
    s_add_u32 s48, s48, s49
    s_lshl_b32 s48, s48, 10
    s_add_u32 s53, s48, {Q}
    s_mul_i32 s54, s47, 144
    s_mul_i32 s48, s33, 12
    s_add_u32 s54, s54, s48
    s_add_u32 s54, s54, s49             ; + 2p
    s_lshl_b32 s54, s54, 10             ; z2t soffset (Z2T = 0)
    s_mul_i32 s55, s32, 24
    s_lshl_b32 s48, s33, 1
    s_add_u32 s48, s48, s37
    s_add_u32 s48, s48, s55
    s_lshl_b32 s48, s48, 11
    s_lshl_b32 s49, s36, 9
    s_add_u32 s48, s48, s49
    s_add_u32 s56, s48, {ST}
    s_lshl_b32 s55, s55, 11
    s_add_u32 s55, s55, s49
    s_add_u32 s55, s55, {ST}
    """)
    pend = []; gate_ok = False; HLC = int(os.environ.get('HLC', 4))
    for n in range(36):
        c, j = divmod(n, 4)
        a.wait(lg=rid[n])
        if j == 2:
            for f in pend: f()
            pend = []
            need = [x_id[c+1], uid[c+1]] if c < 8 else [uid[11]]
            if c == 1:
                a.wait(vm=ep_id)
                epoch_share(a, name, 4, TAG, 4, PRM)
            if c == 8: a.flush()
            a.wait(vm=max(need), lg=a.lg_n - 1 if c == 8 else rid[n+1])
            if stamp == 5 and 0 <= (c - TL0) < 8 and (c - TL0) % 2 == 0: stamp_mid(a, (c - TL0) // 2)
            a.e("s_barrier")
            if c == 1:
                a.e(f"v_mov_b32 v4, {PRM}")
                gate_ok = True
            if c == int(os.environ.get("L2C", 99)):
                a.e(f"""
                s_cmp_lt_u32 s3, 6
                s_mov_b32 s45, 3456
                s_cselect_b32 s45, 9216, s45
                s_mul_i32 s38, s45, {8*36}
                s_sub_u32 s39, 0, s38
                s_cmp_lt_u32 s32, 8
                s_cselect_b32 s38, s38, s39
                s_add_u32 s39, s68, s38
                v_min_u32 v40, 35, v2
                v_mul_lo_u32 v40, v40, s45
                """)
                a.vm("buffer_load_dword v41, v40, s[28:31], s39 offen")
            if c == 8:
                assert not a.fill, len(a.fill)
                xst_load(a); a.keys["xst"] = ("vm", a.vm_n - 1)
            if c + 3 < 9: pend.append(lambda c=c: issue_x(c + 3))
            for u in ([c + 3] if c < 6 else range(3*c - 9, 3*c - 6)):
                pend.append(lambda u=u: issue8(u))
        if n + 2 < 36: areads(n + 2)
        a.e(f"{MF32} {vr(ACC[0],16)}, {vr(WF[n % 4])}, {vr(X + 4*n)}, " + ("0" if n == 0 else vr(ACC[0], 16)))
        if pend: pend.pop(0)()
        if n == 33:
            pass
        if gate_ok: a.open_gate()
        if n >= 4: a.open_gate('c0')
        a.pump(28 if n < 12 else 16)
        if n == 34: h0_tail_at = len(a.lines)
    for f in pend: f()
    if stamp in (1, 2): stamp_mid(a, 1 if stamp == 1 else 0)
    a.e(f"""
    s_mul_i32 s40, s36, {16*9216}
    s_add_u32 s40, s40, s41
    s_mul_i32 s41, s36, {16*3456}
    s_lshl_b32 s42, s34, 7
    s_add_u32 s41, s41, s42
    s_lshl_b32 s42, s36, 11
    v_add_u32 v104, {8*9216-1024}, v5
    v_add_u32 v105, {8*3456-1024}, v13
    s_cmp_eq_u32 s37, 0
    s_cbranch_scc0 {name}_p1
    """)
    common = a.snapshot()

    def epilogue(a, P):
        if "nofill" in ABL:
            if P == 2: a.add("vm", f"buffer_store_dwordx2 {vr(T,2)}, v21, s[20:23], s56 offen sc1", "ststore")
            return
        acc = ACC[P % 2]
        kind = "z2" if P < 3 else ("z1" if P < 6 else "q")
        if P == 0 or (P == 1 and a.par == 0):
            a.add("lg", f"ds_read_b64 v[28:29], v17 offset:{P*512}", "cs0")
            a.add("w", None, "cs0")
            a.addv(f"{MF32} {vr(acc,16)}, v[28:31], v[24:27], {vr(acc,16)}\ns_nop 7\ns_nop 3")
        T8 = [T + k for k in range(4)] + [6, 16, 22, 23]
        m = Sched()
        def defer():
            items = list(m.fill); m.fill.clear()
            a.add("call", lambda a_, items=items: a_.mfill.extend(items))
        for gg in range(2):
            A = acc + 8*gg
            if kind == "q":
                for r in range(8): a.addv(f"v_mul_f32 v{A+r}, v{R}, v{A+r}")
            else:
                for r in range(8): a.addv(f"v_mul_f32 v{T8[r]}, v{A+r}, v{A+r}")
                for r in range(8): a.addv(f"v_fma_f32 v{T8[r]}, v{T8[r]}, v{C2}, v{C1}")
                for r in range(8): a.addv(f"v_mul_f32 v{T8[r]}, v{T8[r]}, v{A+r}")
                for r in range(8): a.addv(f"v_exp_f32 v{T8[r]}, v{T8[r]}")
                for r in range(8): a.addv(f"v_add_f32 v{T8[r]}, 1.0, v{T8[r]}")
                for r in range(8): a.addv(f"v_rcp_f32 v{T8[r]}, v{T8[r]}")
                for r in range(8): a.addv(f"v_mul_f32 v{A+r}, v{A+r}, v{T8[r]}")
            for g in (2*gg, 2*gg + 1):
                Ag = acc + 4*g
                pk = PK + 2*g if kind != "z1" else PK + (g & 1)*4 + (g >> 1)*2
                a.addv(f"v_cvt_pk_bf16_f32 v{pk}, v{Ag}, v{Ag+1}")
                a.addv(f"v_cvt_pk_bf16_f32 v{pk+1}, v{Ag+2}, v{Ag+3}")
            if kind == "z2":
                m.add("lg", f"ds_write_b128 v19, {vr(PK + 4*gg)} offset:{P*64 + gg*32}")
                tgt = m if (gg == 0 or STATM == 2) and STATM else a
                for r in range(8):
                    tgt.addv(f"v_add_f32 v{(S1, 7)[r & 1]}, v{(S1, 7)[r & 1]}, v{A+r}")
                    tgt.addv(f"v_fmac_f32 v{(S2, 8)[r & 1]}, v{A+r}, v{A+r}")
            elif kind == "z1" and gg == 1:
                for k in range(2):
                    m.add("vm", f"buffer_store_dwordx4 {vr(PK + k*4)}, v20, s[20:23], s{50 + P - 3} offen offset:{k*512} {ZSC}")
            elif kind == "q":
                m.add("vm", f"buffer_store_dwordx4 {vr(PK + gg*4)}, v0, s[20:23], s53 offen offset:{gg*1024} {ZSC}")
            if P == 2 and gg == 1:
                a.addv(f"""
                v_add_f32 v{S1}, v{S1}, v7
                v_add_f32 v{S2}, v{S2}, v8
                v_mov_b32 v7, v{S1}
                v_mov_b32 v8, v{S2}
                s_nop 1
                v_permlane32_swap_b32 v{S1}, v7
                v_permlane32_swap_b32 v{S2}, v8
                s_nop 1
                v_add_f32 v8, v{S2}, v8
                v_add_f32 v7, v{S1}, v7
                v_mul_f32 v10, v{R}, v8
                v_mul_f32 v8, v{R}, v7
                v_mul_f32 v10, v{R}, v10
                v_mov_b32 v9, v{TAG}
                v_mov_b32 v11, v{TAG}
                """)
                m.add("vm", f"buffer_store_dwordx4 v[8:11], v21, s[20:23], s56 offen sc1")
            defer()
    def issue4(a, u, half, own):
        P, c = divmod(u, 9)
        if half == 0:
            a.e(f"s_add_u32 m0, s42, {RING + (u % 12)*8192}")
            a.e(f"s_add_u32 s46, s40, {(c*64*9216 + pcol(P)) & 0xffffffff}" if P < 6 else f"s_add_u32 s46, s41, {c*64*3456}")
        v = (5, 104)[half] if P < 6 else (13, 105)[half]
        own[u] = a.vm(f"buffer_load_dwordx4 v{v}, s[{12 if P < 6 else 16}:{15 if P < 6 else 19}], s46 offen" + (" offset:1024" if half else "") + " lds")
    AH = int(os.environ.get("AH", 3)); W8 = WF + [96, 100]; NW = 6
    PRIO = int(os.environ.get("PRIO", 1))
    STS = (8, 0)

    class Path:
        def __init__(s, p):
            s.a = Sched(); s.a.uid = 100*(p + 1); s.a.restore(common); s.p = p; s.a.par = p
            s.own = dict(uid); s.hooks = {}; s.pre = {}; s.ahead = None
        def bar(s, H, t, lg=None):
            a = s.a
            if (H, t) in s.pre: s.pre[(H, t)](a)
            k = H // 2 + 1
            if H % 2 == 1 and t < 2: us = range(9*k + 3*t + 3, 9*k + 3*t + 6)
            elif H % 2 == 0 and t == 1: us = range(9*k, 9*k + 3)
            else: us = []
            ids = [s.own[u] for u in us if u in s.own]
            a.wait(vm=max(ids) if ids else None, lg=lg)
            if stamp == 4 and 0 <= 3*H + t - TL0 < 4: stamp_mid(a, 3*H + t - TL0)
            a.e("s_barrier")
            if (H, t) in s.hooks: s.hooks[(H, t)](a)
        def preread(s, P):
            s.ahead = {n: wread(s.a, W8[n], 9*P + n // 4, n % 4) for n in range(AH)}
        def M(s, H, P, N):
            a = s.a; acc = ACC[P % 2]
            if P + 1 >= N: todo = {}
            elif s.p == 0: todo = {0: [(u, h) for u in range(9*P + 9, 9*P + 12) for h in (0, 1)]}
            else: todo = {12*t - AH + 1: [(u, h) for u in range(9*P + 9 + 3*t, 9*P + 12 + 3*t) for h in (0, 1)] for t in (1, 2)}
            q = []
            if PRIO: a.e("s_setprio 1")
            if s.ahead is None: s.preread(P)
            br = dict(s.ahead); s.ahead = None
            for i in range(36):
                a.wait(lg=br[i])
                n = i + AH
                mf = f"{MF32} {vr(acc,16)}, {vr(W8[i % NW])}, {vr(X + 4*i)}, " + ("0" if i == 0 else vr(acc, 16))
                if n in (12, 24):
                    a.e(mf); mf = ""
                    s.bar(H, n // 12 - 1, br[n-1] if s.p == 1 else None)
                if n < 36: br[n] = wread(a, W8[n % NW], 9*P + n // 4, n % 4)
                a.e(mf)
                q += todo.get(i, [])
                if q and (i % (5 if s.p == 0 else 2) == (1 if s.p == 0 else (AH + 1) % 2)): issue4(a, *q.pop(0), s.own)
                elif i % 2 == 0 and i >= 2: a.mpump(2)
                if i == 30 and H > 1: cid = a.lg(f"ds_read_b64 v[28:29], v17 offset:{P*512}")
            assert not q and not a.mfill
            if H > 1:
                a.wait(lg=cid)
                a.e(f"{MF32} {vr(acc,16)}, v[28:31], v[24:27], {vr(acc,16)}")
            if PRIO: a.e("s_setprio 0")
            s.bar(H, 2)
        def V(s, H, nextP, t0=0):
            a = s.a
            tot = a.fill_cost() + (8 if nextP else 0)
            for t in range(t0, 3):
                a.pump(math.ceil(tot / (3 - t0)) if t < 2 else 1 << 30)
                if t == 2 and nextP: s.preread(nextP)
                s.bar(H, t)

    lt = name + "_ztail"
    for p in (0, 1):
        path = Path(p); b = path.a
        def step(k, N):
            path.M(2*k - 1 + p, k, N)
            if 2*k + p <= 2*(N - 1):
                epilogue(b, k - 1)
                path.V(2*k + p, k + 1 if k + 1 < N else None)
        def xchk(a):
            a.wait_key("xst")
            tags_retry(a, name, [NEGMU + 1, NEGMU + 3], TAG, 61, lambda a: xst_load(a, False))
        if p == 1:
            b.label(f"{name}_p1")
            hand_loads(b, 0, 6, sc="")
            b.e("s_waitcnt vmcnt(10)"); b.vm_done = uid[14]
            path.bar(1, 0)
            hand_loads(b, 6, 16, sc="")
            b.e("s_waitcnt vmcnt(16)"); b.vm_done = b.vm_n - 1
            path.bar(1, 1)
            b.e("s_waitcnt vmcnt(0)")
            xchk(b)
            tags_retry(b, name, [r + o for r in CSR for o in (1, 3)], TAG, 61, hand_loads, 63)
            for st_ in (8, 4, 2, 1):
                for k in range(st_):
                    for o in (0, 2): b.e(f"v_add_f32 v{CSR[k]+o}, v{CSR[k]+o}, v{CSR[k+st_]+o}")
            b.e(f"""
            v_cvt_pk_bf16_f32 v84, v80, v80
            v_cvt_pk_bf16_f32 v86, v82, v82
            v_lshlrev_b32 v85, 16, v84
            v_lshlrev_b32 v87, 16, v86
            v_sub_f32 v80, v80, v85
            v_sub_f32 v82, v82, v87
            v_cvt_pk_bf16_f32 v85, v80, v80
            v_cvt_pk_bf16_f32 v87, v82, v82
            v_add_u32 v104, {8*9216-1024}, v5
            v_add_u32 v105, {8*3456-1024}, v13
            """)
            b.lg("ds_write_b128 v18, v[84:87]")
            wid_ = b.lg_n - 1
            b.e(CONSTS)
            path.preread(1)
            path.bar(1, 2, wid_)
        else:
            b.add("call", xchk); b.addv(CONSTS)
        for k in range(1, 5): step(k, 7)
        lq = f"{name}_noq{p}"
        b.e(f"s_cmp_eq_u32 s18, 0\ns_cbranch_scc1 {lq}")
        snap = b.snapshot(); own_s = dict(path.own); ah_s = path.ahead
        for N in (7, 6):
            if N == 6:
                b.label(lq); b.restore(snap); path.own = dict(own_s); path.ahead = ah_s
            HL = 2*(N - 1)
            path.pre.clear(); path.hooks.clear()
            if p == 0:
                base = RING + (3 if N == 7 else 6)*8192
                path.hooks[(HL, 0)] = lambda a, N=N, base=base: repack_loads(a, name, N, base)
            for k in range(5, N): step(k, N)
            if stamp == 1: stamp_mid(b, 2)
            b.e("s_nop 7")
            stat_issue(b)
            b.mpump(1000)
            if p == 1: epilogue(b, N - 2); b.flush(); b.mpump(1000)
            epilogue(b, N - 1); b.flush(); b.mpump(1000)
            b.wait_key("stl")
            if not (p == 1 and N == 6): b.e(f"s_branch {lt}")
        a.lines += b.lines
        if getattr(b, 'forced', 0): print('forced flushes', p, b.forced)
    a.label(lt)
    if stamp == 1: stamp_mid(a, 3)
    ZT = 184
    tags_retry(a, name, [113 + 2*k for k in range(24)], TAG, 40, lambda a: stat_issue(a, False))
    a.e(f"""
    v_lshrrev_b32 v25, 8, v0            ; kg
    v_bfe_u32 v26, v0, 6, 2             ; r
    v_bfe_u32 v27, v0, 4, 2             ; c
    v_lshl_add_u32 v26, v25, 3, v26
    v_mul_u32_u24 v26, {SP}, v26
    v_and_b32 v28, 1, v27
    v_lshrrev_b32 v27, 1, v27
    v_lshl_add_u32 v26, v27, 3, v26
    v_lshl_add_u32 v26, v28, 4, v26
    s_mul_i32 s38, s3, {32*SP}
    s_add_u32 s38, s38, {XR}
    v_add_u32 v26, s38, v26
    s_lshl_b32 s39, s3, 8
    s_add_u32 s39, s39, {PRM}
    v_lshrrev_b32 v28, 2, v21
    v_add_u32 v28, s39, v28
    v_lshl_add_u32 v29, v25, 5, s39
    s_waitcnt lgkmcnt(0)
    """)
    for b_ in range(6):
        a.e(f"ds_read_b64_tr_b16 {vr(ZT+4*b_,2)}, v26 offset:{b_*32}")
        a.e(f"ds_read_b64_tr_b16 {vr(ZT+4*b_+2,2)}, v26 offset:{b_*32 + 4*SP}")
    L = 112
    for st_ in (6, 3):
        for k in range(st_):
            a.e(f"v_add_f32 v{L+4*k}, v{L+4*k}, v{L+4*(st_+k)}\nv_add_f32 v{L+4*k+2}, v{L+4*k+2}, v{L+4*(st_+k)+2}")
    a.e(f"""
    v_add_f32 v{L}, v{L}, v{L+4}
    v_add_f32 v{L+1}, v{L+2}, v{L+6}
    v_add_f32 v{L}, v{L}, v{L+8}
    v_add_f32 v{L+1}, v{L+1}, v{L+10}
    v_mov_b32 v{L+2}, v{L}
    v_mov_b32 v{L+3}, v{L+1}
    s_nop 1
    v_permlane32_swap_b32 v{L}, v{L+2}
    v_permlane32_swap_b32 v{L+1}, v{L+3}
    s_nop 1
    v_add_f32 v{L}, v{L}, v{L+2}
    v_add_f32 v{L+1}, v{L+1}, v{L+3}
    v_mul_f32 v{L}, {f2u(1/2304.)}, v{L}
    v_mul_f32 v{L+1}, {f2u(1/2304.)}, v{L+1}
    v_fma_f32 v{L+1}, -v{L}, v{L}, v{L+1}
    v_max_f32 v{L+1}, 0, v{L+1}
    v_add_f32 v{L+1}, {f2u(1e-5)}, v{L+1}
    v_rsq_f32 v{L+1}, v{L+1}
    s_nop 0
    v_mul_f32 v{L+2}, v{R}, v{L+1}
    v_mul_f32 v{L+3}, -v{L}, v{L+1}
    ds_write_b32 v28, v{L+2}
    ds_write_b32 v28, v{L+3} offset:128
    s_waitcnt lgkmcnt(0)
    ds_read_b128 {vr(L+8)}, v29
    ds_read_b128 {vr(L+12)}, v29 offset:16
    ds_read_b128 {vr(L+16)}, v29 offset:128
    ds_read_b128 {vr(L+20)}, v29 offset:144
    s_waitcnt lgkmcnt(0)
    """)
    for b_ in range(6):
        for k in range(4):
            z = ZT + 4*b_ + k; t = 32 + 2*(k & 1)
            a.e(f"v_lshlrev_b32 v{t}, 16, v{z}")
            a.e(f"v_and_b32 v{t+1}, 0xffff0000, v{z}")
            a.e(f"v_fma_f32 v{t}, v{t}, v{L+8+2*k}, v{L+16+2*k}")
            a.e(f"v_fma_f32 v{t+1}, v{t+1}, v{L+9+2*k}, v{L+17+2*k}")
            a.e(f"v_cvt_pk_bf16_f32 v{z}, v{t}, v{t+1}")
        if b_ % 2 == 0 and b_ > 0:
            a.e("s_add_u32 s54, s54, 4096")
        a.e(f"buffer_store_dwordx4 {vr(ZT+4*b_)}, v0, s[20:23], s54 offen offset:{(b_&1)*1024} {Z2SC}")
    repack_stores(a, name)
    if stamp == 3:
        a.e(f"""
        s_add_u32 s84, s20, {STAMP + 8*65536}
        s_addc_u32 s85, s21, 0
        s_mov_b32 s86, 0x200000
        s_mov_b32 s87, 0x20000
        s_lshl_b32 s88, s2, 3
        s_add_u32 s88, s88, s3
        s_lshl_b32 s88, s88, 9
        v_writelane_b32 v18, s92, 0
        v_lshlrev_b32 v1, 2, v2
        buffer_store_dword v18, v1, s[84:87], s88 offen
        buffer_store_dword v61, v1, s[84:87], s88 offen offset:256
        """)

def stat_issue(a, tracked=True):
    f = a.vm if tracked else (lambda t, k=None: a.e(t))
    a.e(f"""
    v_lshrrev_b32 v63, 9, v0            ; h
    v_mul_u32_u24 v63, {12*2048}, v63
    v_add_u32 v63, v63, v21
    s_mov_b32 s45, s55
    """)
    for k in range(12):
        if k % 2 == 0 and k: a.e("s_add_u32 s45, s45, 4096")
        f(f"buffer_load_dwordx4 {vr(112+4*k)}, v63, s[20:23], s45 offen offset:{(k%2)*2048}" + ("" if tracked else " sc1"), "stl")

def touch(a, vt=22):
    a.e(f"""
    s_load_dwordx2 s[62:63], s[0:1], {KA_WSP}
    s_lshl_b32 s38, s32, 3
    s_add_u32 s38, s38, s33
    s_lshl_b32 s38, s38, 3
    s_add_u32 s38, s38, s3              ; 0..511
    s_sub_u32 s39, s38, 324
    s_cmp_lt_u32 s38, 324
    s_cselect_b32 s28, s70, s72
    s_cselect_b32 s29, s71, s73
    s_mov_b32 s30, {D*D*2}
    s_cselect_b32 s30, {F2*D*2}, s30
    s_cselect_b32 s39, s38, s39
    s_mov_b32 s31, 0x20000
    s_lshl_b32 s39, s39, 13
    v_lshlrev_b32 v{vt}, 3, v0
    v_add_u32 v{vt+1}, s39, v{vt}
    """)
    a.vm(f"buffer_load_dword v{vt+1}, v{vt+1}, s[28:31], 0 offen")
    a.e(f"""
    s_waitcnt lgkmcnt(0)
    s_mov_b32 s28, s62
    s_mov_b32 s29, s63
    s_mov_b32 s30, {S*S*2}
    s_lshl_b32 s39, s38, 14
    """)
    a.lg_done = a.lg_n - 1
    a.vm(f"buffer_load_dword v13, v{vt}, s[28:31], s39 offen")
    a.e("s_add_u32 s39, s39, 8192")
    a.vm(f"buffer_load_dword v15, v{vt}, s[28:31], s39 offen")

def repack_loads(a, name, tag, base):
    lb = f"{name}_rp{tag}"
    a.e(f"""
    s_cmp_ge_u32 s60, 720
    s_cbranch_scc1 {lb}
    s_lshr_b32 s61, s60, 3              ; step
    s_and_b32 s62, s60, 7               ; d tile
    s_cmp_lt_u32 s61, 72
    s_cselect_b32 s28, s70, s72
    s_cselect_b32 s29, s71, s73
    s_mov_b32 s30, {D*D*2}
    s_cselect_b32 s30, {F2*D*2}, s30
    s_mov_b32 s31, 0x20000
    s_mov_b32 s63, {8*1152}
    s_cselect_b32 s63, {16*1152}, s63           ; j2 stride
    s_mov_b32 s64, {2*1152}                     ; j1 stride
    s_mov_b32 s65, {18*1152}
    s_cselect_b32 s65, {8*1152}, s65            ; k1 stride
    s_mov_b32 s66, {4*1152}                     ; k0 stride
    s_mul_i32 s67, s61, {32*1152}
    s_sub_u32 s68, s61, 72
    s_mul_i32 s68, s68, {36*1152}
    s_cmp_lt_u32 s61, 72
    s_cselect_b32 s67, s67, s68
    s_sub_u32 s68, s61, 88
    s_mul_i32 s68, s68, {288*1152}
    s_add_u32 s68, s68, {16*1152}
    s_cmp_ge_u32 s61, 88
    s_cselect_b32 s67, s68, s67
    s_cselect_b32 s63, {36*1152}, s63
    s_cselect_b32 s64, {18*1152}, s64
    s_cselect_b32 s65, {144*1152}, s65
    s_cselect_b32 s66, {72*1152}, s66
    s_mul_i32 s68, s62, 144
    s_add_u32 s67, s67, s68
    v_lshrrev_b32 v180, 9, v0
    v_mul_lo_u32 v180, v180, s64
    v_bfe_u32 v181, v0, 8, 1
    v_mul_u32_u24 v181, 1152, v181
    v_add_u32 v180, v180, v181
    v_and_b32 v181, 0xf0, v0
    v_add_u32 v180, v180, v181
    v_mov_b32 v182, {BIG}
    v_cmp_gt_u32 vcc, 144, v181
    s_lshl_b32 s48, s3, 13
    s_add_u32 s48, s48, {base}
    s_nop 0
    v_cndmask_b32 v180, v182, v180, vcc
    """)
    for i in range(8):
        j2, k1, k0 = i >> 2, (i >> 1) & 1, i & 1
        a.e(f"s_add_u32 m0, s48, {i*1024}")
        a.e(f"s_mov_b32 s68, s67")
        if j2: a.e("s_add_u32 s68, s68, s63")
        if k1: a.e("s_add_u32 s68, s68, s65")
        if k0: a.e("s_add_u32 s68, s68, s66")
        a.e(f"buffer_load_dwordx4 v180, s[28:31], s68 offen lds")
    a.label(lb)

def repack_stores(a, name):
    lb = f"{name}_rps"
    a.e(f"""
    s_cmp_ge_u32 s60, 720
    s_cbranch_scc1 {lb}
    v_lshrrev_b32 v181, 6, v0
    v_lshlrev_b32 v181, 8, v181
    v_bfe_u32 v182, v0, 4, 2
    v_lshl_add_u32 v181, v182, 3, v181
    v_add_u32 v181, s48, v181
    s_and_b32 s63, s62, 1
    s_lshl_b32 s64, s63, 4
    v_add_u32 v182, s64, v181
    s_lshl_b32 s64, s63, 7
    s_sub_u32 s65, 128, s64
    v_add_u32 v181, s65, v181
    """)
    for i in range(4):
        a.e(f"ds_read_b64_tr_b16 {vr(160+4*i,2)}, v182 offset:{32*i}")
        a.e(f"ds_read_b64_tr_b16 {vr(162+4*i,2)}, v182 offset:{32*i + 4096}")
    a.e(f"""
    ds_read_b64_tr_b16 v[176:177], v181
    ds_read_b64_tr_b16 v[178:179], v181 offset:4096
    s_lshr_b32 s68, s62, 1
    s_mul_i32 s68, s68, 90
    s_add_u32 s68, s68, s61
    s_mul_i32 s68, s68, {9*1024}
    s_add_u32 s68, s68, {WP}
    s_add_u32 s65, s68, s64
    s_add_u32 s65, s65, 4096
    s_mul_i32 s63, s63, {5*1024}
    s_add_u32 s68, s68, s63
    v_and_b32 v182, 0x80, v0
    v_cmp_eq_u32 vcc, 0, v182
    v_mov_b32 v182, {BIG}
    s_nop 0
    v_cndmask_b32 v181, v182, v0, vcc
    s_waitcnt lgkmcnt(0)
    """)
    for i in range(4):
        a.e(f"buffer_store_dwordx4 v[{160+4*i}:{163+4*i}], v0, s[20:23], s68 offen offset:{1024*i} sc1")
    a.e(f"buffer_store_dwordx4 v[176:179], v181, s[20:23], s65 offen sc1")
    a.label(lb)

def gen_k1(name="k1_kernel", stamp=False, attn=True, merged=False):
    a = Sched()
    a.e(f"""
    s_cmp_ge_u32 s2, 256
    s_cbranch_scc1 {name}_end
    """)
    if stamp: stamp_begin(a)
    a.e(f"""
    s_load_dwordx4 s[4:7], s[0:1], {KA_X}         ; x, wqkv
    s_load_dwordx2 s[74:75], s[0:1], {KA_WPHI}
    s_load_dwordx2 s[72:73], s[0:1], {KA_WO}
    s_load_dwordx2 s[28:29], s[0:1], {KA_WIN}
    s_load_dwordx2 s[70:71], s[0:1], {KA_WOUT}
    s_load_dwordx4 s[64:67], s[0:1], {KA_DBG}
    v_lshrrev_b32 v1, 6, v0
    v_and_b32 v2, 63, v0
    v_readfirstlane_b32 s3, v1
    s_and_b32 s30, s2, 7
    s_lshr_b32 s31, s2, 3               ; l
    s_and_b32 s35, s30, 1
    s_lshr_b32 s30, s30, 1              ; j
    s_waitcnt lgkmcnt(0)
    """)
    srd(a, 24, 64, 65, 256)
    epoch_publish(a, name)
    srd(a, 8, 4, 5, S*D*2)
    srd(a, 16, 6, 7, D*1728*2)
    srd(a, 12, 28, 29, D*4608*2)
    srd(a, 20, 66, 67, WS_USED)
    NT = int(os.environ.get("NT", 0))
    if NT:
        a.e(f"""
        s_mul_i32 s38, s2, 5
        s_add_u32 s38, s38, s3
        s_sub_u32 s39, s38, 288
        s_sub_u32 s40, s38, {288+243}
        s_cmp_lt_u32 s38, {288+243}
        s_cselect_b32 s76, s16, s12
        s_cselect_b32 s77, s17, s13
        s_cselect_b32 s78, s18, s14
        s_cselect_b32 s39, s39, s40
        s_cmp_lt_u32 s38, 288
        s_cselect_b32 s76, s8, s76
        s_cselect_b32 s77, s9, s77
        s_cselect_b32 s78, s10, s78
        s_cselect_b32 s39, s38, s39
        s_mov_b32 s79, 0x20000
        s_cmp_ge_u32 s3, 5
        s_cselect_b32 s78, 0, s78
        s_lshl_b32 s39, s39, 13
        v_lshlrev_b32 v63, 7, v2
        v_add_u32 v63, s39, v63
        """)
        a.vm("buffer_load_dword v63, v63, s[76:79], 0 offen")
    a.e(f"""
    s_cmp_ge_u32 s31, 24
    s_cbranch_scc1 {name}_attn
    s_lshl_b32 s32, s35, 3
    s_and_b32 s33, s31, 7
    s_add_u32 s32, s32, s33             ; rt
    s_mul_i32 s33, s30, 3
    s_lshr_b32 s34, s31, 3
    s_add_u32 s33, s33, s34             ; zg
    s_lshr_b32 s34, s33, 2
    s_sub_u32 s34, s33, s34             ; qi
    s_and_b32 s36, s33, 3
    s_cmp_eq_u32 s36, 3
    s_cselect_b32 s18, 0, s18
    s_cselect_b32 s34, 0, s34
    s_mul_i32 s60, s33, 16
    s_add_u32 s60, s60, s32
    s_lshl_b32 s60, s60, 2
    s_add_u32 s60, s60, s3
    s_cmp_ge_u32 s3, 4
    s_cselect_b32 s60, 720, s60
    """)
    gen_zpath(a, name, stamp)
    if os.environ.get("ENDINV"): a.e("s_waitcnt vmcnt(0)\n" + os.environ["ENDINV"])
    if merged:
        a.e(f"v_readfirstlane_b32 s69, v60\ns_lshl_b32 s68, s33, 4\ns_add_u32 s68, s68, s32\ns_branch {name}_p2")
    else:
        if stamp: stamp_end(a, 1, "s3", 4)
        a.e("s_endpgm")
    a.label(f"{name}_attn")
    from k1a import gen_attn, A_LDS
    b = Sched(); b.uid = 1000; b.vm_n = 1 if NT else 0
    gen_attn(b, name, stamp, attn, merged)
    a.lines += b.lines
    lds = max(Z_LDS, A_LDS)
    if merged: return a.lines, lds
    a.label(f"{name}_end")
    a.e("s_endpgm")
    launch = f"; @launch kernel={name} grid=(256,1,1) block=(512,1,1) lds={lds}\n"
    return launch, kernel_begin(name) + a.text(), kernel_desc(name, 256, 102, 256)
```

```python
import os
from k1common import *
from sched import Sched
XRA = 0
WRA = 98304
PHI = 40960
AFO = 147456
CSA = AFO + 14*1024
WPH = AFO + 10*1024
A_LDS = CSA + 1024
PPH, PV = 328, 152

def gen_attn(a, name, stamp, full=True, merged=False):
    X = 112; ACC = [48, 64, 80, 96]; WF = [24, 28, 32, 36]
    NEGMU, R, TAG = 8, 10, 14

    a.e(f"""
    s_sub_u32 s33, s31, 24
    s_lshl_b32 s32, s35, 2
    s_and_b32 s34, s33, 3
    s_add_u32 s32, s32, s34             ; rt2
    s_lshr_b32 s33, s33, 2
    s_lshl_b32 s34, s30, 1
    s_add_u32 s33, s33, s34             ; G
    s_and_b32 s34, s33, 1               ; G odd
    s_mul_i32 s36, s33, 144
    s_lshl_b32 s37, s34, 4
    s_sub_u32 s37, s36, s37
    s_add_u32 s37, s37, 1152
    s_add_u32 s36, s36, {2304 - 160}
    """)
    def colreg(a, dst, unit, t):
        a.e(f"""
        v_cmp_gt_u32 vcc, 10, v{unit}
        v_mov_b32 v{dst}, s36
        v_mov_b32 v{t}, s37
        v_cndmask_b32 v{dst}, v{dst}, v{t}, vcc
        v_lshl_add_u32 v{dst}, v{unit}, 4, v{dst}
        """)
    a.e(f"""
    v_lshrrev_b32 v28, 3, v2
    v_and_b32 v29, 7, v2
    v_lshrrev_b32 v31, 4, v2
    v_xor_b32 v31, v31, v29
    v_mul_u32_u24 v8, 1152, v28
    v_lshl_add_u32 v8, v31, 4, v8
    v_xor_b32 v9, 64, v8
    v_add_u32 v10, {2*(8*1152-1024)}, v8
    v_add_u32 v11, {3*(8*1152-1024)}, v9
    v_add_u32 v9, {8*1152-1024}, v9
    s_lshl_b32 s43, s32, 8
    s_lshl_b32 s44, s3, 5
    s_add_u32 s43, s43, s44
    s_lshl_b32 s59, s43, 4
    s_add_u32 s59, s59, {XST}
    s_mul_i32 s43, s43, 1152
    s_lshl_b32 s44, s3, 12
    v_and_b32 v26, 3, v2
    v_lshrrev_b32 v30, 2, v2
    v_mul_u32_u24 v30, 3456, v30
    s_lshr_b32 s38, s3, 1
    s_lshl_b32 s38, s38, 2
    v_add_u32 v27, s38, v26
    """)
    colreg(a, 5, 27, 29)
    a.e(f"""
    v_add_u32 v5, v5, v30
    v_add_u32 v6, {16*3456 - 1024}, v5
    s_and_b32 s40, s3, 1
    s_mul_i32 s40, s40, {32*3456}
    s_lshl_b32 s42, s3, 11
    s_add_u32 s42, s42, {WRA}
    """)
    wid = {}; xid = {}; pend = []
    def issue(k):
        if k[0] == "x":
            c, i = k[1], k[2]
            if i == 0: a.e(f"s_add_u32 m0, s44, {XRA + (c%3)*32768}\ns_add_u32 s46, s43, {c*128}")
            xid[c] = a.vm(f"buffer_load_dwordx4 v{8+i}, s[8:11], s46 offen offset:{i*1024} lds")
        elif k[0] == "w":
            c, i = k[1], k[2]
            if i == 0: a.e(f"s_add_u32 m0, s42, {(c%3)*16384}\ns_add_u32 s46, s40, {c*64*3456}")
            wid[c] = a.vm(f"buffer_load_dwordx4 v{5+i}, s[16:19], s46 offen offset:{i*1024} lds")
        else:
            i = k[1]
            a.e(f"s_add_u32 m0, s48, {XRA + i*8192}\ns_add_u32 s46, s41, {i*128*3456}")
            if i < 4:
                wid[("b4", i)] = a.vm(f"buffer_load_dwordx4 v7, s[16:19], s46 offen lds")
            else:
                a.e("v_add_u32 v22, s46, v7")
                wid[("b4", i)] = a.vm(f"buffer_load_dwordx4 v22, s[16:19], 0 offen lds")
    def push(c):
        pend.extend([("x", c, i) for i in range(4)] + [("w", c, 0), ("w", c, 1)])
    def dma(n=1):
        for _ in range(n):
            if pend: issue(pend.pop(0))
    push(0); dma(100)
    a.e(f"""
    s_lshl_b32 s38, s3, 2
    v_add_u32 v27, s38, v26
    """)
    colreg(a, 28, 27, 29)
    a.e(f"""
    v_add_u32 v28, v28, v30
    v_mov_b32 v31, {BIG}
    s_cmp_lt_u32 s3, 5
    s_cselect_b64 vcc, -1, 0
    v_cndmask_b32 v28, v31, v28, vcc
    v_cmp_gt_u32 vcc, 32, v2
    s_mul_i32 s39, s32, {72*3456}
    s_nop 0
    v_cndmask_b32 v29, v31, v28, vcc
    """)
    for i in range(5):
        coop_id = a.vm(f"buffer_load_dwordx4 {vr(216+4*i)}, v{28 if i < 4 else 29}, s[16:19], s39 offen")
        if i < 4: a.e(f"s_add_u32 s39, s39, {16*3456}")
    a.e(f"""
    s_mov_b32 s28, s74
    s_mov_b32 s29, s75
    s_mov_b32 s30, {32*18*18*2}
    s_mov_b32 s31, 0x20000
    s_min_u32 s38, s3, 3
    s_lshl_b32 s38, s38, 10
    s_add_u32 m0, s38, {WPH}
    s_mul_i32 s39, s33, 2592
    s_add_u32 s39, s39, s38
    v_lshlrev_b32 v0, 4, v2
    s_cmp_ge_u32 s3, 3
    s_cselect_b64 vcc, -1, 0
    v_add_u32 v28, s39, v0
    v_cndmask_b32 v28, v28, v31, vcc
    """)
    a.vm("buffer_load_dwordx4 v28, s[28:31], 0 offen lds")
    a.e(f"""
    s_cmp_eq_u32 s3, 0
    s_cselect_b32 s38, 0, {BIG}
    v_mov_b32 v4, s38
    """)
    push(1); dma(100)
    ep_id = a.vm(f"buffer_load_dword v{TAG}, v4, s[24:27], 0 offen sc1")
    a.e(f"""
    v_add_u32 v27, 16, v26
    """)
    colreg(a, 7, 27, 29)
    a.e(f"""
    v_add_u32 v7, v7, v30               ; B4 panel
    s_mul_i32 s41, s3, {16*3456}
    s_lshl_b32 s48, s3, 10
    v_lshrrev_b32 v24, 5, v2
    v_and_b32 v22, 15, v2
    v_lshrrev_b32 v23, 2, v22           ; r
    v_and_b32 v22, 3, v22               ; c
    v_bfe_u32 v25, v2, 4, 1             ; n half
    v_lshl_add_u32 v12, v24, 3, v23     ; 8h + r
    v_lshlrev_b32 v1, 6, v12
    v_lshl_add_u32 v1, v25, 5, v1
    v_lshl_add_u32 v3, v22, 3, v1
    v_add_u32 v1, {WRA}, v3
    v_and_b32 v32, 31, v2               ; s
    v_bfe_u32 v33, v2, 1, 3
    v_xor_b32 v33, v33, v24
    v_lshlrev_b32 v33, 4, v33
    v_lshl_add_u32 v16, v32, 7, v33
    v_add_u32 v16, s44, v16
    v_xor_b32 v17, 32, v16
    v_xor_b32 v18, 64, v16
    v_xor_b32 v19, 96, v16
    v_lshlrev_b32 v21, 3, v32           ; s*8
    """)
    push(2)
    a.keys["coop"] = ("vm", coop_id)
    b = Sched()
    b.e(f"""
    s_mul_i32 s57, s33, {8*160*8}
    s_add_u32 s57, s57, {CSPA}
    s_mul_i32 s47, s32, {160*8}
    s_add_u32 s47, s47, s57
    s_lshl_b32 s50, s3, 8
    s_add_u32 s47, s47, s50
    v_and_b32 v250, 3, v2
    v_lshlrev_b32 v250, 6, v250
    v_lshrrev_b32 v249, 4, v2
    v_lshl_add_u32 v250, v249, 3, v250
    v_and_b32 v249, 12, v2
    v_cmp_eq_u32 vcc, 0, v249
    s_mov_b32 s62, 0x00003f80
    s_mov_b32 s63, 0x3f800000
    v_mov_b32 v249, {BIG}
    s_cmp_ge_u32 s3, 5
    s_cselect_b64 vcc, 0, vcc
    v_cndmask_b32 v250, v249, v250, vcc
    """)
    a.add_block(b.lines, "x"); b.lines = []
    a.add("w", None, "coop")
    for i in range(5): colsum_add(b, 236, 216 + 4*i, i == 0)
    fold_pairs(b, 236, [4, 8])
    a.add_block(b.lines, "x"); b.lines = []
    a.add("gate")
    a.add("lg", f"ds_read_b32 v{TAG}, v4", "tag")
    a.add("w", None, "tag")
    a.addv(f"v_mov_b32 v237, v{TAG}\nv_mov_b32 v241, v{TAG}")
    a.add("vm", f"buffer_store_dwordx2 v[236:237], v250, s[20:23], s47 offen sc1")
    a.add("vm", f"buffer_store_dwordx2 v[240:241], v250, s[20:23], s47 offen offset:32 sc1")
    a.addv(f"""
    s_mul_i32 s50, s3, 160
    v_and_b32 v22, 7, v2
    v_lshrrev_b32 v23, 3, v2
    v_mul_u32_u24 v23, 1280, v23
    v_lshl_add_u32 v23, v22, 3, v23
    v_add_u32 v23, s50, v23
    v_cmp_gt_u32 vcc, 4, v22
    v_mov_b32 v47, {BIG}
    s_lshr_b32 s50, s50, 1
    v_cndmask_b32 v47, v47, v23, vcc
    s_add_u32 s50, s50, {CSA}
    v_lshl_add_u32 v20, v22, 2, s50
    v_lshlrev_b32 v15, 1, v21
    """)
    a.add("mark", None, "sigready")
    a.addv(f"""
    v_lshrrev_b32 v224, 5, v2           ; h'
    v_bfe_u32 v225, v2, 3, 2            ; g
    v_and_b32 v226, 3, v2               ; r
    v_lshl_add_u32 v225, v225, 2, v226  ; n = 4g + r
    s_lshr_b32 s50, s3, 1               ; i
    s_and_b32 s51, s3, 1
    s_lshl_b32 s51, s51, 4
    s_lshl_b32 s52, s50, 1
    s_sub_u32 s51, s51, s52
    s_lshl_b32 s52, s34, 3
    s_sub_u32 s51, s51, s52             ; D0 = 16t - 2i - 8(G&1)
    v_lshlrev_b32 v227, 2, v224
    v_add_u32 v228, s51, v227
    s_mul_i32 s50, s50, 648
    s_add_u32 s50, s50, {WPH}
    v_lshlrev_b32 v229, 1, v225
    v_add_u32 v229, s50, v229
    v_lshrrev_b32 v230, 1, v225         ; i' = n>>1
    s_lshl_b32 s53, s3, 4
    s_sub_u32 s53, s53, s52
    v_add_u32 v231, s53, v227
    v_mul_u32_u24 v226, 18, v230
    v_sub_u32 v231, v231, v226
    v_cmp_lt_u32 vcc, 7, v225
    v_mov_b32 v227, 1000
    v_mul_u32_u24 v230, 648, v230
    v_cndmask_b32 v231, v231, v227, vcc
    v_and_b32 v226, 1, v225
    v_lshl_add_u32 v230, v226, 1, v230
    v_add_u32 v230, {32 + WPH}, v230
    v_mov_b32 v227, {WPH + 3072}
    """)
    AFL = 232
    for f, (db, vf) in enumerate(((228, 229), (231, 230))):
        for j in range(8):
            a.addv(f"""
            v_add_u32 v226, {8*(j>>2) + (j&3)}, v{db}
            v_cmp_gt_u32 vcc, 18, v226
            v_mul_u32_u24 v226, 36, v226
            v_add_u32 v226, v226, v{vf}
            v_cndmask_b32 v226, v227, v226, vcc
            """)
            a.add("lg", f"ds_read_u16 v{AFL + 8*f + j}, v226", "afl")
    a.addv(f"""
    v_bfe_u32 v224, v2, 2, 1
    v_mov_b32 v225, 0x80008000
    v_mul_lo_u32 v224, v224, v225
    s_add_u32 s50, s48, {AFO}
    v_add_u32 v225, s50, v0
    s_min_u32 s51, s3, 5
    s_lshl_b32 s51, s51, 10
    s_add_u32 s50, s51, {AFO + 8192}
    v_add_u32 v226, s50, v0
    s_mul_i32 s52, s33, {13*1024}
    s_add_u32 s52, s52, {AF}
    s_add_u32 s51, s51, s52
    s_add_u32 s51, s51, 8192
    s_add_u32 s52, s52, s48
    v_mov_b32 v227, {BIG}
    s_cmp_eq_u32 s32, 0
    s_cselect_b64 vcc, -1, 0
    v_cndmask_b32 v228, v227, v0, vcc
    s_cmp_ge_u32 s3, 5
    s_cselect_b64 vcc, 0, vcc
    v_cndmask_b32 v229, v227, v0, vcc
    """)
    a.add("w", None, "afl")
    for f in range(2):
        for k in range(4):
            a.addv(f"v_lshl_or_b32 v{248+4*f+k}, v{AFL+8*f+2*k+1}, 16, v{AFL+8*f+2*k}")
            a.addv(f"v_xor_b32 v{248+4*f+k}, v{248+4*f+k}, v224")
    a.add("gate", None, "af")
    a.add("lg", f"ds_write_b128 v225, {vr(248)}")
    a.add("lg", f"ds_write_b128 v226, {vr(252)}")
    a.add("vm", f"buffer_store_dwordx4 {vr(248)}, v228, s[20:23], s52 offen sc1")
    a.add("vm", f"buffer_store_dwordx4 {vr(252)}, v229, s[20:23], s51 offen sc1")
    a.addv("s_nop 1")
    def barrier(vmid):
        a.wait(vm=vmid, lg=a.lg_n - 1)
        a.e("s_barrier")
    def hand_loads(a, tracked=True):
        f = a.vm if tracked else (lambda t, k=None: a.e(t))
        sc = "" if tracked else " sc1"
        f(f"buffer_load_dwordx4 {vr(NEGMU)}, v15, s[20:23], s59 offen{sc}")
        for k in range(3):
            f(f"buffer_load_dwordx2 {vr(40 + 2*k, 2)}, v{47 if k == 2 else 23}, s[20:23], s57 offen offset:{64*k}{sc}", "csp")
    seq = [(c, j, b) for c in range(9) for j in range(4) for b in range(4)]
    rid = {}
    def rd(n):
        c, j, b = seq[n]
        if b == 0:
            xr = X + (4*c + j)*4
            if c % 3 < 2:
                a.lg(f"ds_read_b128 {vr(xr)}, v{16+j} offset:{(c%3)*32768}")
            else:
                a.e(f"v_add_u32 v13, 65536, v{16+j}")
                a.lg(f"ds_read_b128 {vr(xr)}, v13")
        w = WF[n % 4]
        off = (c % 3)*16384 + b*4096 + j*1024
        a.lg(f"ds_read_b64_tr_b16 {vr(w,2)}, v1 offset:{off}")
        rid[n] = a.lg(f"ds_read_b64_tr_b16 {vr(w+2,2)}, v1 offset:{off+256}")
    AH = 3
    barrier(max(xid[0], wid[0]))
    if stamp: stamp_mid(a, 0)
    for n in range(AH): rd(n)
    b4 = {}
    def rd4(i):
        w = WF[i % 4]
        a.lg(f"ds_read_b64_tr_b16 {vr(w,2)}, v3 offset:{i*1024}")
        b4[i] = a.lg(f"ds_read_b64_tr_b16 {vr(w+2,2)}, v3 offset:{i*1024+256}")
    for n, (c, j, b) in enumerate(seq):
        a.wait(lg=rid[n])
        m = n + AH
        if m < len(seq):
            if m % 16 == 0:
                c1 = m // 16
                dma(100)
                if c1 == 1:
                    a.wait(vm=ep_id)
                    epoch_share(a, name, 0, TAG, 4, CSA + 1020)
                barrier(max(xid[c1], wid[c1]))
                if c1 == 1: a.e(f"v_mov_b32 v4, {CSA + 1020}")
                a.open_gate('af')
                if c1 + 2 < 9: push(c1 + 2)
                if c1 == 7: pend.extend([("b4", i) for i in range(4)])
                if c1 == 8: pend.append(("b4", 4))
                if c1 == 7: hand_loads(a)
            rd(m)
        a.e(f"{MF32} {vr(ACC[b],16)}, {vr(WF[n % 4])}, {vr(X + (4*c+j)*4)}, " + ("0" if n < 4 else vr(ACC[b],16)))
        if n % 2 == 1: dma(1)
        if n + AH >= 16: a.open_gate()
        a.pump(6 if n < 32 else 5)
        if n + AH + 1 == 16*6: assert "sigready" in a.marks
        if n + AH + 1 == 16*7: assert all(k in ('gate', 'lg', 'vm') or t == 's_nop 1' for k, t, _ in a.fill), len(a.fill)
        if n + AH + 1 == 16*8: assert not a.fill
    if stamp: stamp_mid(a, 1)
    dma(100)
    a.wait_key("csp")
    rl = lambda a: hand_loads(a, False)
    tags_retry(a, name, [41, 43, NEGMU + 1, NEGMU + 3], TAG, 4, rl)
    tags_retry(a, name, [45, 45], TAG, 4, rl, 47)
    a.e("v_mov_b32 v41, v42\nv_mov_b32 v42, v44")
    fold8(a, 40, 44, 3)
    a.lg("ds_write_b32 v20, v40")
    a.lg("ds_write_b32 v20, v41 offset:32")
    a.e(f"""
    v_cmp_gt_u32 vcc, {BIG}, v47
    v_mov_b32 v43, {CSA + 1000 - 64}
    s_nop 0
    v_cndmask_b32 v20, v43, v20, vcc
    """)
    a.lg("ds_write_b32 v20, v42 offset:64")
    barrier(wid[("b4", 4)])
    a.e(f"""
    v_lshrrev_b32 v4, 9, v0
    v_lshlrev_b32 v4, 4, v4
    v_add_u32 v4, {CSA}, v4
    v_add_u32 v5, {AFO}, v0
    v_lshrrev_b32 v6, 3, v21
    s_lshl_b32 s38, s3, 5
    v_add_u32 v6, s38, v6
    v_lshrrev_b32 v9, 9, v0             ; h / sign
    v_mul_u32_u24 v7, {PV}, v6
    v_lshl_add_u32 v7, v9, 3, v7
    v_mul_u32_u24 v6, {PPH}, v6
    v_mul_u32_u24 v9, 40, v9
    v_add_u32 v6, v6, v9
    v_add_u32 v6, {PHI}, v6
    """)
    CB = [16, 16]
    def conv(b, acc, emit_now):
        for g in range(4):
            cb = CB[g & 1]; A = acc + 4*g
            a.add("lg", f"ds_read_b128 {vr(cb)}, v4 offset:{b*128 + g*32}", ("cs", b, g))
            a.add("w", None, ("cs", b, g))
            for r in range(4): a.addv(f"v_fmac_f32 v{A+r}, v{NEGMU}, v{cb+r}")
            for r in range(4): a.addv(f"v_mul_f32 v{A+r}, v{R}, v{A+r}")
            a.addv(f"v_cvt_pk_bf16_f32 v{acc+2*g}, v{A}, v{A+1}")
            a.addv(f"v_cvt_pk_bf16_f32 v{acc+2*g+1}, v{A+2}, v{A+3}")
        if emit_now: a.flush()
    if "k1touch" in os.environ.get("OPT", "k1touch"):
        from k1 import touch
        touch(a, 22)
    rd4(0); rd4(1)
    conv(3, ACC[3], True)
    for k in range(8): a.e(f"v_mov_b32 v{40+k}, v{96+k}")
    conv(0, ACC[0], False); conv(1, ACC[1], False); conv(2, ACC[2], False)
    for i in range(36):
        a.wait(lg=b4[i])
        if i + 2 < 36: rd4(i + 2)
        mfma(a, vr(ACC[3],16), vr(WF[i % 4]), vr(X + 4*i), "0" if i == 0 else vr(ACC[3],16))
        a.pump(6)
    a.flush()
    if stamp: stamp_mid(a, 2)
    KB = [48, 52, 64, 68, 80]
    AFR = 112
    P = [164, 180, 196, 212]; PT = 228
    for f in range(13):
        a.lg(f"ds_read_b128 {vr(AFR+4*f)}, v5 offset:{f*1024}", ("af", f))
    for st_ in range(5):
        a.wait_key(("af", 8 + st_))
        a.e(f"{MF32} {vr(PT,16)}, {vr(AFR+4*(8+st_))}, {vr(KB[st_])}, " + ("0" if st_ == 0 else vr(PT,16)))
    for i in range(4):
        for t in range(2):
            a.e(f"{MF32} {vr(P[i],16)}, {vr(AFR+4*(2*i+t))}, {vr(KB[i+t])}, " + ("0" if t == 0 else vr(P[i],16)))
    conv(4, ACC[3], True)
    a.e(f"s_mov_b32 s45, {f2u(LOG2E)}")
    for i in range(4):
        vals = [P[i] + k for k in range(16)] + [PT + 2*i, PT + 2*i + 1]
        softmax18(a, vals, 24, 28)
        for k in range(4):
            a.lg(f"ds_write_b64 v6, {vr(28+2*k,2)} offset:{i*80 + 8*k}")
        a.lg(f"ds_write_b32 v6, v36 offset:{i*80 + 32}")
    a.wait_all(vm=False)
    a.e("s_barrier")
    vq = [(84, 0), (86, 8)] + [(40 + 2*g, 16 + 8*g) for g in range(4)] + [(96 + 2*g, 48 + 8*g) for g in range(3)]
    for reg, cv in vq:
        a.lg(f"ds_write_b64 v7, {vr(reg,2)} offset:{2*cv}")
    a.e(f"""
    v_mov_b32 v24, {ONES}
    v_mov_b32 v25, {ONES}
    v_lshrrev_b32 v26, 9, v0
    v_lshlrev_b32 v26, 3, v26
    v_sub_u32 v26, v7, v26
    """)
    a.lg("ds_write_b64 v26, v[24:25] offset:144")
    a.e(f"""
    s_lshr_b32 s38, s3, 1               ; i
    s_and_b32 s39, s38, 1
    s_mul_i32 s40, s38, 36
    s_lshl_b32 s39, s39, 2
    s_sub_u32 s40, s40, s39
    v_bfe_u32 v24, v0, 4, 2             ; c
    v_bfe_u32 v25, v0, 8, 1             ; n half
    v_lshlrev_b32 v26, 3, v24
    v_lshl_add_u32 v26, v25, 5, v26
    v_add_u32 v27, s40, v26
    v_cmp_eq_u32 vcc, 40, v26
    v_mov_b32 v28, 144
    v_mul_u32_u24 v29, {PV}, v12
    v_cndmask_b32 v27, v27, v28, vcc
    v_add_u32 v27, v27, v29
    v_mul_u32_u24 v29, {PPH}, v12
    v_add_u32 v29, v29, v26
    s_mul_i32 s41, s3, 40
    s_add_u32 s41, s41, {PHI}
    v_add_u32 v29, s41, v29
    v_add_u32 v30, {128*PPH}, v29
    """)
    a.wait_all(vm=False)
    a.e("s_barrier")
    kid = {}
    for ks in range(16):
        r = 112 + 8*ks
        a.lg(f"ds_read_b64_tr_b16 {vr(r,2)}, v27 offset:{16*ks*PV}")
        a.lg(f"ds_read_b64_tr_b16 {vr(r+2,2)}, v27 offset:{(16*ks+4)*PV}")
        vb = 29 + ks // 8; o = (16*(ks % 8))*PPH
        a.lg(f"ds_read_b64_tr_b16 {vr(r+4,2)}, v{vb} offset:{o}")
        kid[ks] = a.lg(f"ds_read_b64_tr_b16 {vr(r+6,2)}, v{vb} offset:{o + 4*PPH}")
        if ks >= 2:
            k2 = ks - 2
            a.wait(lg=kid[k2])
            a.e(f"{MF32} {vr(48,16)}, {vr(112+8*k2)}, {vr(116+8*k2)}, " + ("0" if k2 == 0 else vr(48,16)))
    for k2 in (14, 15):
        a.wait(lg=kid[k2])
        a.e(f"{MF32} {vr(48,16)}, {vr(112+8*k2)}, {vr(116+8*k2)}, {vr(48,16)}")
    a.e(f"""
    s_lshl_b32 s38, s32, 6
    s_lshl_b32 s39, s33, 3
    s_add_u32 s38, s38, s39
    s_add_u32 s38, s38, s3
    s_mul_i32 s38, s38, 1920
    s_add_u32 s38, s38, {KVP}
    v_lshrrev_b32 v24, 9, v0
    v_mul_u32_u24 v24, 320, v24
    v_lshrrev_b32 v25, 1, v21
    v_add_u32 v24, v24, v25
    v_cmp_gt_u32 vcc, 80, v25
    v_mov_b32 v26, {BIG}
    s_nop 0
    v_cndmask_b32 v24, v26, v24, vcc
    s_nop 7
    """)
    for g in range(3):
        for r in range(4):
            a.e(f"buffer_store_dword v{48+4*g+r}, v24, s[20:23], s38 offen offset:{(8*g+r)*80} sc1")
    if merged:
        a.e(f"v_readfirstlane_b32 s69, v{TAG}\ns_lshl_b32 s68, s33, 3\ns_add_u32 s68, s68, s32\ns_add_u32 s68, s68, 192\ns_branch {name}_p2")
    elif stamp: stamp_end(a, 1, "s3", 3)

def softmax18(a, vals, t, out):
    m, sm = t, t + 1
    a.e(f"v_max3_f32 v{m}, v{vals[0]}, v{vals[1]}, v{vals[2]}")
    a.e(f"v_max3_f32 v{sm}, v{vals[3]}, v{vals[4]}, v{vals[5]}")
    for k in range(6, 18, 4):
        a.e(f"v_max3_f32 v{m}, v{m}, v{vals[k]}, v{vals[k+1]}")
        a.e(f"v_max3_f32 v{sm}, v{sm}, v{vals[k+2]}, v{vals[k+3]}")
    a.e(f"v_max_f32 v{m}, v{m}, v{sm}")
    a.e(f"v_mul_f32 v{m}, s45, v{m}")
    for v in vals: a.e(f"v_fma_f32 v{v}, v{v}, s45, -v{m}")
    for v in vals: a.e(f"v_exp_f32 v{v}, v{v}")
    a.e(f"v_add_f32 v{sm}, v{vals[0]}, v{vals[1]}")
    a.e(f"v_add_f32 v{t+2}, v{vals[2]}, v{vals[3]}")
    for k in range(4, 18, 2):
        a.e(f"v_add_f32 v{sm}, v{sm}, v{vals[k]}")
        a.e(f"v_add_f32 v{t+2}, v{t+2}, v{vals[k+1]}")
    a.e(f"v_add_f32 v{sm}, v{sm}, v{t+2}")
    a.e(f"v_rcp_f32 v{sm}, v{sm}")
    a.e("s_nop 0")
    for v in vals: a.e(f"v_mul_f32 v{v}, v{v}, v{sm}")
    for k in range(9):
        a.e(f"v_cvt_pk_bf16_f32 v{out+k}, v{vals[2*k]}, v{vals[2*k+1]}")
```

```python
import os
from asmlib import *
from sched import Sched
from layout import *
from k3 import srd
from k1common import *
from k1a import softmax18
from k2 import tile_ids

SLOT = 34 * 1024
KVI = 4 * SLOT
OSTG = KVI + 2048
OW = 2560
OIT = int(os.environ.get('OIT', 5))
MF16 = "v_mfma_f32_16x16x32_bf16"

def flag_wait(a, name, vflag, vaddr):
    lp = a.newlabel(name + "_fl"); ok = a.newlabel(name + "_fk")
    a.e("s_mov_b32 s58, 200000")
    a.label(lp)
    a.e(f"""
    v_cmp_ne_u32 vcc, s69, v{vflag}
    s_sub_u32 s58, s58, 1
    s_cmp_eq_u32 s58, 0
    s_cbranch_scc1 {ok}
    s_cmp_eq_u64 vcc, 0
    s_cbranch_scc1 {ok}
    s_sleep {int(os.environ.get('SLP', 6))}
    buffer_load_dword v{vflag}, v{vaddr}, s[20:23], 0 offen sc1
    s_waitcnt vmcnt(0)
    s_branch {lp}
    """)
    a.label(ok)

def flag_store(a, name, base, wave=0, idx='s2'):
    lb = a.newlabel(name + "_fs")
    a.e(f"""
    s_cmp_eq_u32 s3, {wave}
    s_cbranch_scc0 {lb}
    s_lshl_b32 s58, {idx}, 7
    s_add_u32 s58, s58, {base}
    v_mov_b32 v12, s69
    v_mov_b32 v13, s69
    v_mov_b32 v14, s69
    v_mov_b32 v15, s69
    s_mov_b64 exec, 0xff
    buffer_store_dwordx4 v[12:15], v3, s[20:23], s58 offen sc1
    s_mov_b64 exec, -1
    """)
    a.label(lb)

def side_stream(a, name, merged):
    KV = 104; AFR = 104; QR = [120, 128]; P = 136; PT = 232; PH = 120; KA = 232; T = 248; OUT = 152
    def raw(t):
        for l in t.strip().split("\n"): a.add("raw", l.strip())
    def mf(t): a.add("t", t)
    a.addv(f"""
    s_and_b32 s50, s2, 7
    s_lshr_b32 s51, s2, 3               ; head
    """)
    if merged:
        a.addv(f"""
        s_lshr_b32 s52, s51, 3
        s_add_u32 s52, s52, s51
        s_add_u32 s53, s52, 1
        s_lshr_b32 s52, s52, 2
        s_lshr_b32 s53, s53, 2
        s_mul_i32 s54, s52, 43
        s_lshr_b32 s54, s54, 7
        s_add_u32 s52, s52, s54
        s_mul_i32 s54, s53, 43
        s_lshr_b32 s54, s54, 7
        s_add_u32 s53, s53, s54
        s_lshl_b32 s54, s50, 1
        s_lshl_b32 s52, s52, 4
        s_lshl_b32 s53, s53, 4
        s_add_u32 s52, s52, s54
        s_add_u32 s53, s53, s54
        s_lshr_b32 s54, s51, 2
        s_lshl_b32 s54, s54, 3
        s_add_u32 s54, s54, 192
        v_and_b32 v250, 7, v2
        v_add_u32 v250, s54, v250
        v_writelane_b32 v250, s52, 8
        v_writelane_b32 v250, s53, 9
        s_add_u32 s52, s52, 1
        s_add_u32 s53, s53, 1
        v_writelane_b32 v250, s52, 10
        v_writelane_b32 v250, s53, 11
        v_lshlrev_b32 v250, 7, v250
        v_add_u32 v250, {F1}, v250
        buffer_load_dword v251, v250, s[20:23], 0 offen sc1
        """)
        a.add("gate"); a.add("gate")
        raw("s_waitcnt vmcnt(0)")
        a.add("call", lambda a: flag_wait(a, name, 251, 250))
    a.addv(f"""
    s_mul_i32 s52, s51, 3840
    s_add_u32 s52, s52, {KVP}
    v_lshlrev_b32 v252, 4, v0
    v_cmp_gt_u32 vcc, 3840, v252
    v_mov_b32 v253, {BIG}
    s_lshr_b32 s53, s51, 2
    s_mul_i32 s53, s53, 13
    v_cndmask_b32 v253, v253, v252, vcc
    """)
    for k in range(8):
        a.addv(f"buffer_load_dwordx4 {vr(KV+4*k)}, v253, s[20:23], s52 offen")
        if k < 7: a.addv(f"s_add_u32 s52, s52, {32*3840}")
    a.addv(f"""
    s_and_b32 s54, s51, 3               ; i
    s_lshl_b32 s55, s54, 1
    s_add_u32 s55, s55, s53
    s_lshl_b32 s55, s55, 10
    s_add_u32 s55, s55, {AF}
    s_add_u32 s56, s53, s54
    s_lshl_b32 s56, s56, 10
    s_add_u32 s56, s56, {AF + 8192}
    s_lshl_b32 s57, s50, 3
    s_lshl_b32 s58, s3, 1
    s_add_u32 s57, s57, s58
    s_mul_i32 s58, s57, 36
    s_lshr_b32 s59, s51, 3
    s_add_u32 s59, s59, s51
    s_add_u32 s58, s58, s59
    s_lshl_b32 s58, s58, 10
    s_add_u32 s58, s58, {Q}
    v_lshrrev_b32 v252, 1, v252
    v_add_u32 v252, {KVI}, v252
    s_mov_b32 s45, {f2u(LOG2E)}
    """)
    a.add("gate"); a.add("gate")
    raw("s_waitcnt vmcnt(0)")
    for k in range(1, 8):
        for r in range(4): a.addv(f"v_add_f32 v{KV+r}, v{KV+r}, v{KV+4*k+r}")
    a.addv(f"v_cvt_pk_bf16_f32 v{T}, v{KV}, v{KV+1}\nv_cvt_pk_bf16_f32 v{T+1}, v{KV+2}, v{KV+3}\nds_write_b64 v252, v[{T}:{T+1}]")
    for k in range(2):
        a.addv(f"buffer_load_dwordx4 {vr(AFR+4*k)}, v3, s[20:23], s55 offen offset:{k*1024}")
        a.addv(f"buffer_load_dwordx4 {vr(AFR+8+4*k)}, v3, s[20:23], s56 offen offset:{k*1024}")
        a.addv(f"buffer_load_dwordx4 {vr(QR[0]+4*k)}, v3, s[20:23], s58 offen offset:{k*1024}")
    a.addv(f"s_add_u32 s58, s58, {36*1024}")
    for k in range(2): a.addv(f"buffer_load_dwordx4 {vr(QR[1]+4*k)}, v3, s[20:23], s58 offen offset:{k*1024}")
    a.addv(f"""
    v_and_b32 v248, 31, v2
    s_and_b32 s52, s51, 1
    s_lshl_b32 s52, s52, 1
    v_add_u32 v249, s52, v248
    v_min_u32 v249, 23, v249
    v_and_b32 v250, 27, v248
    v_cmp_eq_u32 vcc, 18, v250
    v_mov_b32 v251, 20
    v_lshrrev_b32 v253, 5, v2
    v_cndmask_b32 v249, v249, v251, vcc
    v_mul_u32_u24 v250, 24, v253
    v_add_u32 v249, v249, v250
    v_mul_u32_u24 v249, 40, v249
    v_add_u32 v252, {KVI}, v249
    v_bfe_u32 v254, v2, 4, 1
    v_mul_u32_u24 v254, {90*1024}, v254
    v_and_b32 v255, 15, v2
    v_lshl_add_u32 v254, v255, 4, v254
    v_lshl_add_u32 v255, v253, 8, v254
    v_cmp_gt_u32 vcc, 32, v2
    v_mov_b32 v248, {BIG}
    s_mul_i32 s57, s57, {2*90*1024}
    v_cndmask_b32 v254, v248, v254, vcc
    s_add_u32 s57, s57, {U}
    s_lshr_b32 s52, s51, 1
    s_lshl_b32 s52, s52, 10
    s_and_b32 s53, s51, 1
    s_lshl_b32 s53, s53, 9
    s_add_u32 s52, s52, s53
    s_add_u32 s52, s52, {72*1024}
    s_add_u32 s52, s52, s57
    s_lshr_b32 s53, s51, 4
    s_lshl_b32 s53, s53, 10
    s_bfe_u32 s55, s51, 0x20002
    s_lshl_b32 s55, s55, 8
    s_add_u32 s53, s53, s55
    s_lshl_b32 s55, s54, 2
    s_add_u32 s53, s53, s55
    s_add_u32 s53, s53, {88*1024}
    s_add_u32 s53, s53, s57
    """)
    a.add("gate")
    raw("s_waitcnt vmcnt(0)")
    for b in range(2):
        for t in range(2):
            mf(f"{MF32} {vr(P,16)}, {vr(AFR+4*t)}, {vr(QR[b]+4*t)}, " + ("0" if t == 0 else vr(P,16)))
            mf(f"{MF32} {vr(PT,16)}, {vr(AFR+8+4*t)}, {vr(QR[b]+4*t)}, " + ("0" if t == 0 else vr(PT,16)))
        a.add("gate", None, "half")
        for i in range(1, 4):
            a.addv(f"s_cmp_eq_u32 s54, {i}\ns_cselect_b64 vcc, -1, 0")
            a.addv(f"v_cndmask_b32 v{PT}, v{PT}, v{PT+2*i}, vcc\nv_cndmask_b32 v{PT+1}, v{PT+1}, v{PT+2*i+1}, vcc")
        a.addv(f"v_mov_b32 v{OUT+6}, v{PT}\nv_mov_b32 v{OUT+7}, v{PT+1}")
        a.addv(f"""
        ds_read_b64 v[{KA}:{KA+1}], v252
        ds_read_b64 v[{KA+2}:{KA+3}], v252 offset:8
        ds_read_b64 v[{KA+4}:{KA+5}], v252 offset:16
        ds_read_b64 v[{KA+6}:{KA+7}], v252 offset:24
        ds_read_b32 v{KA+8}, v252 offset:32
        v_mov_b32 v{KA+9}, 0
        v_mov_b32 v{KA+10}, 0
        v_mov_b32 v{KA+11}, 0
        """)
        ph = PH if b == 1 else 0
        c = Asm()
        dst = 120 if b == 0 else 120
        softmax18(c, [P + k for k in range(16)] + [OUT + 6, OUT + 7], T, 0)
        PHR = [120 + k for k in range(8)] + [244]
        for l in c.lines:
            l = l.strip()
            if l.startswith("v_cvt_pk"):
                k = int(l.split()[1][1:-1]); l = l.replace(f"v{k},", f"v{PHR[k]},", 1)
            a.addv(l)
        a.addv("v_mov_b32 v245, 0\nv_mov_b32 v246, 0\nv_mov_b32 v247, 0")
        a.add("gate", None, "half")
        for st, r in enumerate((120, 124, 244)):
            mf(f"{MF32} {vr(P,16)}, {vr(KA+4*st)}, {vr(r)}, " + ("0" if st == 0 else vr(P,16)))
        a.add("gate", None, "half")
        a.addv(f"v_add_f32 v{T}, {f2u(1e-6)}, v{P+10}\nv_rcp_f32 v{T}, v{T}\ns_nop 0")
        for k in range(10): a.addv(f"v_mul_f32 v{P+k}, v{P+k}, v{T}")
        for k in range(5): a.addv(f"v_cvt_pk_bf16_f32 v{OUT+k}, v{P+2*k}, v{P+2*k+1}")
        a.addv(f"buffer_store_dwordx4 {vr(OUT)}, v255, s[20:23], s52 offen sc1\nbuffer_store_dword v{OUT+4}, v254, s[20:23], s53 offen sc1")
        if b == 0: a.addv(f"s_add_u32 s52, s52, {2*90*1024}\ns_add_u32 s53, s53, {2*90*1024}")

def gen_loader(name, hi, stamp, merged=False):
    a = Sched(); a.uid = 500 + 100*hi
    LM, LD = 3, 4
    lead = "L" in os.environ.get("ROT", "L")
    fb0 = 5 if hi else 0; fbx = 8 if hi else 4; nrun = 3 if hi else 4
    sid = {}
    def issue(s, part="wz"):
        base = (s % 4) * SLOT
        if lead:
            a.e(f"s_cmp_eq_u32 s62, {s & LM}\ns_cselect_b32 s63, {(s + LD) & 31}, {s}")
        else:
            a.e(f"s_mov_b32 s63, {s}")
        a.e(f"""
        s_lshl_b32 s64, s63, 7
        s_add_u32 s64, s64, s36
        s_add_u32 m0, s39, {base}
        s_mul_i32 s63, s63, {2*144*1024}
        """)
        if "w" in part:
            for i in range(4): a.vm(f"buffer_load_dwordx4 v{4+i}, s[12:15], s64 offen offset:{i*1024} lds")
        if "z" not in part: return
        a.e(f"s_add_u32 m0, s40, {base}\ns_add_u32 s64, s63, s37")
        for i in range(nrun - (1 if ('even' in os.environ.get('ABL2', '') and not hi) else 0)): a.vm(f"buffer_load_dwordx4 v3, s[16:19], s64 offen offset:{i*1024} lds")
        a.e(f"s_add_u32 m0, s41, {base}\ns_add_u32 s64, s63, s38")
        sid[s] = a.vm(f"buffer_load_dwordx4 v3, s[16:19], s64 offen lds")
    a.e(f"""
    s_add_u32 s62, s32, s33
    s_and_b32 s62, s62, {LM}
    s_and_b32 s42, s3, 1
    s_mul_i32 s43, s33, 9
    s_and_b32 s44, s33, 1
    s_add_u32 s45, s43, s44
    s_mul_i32 s46, s42, 144
    s_add_u32 s37, s45, s46
    s_add_u32 s37, s37, {fb0}
    s_lshl_b32 s37, s37, 10
    """)
    if hi:
        a.e("""
        s_cmp_eq_u32 s44, 0
        s_cselect_b32 s47, 8, 0
        s_add_u32 s38, s43, s47             ; g8
        s_add_u32 s38, s38, s46
        s_lshl_b32 s38, s38, 10
        """)
    else:
        a.e("s_add_u32 s38, s37, 4096")
    a.e(f"""
    s_mul_i32 s40, s42, {9*1024}
    s_add_u32 s41, s40, {fbx*1024}
    s_add_u32 s40, s40, {fb0*1024}
    s_lshl_b32 s39, s3, 12
    s_add_u32 s39, s39, {18*1024}
    """)
    if merged:
        for s in range(3): issue(s, "w")
        a.e(f"""
        s_mul_i32 s58, s33, 3
        s_add_u32 s59, s58, 2
        s_lshr_b32 s58, s58, 2
        s_lshr_b32 s59, s59, 2
        s_sub_u32 s59, s59, s58
        v_bfe_u32 v20, v2, 4, 1
        v_mul_lo_u32 v20, v20, s59
        v_add_u32 v20, s58, v20
        v_and_b32 v21, 15, v2
        v_lshl_add_u32 v20, v20, 4, v21
        v_lshlrev_b32 v20, 7, v20
        v_add_u32 v20, {F1}, v20
        s_waitcnt vmcnt(12)
        s_barrier
        """)
        flag_store(a, name, F1, 0, "s68")
        lb = a.newlabel(name + "_e1")
        a.e(f"s_cmp_eq_u32 s3, 1\ns_cbranch_scc0 {lb}\nbuffer_load_dword v22, v20, s[20:23], 0 offen sc1\ns_waitcnt vmcnt(0)")
        flag_wait(a, name, 22, 20)
        a.label(lb)
        a.e("s_barrier")
        for s in range(3): issue(s, "z")
    else:
        for s in range(3): issue(s)
    for s in range(32):
        need = sid[s]
        if s == 31: need = a.keys["fo"][1]
        a.wait(vm=need)
        a.e("s_barrier")
        if s == 4 + 4*OIT: flag_store(a, name, FO)
        if os.environ.get("LPRIO"): a.e("s_setprio 3")
        if s + 3 < 32: issue(s + 3)
        if os.environ.get("LPRIO"): a.e("s_setprio 0")
        if s == 24:
            a.e(f"""
            s_lshr_b32 s70, s33, 2              ; kq
            s_and_b32 s71, s33, 3               ; dj
            """)
            a.e(f"""
            s_mul_i32 s72, s33, 9
            s_and_b32 s73, s33, 1
            s_add_u32 s72, s72, s73
            s_lshr_b32 s72, s72, 1              ; st0
            s_mul_i32 s73, s70, 18
            s_sub_u32 s74, s72, s73
            s_mul_i32 s75, s70, 5
            s_cmp_eq_u32 s70, 3
            s_cselect_b32 s75, 14, s75
            s_add_u32 s75, s75, 72
            s_mul_i32 s76, s71, {90*9*1024}
            s_add_u32 s76, s76, {WP + fb0*1024}
            s_lshl_b32 s77, s32, 3
            s_add_u32 s77, s77, {4 if hi else 0}
            s_mul_i32 s77, s77, {90*1024}
            s_add_u32 s77, s77, {U}
            s_lshl_b32 s78, s42, 10
            s_add_u32 s78, s78, {18*1024 + (8192 if hi else 0)}
            v_add_u32 v16, {90*1024 - 2048}, v3
            v_add_u32 v17, {2*90*1024}, v3
            v_add_u32 v18, {3*90*1024 - 2048}, v3
            v_and_b32 v20, 31, v2
            v_lshlrev_b32 v20, 10, v20
            s_lshr_b32 s58, s32, 1
            s_lshl_b32 s58, s58, 7
            s_add_u32 s58, s58, {FO}
            v_add_u32 v20, s58, v20
            v_and_b32 v21, 3, v2
            v_lshlrev_b32 v21, 13, v21
            s_and_b32 s58, s2, 63
            s_lshl_b32 s58, s58, 7
            s_add_u32 s58, s58, {FU}
            v_add_u32 v21, s58, v21
            """)
            if merged:
                a.e(f"""
                v_subrev_u32 v23, 32, v2
                v_add_u32 v24, s73, v23
                v_subrev_u32 v25, 18, v23
                v_add_u32 v25, s75, v25
                v_cmp_gt_u32 vcc, 18, v23
                v_min_u32 v25, 89, v25
                s_lshr_b32 s58, s71, 1
                v_cndmask_b32 v24, v25, v24, vcc
                v_lshlrev_b32 v24, 1, v24
                v_add_u32 v24, s58, v24
                v_lshlrev_b32 v24, 7, v24
                v_add_u32 v24, {F1}, v24
                v_cmp_gt_u32 vcc, 32, v2
                s_nop 1
                v_cndmask_b32 v20, v24, v20, vcc
                """)
        if s == 29:
            a.vm("buffer_load_dword v22, v20, s[20:23], 0 offen sc1", "fo")
    def gstep(i):
        def expr(i, d):
            if i < 4: a.e(f"s_add_u32 {d}, s72, {i}")
            elif i < 8: a.e(f"s_add_u32 {d}, s75, {i - 4}")
            elif i == 8: a.e(f"s_add_u32 {d}, s75, 4\ns_cmp_lt_u32 s70, 2\ns_cselect_b32 {d}, {d}, 100")
            elif i < 23: a.e(f"s_cmp_le_u32 s74, {i - 9}\ns_cselect_b32 {d}, {i - 9 + 4}, {i - 9}\ns_add_u32 {d}, {d}, s73")
            else: a.e(f"s_mov_b32 {d}, 100")
        expr(i, "s63"); expr(i + 1, "s65")
        a.e("s_cmp_eq_u32 s42, 0\ns_cselect_b32 s63, s63, s65")
        if i in (8, 22):
            a.e(f"s_cmp_lt_u32 s63, 90\ns_cselect_b32 s26, {WS_USED}, 0\ns_cselect_b32 s63, s63, 0")
    aid = {}; bid = {}
    def issueA(p):
        base = (p % 4) * SLOT; sr = "s[24:27]" if p in (4, 11) else "s[20:23]"
        gstep(2*p)
        a.e(f"s_mul_i32 s64, s63, {9*1024}\ns_add_u32 s64, s64, s76\ns_add_u32 m0, s40, {base}\ns_nop 0")
        for i in range(nrun): a.vm(f"buffer_load_dwordx4 v3, {sr}, s64 offen offset:{i*1024} lds")
        a.e(f"s_add_u32 m0, s41, {base}\ns_add_u32 s64, s64, {nrun*1024}")
        aid[p] = a.vm(f"buffer_load_dwordx4 v3, {sr}, s64 offen lds")
    def issueB(p):
        base = (p % 4) * SLOT; sr = "s[24:27]" if p in (4, 11) else "s[20:23]"
        gstep(2*p)
        a.e(f"s_lshl_b32 s64, s63, 10\ns_add_u32 s64, s64, s77\ns_add_u32 m0, s78, {base}\ns_nop 0")
        a.vm(f"buffer_load_dwordx4 v3, {sr}, s64 offen lds")
        a.vm(f"buffer_load_dwordx4 v16, {sr}, s64 offen offset:2048 lds")
        a.e(f"s_add_u32 m0, s78, {base + 4096}\ns_nop 0")
        a.vm(f"buffer_load_dwordx4 v17, {sr}, s64 offen lds")
        bid[p] = a.vm(f"buffer_load_dwordx4 v18, {sr}, s64 offen offset:2048 lds")
    a.e("s_mov_b32 s24, s20\ns_mov_b32 s25, s21\ns_mov_b32 s27, 0x20000")
    flag_wait(a, name, 22, 20)
    issueA(0); issueA(1); issueA(2); issueB(2)
    for p in range(12):
        a.wait(vm=max(aid[p], bid.get(p, -1)))
        a.e("s_barrier")
        if p == 2:
            flag_store(a, name, FU)
            issueA(5)
            a.e("buffer_load_dword v22, v21, s[20:23], 0 offen sc1\ns_waitcnt vmcnt(0)"); a.vm_done = a.vm_n - 1
            flag_wait(a, name, 22, 21)
            issueB(4); issueB(5)
        elif p == 1: issueA(4)
        elif p + 3 < 12: issueA(p + 3); issueB(p + 3)
    a.e(f"s_add_u32 s3, s3, 4\ns_branch {name}_final")
    return a.lines

def gen_k2f(name="k2_kernel", stamp=False, merged=False):
    a = Sched()
    ACC = 160; FX, FY = 16, 60
    def acc(fb, tb): r = ACC + (fb*2 + tb)*4; return f"v[{r}:{r+3}]"
    def fa(buf, fb): r = buf + fb*4; return f"v[{r}:{r+3}]"
    def fbr(buf, tb): r = buf + 36 + tb*4; return f"v[{r}:{r+3}]"
    lds = OSTG
    if merged:
        from k1 import gen_k1
        lines, l1 = gen_k1(name, 0 if stamp in (7, 8) else stamp, True, True)
        if stamp in (7, 8):
            b = Asm(); stamp_begin(b); lines = lines[:2] + b.lines + lines[2:]
        a.lines += lines; lds = max(lds, l1); a.uid = 2000
        a.label(f"{name}_p2")
        if stamp == 7: stamp_mid(a, 0)
        a.e(f"""
        s_load_dwordx2 s[4:5], s[0:1], {KA_WS}
        s_load_dwordx2 s[6:7], s[0:1], {KA_WSP}
        s_load_dwordx2 s[8:9], s[0:1], {KA_BSP}
        v_mbcnt_lo_u32_b32 v2, -1, 0
        v_mbcnt_hi_u32_b32 v2, -1, v2
        s_lshl_b32 s10, s3, 6
        v_add_u32 v0, s10, v2
        """)
    else:
        a.e(f"s_cmp_ge_u32 s2, 256\ns_cbranch_scc1 {name}_end")
        if stamp: stamp_begin(a)
        a.e(f"""
        s_load_dwordx2 s[4:5], s[0:1], {KA_WS}
        s_load_dwordx2 s[6:7], s[0:1], {KA_WSP}
        s_load_dwordx2 s[8:9], s[0:1], {KA_BSP}
        v_lshrrev_b32 v1, 6, v0
        v_and_b32 v2, 63, v0
        v_readfirstlane_b32 s3, v1          ; wave
        """)
    tile_ids(a)
    a.e(f"""
    v_lshlrev_b32 v3, 4, v2
    s_waitcnt lgkmcnt(0)
    """)
    if merged: a.e("s_barrier")
    else: a.e(f"""
    s_add_u32 s66, s4, {XST + 4}
    s_addc_u32 s67, s5, 0
    s_load_dword s69, s[66:67], 0
    """)
    srd(a, 12, 6, 7, S*S*2)
    srd(a, 16, 4, 5, Z2T_BYTES, Z2T)
    srd(a, 20, 4, 5, WS_USED)
    a.e(f"""
    s_cmp_lt_u32 s3, 4
    s_cbranch_scc1 {name}_compute
    s_sub_u32 s3, s3, 4
    v_lshrrev_b32 v8, 3, v2
    v_and_b32 v9, 7, v2
    v_lshrrev_b32 v10, 4, v2
    v_xor_b32 v9, v9, v10
    v_lshlrev_b32 v8, 12, v8
    v_lshl_add_u32 v4, v9, 4, v8
    v_xor_b32 v9, 4, v9
    v_lshl_add_u32 v5, v9, 4, v8
    v_add_u32 v6, {2*(32768-1024)}, v4
    v_add_u32 v7, {3*(32768-1024)}, v5
    v_add_u32 v5, {(32768-1024)}, v5
    s_lshl_b32 s36, s32, 7
    s_lshl_b32 s37, s3, 5
    s_add_u32 s36, s36, s37
    s_lshl_b32 s36, s36, 12
    s_waitcnt lgkmcnt(0)
    s_cmp_ge_u32 s3, 2
    s_cbranch_scc1 {name}_ldhi
    """)
    a.lines += gen_loader(name, False, stamp, merged)
    a.label(f"{name}_ldhi")
    a.lines += gen_loader(name, True, stamp, merged)
    a.label(f"{name}_compute")
    srd(a, 28, 8, 9, S*2)
    if merged: a.e("s_waitcnt vmcnt(0)\ns_barrier")
    a.e(f"""
    v_mov_b32 v4, v3
    v_add_u32 v5, {2*SLOT}, v3
    v_and_b32 v10, 15, v2               ; t
    v_lshrrev_b32 v11, 4, v2            ; kg
    v_lshrrev_b32 v12, 1, v10           ; swz
    v_xor_b32 v12, v12, v11
    v_lshlrev_b32 v12, 4, v12
    v_lshl_add_u32 v6, v10, 7, v12
    s_lshl_b32 s36, s3, 12
    s_add_u32 s36, s36, {18*1024}
    v_add_u32 v6, s36, v6
    v_xor_b32 v7, 64, v6
    v_add_u32 v8, {2*SLOT}, v6
    v_add_u32 v9, {2*SLOT}, v7
    s_lshl_b32 s37, s32, 7
    s_lshl_b32 s38, s3, 5
    s_add_u32 s37, s37, s38
    s_lshl_b32 s38, s37, 1
    v_lshlrev_b32 v12, 1, v10
    buffer_load_ushort v13, v12, s[28:31], s38 offen
    buffer_load_ushort v14, v12, s[28:31], s38 offen offset:32
    s_lshl_b32 s38, s37, 4
    s_add_u32 s38, s38, {XST + 8}
    v_lshlrev_b32 v12, 4, v10
    buffer_load_dword v15, v12, s[20:23], s38 offen sc1
    buffer_load_dword v1, v12, s[20:23], s38 offen offset:256 sc1
    """)
    if merged: a.e("s_barrier")
    if stamp == 7: stamp_mid(a, 1)
    def reads(buf, slot, kh):
        L = []
        sa = (slot & 1) * SLOT
        va = "v4" if slot < 2 else "v5"
        vb = f"v{6 + kh + (0 if slot < 2 else 2)}"
        for tb in range(2): L.append(f"ds_read_b128 {fbr(buf,tb)}, {vb} offset:{sa + tb*2048}")
        for fb in range(9):
            if "halfrd" in os.environ.get("ABL2", "") and fb % 2: continue
            if "nord" in os.environ.get("ABL2", ""): continue
            L.append(f"ds_read_b128 {fa(buf,fb)}, {va} offset:{sa + (kh*9+fb)*1024}")
        return L
    def phase(cbuf, R, skip=False, zero=False):
        R = list(R)
        if skip:
            for r in R: a.e(r)
            return
        if "nomf" in os.environ.get("ABL2", ""):
            for r in R: a.e(r)
            R = []
        for fb in range(9):
            for tb in range(2):
                if R: a.e(R.pop(0))
                if "nomf" in os.environ.get("ABL2", "") and fb: continue
                a.e(f"{MF16} {acc(fb,tb)}, {fa(cbuf,fb)}, {fbr(cbuf,tb)}, " + ("0" if zero else acc(fb,tb)))
                if a.fill and (fb*2 + tb) >= 4: a.pump(SB if not R else SB - 1)
    def stage(slot, first=False, pre="", post=None, nobar=False):
        a.e(pre)
        if not nobar: a.e("s_barrier")
        if post: post()
        a.open_gate(); a.open_gate("half")
        phase(FY, reads(FX, slot, 0), skip=first)
        a.e("s_waitcnt lgkmcnt(0)")
        a.open_gate("half")
        phase(FX, reads(FY, slot, 1), zero=first)
        a.e("s_waitcnt lgkmcnt(0)")
    SB = int(os.environ.get("SB", 2))
    side_stream(a, name, merged)
    stage(0, first=True)
    if stamp in (1, 7): stamp_mid(a, 2*(stamp == 7))
    if stamp == 8: stamp_mid(a, 0)
    NU = 4*int(os.environ.get("NU", 5 if merged else 4))
    for u in range(1, NU): stage(u % 4)
    assert not a.fill, len(a.fill)
    a.e(f"s_mov_b32 s48, {NU//4 - 1}")
    lp = f"{name}_cl"
    a.label(lp)
    for u in range(4): stage(u)
    a.e(f"s_add_u32 s48, s48, 1\ns_cmp_lt_u32 s48, 5\ns_cbranch_scc1 {lp}")
    ZR = 104
    a.e("s_waitcnt vmcnt(0)")
    a.e(f"""
    s_lshr_b32 s40, s37, 4
    s_mul_i32 s41, s33, 9
    s_and_b32 s42, s33, 1
    s_add_u32 s43, s41, s42
    s_lshr_b32 s43, s43, 1              ; st0
    s_add_u32 s44, s41, 8
    s_cmp_eq_u32 s42, 0
    s_cselect_b32 s44, s44, s41
    s_lshr_b32 s44, s44, 1              ; st8
    s_lshl_b32 s42, s42, 3              ; half*8
    s_mul_i32 s54, s40, 90
    s_add_u32 s55, s54, s44
    s_add_u32 s54, s54, s43
    s_lshl_b32 s54, s54, 10
    s_lshl_b32 s55, s55, 10
    s_add_u32 s55, s55, s42
    s_add_u32 s54, s54, {U}
    s_add_u32 s55, s55, {U}
    s_add_u32 s56, s54, {90*1024}
    s_add_u32 s57, s55, {90*1024}
    """)
    for tb in range(2):
        sm, ss = ("s54", "s55") if tb == 0 else ("s56", "s57")
        for i in range(4):
            r = ZR + tb*18 + i*4
            a.e(f"buffer_load_dwordx4 v[{r}:{r+3}], v3, s[20:23], {sm} offen offset:{i*1024}")
        r = ZR + tb*18 + 16
        a.e(f"buffer_load_dwordx2 v[{r}:{r+1}], v3, s[20:23], {ss} offen sc1")
    for u in range(8): stage(u % 4)
    phase(FY, [])
    if stamp in (1, 7, 8): stamp_mid(a, 3 if stamp == 7 else 1)
    a.e(f"""
    s_waitcnt vmcnt(0)
    v_lshlrev_b32 v13, 16, v13
    v_lshlrev_b32 v14, 16, v14
    v_mul_f32 v13, v13, v15
    v_mul_f32 v14, v14, v1
    v_add_u32 v6, s36, v3
    v_add_u32 v7, 1024, v6
    v_add_u32 v8, {2*SLOT}, v6
    v_add_u32 v9, {2*SLOT}, v7
    s_nop 3
    """)
    T = 16
    for tb in range(2):
        sm, ss = ("s54", "s55") if tb == 0 else ("s56", "s57")
        for i in (4, 0, 1, 2, 3):
            nfb = 2 if i < 4 else 1
            zr = ZR + tb*18 + i*4
            for k in range(nfb):
                ar = ACC + ((2*i + k)*2 + tb)*4
                for p in range(2):
                    z = zr + 2*k + p; t0 = T + 2*((2*k + p) % 4)
                    a.e(f"v_fma_f32 v{ar+2*p}, v{ar+2*p}, v{(15, 1)[tb]}, v{13+tb}")
                    a.e(f"v_fma_f32 v{ar+2*p+1}, v{ar+2*p+1}, v{(15, 1)[tb]}, v{13+tb}")
                    a.e(f"v_lshlrev_b32 v{t0}, 16, v{z}")
                    a.e(f"v_and_b32 v{t0+1}, 0xffff0000, v{z}")
                    a.e(f"v_mul_f32 v{t0}, v{t0}, v{ar+2*p}")
                    a.e(f"v_mul_f32 v{t0+1}, v{t0+1}, v{ar+2*p+1}")
                    a.e(f"v_cvt_pk_bf16_f32 v{z}, v{t0}, v{t0+1}")
            if i < 4:
                a.e(f"buffer_store_dwordx4 v[{zr}:{zr+3}], v3, s[20:23], {sm} offen offset:{i*1024} sc1")
                a.e(f"ds_write_b128 v{6 + (i & 1)}, v[{zr}:{zr+3}] offset:{(i >> 1)*SLOT + tb*2048}")
            else:
                a.e(f"buffer_store_dwordx2 v[{zr}:{zr+1}], v3, s[20:23], {ss} offen sc1")
    if stamp and stamp != 7: stamp_mid(a, {1: 2, 8: 2}.get(stamp, 0))
    stage(0, first=True, pre="s_waitcnt lgkmcnt(0)")
    stage(1)
    stage(2, pre="s_waitcnt vmcnt(0)" + ("\ns_memtime s[82:83]" if stamp == 2 else ""))
    stage(3)
    if stamp == 2: stamp_mid(a, 2)
    a.e("s_mov_b32 s48, 0")
    lp = f"{name}_c3"
    a.label(lp)
    for u in range(4):
        stage(u)
        if stamp == 2 and u == 0: a.e(f"s_cmp_eq_u32 s48, 0\ns_cbranch_scc0 {name}_ns\ns_memtime s[86:87]\n{name}_ns:")
    a.e(f"s_add_u32 s48, s48, 1\ns_cmp_lt_u32 s48, 2\ns_cbranch_scc1 {lp}")
    phase(FY, [])
    if stamp in (1, 3, 8): stamp_mid(a, {1: 3, 8: 3}.get(stamp, 1))
    own = f"{name}_own"
    a.e(f"""
    s_lshr_b32 s70, s33, 2              ; kq
    s_and_b32 s71, s33, 3               ; dj
    s_lshl_b32 s40, s32, 2
    s_add_u32 s40, s40, s71
    s_lshl_b32 s40, s40, 2
    s_add_u32 s40, s40, s3
    s_lshl_b32 s40, s40, 2
    s_add_u32 s40, s40, s70
    s_mul_i32 s40, s40, {9*1024}
    s_add_u32 s40, s40, {PX}
    s_nop 1
    s_cmp_eq_u32 s3, s70
    s_cbranch_scc1 {own}
    """)
    for fb in range(9):
        r = ACC + 8*fb; t = 16 + 4*(fb & 1)
        for k in range(4): a.e(f"v_cvt_pk_bf16_f32 v{t+k}, v{r+2*k}, v{r+2*k+1}")
        if fb % 4 == 0 and fb: a.e("s_add_u32 s40, s40, 4096")
        a.e(f"buffer_store_dwordx4 v[{t}:{t+3}], v3, s[20:23], s40 offen offset:{(fb%4)*1024} sc1")
    a.e(f"s_branch {name}_final")
    a.label(own)
    for c in range(18):
        a.e(f"ds_write_b128 v3, v[{ACC+4*c}:{ACC+4*c+3}] offset:{c*1024}")
    a.label(f"{name}_final")
    a.e(f"""
    s_load_dwordx2 s[6:7], s[0:1], {KA_X}
    s_load_dwordx2 s[8:9], s[0:1], {KA_OUT}
    s_lshl_b32 s46, s32, 7
    s_lshl_b32 s47, s70, 5
    s_add_u32 s46, s46, s47
    s_mul_i32 s46, s46, 1152
    s_mul_i32 s47, s71, 288
    s_add_u32 s46, s46, s47
    s_lshl_b32 s47, s3, 5
    s_add_u32 s46, s46, s47
    v_and_b32 v10, 15, v2
    v_mul_u32_u24 v10, 1152, v10
    v_lshrrev_b32 v11, 4, v2
    v_lshl_add_u32 v10, v11, 3, v10
    v_add_u32 v11, {16*1152}, v10
    v_mov_b32 v9, {BIG}
    s_cmp_eq_u32 s3, 0
    s_cselect_b64 vcc, -1, 0
    v_cndmask_b32 v24, v9, v10, vcc
    v_cndmask_b32 v25, v9, v11, vcc
    v_cndmask_b32 v26, v9, v3, vcc
    s_lshl_b32 s41, s3, 11
    v_add_u32 v27, s41, v3
    s_waitcnt lgkmcnt(0)
    """)
    srd(a, 24, 6, 7, S*D*2)
    srd(a, 28, 8, 9, S*D*2)
    XA = [10, 11, 24, 25]
    for k in range(4):
        a.e(f"buffer_load_dwordx2 v[{64+2*k}:{65+2*k}], v{XA[k]}, s[24:27], s46 offen offset:{256*(k >> 1)}")
    a.e(f"""
    s_lshl_b32 s40, s32, 2
    s_add_u32 s40, s40, s71
    s_lshl_b32 s40, s40, 2
    s_add_u32 s40, s40, s70
    s_mul_i32 s40, s40, {4*9*1024}
    s_lshl_b32 s41, s3, 10
    s_add_u32 s40, s40, s41
    s_add_u32 s40, s40, {PX}
    v_and_b32 v20, 3, v2
    v_lshlrev_b32 v20, 8, v20
    s_andn2_b32 s58, s2, 6
    s_lshl_b32 s58, s58, 7
    s_add_u32 s58, s58, {FP}
    v_add_u32 v20, s58, v20
    s_waitcnt vmcnt(4) lgkmcnt(0)
    s_barrier
    """)
    flag_store(a, name, FP, 7)
    for m in range(3):
        a.e(f"s_add_u32 s{42+m}, s70, {m+1}\ns_and_b32 s{42+m}, s{42+m}, 3\ns_mul_i32 s{42+m}, s{42+m}, {9*1024}\ns_add_u32 s{42+m}, s{42+m}, s40")
    for k in range(4):
        a.e(f"ds_read_b128 {vr(72+4*k)}, v27 offset:{1024*(k & 1) + 16384*(k >> 1)}")
    lbp = f"{name}_pp"
    a.e(f"""
    s_cmp_eq_u32 s3, 7
    s_cbranch_scc0 {lbp}
    buffer_load_dword v22, v20, s[20:23], 0 offen sc1
    s_waitcnt vmcnt(0)
    """)
    flag_wait(a, name, 22, 20)
    a.label(lbp)
    a.e("s_barrier")
    if stamp == 3: stamp_mid(a, 2)
    PR = 32
    for m in range(3):
        a.e(f"buffer_load_dwordx4 {vr(PR+4*m)}, v3, s[20:23], s{42+m} offen sc1")
    for m in range(3):
        a.e(f"s_add_u32 s{42+m}, s{42+m}, 8192\nbuffer_load_dwordx4 {vr(PR+12+4*m)}, v26, s[20:23], s{42+m} offen sc1")
    a.e("s_waitcnt lgkmcnt(0)")
    for k in range(4):
        if k == 0: a.e("s_waitcnt vmcnt(3)")
        if k == 2: a.e("s_waitcnt vmcnt(2)")
        if stamp == 3 and k == 0: stamp_mid(a, 3)
        terms = [64 + 2*k] + [PR + 12*(k >> 1) + 4*m + 2*(k & 1) for m in range(3)]
        for z in terms:
            for p in range(2):
                a.e(f"v_lshlrev_b32 v{16+2*p}, 16, v{z+p}\nv_and_b32 v{17+2*p}, 0xffff0000, v{z+p}")
            for r in range(4): a.e(f"v_add_f32 v{72+4*k+r}, v{72+4*k+r}, v{16+r}")
        a.e(f"v_cvt_pk_bf16_f32 v{64+2*k}, v{72+4*k}, v{73+4*k}\nv_cvt_pk_bf16_f32 v{65+2*k}, v{74+4*k}, v{75+4*k}")
        a.e(f"buffer_store_dwordx2 v[{64+2*k}:{65+2*k}], v{XA[k]}, s[28:31], s46 offen offset:{256*(k >> 1)}")
    if stamp: stamp_end(a, 2, "s3", 4)
    a.label(f"{name}_end")
    a.e("s_endpgm")
    launch = f"; @launch kernel={name} grid=(256,1,1) block=(512,1,1) lds={lds}\n"
    if merged: launch = f"; @launch grid=(256,1,1) block=(512,1,1) lds={lds}\n"
    return launch, kernel_begin(name) + a.text(), kernel_desc(name, 256, 102, 256)
```

```python
class Asm:
    def __init__(self):
        self.lines = []
        self.uid = 0
    def e(self, s=""):
        for l in s.split("\n"):
            if not l.strip(): continue
            self.lines.append("    " + l.strip() if l.strip() and not l.strip().endswith(":") else l.strip())
    def label(self, n):
        self.lines.append(n + ":")
    def newlabel(self, p="L"):
        self.uid += 1
        return f"{p}_{self.uid}"
    def text(self):
        return "\n".join(self.lines) + "\n"

HEADER = '.amdgcn_target "amdgcn-amd-amdhsa--gfx950"\n.text\n'

def kernel_begin(name):
    return f".globl {name}\n.p2align 8\n.type {name},@function\n{name}:\n"

def kernel_desc(name, vgpr, sgpr, accum, extra=""):
    return (f".p2align 6\n.amdhsa_kernel {name}\n  .amdhsa_next_free_vgpr {vgpr}\n  .amdhsa_next_free_sgpr {sgpr}\n"
            f"  .amdhsa_accum_offset {accum}\n  .amdhsa_group_segment_fixed_size 0\n  .amdhsa_kernarg_size 96\n"
            f"  .amdhsa_user_sgpr_count 2\n  .amdhsa_user_sgpr_kernarg_segment_ptr 1\n"
            f"  .amdhsa_system_sgpr_workgroup_id_x 1\n{extra}.end_amdhsa_kernel\n")

def stamp_begin(a):
    a.e("s_memrealtime s[90:91]\ns_memtime s[92:93]")

def stamp_mid(a, i):
    a.e(f"s_memtime s[{80+2*i}:{81+2*i}]")

def stamp_end(a, kidx, wave_sreg, nmid=0):
    from layout import STAMP, KA_WS
    a.e(f"""
    s_waitcnt vmcnt(0)
    s_memtime s[94:95]
    s_memrealtime s[96:97]
    s_load_dwordx2 s[98:99], s[0:1], {KA_WS}
    s_waitcnt lgkmcnt(0)
    s_add_u32 s76, s98, {STAMP + kidx*65536}
    s_addc_u32 s77, s99, 0
    s_mov_b32 s78, 65536
    s_mov_b32 s79, 0x20000
    s_sub_u32 s94, s94, s92
    v_mov_b32 v0, s90
    v_mov_b32 v1, s96
    v_mov_b32 v2, s94
    s_getreg_b32 s95, hwreg(HW_REG_XCC_ID)
    v_mov_b32 v3, s92
    """)
    for i in range(4):
        if i < nmid:
            a.e(f"s_sub_u32 s95, s{80+2*i}, s92\nv_mov_b32 v{4+i}, s95")
        else:
            a.e(f"v_mov_b32 v{4+i}, 0")
    a.e(f"""
    s_lshl_b32 s95, s2, 3
    s_add_u32 s95, s95, {wave_sreg}
    s_lshl_b32 s95, s95, 5
    v_mov_b32 v8, s95
    s_mov_b64 exec, 1
    buffer_store_dwordx4 v[0:3], v8, s[76:79], 0 offen
    buffer_store_dwordx4 v[4:7], v8, s[76:79], 0 offen offset:16
    """)
    import os
    if os.environ.get("DBGOUT"):
        from layout import KA_DBG
        lb = a.newlabel("dbgo")
        wg2 = int(os.environ["DBGOUT"])
        a.e(f"""
        s_cmp_eq_u32 {wave_sreg}, 0
        s_cbranch_scc0 {lb}
        s_cmp_eq_u32 s2, {wg2}
        s_cselect_b32 s95, 32, 64
        s_cmp_eq_u32 s2, 1
        s_cselect_b32 s95, 0, s95
        s_cmp_ge_u32 s95, 64
        s_cbranch_scc1 {lb}
        s_load_dwordx2 s[76:77], s[0:1], {KA_DBG}
        s_sub_u32 s96, s96, s90
        s_waitcnt lgkmcnt(0)
        s_mov_b32 s78, 256
        v_mov_b32 v8, s95
        v_mov_b32 v1, s96
        buffer_store_dwordx4 v[0:3], v8, s[76:79], 0 offen
        buffer_store_dwordx4 v[4:7], v8, s[76:79], 0 offen offset:16
        """)
        a.label(lb)
```

```python
import math, os
from asmlib import *
from sched import Sched
from layout import *
from k1common import *
from k3 import srd
ABL = os.environ.get('ABL', '').split(',')

GK1 = -2.0 * math.sqrt(2.0 / math.pi) * LOG2E
GK2 = GK1 * 0.044715

RING = 0
XR = 98304
SP = 208
CSO = XR + 256*SP
PRM = CSO + 4096
Z_LDS = PRM + 2048
TL0 = int(os.environ.get('TL0', 11))
STATM = int(os.environ.get('STATM', 0)); MPS = int(os.environ.get('MPS', 2))
ZSC = os.environ.get('ZSC', 'sc1')
Z2SC = os.environ.get('Z2SC', 'sc1')
WSB = int(os.environ.get('WSB', 0)) << 20
PER_MFMA = int(os.environ.get('PM', 6))

def gen_zpath(a, name, stamp):
    X = 112; ACC = [64, 80]; WF = [44, 48, 52, 56]
    NEGMU, R, C1, C2, S1, S2, TAG = 108, 12, 14, 15, 61, 62, 60
    CB = [24, 28]; T = 32; PK = 36
    a.e(f"""
    v_lshrrev_b32 v28, 3, v2
    v_and_b32 v29, 7, v2                ; pos
    v_lshrrev_b32 v31, 4, v2
    v_xor_b32 v31, v31, v29
    v_mul_u32_u24 v7, 1152, v28
    v_lshl_add_u32 v7, v31, 4, v7
    v_bfe_u32 v30, v2, 4, 1
    v_lshlrev_b32 v30, 2, v30
    v_xor_b32 v30, v30, v29
    v_lshlrev_b32 v30, 4, v30           ; chunk*16
    v_mul_u32_u24 v5, 9216, v28
    v_add_u32 v5, v5, v30
    v_xor_b32 v8, 64, v7
    v_add_u32 v8, {8*1152-1024}, v8
    s_mul_i32 s41, s33, 384
    s_add_u32 s41, s41, 4608            ; column offset of z2 panel 0
    s_mul_i32 s40, s3, {8*9216}
    s_add_u32 s40, s40, s41
    s_lshl_b32 s42, s3, 10              ; w*1024
    s_lshl_b32 s43, s32, 7
    s_lshl_b32 s44, s3, 4
    s_add_u32 s43, s43, s44
    s_mul_i32 s43, s43, 1152            ; x base
    s_lshl_b32 s44, s3, 11
    s_add_u32 s44, s44, {XR}
    """)
    def pcol(P): return 128*P if P < 3 else 128*(P-3) - 4608
    uid = {}; x_id = {}
    def issue8(u):
        P, c = divmod(u, 9)
        a.e(f"s_add_u32 m0, s42, {RING + (u % 12)*8192}")
        a.e(f"s_add_u32 s46, s40, {c*64*9216 + pcol(P)}")
        uid[u] = a.vm(f"buffer_load_dwordx4 v5, s[12:15], s46 offen lds")
    def issue_x(c):
        a.e(f"s_add_u32 m0, s44, {(c % 3)*16384}")
        a.e(f"s_add_u32 s46, s43, {c*128}")
        a.vm(f"buffer_load_dwordx4 v7, s[8:11], s46 offen lds")
        x_id[c] = a.vm(f"buffer_load_dwordx4 v8, s[8:11], s46 offen offset:1024 lds")
    issue_x(0); issue8(0); issue_x(1); issue8(1)
    a.e(f"""
    s_and_b32 s36, s3, 3                ; rg
    s_lshr_b32 s37, s3, 2               ; p
    v_mul_u32_u24 v13, 3456, v28
    v_add_u32 v13, v13, v30
    v_and_b32 v22, 15, v2
    v_lshrrev_b32 v23, 2, v22           ; r
    v_and_b32 v22, 3, v22               ; c
    v_lshrrev_b32 v24, 5, v2            ; h
    v_bfe_u32 v25, v2, 4, 1             ; n half
    v_lshlrev_b32 v1, 3, v24
    v_add_u32 v1, v1, v23
    v_lshlrev_b32 v1, 7, v1             ; (8h + r)*128
    v_lshrrev_b32 v26, 1, v23
    v_xor_b32 v26, s37, v26
    v_lshl_add_u32 v1, v26, 6, v1
    v_lshl_add_u32 v1, v25, 5, v1
    v_lshl_add_u32 v1, v22, 3, v1
    v_add_u32 v3, 49152, v1
    v_and_b32 v32, 31, v2               ; s
    v_bfe_u32 v33, v2, 1, 3             ; swz
    v_xor_b32 v33, v33, v24
    v_lshlrev_b32 v33, 4, v33
    v_lshl_add_u32 v9, v32, 7, v33
    s_lshl_b32 s38, s36, 12
    s_add_u32 s38, s38, {XR}
    v_add_u32 v9, s38, v9
    v_xor_b32 v10, 32, v9
    v_xor_b32 v11, 64, v9
    v_xor_b32 v12, 96, v9
    v_lshlrev_b32 v21, 3, v32           ; s*8
    v_lshlrev_b32 v0, 4, v2
    """)
    assert Z2T == 0
    def wread(a, buf, u, j):
        pos = u % 12
        bb = (1, 3)[pos // 6]; off = (pos % 6)*8192 + j*2048
        a.lg(f"ds_read_b64_tr_b16 {vr(buf,2)}, v{bb} offset:{off}")
        return a.lg(f"ds_read_b64_tr_b16 {vr(buf+2,2)}, v{bb} offset:{off+512}")
    CSR = [80 + 4*k for k in range(7)] + [24 + 4*k for k in range(9)]
    def xst_load(a, tracked=True):
        (a.vm if tracked else a.e)(f"buffer_load_dwordx4 {vr(NEGMU)}, v21, s[20:23], s59 offen" + ("" if tracked else " sc1"))
    def hand_loads(a, k0=0, k1=16, sc=" sc1"):
        if k0 == 0: a.e("s_mov_b32 s45, s57")
        for k in range(k0, k1):
            if k % 2 == 0 and k: a.e(f"s_add_u32 s45, s45, {2*448*8}")
            a.e(f"buffer_load_dwordx4 {vr(CSR[k])}, v63, s[20:23], s45 offen offset:{(k%2)*448*8}{sc}")
    CONSTS = f"""
    v_mov_b32 v{R}, v110
    v_mul_f32 v{C2}, v{R}, v{R}
    v_mul_f32 v{C1}, {f2u(GK1)}, v{R}
    v_mul_f32 v{C2}, v{C2}, v{R}
    v_mov_b32 v{S1}, 0
    v_mul_f32 v{C2}, {f2u(GK2)}, v{C2}
    v_mov_b32 v{S2}, 0
    v_mov_b32 v7, 0
    v_mov_b32 v8, 0
    v_cvt_pk_bf16_f32 v24, v{NEGMU}, v{NEGMU}
    v_mov_b32 v26, 0
    v_lshlrev_b32 v24, 16, v24
    v_mov_b32 v27, 0
    v_sub_f32 v24, v{NEGMU}, v24
    v_cmp_gt_u32 vcc, 32, v2
    v_cvt_pk_bf16_f32 v24, v{NEGMU}, v24
    v_mov_b32 v30, 0
    v_cndmask_b32 v24, v26, v24, vcc
    v_mov_b32 v31, 0
    v_mov_b32 v25, v24
    """
    rid = {}
    def areads(n):
        c, j = divmod(n, 4)
        a.lg(f"ds_read_b128 {vr(X + 4*n)}, v{9+j} offset:{(c%3)*16384}")
        rid[n] = wread(a, WF[n % 4], c, j)
    a.wait(vm=max(x_id[0], uid[0]))
    a.e("s_barrier")
    if stamp == 1: stamp_mid(a, 0)
    areads(0); areads(1)
    rowstat_loads(a, 2, 80, 32)
    a.e(f"""
    s_cmp_lt_u32 s3, 6
    s_cselect_b32 s28, s12, s16
    s_cselect_b32 s29, s13, s17
    s_cselect_b32 s30, s14, s18
    s_mov_b32 s31, 0x20000
    s_mov_b32 s45, 3456
    s_cselect_b32 s45, 9216, s45
    s_lshl_b32 s39, s3, 7
    s_add_u32 s39, s39, s41
    s_lshl_b32 s47, s34, 7
    s_sub_u32 s48, s39, {4608 + 384}
    s_cmp_lt_u32 s3, 6
    s_cselect_b32 s47, s48, s47
    s_cmp_lt_u32 s3, 3
    s_cselect_b32 s39, s39, s47
    s_cmp_eq_u32 s3, 7
    s_cselect_b32 s30, 0, s30
    s_mul_i32 s38, s32, 36
    s_mul_i32 s38, s38, s45
    s_add_u32 s39, s39, s38
    s_mov_b32 s68, s39
    s_lshl_b32 s38, s45, 3
    v_mul_lo_u32 v26, v28, s45
    v_lshl_add_u32 v26, v29, 4, v26
    v_cmp_gt_u32 vcc, 32, v2
    v_mov_b32 v27, {BIG}
    s_nop 0
    v_cndmask_b32 v27, v27, v26, vcc
    """)
    for i in range(5):
        coop_id = a.vm(f"buffer_load_dwordx4 {vr(92+4*i)}, v{26 if i < 4 else 27}, s[28:31], s39 offen")
        if i < 4: a.e(f"s_add_u32 s39, s39, s38")
    a.e(f"""
    s_cmp_eq_u32 s3, 4
    s_cselect_b32 s38, 0, {BIG}
    v_mov_b32 v4, s38
    """)
    ep_id = a.vm(f"buffer_load_dword v{TAG}, v4, s[24:27], 0 offen sc1")
    issue_x(2); issue8(2)
    a.keys["coop"] = ("vm", coop_id)
    b = Sched()
    b.e(f"""
    s_mul_i32 s57, s33, {16*448*8}
    s_add_u32 s57, s57, {CSP}
    s_mul_i32 s47, s32, {448*8}
    s_add_u32 s47, s47, s57
    s_lshl_b32 s48, s3, 9
    s_add_u32 s47, s47, s48
    v_lshlrev_b32 v40, 6, v29
    v_lshrrev_b32 v41, 4, v2
    v_lshl_add_u32 v40, v41, 3, v40     ; (unit*8 + q)*8
    v_and_b32 v41, 8, v2
    v_cmp_eq_u32 vcc, 0, v41
    v_mov_b32 v41, {BIG}
    s_cmp_eq_u32 s3, 7
    s_cselect_b64 vcc, 0, vcc
    v_cndmask_b32 v42, v41, v40, vcc
    s_mov_b32 s62, 0x00003f80
    s_mov_b32 s63, 0x3f800000
    """)
    rowstat_addr(b, 2, 43, 40)
    a.add_block(b.lines, "x"); b.lines = []
    a.add("gate", None, "c0")
    a.add("w", None, "coop")
    rowstat_compute(b, 80, 36)
    for i in range(5): colsum_add(b, 24, 92 + 4*i, i == 0)
    fold_pairs(b, 24, [8])
    a.add_block(b.lines, "x"); b.lines = []
    a.add("gate")
    a.add("lg", f"ds_read_b32 v{TAG}, v4", "tag")
    a.add("w", None, "tag")
    a.addv(f"v_mov_b32 v37, v{TAG}\nv_mov_b32 v39, v{TAG}\nv_mov_b32 v25, v{TAG}\nv_mov_b32 v29, v{TAG}")
    a.add("vm", f"buffer_store_dwordx4 v[36:39], v43, s[20:23], 0 offen sc1")
    a.add("vm", f"buffer_store_dwordx2 v[24:25], v42, s[20:23], s47 offen sc1")
    a.add("vm", f"buffer_store_dwordx2 v[28:29], v42, s[20:23], s47 offen offset:32 sc1")
    a.addv(f"""
    s_lshl_b32 s49, s37, 8
    s_add_u32 s49, s49, {CSO}
    v_lshrrev_b32 v40, 5, v2
    v_add_u32 v17, s49, v21
    s_mul_i32 s49, s3, {32*SP}
    s_add_u32 s49, s49, {XR}
    v_mul_u32_u24 v19, {SP//8}, v21
    v_lshl_add_u32 v19, v40, 4, v19
    v_add_u32 v19, s49, v19
    v_bfe_u32 v20, v2, 4, 1
    v_mul_u32_u24 v20, {90*1024}, v20
    v_and_b32 v41, 15, v2
    v_lshl_add_u32 v41, v40, 4, v41
    v_lshl_add_u32 v20, v41, 4, v20     ; z1 store
    s_lshl_b32 s49, s36, 10
    v_add_u32 v18, s49, v0
    v_cmp_gt_u32 vcc, {448*8}, v18
    v_mov_b32 v63, {BIG}
    v_lshlrev_b32 v21, 1, v21           ; s*16
    v_cndmask_b32 v63, v63, v18, vcc
    v_add_u32 v18, {CSO}, v18
    """)
    a.addv(f"""
    s_lshl_b32 s47, s32, 3
    s_lshl_b32 s48, s36, 1
    s_add_u32 s47, s47, s48             ; t16
    s_mul_i32 s47, s47, 90
    s_mul_i32 s48, s33, 6
    s_add_u32 s47, s47, s48
    s_add_u32 s47, s47, s37
    s_lshl_b32 s47, s47, 10
    s_add_u32 s50, s47, {U}
    s_add_u32 s51, s50, 2048
    s_add_u32 s52, s50, 4096
    s_lshl_b32 s47, s32, 2
    s_add_u32 s47, s47, s36
    s_lshl_b32 s59, s47, 9
    s_add_u32 s59, s59, {XST}
    s_mul_i32 s48, s47, 36
    s_lshl_b32 s49, s34, 2
    s_add_u32 s48, s48, s49
    s_lshl_b32 s49, s37, 1
    s_add_u32 s48, s48, s49
    s_lshl_b32 s48, s48, 10
    s_add_u32 s53, s48, {Q}
    s_mul_i32 s54, s47, 144
    s_mul_i32 s48, s33, 12
    s_add_u32 s54, s54, s48
    s_add_u32 s54, s54, s49             ; + 2p
    s_lshl_b32 s54, s54, 10             ; z2t soffset (Z2T = 0)
    s_mul_i32 s55, s32, 24
    s_lshl_b32 s48, s33, 1
    s_add_u32 s48, s48, s37
    s_add_u32 s48, s48, s55
    s_lshl_b32 s48, s48, 11
    s_lshl_b32 s49, s36, 9
    s_add_u32 s48, s48, s49
    s_add_u32 s56, s48, {ST}
    s_lshl_b32 s55, s55, 11
    s_add_u32 s55, s55, s49
    s_add_u32 s55, s55, {ST}
    """)
    pend = []; gate_ok = False; HLC = int(os.environ.get('HLC', 4))
    for n in range(36):
        c, j = divmod(n, 4)
        a.wait(lg=rid[n])
        if j == 2:
            for f in pend: f()
            pend = []
            need = [x_id[c+1], uid[c+1]] if c < 8 else [uid[11]]
            if c == 1:
                a.wait(vm=ep_id)
                epoch_share(a, name, 4, TAG, 4, PRM)
            if c == 8: a.flush()
            a.wait(vm=max(need), lg=a.lg_n - 1 if c == 8 else rid[n+1])
            if stamp == 5 and 0 <= (c - TL0) < 8 and (c - TL0) % 2 == 0: stamp_mid(a, (c - TL0) // 2)
            a.e("s_barrier")
            if c == 1:
                a.e(f"v_mov_b32 v4, {PRM}")
                gate_ok = True
            if c == int(os.environ.get("L2C", 99)):
                a.e(f"""
                s_cmp_lt_u32 s3, 6
                s_mov_b32 s45, 3456
                s_cselect_b32 s45, 9216, s45
                s_mul_i32 s38, s45, {8*36}
                s_sub_u32 s39, 0, s38
                s_cmp_lt_u32 s32, 8
                s_cselect_b32 s38, s38, s39
                s_add_u32 s39, s68, s38
                v_min_u32 v40, 35, v2
                v_mul_lo_u32 v40, v40, s45
                """)
                a.vm("buffer_load_dword v41, v40, s[28:31], s39 offen")
            if c == 8:
                assert not a.fill, len(a.fill)
                xst_load(a); a.keys["xst"] = ("vm", a.vm_n - 1)
            if c + 3 < 9: pend.append(lambda c=c: issue_x(c + 3))
            for u in ([c + 3] if c < 6 else range(3*c - 9, 3*c - 6)):
                pend.append(lambda u=u: issue8(u))
        if n + 2 < 36: areads(n + 2)
        a.e(f"{MF32} {vr(ACC[0],16)}, {vr(WF[n % 4])}, {vr(X + 4*n)}, " + ("0" if n == 0 else vr(ACC[0], 16)))
        if pend: pend.pop(0)()
        if n == 33:
            pass
        if gate_ok: a.open_gate()
        if n >= 4: a.open_gate('c0')
        a.pump(28 if n < 12 else 16)
        if n == 34: h0_tail_at = len(a.lines)
    for f in pend: f()
    if stamp in (1, 2): stamp_mid(a, 1 if stamp == 1 else 0)
    a.e(f"""
    s_mul_i32 s40, s36, {16*9216}
    s_add_u32 s40, s40, s41
    s_mul_i32 s41, s36, {16*3456}
    s_lshl_b32 s42, s34, 7
    s_add_u32 s41, s41, s42
    s_lshl_b32 s42, s36, 11
    v_add_u32 v104, {8*9216-1024}, v5
    v_add_u32 v105, {8*3456-1024}, v13
    s_cmp_eq_u32 s37, 0
    s_cbranch_scc0 {name}_p1
    """)
    common = a.snapshot()

    def epilogue(a, P):
        if "nofill" in ABL:
            if P == 2: a.add("vm", f"buffer_store_dwordx2 {vr(T,2)}, v21, s[20:23], s56 offen sc1", "ststore")
            return
        acc = ACC[P % 2]
        kind = "z2" if P < 3 else ("z1" if P < 6 else "q")
        if P == 0 or (P == 1 and a.par == 0):
            a.add("lg", f"ds_read_b64 v[28:29], v17 offset:{P*512}", "cs0")
            a.add("w", None, "cs0")
            a.addv(f"{MF32} {vr(acc,16)}, v[28:31], v[24:27], {vr(acc,16)}\ns_nop 7\ns_nop 3")
        T8 = [T + k for k in range(4)] + [6, 16, 22, 23]
        m = Sched()
        def defer():
            items = list(m.fill); m.fill.clear()
            a.add("call", lambda a_, items=items: a_.mfill.extend(items))
        for gg in range(2):
            A = acc + 8*gg
            if kind == "q":
                for r in range(8): a.addv(f"v_mul_f32 v{A+r}, v{R}, v{A+r}")
            else:
                for r in range(8): a.addv(f"v_mul_f32 v{T8[r]}, v{A+r}, v{A+r}")
                for r in range(8): a.addv(f"v_fma_f32 v{T8[r]}, v{T8[r]}, v{C2}, v{C1}")
                for r in range(8): a.addv(f"v_mul_f32 v{T8[r]}, v{T8[r]}, v{A+r}")
                for r in range(8): a.addv(f"v_exp_f32 v{T8[r]}, v{T8[r]}")
                for r in range(8): a.addv(f"v_add_f32 v{T8[r]}, 1.0, v{T8[r]}")
                for r in range(8): a.addv(f"v_rcp_f32 v{T8[r]}, v{T8[r]}")
                for r in range(8): a.addv(f"v_mul_f32 v{A+r}, v{A+r}, v{T8[r]}")
            for g in (2*gg, 2*gg + 1):
                Ag = acc + 4*g
                pk = PK + 2*g if kind != "z1" else PK + (g & 1)*4 + (g >> 1)*2
                a.addv(f"v_cvt_pk_bf16_f32 v{pk}, v{Ag}, v{Ag+1}")
                a.addv(f"v_cvt_pk_bf16_f32 v{pk+1}, v{Ag+2}, v{Ag+3}")
            if kind == "z2":
                m.add("lg", f"ds_write_b128 v19, {vr(PK + 4*gg)} offset:{P*64 + gg*32}")
                tgt = m if (gg == 0 or STATM == 2) and STATM else a
                for r in range(8):
                    tgt.addv(f"v_add_f32 v{(S1, 7)[r & 1]}, v{(S1, 7)[r & 1]}, v{A+r}")
                    tgt.addv(f"v_fmac_f32 v{(S2, 8)[r & 1]}, v{A+r}, v{A+r}")
            elif kind == "z1" and gg == 1:
                for k in range(2):
                    m.add("vm", f"buffer_store_dwordx4 {vr(PK + k*4)}, v20, s[20:23], s{50 + P - 3} offen offset:{k*512} {ZSC}")
            elif kind == "q":
                m.add("vm", f"buffer_store_dwordx4 {vr(PK + gg*4)}, v0, s[20:23], s53 offen offset:{gg*1024} {ZSC}")
            if P == 2 and gg == 1:
                a.addv(f"""
                v_add_f32 v{S1}, v{S1}, v7
                v_add_f32 v{S2}, v{S2}, v8
                v_mov_b32 v7, v{S1}
                v_mov_b32 v8, v{S2}
                s_nop 1
                v_permlane32_swap_b32 v{S1}, v7
                v_permlane32_swap_b32 v{S2}, v8
                s_nop 1
                v_add_f32 v8, v{S2}, v8
                v_add_f32 v7, v{S1}, v7
                v_mul_f32 v10, v{R}, v8
                v_mul_f32 v8, v{R}, v7
                v_mul_f32 v10, v{R}, v10
                v_mov_b32 v9, v{TAG}
                v_mov_b32 v11, v{TAG}
                """)
                a.add("vm", f"buffer_store_dwordx4 v[8:11], v21, s[20:23], s56 offen sc1")
            defer()
    def issue4(a, u, half, own):
        P, c = divmod(u, 9)
        if half == 0:
            a.e(f"s_add_u32 m0, s42, {RING + (u % 12)*8192}")
            a.e(f"s_add_u32 s46, s40, {(c*64*9216 + pcol(P)) & 0xffffffff}" if P < 6 else f"s_add_u32 s46, s41, {c*64*3456}")
        v = (5, 104)[half] if P < 6 else (13, 105)[half]
        own[u] = a.vm(f"buffer_load_dwordx4 v{v}, s[{12 if P < 6 else 16}:{15 if P < 6 else 19}], s46 offen" + (" offset:1024" if half else "") + " lds")
    AH = int(os.environ.get("AH", 3)); W8 = WF + [96, 100]; NW = 6
    PRIO = int(os.environ.get("PRIO", 1))
    STS = (8, 0)

    class Path:
        def __init__(s, p):
            s.a = Sched(); s.a.uid = 100*(p + 1); s.a.restore(common); s.p = p; s.a.par = p
            s.own = dict(uid); s.hooks = {}; s.pre = {}; s.ahead = None
        def bar(s, H, t, lg=None):
            a = s.a
            if (H, t) in s.pre: s.pre[(H, t)](a)
            k = H // 2 + 1
            if H % 2 == 1 and t < 2: us = range(9*k + 3*t + 3, 9*k + 3*t + 6)
            elif H % 2 == 0 and t == 1: us = range(9*k, 9*k + 3)
            else: us = []
            ids = [s.own[u] for u in us if u in s.own]
            a.wait(vm=max(ids) if ids else None, lg=lg)
            if stamp == 4 and 0 <= 3*H + t - TL0 < 4: stamp_mid(a, 3*H + t - TL0)
            a.e("s_barrier")
            if (H, t) in s.hooks: s.hooks[(H, t)](a)
        def preread(s, P):
            s.ahead = {n: wread(s.a, W8[n], 9*P + n // 4, n % 4) for n in range(AH)}
        def M(s, H, P, N):
            a = s.a; acc = ACC[P % 2]
            if P + 1 >= N: todo = {}
            elif s.p == 0: todo = {0: [(u, h) for u in range(9*P + 9, 9*P + 12) for h in (0, 1)]}
            else: todo = {12*t - AH + 1: [(u, h) for u in range(9*P + 9 + 3*t, 9*P + 12 + 3*t) for h in (0, 1)] for t in (1, 2)}
            q = []
            if PRIO: a.e("s_setprio 1")
            if s.ahead is None: s.preread(P)
            br = dict(s.ahead); s.ahead = None
            for i in range(36):
                a.wait(lg=br[i])
                n = i + AH
                mf = f"{MF32} {vr(acc,16)}, {vr(W8[i % NW])}, {vr(X + 4*i)}, " + ("0" if i == 0 else vr(acc, 16))
                if n in (12, 24):
                    a.e(mf); mf = ""
                    s.bar(H, n // 12 - 1, br[n-1] if s.p == 1 else None)
                if n < 36: br[n] = wread(a, W8[n % NW], 9*P + n // 4, n % 4)
                a.e(mf)
                q += todo.get(i, [])
                if q and (i % (5 if s.p == 0 else 2) == (1 if s.p == 0 else (AH + 1) % 2)): issue4(a, *q.pop(0), s.own)
                elif i % 2 == 0 and i >= 2: a.mpump(2)
                if i == 30 and H > 1: cid = a.lg(f"ds_read_b64 v[28:29], v17 offset:{P*512}")
            assert not q and not a.mfill
            if H > 1:
                a.wait(lg=cid)
                a.e(f"{MF32} {vr(acc,16)}, v[28:31], v[24:27], {vr(acc,16)}")
            if PRIO: a.e("s_setprio 0")
            s.bar(H, 2)
        def V(s, H, nextP, t0=0):
            a = s.a
            tot = a.fill_cost() + (8 if nextP else 0)
            for t in range(t0, 3):
                a.pump(math.ceil(tot / (3 - t0)) if t < 2 else 1 << 30)
                if t == 2 and nextP: s.preread(nextP)
                s.bar(H, t)

    QD = [44, 48, 52, 56, 96, 100, 108, 8]
    def stat_loads(a, k0, k1, tracked=True):
        f = a.vm if tracked else (lambda t, k=None: a.e(t))
        a.e(f"s_add_u32 s45, s55, {k0*2048}")
        for k in range(k0, k1):
            if k % 2 == 0 and k > k0: a.e("s_add_u32 s45, s45, 4096")
            f(f"buffer_load_dwordx4 {vr(QD[k - k0])}, v63, s[20:23], s45 offen offset:{(k%2)*2048}" + ("" if tracked else " sc1"), "stl")
    def stat_take(a, k0, k1):
        a.wait_key("stl")
        tags_retry(a, name, [QD[k] + o for k in range(k1 - k0) for o in (1, 3)], TAG, 106, lambda a: stat_loads(a, k0, k1, False))
        for k in range(k1 - k0):
            if k0 + k == 0: a.e(f"v_mov_b32 v{S1}, v{QD[0]}\nv_mov_b32 v{S2}, v{QD[0]+2}")
            else: a.e(f"v_add_f32 v{S1}, v{S1}, v{QD[k]}\nv_add_f32 v{S2}, v{S2}, v{QD[k]+2}")
    def stat_phase(path, H, nextP):
        a = path.a
        a.e(f"""
        v_lshrrev_b32 v63, 9, v0            ; h
        v_mul_u32_u24 v63, {12*2048}, v63
        v_add_u32 v63, v63, v21
        """)
        stat_loads(a, 0, 8)
        tot = a.fill_cost()
        a.pump(math.ceil(tot * 0.42)); path.bar(H, 0)
        stat_take(a, 0, 8); stat_loads(a, 8, 12)
        a.pump(math.ceil(tot * 0.3)); path.bar(H, 1)
        a.flush()
        stat_take(a, 8, 12)
        a.e(f"""
        v_mov_b32 v106, v{S1}
        v_mov_b32 v107, v{S2}
        s_lshl_b32 s39, s36, 8
        s_add_u32 s39, s39, {PRM + 256}
        v_permlane32_swap_b32 v{S1}, v106
        v_permlane32_swap_b32 v{S2}, v107
        v_lshrrev_b32 v63, 2, v21
        v_add_u32 v63, s39, v63
        v_add_f32 v{S1}, v{S1}, v106
        v_add_f32 v{S2}, v{S2}, v107
        v_mul_f32 v{S1}, {f2u(1/2304.)}, v{S1}
        v_mul_f32 v{S2}, {f2u(1/2304.)}, v{S2}
        v_fma_f32 v{S2}, -v{S1}, v{S1}, v{S2}
        v_max_f32 v{S2}, 0, v{S2}
        v_add_f32 v{S2}, {f2u(1e-5)}, v{S2}
        v_rsq_f32 v{S2}, v{S2}
        s_nop 0
        v_mul_f32 v106, v{R}, v{S2}
        v_mul_f32 v107, -v{S1}, v{S2}
        """)
        a.lg("ds_write_b32 v63, v106")
        w = a.lg("ds_write_b32 v63, v107 offset:128")
        path.preread(nextP)
        path.bar(H, 2, w)
    def normalise(a):
        a.addv(f"""
        v_lshrrev_b32 v106, 8, v0           ; kg
        v_bfe_u32 v63, v0, 6, 2             ; r
        s_lshl_b32 s39, s36, 8
        s_add_u32 s39, s39, {PRM + 256}
        v_lshl_add_u32 v107, v106, 5, s39
        """)
        for k in range(4): a.add("lg", f"ds_read_b128 {vr(44 + 4*k)}, v107 offset:{(k & 1)*16 + (k >> 1)*128}", "prm")
        a.addv(f"""
        v_lshl_add_u32 v63, v106, 3, v63
        v_mul_u32_u24 v63, {SP}, v63
        v_bfe_u32 v106, v0, 4, 1
        v_lshl_add_u32 v63, v106, 4, v63
        v_bfe_u32 v106, v0, 5, 1
        v_lshl_add_u32 v63, v106, 3, v63
        s_mul_i32 s39, s3, {32*SP}
        s_add_u32 s39, s39, {XR}
        v_add_u32 v63, s39, v63
        """)
        ZQ = [96, 100, 108]
        def rd(b_):
            a.add("lg", f"ds_read_b64_tr_b16 {vr(ZQ[b_ % 3],2)}, v63 offset:{b_*32}")
            a.add("lg", f"ds_read_b64_tr_b16 {vr(ZQ[b_ % 3]+2,2)}, v63 offset:{b_*32 + 4*SP}", ("zt", b_))
        rd(0); rd(1)
        for b_ in range(6):
            a.add("w", None, ("zt", b_))
            for k in range(4):
                z = ZQ[b_ % 3] + k; t = (106, 8)[k & 1]
                a.addv(f"""
                v_lshlrev_b32 v{t}, 16, v{z}
                v_and_b32 v{t+1}, 0xffff0000, v{z}
                v_fma_f32 v{t}, v{t}, v{44+2*k}, v{52+2*k}
                v_fma_f32 v{t+1}, v{t+1}, v{45+2*k}, v{53+2*k}
                v_cvt_pk_bf16_f32 v{z}, v{t}, v{t+1}
                """)
                if k == 1 and b_ + 2 < 6: rd(b_ + 2)
            if b_ % 2 == 0 and b_ > 0: a.addv("s_add_u32 s54, s54, 4096")
            a.add("vm", f"buffer_store_dwordx4 {vr(ZQ[b_ % 3])}, v0, s[20:23], s54 offen offset:{(b_&1)*1024} {Z2SC}", "z2st")
    def zflag(a):
        lb = a.newlabel(name + "_zf")
        a.e(f"""
        s_cmp_eq_u32 s3, 4
        s_cbranch_scc0 {lb}
        s_lshl_b32 s39, s33, 4
        s_add_u32 s39, s39, s32
        s_lshl_b32 s39, s39, 7
        s_add_u32 s39, s39, {FZ}
        v_mov_b32 v8, v{TAG}
        v_mov_b32 v9, v{TAG}
        v_mov_b32 v10, v{TAG}
        v_mov_b32 v11, v{TAG}
        s_mov_b64 exec, 0xff
        buffer_store_dwordx4 v[8:11], v0, s[20:23], s39 offen sc1
        s_mov_b64 exec, -1
        """)
        a.label(lb)
    lt = name + "_ztail"
    for p in (0, 1):
        path = Path(p); b = path.a
        def step(k, N):
            path.M(2*k - 1 + p, k, N)
            if 2*k + p <= 2*(N - 1):
                H = 2*k + p
                if H in (10, 11): normalise(b)
                epilogue(b, k - 1)
                if H == 9: stat_phase(path, H, k + 1)
                else: path.V(H, k + 1 if k + 1 < N else None)
        def xchk(a):
            a.wait_key("xst")
            tags_retry(a, name, [NEGMU + 1, NEGMU + 3], TAG, 61, lambda a: xst_load(a, False))
        if p == 1:
            b.label(f"{name}_p1")
            hand_loads(b, 0, 6, sc="")
            b.e("s_waitcnt vmcnt(10)"); b.vm_done = uid[14]
            path.bar(1, 0)
            hand_loads(b, 6, 16, sc="")
            b.e("s_waitcnt vmcnt(16)"); b.vm_done = b.vm_n - 1
            path.bar(1, 1)
            b.e("s_waitcnt vmcnt(0)")
            xchk(b)
            tags_retry(b, name, [r + o for r in CSR for o in (1, 3)], TAG, 61, hand_loads, 63)
            for st_ in (8, 4, 2, 1):
                for k in range(st_):
                    for o in (0, 2): b.e(f"v_add_f32 v{CSR[k]+o}, v{CSR[k]+o}, v{CSR[k+st_]+o}")
            b.e(f"""
            v_cvt_pk_bf16_f32 v84, v80, v80
            v_cvt_pk_bf16_f32 v86, v82, v82
            v_lshlrev_b32 v85, 16, v84
            v_lshlrev_b32 v87, 16, v86
            v_sub_f32 v80, v80, v85
            v_sub_f32 v82, v82, v87
            v_cvt_pk_bf16_f32 v85, v80, v80
            v_cvt_pk_bf16_f32 v87, v82, v82
            v_add_u32 v104, {8*9216-1024}, v5
            v_add_u32 v105, {8*3456-1024}, v13
            """)
            b.lg("ds_write_b128 v18, v[84:87]")
            wid_ = b.lg_n - 1
            b.e(CONSTS)
            path.preread(1)
            path.bar(1, 2, wid_)
        else:
            b.add("call", xchk); b.addv(CONSTS)
        for k in range(1, 5): step(k, 7)
        lq = f"{name}_noq{p}"
        b.e(f"s_cmp_eq_u32 s18, 0\ns_cbranch_scc1 {lq}")
        snap = b.snapshot(); own_s = dict(path.own); ah_s = path.ahead
        for N in (7, 6):
            if N == 6:
                b.label(lq); b.restore(snap); path.own = dict(own_s); path.ahead = ah_s
            HL = 2*(N - 1)
            path.pre.clear(); path.hooks.clear()
            if N == 7:
                path.pre[(12, 1)] = lambda a: a.wait_key("z2st")
                if p == 1: path.hooks[(12, 1)] = zflag
            for k in range(5, N): step(k, N)
            if stamp == 1: stamp_mid(b, 2)
            b.e("s_nop 7")
            b.mpump(1000)
            if N == 6 and p == 1: normalise(b); b.flush()
            if p == 1: epilogue(b, N - 2); b.flush(); b.mpump(1000)
            epilogue(b, N - 1); b.flush(); b.mpump(1000)
            if N == 6:
                b.wait_key("z2st"); b.e("s_barrier")
                if p == 1: zflag(b)
            if not (p == 1 and N == 6): b.e(f"s_branch {lt}")
        a.lines += b.lines
        if getattr(b, 'forced', 0): print('forced flushes', p, b.forced)
    a.label(lt)
    if stamp == 1: stamp_mid(a, 3)
    if stamp == 3:
        a.e(f"""
        s_add_u32 s84, s20, {STAMP + 8*65536}
        s_addc_u32 s85, s21, 0
        s_mov_b32 s86, 0x200000
        s_mov_b32 s87, 0x20000
        s_lshl_b32 s88, s2, 3
        s_add_u32 s88, s88, s3
        s_lshl_b32 s88, s88, 9
        v_writelane_b32 v18, s92, 0
        v_lshlrev_b32 v1, 2, v2
        buffer_store_dword v18, v1, s[84:87], s88 offen
        buffer_store_dword v61, v1, s[84:87], s88 offen offset:256
        """)

def stat_issue(a, tracked=True):
    f = a.vm if tracked else (lambda t, k=None: a.e(t))
    a.e(f"""
    v_lshrrev_b32 v63, 9, v0            ; h
    v_mul_u32_u24 v63, {12*2048}, v63
    v_add_u32 v63, v63, v21
    s_mov_b32 s45, s55
    """)
    for k in range(12):
        if k % 2 == 0 and k: a.e("s_add_u32 s45, s45, 4096")
        f(f"buffer_load_dwordx4 {vr(112+4*k)}, v63, s[20:23], s45 offen offset:{(k%2)*2048}" + ("" if tracked else " sc1"), "stl")

def touch(a, vt=22):
    a.e(f"""
    s_load_dwordx2 s[62:63], s[0:1], {KA_WSP}
    s_lshl_b32 s38, s32, 3
    s_add_u32 s38, s38, s33
    s_lshl_b32 s38, s38, 3
    s_add_u32 s38, s38, s3              ; 0..511
    s_sub_u32 s39, s38, 324
    s_cmp_lt_u32 s38, 324
    s_cselect_b32 s28, s70, s72
    s_cselect_b32 s29, s71, s73
    s_mov_b32 s30, {D*D*2}
    s_cselect_b32 s30, {F2*D*2}, s30
    s_cselect_b32 s39, s38, s39
    s_mov_b32 s31, 0x20000
    s_lshl_b32 s39, s39, 13
    v_lshlrev_b32 v{vt}, 3, v0
    v_add_u32 v{vt+1}, s39, v{vt}
    """)
    a.vm(f"buffer_load_dword v{vt+1}, v{vt+1}, s[28:31], 0 offen")
    a.e(f"""
    s_waitcnt lgkmcnt(0)
    s_mov_b32 s28, s62
    s_mov_b32 s29, s63
    s_mov_b32 s30, {S*S*2}
    s_lshl_b32 s39, s38, 14
    """)
    a.lg_done = a.lg_n - 1
    a.vm(f"buffer_load_dword v13, v{vt}, s[28:31], s39 offen")
    a.e("s_add_u32 s39, s39, 8192")
    a.vm(f"buffer_load_dword v15, v{vt}, s[28:31], s39 offen")

def repack_loads(a, name, tag, base):
    lb = f"{name}_rp{tag}"
    a.e(f"""
    s_cmp_ge_u32 s60, 720
    s_cbranch_scc1 {lb}
    s_lshr_b32 s61, s60, 3              ; step
    s_and_b32 s62, s60, 7               ; d tile
    s_cmp_lt_u32 s61, 72
    s_cselect_b32 s28, s70, s72
    s_cselect_b32 s29, s71, s73
    s_mov_b32 s30, {D*D*2}
    s_cselect_b32 s30, {F2*D*2}, s30
    s_mov_b32 s31, 0x20000
    s_mov_b32 s63, {8*1152}
    s_cselect_b32 s63, {16*1152}, s63           ; j2 stride
    s_mov_b32 s64, {2*1152}                     ; j1 stride
    s_mov_b32 s65, {18*1152}
    s_cselect_b32 s65, {8*1152}, s65            ; k1 stride
    s_mov_b32 s66, {4*1152}                     ; k0 stride
    s_mul_i32 s67, s61, {32*1152}
    s_sub_u32 s68, s61, 72
    s_mul_i32 s68, s68, {36*1152}
    s_cmp_lt_u32 s61, 72
    s_cselect_b32 s67, s67, s68
    s_sub_u32 s68, s61, 88
    s_mul_i32 s68, s68, {288*1152}
    s_add_u32 s68, s68, {16*1152}
    s_cmp_ge_u32 s61, 88
    s_cselect_b32 s67, s68, s67
    s_cselect_b32 s63, {36*1152}, s63
    s_cselect_b32 s64, {18*1152}, s64
    s_cselect_b32 s65, {144*1152}, s65
    s_cselect_b32 s66, {72*1152}, s66
    s_mul_i32 s68, s62, 144
    s_add_u32 s67, s67, s68
    v_lshrrev_b32 v180, 9, v0
    v_mul_lo_u32 v180, v180, s64
    v_bfe_u32 v181, v0, 8, 1
    v_mul_u32_u24 v181, 1152, v181
    v_add_u32 v180, v180, v181
    v_and_b32 v181, 0xf0, v0
    v_add_u32 v180, v180, v181
    v_mov_b32 v182, {BIG}
    v_cmp_gt_u32 vcc, 144, v181
    s_lshl_b32 s48, s3, 13
    s_add_u32 s48, s48, {base}
    s_nop 0
    v_cndmask_b32 v180, v182, v180, vcc
    """)
    for i in range(8):
        j2, k1, k0 = i >> 2, (i >> 1) & 1, i & 1
        a.e(f"s_add_u32 m0, s48, {i*1024}")
        a.e(f"s_mov_b32 s68, s67")
        if j2: a.e("s_add_u32 s68, s68, s63")
        if k1: a.e("s_add_u32 s68, s68, s65")
        if k0: a.e("s_add_u32 s68, s68, s66")
        a.e(f"buffer_load_dwordx4 v180, s[28:31], s68 offen lds")
    a.label(lb)

def repack_stores(a, name, tag=""):
    lb = f"{name}_rps{tag}"
    a.e(f"""
    s_cmp_ge_u32 s60, 720
    s_cbranch_scc1 {lb}
    v_lshrrev_b32 v181, 6, v0
    v_lshlrev_b32 v181, 8, v181
    v_bfe_u32 v182, v0, 4, 2
    v_lshl_add_u32 v181, v182, 3, v181
    v_add_u32 v181, s48, v181
    s_and_b32 s63, s62, 1
    s_lshl_b32 s64, s63, 4
    v_add_u32 v182, s64, v181
    s_lshl_b32 s64, s63, 7
    s_sub_u32 s65, 128, s64
    v_add_u32 v181, s65, v181
    """)
    for i in range(4):
        a.e(f"ds_read_b64_tr_b16 {vr(160+4*i,2)}, v182 offset:{32*i}")
        a.e(f"ds_read_b64_tr_b16 {vr(162+4*i,2)}, v182 offset:{32*i + 4096}")
    a.e(f"""
    ds_read_b64_tr_b16 v[176:177], v181
    ds_read_b64_tr_b16 v[178:179], v181 offset:4096
    s_lshr_b32 s68, s62, 1
    s_mul_i32 s68, s68, 90
    s_add_u32 s68, s68, s61
    s_mul_i32 s68, s68, {9*1024}
    s_add_u32 s68, s68, {WP}
    s_add_u32 s65, s68, s64
    s_add_u32 s65, s65, 4096
    s_mul_i32 s63, s63, {5*1024}
    s_add_u32 s68, s68, s63
    v_and_b32 v182, 0x80, v0
    v_cmp_eq_u32 vcc, 0, v182
    v_mov_b32 v182, {BIG}
    s_nop 0
    v_cndmask_b32 v181, v182, v0, vcc
    s_waitcnt lgkmcnt(0)
    """)
    for i in range(4):
        a.e(f"buffer_store_dwordx4 v[{160+4*i}:{163+4*i}], v0, s[20:23], s68 offen offset:{1024*i} sc1")
    a.e(f"buffer_store_dwordx4 v[176:179], v181, s[20:23], s65 offen sc1")
    a.label(lb)

def gen_k1(name="k1_kernel", stamp=False, attn=True, merged=False):
    a = Sched()
    a.e(f"""
    s_cmp_ge_u32 s2, 256
    s_cbranch_scc1 {name}_end
    """)
    if stamp: stamp_begin(a)
    a.e(f"""
    s_load_dwordx4 s[4:7], s[0:1], {KA_X}         ; x, wqkv
    s_load_dwordx2 s[74:75], s[0:1], {KA_WPHI}
    s_load_dwordx2 s[72:73], s[0:1], {KA_WO}
    s_load_dwordx2 s[28:29], s[0:1], {KA_WIN}
    s_load_dwordx2 s[70:71], s[0:1], {KA_WOUT}
    s_load_dwordx4 s[64:67], s[0:1], {KA_DBG}
    v_lshrrev_b32 v1, 6, v0
    v_and_b32 v2, 63, v0
    v_readfirstlane_b32 s3, v1
    s_and_b32 s30, s2, 7
    s_lshr_b32 s31, s2, 3               ; l
    s_and_b32 s35, s30, 1
    s_lshr_b32 s30, s30, 1              ; j
    s_waitcnt lgkmcnt(0)
    """)
    srd(a, 24, 64, 65, 256)
    epoch_publish(a, name)
    srd(a, 8, 4, 5, S*D*2)
    srd(a, 16, 6, 7, D*1728*2)
    srd(a, 12, 28, 29, D*4608*2)
    srd(a, 20, 66, 67, WS_USED, WSB)
    NT = int(os.environ.get("NT", 0))
    if NT:
        a.e(f"""
        s_mul_i32 s38, s2, 5
        s_add_u32 s38, s38, s3
        s_sub_u32 s39, s38, 288
        s_sub_u32 s40, s38, {288+243}
        s_cmp_lt_u32 s38, {288+243}
        s_cselect_b32 s76, s16, s12
        s_cselect_b32 s77, s17, s13
        s_cselect_b32 s78, s18, s14
        s_cselect_b32 s39, s39, s40
        s_cmp_lt_u32 s38, 288
        s_cselect_b32 s76, s8, s76
        s_cselect_b32 s77, s9, s77
        s_cselect_b32 s78, s10, s78
        s_cselect_b32 s39, s38, s39
        s_mov_b32 s79, 0x20000
        s_cmp_ge_u32 s3, 5
        s_cselect_b32 s78, 0, s78
        s_lshl_b32 s39, s39, 13
        v_lshlrev_b32 v63, 7, v2
        v_add_u32 v63, s39, v63
        """)
        a.vm("buffer_load_dword v63, v63, s[76:79], 0 offen")
    a.e(f"""
    s_cmp_ge_u32 s31, 24
    s_cbranch_scc1 {name}_attn
    s_lshl_b32 s32, s35, 3
    s_and_b32 s33, s31, 7
    s_add_u32 s32, s32, s33             ; rt
    s_mul_i32 s33, s30, 3
    s_lshr_b32 s34, s31, 3
    s_add_u32 s33, s33, s34             ; zg
    s_lshr_b32 s34, s33, 2
    s_sub_u32 s34, s33, s34             ; qi
    s_and_b32 s36, s33, 3
    s_cmp_eq_u32 s36, 3
    s_cselect_b32 s18, 0, s18
    s_cselect_b32 s34, 0, s34
    s_mul_i32 s60, s33, 16
    s_add_u32 s60, s60, s32
    s_lshl_b32 s60, s60, 2
    s_add_u32 s60, s60, s3
    s_cmp_ge_u32 s3, 4
    s_cselect_b32 s60, 720, s60
    """)
    gen_zpath(a, name, stamp)
    if os.environ.get("ENDINV"): a.e("s_waitcnt vmcnt(0)\n" + os.environ["ENDINV"])
    if merged:
        a.e(f"v_readfirstlane_b32 s69, v60\ns_lshl_b32 s68, s33, 4\ns_add_u32 s68, s68, s32\ns_branch {name}_p2")
    else:
        if stamp: stamp_end(a, 1, "s3", 4)
        a.e("s_endpgm")
    a.label(f"{name}_attn")
    from k1a import gen_attn, A_LDS
    b = Sched(); b.uid = 1000; b.vm_n = 1 if NT else 0
    gen_attn(b, name, stamp, attn, merged)
    a.lines += b.lines
    lds = max(Z_LDS, A_LDS)
    if merged: return a.lines, lds
    a.label(f"{name}_end")
    a.e("s_endpgm")
    launch = f"; @launch kernel={name} grid=(256,1,1) block=(512,1,1) lds={lds}\n"
    return launch, kernel_begin(name) + a.text(), kernel_desc(name, 256, 102, 256)
```

```python
import os
from k1common import *
from sched import Sched
XRA = 0
WRA = 98304
PHI = 40960
AFO = 147456
CSA = AFO + 14*1024
WPH = AFO + 10*1024
A_LDS = CSA + 1024
PPH, PV = 328, 152

def gen_attn(a, name, stamp, full=True, merged=False):
    X = 112; ACC = [48, 64, 80, 96]; WF = [24, 28, 32, 36]
    NEGMU, R, TAG = 8, 10, 14

    a.e(f"""
    s_sub_u32 s33, s31, 24
    s_lshl_b32 s32, s35, 2
    s_and_b32 s34, s33, 3
    s_add_u32 s32, s32, s34             ; rt2
    s_lshr_b32 s33, s33, 2
    s_lshl_b32 s34, s30, 1
    s_add_u32 s33, s33, s34             ; G
    s_and_b32 s34, s33, 1               ; G odd
    s_mul_i32 s36, s33, 144
    s_lshl_b32 s37, s34, 4
    s_sub_u32 s37, s36, s37
    s_add_u32 s37, s37, 1152
    s_add_u32 s36, s36, {2304 - 160}
    """)
    def colreg(a, dst, unit, t):
        a.e(f"""
        v_cmp_gt_u32 vcc, 10, v{unit}
        v_mov_b32 v{dst}, s36
        v_mov_b32 v{t}, s37
        v_cndmask_b32 v{dst}, v{dst}, v{t}, vcc
        v_lshl_add_u32 v{dst}, v{unit}, 4, v{dst}
        """)
    a.e(f"""
    v_lshrrev_b32 v28, 3, v2
    v_and_b32 v29, 7, v2
    v_lshrrev_b32 v31, 4, v2
    v_xor_b32 v31, v31, v29
    v_mul_u32_u24 v8, 1152, v28
    v_lshl_add_u32 v8, v31, 4, v8
    v_xor_b32 v9, 64, v8
    v_add_u32 v10, {2*(8*1152-1024)}, v8
    v_add_u32 v11, {3*(8*1152-1024)}, v9
    v_add_u32 v9, {8*1152-1024}, v9
    s_lshl_b32 s43, s32, 8
    s_lshl_b32 s44, s3, 5
    s_add_u32 s43, s43, s44
    s_lshl_b32 s59, s43, 4
    s_add_u32 s59, s59, {XST}
    s_mul_i32 s43, s43, 1152
    s_lshl_b32 s44, s3, 12
    v_and_b32 v26, 3, v2
    v_lshrrev_b32 v30, 2, v2
    v_mul_u32_u24 v30, 3456, v30
    s_lshr_b32 s38, s3, 1
    s_lshl_b32 s38, s38, 2
    v_add_u32 v27, s38, v26
    """)
    colreg(a, 5, 27, 29)
    a.e(f"""
    v_add_u32 v5, v5, v30
    v_add_u32 v6, {16*3456 - 1024}, v5
    s_and_b32 s40, s3, 1
    s_mul_i32 s40, s40, {32*3456}
    s_lshl_b32 s42, s3, 11
    s_add_u32 s42, s42, {WRA}
    """)
    wid = {}; xid = {}; pend = []
    def issue(k):
        if k[0] == "x":
            c, i = k[1], k[2]
            if i == 0: a.e(f"s_add_u32 m0, s44, {XRA + (c%3)*32768}\ns_add_u32 s46, s43, {c*128}")
            xid[c] = a.vm(f"buffer_load_dwordx4 v{8+i}, s[8:11], s46 offen offset:{i*1024} lds")
        elif k[0] == "w":
            c, i = k[1], k[2]
            if i == 0: a.e(f"s_add_u32 m0, s42, {(c%3)*16384}\ns_add_u32 s46, s40, {c*64*3456}")
            wid[c] = a.vm(f"buffer_load_dwordx4 v{5+i}, s[16:19], s46 offen offset:{i*1024} lds")
        else:
            i = k[1]
            a.e(f"s_add_u32 m0, s48, {XRA + i*8192}\ns_add_u32 s46, s41, {i*128*3456}")
            if i < 4:
                wid[("b4", i)] = a.vm(f"buffer_load_dwordx4 v7, s[16:19], s46 offen lds")
            else:
                a.e("v_add_u32 v22, s46, v7")
                wid[("b4", i)] = a.vm(f"buffer_load_dwordx4 v22, s[16:19], 0 offen lds")
    def push(c):
        pend.extend([("x", c, i) for i in range(4)] + [("w", c, 0), ("w", c, 1)])
    def dma(n=1):
        for _ in range(n):
            if pend: issue(pend.pop(0))
    push(0); dma(100)
    a.e(f"""
    s_lshl_b32 s38, s3, 2
    v_add_u32 v27, s38, v26
    """)
    colreg(a, 28, 27, 29)
    a.e(f"""
    v_add_u32 v28, v28, v30
    v_mov_b32 v31, {BIG}
    s_cmp_lt_u32 s3, 5
    s_cselect_b64 vcc, -1, 0
    v_cndmask_b32 v28, v31, v28, vcc
    v_cmp_gt_u32 vcc, 32, v2
    s_mul_i32 s39, s32, {72*3456}
    s_nop 0
    v_cndmask_b32 v29, v31, v28, vcc
    """)
    for i in range(5):
        coop_id = a.vm(f"buffer_load_dwordx4 {vr(216+4*i)}, v{28 if i < 4 else 29}, s[16:19], s39 offen")
        if i < 4: a.e(f"s_add_u32 s39, s39, {16*3456}")
    a.e(f"""
    s_mov_b32 s28, s74
    s_mov_b32 s29, s75
    s_mov_b32 s30, {32*18*18*2}
    s_mov_b32 s31, 0x20000
    s_min_u32 s38, s3, 3
    s_lshl_b32 s38, s38, 10
    s_add_u32 m0, s38, {WPH}
    s_mul_i32 s39, s33, 2592
    s_add_u32 s39, s39, s38
    v_lshlrev_b32 v0, 4, v2
    s_cmp_ge_u32 s3, 3
    s_cselect_b64 vcc, -1, 0
    v_add_u32 v28, s39, v0
    v_cndmask_b32 v28, v28, v31, vcc
    """)
    a.vm("buffer_load_dwordx4 v28, s[28:31], 0 offen lds")
    a.e(f"""
    s_cmp_eq_u32 s3, 0
    s_cselect_b32 s38, 0, {BIG}
    v_mov_b32 v4, s38
    """)
    push(1); dma(100)
    ep_id = a.vm(f"buffer_load_dword v{TAG}, v4, s[24:27], 0 offen sc1")
    a.e(f"""
    v_add_u32 v27, 16, v26
    """)
    colreg(a, 7, 27, 29)
    a.e(f"""
    v_add_u32 v7, v7, v30               ; B4 panel
    s_mul_i32 s41, s3, {16*3456}
    s_lshl_b32 s48, s3, 10
    v_lshrrev_b32 v24, 5, v2
    v_and_b32 v22, 15, v2
    v_lshrrev_b32 v23, 2, v22           ; r
    v_and_b32 v22, 3, v22               ; c
    v_bfe_u32 v25, v2, 4, 1             ; n half
    v_lshl_add_u32 v12, v24, 3, v23     ; 8h + r
    v_lshlrev_b32 v1, 6, v12
    v_lshl_add_u32 v1, v25, 5, v1
    v_lshl_add_u32 v3, v22, 3, v1
    v_add_u32 v1, {WRA}, v3
    v_and_b32 v32, 31, v2               ; s
    v_bfe_u32 v33, v2, 1, 3
    v_xor_b32 v33, v33, v24
    v_lshlrev_b32 v33, 4, v33
    v_lshl_add_u32 v16, v32, 7, v33
    v_add_u32 v16, s44, v16
    v_xor_b32 v17, 32, v16
    v_xor_b32 v18, 64, v16
    v_xor_b32 v19, 96, v16
    v_lshlrev_b32 v21, 3, v32           ; s*8
    """)
    push(2)
    a.keys["coop"] = ("vm", coop_id)
    b = Sched()
    b.e(f"""
    s_mul_i32 s57, s33, {8*160*8}
    s_add_u32 s57, s57, {CSPA}
    s_mul_i32 s47, s32, {160*8}
    s_add_u32 s47, s47, s57
    s_lshl_b32 s50, s3, 8
    s_add_u32 s47, s47, s50
    v_and_b32 v250, 3, v2
    v_lshlrev_b32 v250, 6, v250
    v_lshrrev_b32 v249, 4, v2
    v_lshl_add_u32 v250, v249, 3, v250
    v_and_b32 v249, 12, v2
    v_cmp_eq_u32 vcc, 0, v249
    s_mov_b32 s62, 0x00003f80
    s_mov_b32 s63, 0x3f800000
    v_mov_b32 v249, {BIG}
    s_cmp_ge_u32 s3, 5
    s_cselect_b64 vcc, 0, vcc
    v_cndmask_b32 v250, v249, v250, vcc
    """)
    a.add_block(b.lines, "x"); b.lines = []
    a.add("w", None, "coop")
    for i in range(5): colsum_add(b, 236, 216 + 4*i, i == 0)
    fold_pairs(b, 236, [4, 8])
    a.add_block(b.lines, "x"); b.lines = []
    a.add("gate")
    a.add("lg", f"ds_read_b32 v{TAG}, v4", "tag")
    a.add("w", None, "tag")
    a.addv(f"v_mov_b32 v237, v{TAG}\nv_mov_b32 v241, v{TAG}")
    a.add("vm", f"buffer_store_dwordx2 v[236:237], v250, s[20:23], s47 offen sc1")
    a.add("vm", f"buffer_store_dwordx2 v[240:241], v250, s[20:23], s47 offen offset:32 sc1")
    a.addv(f"""
    s_mul_i32 s50, s3, 160
    v_and_b32 v22, 7, v2
    v_lshrrev_b32 v23, 3, v2
    v_mul_u32_u24 v23, 1280, v23
    v_lshl_add_u32 v23, v22, 3, v23
    v_add_u32 v23, s50, v23
    v_cmp_gt_u32 vcc, 4, v22
    v_mov_b32 v47, {BIG}
    s_lshr_b32 s50, s50, 1
    v_cndmask_b32 v47, v47, v23, vcc
    s_add_u32 s50, s50, {CSA}
    v_lshl_add_u32 v20, v22, 2, s50
    v_lshlrev_b32 v15, 1, v21
    """)
    a.add("mark", None, "sigready")
    a.addv(f"""
    v_lshrrev_b32 v224, 5, v2           ; h'
    v_bfe_u32 v225, v2, 3, 2            ; g
    v_and_b32 v226, 3, v2               ; r
    v_lshl_add_u32 v225, v225, 2, v226  ; n = 4g + r
    s_lshr_b32 s50, s3, 1               ; i
    s_and_b32 s51, s3, 1
    s_lshl_b32 s51, s51, 4
    s_lshl_b32 s52, s50, 1
    s_sub_u32 s51, s51, s52
    s_lshl_b32 s52, s34, 3
    s_sub_u32 s51, s51, s52             ; D0 = 16t - 2i - 8(G&1)
    v_lshlrev_b32 v227, 2, v224
    v_add_u32 v228, s51, v227
    s_mul_i32 s50, s50, 648
    s_add_u32 s50, s50, {WPH}
    v_lshlrev_b32 v229, 1, v225
    v_add_u32 v229, s50, v229
    v_lshrrev_b32 v230, 1, v225         ; i' = n>>1
    s_lshl_b32 s53, s3, 4
    s_sub_u32 s53, s53, s52
    v_add_u32 v231, s53, v227
    v_mul_u32_u24 v226, 18, v230
    v_sub_u32 v231, v231, v226
    v_cmp_lt_u32 vcc, 7, v225
    v_mov_b32 v227, 1000
    v_mul_u32_u24 v230, 648, v230
    v_cndmask_b32 v231, v231, v227, vcc
    v_and_b32 v226, 1, v225
    v_lshl_add_u32 v230, v226, 1, v230
    v_add_u32 v230, {32 + WPH}, v230
    v_mov_b32 v227, {WPH + 3072}
    """)
    AFL = 232
    for f, (db, vf) in enumerate(((228, 229), (231, 230))):
        for j in range(8):
            a.addv(f"""
            v_add_u32 v226, {8*(j>>2) + (j&3)}, v{db}
            v_cmp_gt_u32 vcc, 18, v226
            v_mul_u32_u24 v226, 36, v226
            v_add_u32 v226, v226, v{vf}
            v_cndmask_b32 v226, v227, v226, vcc
            """)
            a.add("lg", f"ds_read_u16 v{AFL + 8*f + j}, v226", "afl")
    a.addv(f"""
    v_bfe_u32 v224, v2, 2, 1
    v_mov_b32 v225, 0x80008000
    v_mul_lo_u32 v224, v224, v225
    s_add_u32 s50, s48, {AFO}
    v_add_u32 v225, s50, v0
    s_min_u32 s51, s3, 5
    s_lshl_b32 s51, s51, 10
    s_add_u32 s50, s51, {AFO + 8192}
    v_add_u32 v226, s50, v0
    s_mul_i32 s52, s33, {13*1024}
    s_add_u32 s52, s52, {AF}
    s_add_u32 s51, s51, s52
    s_add_u32 s51, s51, 8192
    s_add_u32 s52, s52, s48
    v_mov_b32 v227, {BIG}
    s_cmp_eq_u32 s32, 0
    s_cselect_b64 vcc, -1, 0
    v_cndmask_b32 v228, v227, v0, vcc
    s_cmp_ge_u32 s3, 5
    s_cselect_b64 vcc, 0, vcc
    v_cndmask_b32 v229, v227, v0, vcc
    """)
    a.add("w", None, "afl")
    for f in range(2):
        for k in range(4):
            a.addv(f"v_lshl_or_b32 v{248+4*f+k}, v{AFL+8*f+2*k+1}, 16, v{AFL+8*f+2*k}")
            a.addv(f"v_xor_b32 v{248+4*f+k}, v{248+4*f+k}, v224")
    a.add("gate", None, "af")
    a.add("lg", f"ds_write_b128 v225, {vr(248)}")
    a.add("lg", f"ds_write_b128 v226, {vr(252)}")
    a.add("vm", f"buffer_store_dwordx4 {vr(248)}, v228, s[20:23], s52 offen sc1")
    a.add("vm", f"buffer_store_dwordx4 {vr(252)}, v229, s[20:23], s51 offen sc1")
    a.addv("s_nop 1")
    def barrier(vmid):
        a.wait(vm=vmid, lg=a.lg_n - 1)
        a.e("s_barrier")
    def hand_loads(a, tracked=True):
        f = a.vm if tracked else (lambda t, k=None: a.e(t))
        sc = "" if tracked else " sc1"
        f(f"buffer_load_dwordx4 {vr(NEGMU)}, v15, s[20:23], s59 offen{sc}")
        for k in range(3):
            f(f"buffer_load_dwordx2 {vr(40 + 2*k, 2)}, v{47 if k == 2 else 23}, s[20:23], s57 offen offset:{64*k}{sc}", "csp")
    seq = [(c, j, b) for c in range(9) for j in range(4) for b in range(4)]
    rid = {}
    def rd(n):
        c, j, b = seq[n]
        if b == 0:
            xr = X + (4*c + j)*4
            if c % 3 < 2:
                a.lg(f"ds_read_b128 {vr(xr)}, v{16+j} offset:{(c%3)*32768}")
            else:
                a.e(f"v_add_u32 v13, 65536, v{16+j}")
                a.lg(f"ds_read_b128 {vr(xr)}, v13")
        w = WF[n % 4]
        off = (c % 3)*16384 + b*4096 + j*1024
        a.lg(f"ds_read_b64_tr_b16 {vr(w,2)}, v1 offset:{off}")
        rid[n] = a.lg(f"ds_read_b64_tr_b16 {vr(w+2,2)}, v1 offset:{off+256}")
    AH = 3
    barrier(max(xid[0], wid[0]))
    if stamp: stamp_mid(a, 0)
    for n in range(AH): rd(n)
    b4 = {}
    def rd4(i):
        w = WF[i % 4]
        a.lg(f"ds_read_b64_tr_b16 {vr(w,2)}, v3 offset:{i*1024}")
        b4[i] = a.lg(f"ds_read_b64_tr_b16 {vr(w+2,2)}, v3 offset:{i*1024+256}")
    for n, (c, j, b) in enumerate(seq):
        a.wait(lg=rid[n])
        m = n + AH
        if m < len(seq):
            if m % 16 == 0:
                c1 = m // 16
                dma(100)
                if c1 == 1:
                    a.wait(vm=ep_id)
                    epoch_share(a, name, 0, TAG, 4, CSA + 1020)
                barrier(max(xid[c1], wid[c1]))
                if c1 == 1: a.e(f"v_mov_b32 v4, {CSA + 1020}")
                a.open_gate('af')
                if c1 + 2 < 9: push(c1 + 2)
                if c1 == 7: pend.extend([("b4", i) for i in range(4)])
                if c1 == 8: pend.append(("b4", 4))
                if c1 == 7: hand_loads(a)
            rd(m)
        a.e(f"{MF32} {vr(ACC[b],16)}, {vr(WF[n % 4])}, {vr(X + (4*c+j)*4)}, " + ("0" if n < 4 else vr(ACC[b],16)))
        if n % 2 == 1: dma(1)
        if n + AH >= 16: a.open_gate()
        a.pump(6 if n < 32 else 5)
        if n + AH + 1 == 16*6: assert "sigready" in a.marks
        if n + AH + 1 == 16*7: assert all(k in ('gate', 'lg', 'vm') or t == 's_nop 1' for k, t, _ in a.fill), len(a.fill)
        if n + AH + 1 == 16*8: assert not a.fill
    if stamp: stamp_mid(a, 1)
    dma(100)
    a.wait_key("csp")
    rl = lambda a: hand_loads(a, False)
    tags_retry(a, name, [41, 43, NEGMU + 1, NEGMU + 3], TAG, 4, rl)
    tags_retry(a, name, [45, 45], TAG, 4, rl, 47)
    a.e("v_mov_b32 v41, v42\nv_mov_b32 v42, v44")
    fold8(a, 40, 44, 3)
    a.lg("ds_write_b32 v20, v40")
    a.lg("ds_write_b32 v20, v41 offset:32")
    a.e(f"""
    v_cmp_gt_u32 vcc, {BIG}, v47
    v_mov_b32 v43, {CSA + 1000 - 64}
    s_nop 0
    v_cndmask_b32 v20, v43, v20, vcc
    """)
    a.lg("ds_write_b32 v20, v42 offset:64")
    barrier(wid[("b4", 4)])
    a.e(f"""
    v_lshrrev_b32 v4, 9, v0
    v_lshlrev_b32 v4, 4, v4
    v_add_u32 v4, {CSA}, v4
    v_add_u32 v5, {AFO}, v0
    v_lshrrev_b32 v6, 3, v21
    s_lshl_b32 s38, s3, 5
    v_add_u32 v6, s38, v6
    v_lshrrev_b32 v9, 9, v0             ; h / sign
    v_mul_u32_u24 v7, {PV}, v6
    v_lshl_add_u32 v7, v9, 3, v7
    v_mul_u32_u24 v6, {PPH}, v6
    v_mul_u32_u24 v9, 40, v9
    v_add_u32 v6, v6, v9
    v_add_u32 v6, {PHI}, v6
    """)
    CB = [16, 16]
    def conv(b, acc, emit_now):
        for g in range(4):
            cb = CB[g & 1]; A = acc + 4*g
            a.add("lg", f"ds_read_b128 {vr(cb)}, v4 offset:{b*128 + g*32}", ("cs", b, g))
            a.add("w", None, ("cs", b, g))
            for r in range(4): a.addv(f"v_fmac_f32 v{A+r}, v{NEGMU}, v{cb+r}")
            for r in range(4): a.addv(f"v_mul_f32 v{A+r}, v{R}, v{A+r}")
            a.addv(f"v_cvt_pk_bf16_f32 v{acc+2*g}, v{A}, v{A+1}")
            a.addv(f"v_cvt_pk_bf16_f32 v{acc+2*g+1}, v{A+2}, v{A+3}")
        if emit_now: a.flush()
    if "k1touch" in os.environ.get("OPT", "k1touch"):
        from k1 import touch
        touch(a, 22)
    rd4(0); rd4(1)
    conv(3, ACC[3], True)
    for k in range(8): a.e(f"v_mov_b32 v{40+k}, v{96+k}")
    conv(0, ACC[0], False); conv(1, ACC[1], False); conv(2, ACC[2], False)
    for i in range(36):
        a.wait(lg=b4[i])
        if i + 2 < 36: rd4(i + 2)
        mfma(a, vr(ACC[3],16), vr(WF[i % 4]), vr(X + 4*i), "0" if i == 0 else vr(ACC[3],16))
        a.pump(6)
    a.flush()
    if stamp: stamp_mid(a, 2)
    KB = [48, 52, 64, 68, 80]
    AFR = 112
    P = [164, 180, 196, 212]; PT = 228
    for f in range(13):
        a.lg(f"ds_read_b128 {vr(AFR+4*f)}, v5 offset:{f*1024}", ("af", f))
    for st_ in range(5):
        a.wait_key(("af", 8 + st_))
        a.e(f"{MF32} {vr(PT,16)}, {vr(AFR+4*(8+st_))}, {vr(KB[st_])}, " + ("0" if st_ == 0 else vr(PT,16)))
    for i in range(4):
        for t in range(2):
            a.e(f"{MF32} {vr(P[i],16)}, {vr(AFR+4*(2*i+t))}, {vr(KB[i+t])}, " + ("0" if t == 0 else vr(P[i],16)))
    conv(4, ACC[3], True)
    a.e(f"s_mov_b32 s45, {f2u(LOG2E)}")
    for i in range(4):
        vals = [P[i] + k for k in range(16)] + [PT + 2*i, PT + 2*i + 1]
        softmax18(a, vals, 24, 28)
        for k in range(4):
            a.lg(f"ds_write_b64 v6, {vr(28+2*k,2)} offset:{i*80 + 8*k}")
        a.lg(f"ds_write_b32 v6, v36 offset:{i*80 + 32}")
    a.wait_all(vm=False)
    a.e("s_barrier")
    vq = [(84, 0), (86, 8)] + [(40 + 2*g, 16 + 8*g) for g in range(4)] + [(96 + 2*g, 48 + 8*g) for g in range(3)]
    for reg, cv in vq:
        a.lg(f"ds_write_b64 v7, {vr(reg,2)} offset:{2*cv}")
    a.e(f"""
    v_mov_b32 v24, {ONES}
    v_mov_b32 v25, {ONES}
    v_lshrrev_b32 v26, 9, v0
    v_lshlrev_b32 v26, 3, v26
    v_sub_u32 v26, v7, v26
    """)
    a.lg("ds_write_b64 v26, v[24:25] offset:144")
    a.e(f"""
    s_lshr_b32 s38, s3, 1               ; i
    s_and_b32 s39, s38, 1
    s_mul_i32 s40, s38, 36
    s_lshl_b32 s39, s39, 2
    s_sub_u32 s40, s40, s39
    v_bfe_u32 v24, v0, 4, 2             ; c
    v_bfe_u32 v25, v0, 8, 1             ; n half
    v_lshlrev_b32 v26, 3, v24
    v_lshl_add_u32 v26, v25, 5, v26
    v_add_u32 v27, s40, v26
    v_cmp_eq_u32 vcc, 40, v26
    v_mov_b32 v28, 144
    v_mul_u32_u24 v29, {PV}, v12
    v_cndmask_b32 v27, v27, v28, vcc
    v_add_u32 v27, v27, v29
    v_mul_u32_u24 v29, {PPH}, v12
    v_add_u32 v29, v29, v26
    s_mul_i32 s41, s3, 40
    s_add_u32 s41, s41, {PHI}
    v_add_u32 v29, s41, v29
    v_add_u32 v30, {128*PPH}, v29
    """)
    a.wait_all(vm=False)
    a.e("s_barrier")
    kid = {}
    for ks in range(16):
        r = 112 + 8*ks
        a.lg(f"ds_read_b64_tr_b16 {vr(r,2)}, v27 offset:{16*ks*PV}")
        a.lg(f"ds_read_b64_tr_b16 {vr(r+2,2)}, v27 offset:{(16*ks+4)*PV}")
        vb = 29 + ks // 8; o = (16*(ks % 8))*PPH
        a.lg(f"ds_read_b64_tr_b16 {vr(r+4,2)}, v{vb} offset:{o}")
        kid[ks] = a.lg(f"ds_read_b64_tr_b16 {vr(r+6,2)}, v{vb} offset:{o + 4*PPH}")
        if ks >= 2:
            k2 = ks - 2
            a.wait(lg=kid[k2])
            a.e(f"{MF32} {vr(48,16)}, {vr(112+8*k2)}, {vr(116+8*k2)}, " + ("0" if k2 == 0 else vr(48,16)))
    for k2 in (14, 15):
        a.wait(lg=kid[k2])
        a.e(f"{MF32} {vr(48,16)}, {vr(112+8*k2)}, {vr(116+8*k2)}, {vr(48,16)}")
    a.e(f"""
    s_lshl_b32 s38, s32, 6
    s_lshl_b32 s39, s33, 3
    s_add_u32 s38, s38, s39
    s_add_u32 s38, s38, s3
    s_mul_i32 s38, s38, 1920
    s_add_u32 s38, s38, {KVP}
    v_lshrrev_b32 v24, 9, v0
    v_mul_u32_u24 v24, 320, v24
    v_lshrrev_b32 v25, 1, v21
    v_add_u32 v24, v24, v25
    v_cmp_gt_u32 vcc, 80, v25
    v_mov_b32 v26, {BIG}
    s_nop 0
    v_cndmask_b32 v24, v26, v24, vcc
    s_nop 7
    """)
    for g in range(3):
        for r in range(4):
            a.e(f"buffer_store_dword v{48+4*g+r}, v24, s[20:23], s38 offen offset:{(8*g+r)*80} sc1")
    from k1 import repack_loads, repack_stores
    a.e(f"""
    s_barrier
    s_lshl_b32 s60, s33, 3
    s_add_u32 s60, s60, s32
    s_lshl_b32 s60, s60, 3
    s_add_u32 s60, s60, s3
    s_mov_b32 s49, s60
    """)
    repack_loads(a, name, "a", 0)
    a.e("s_mov_b32 s50, s61\ns_mov_b32 s51, s62\ns_add_u32 s60, s60, 512")
    repack_loads(a, name, "b", 65536)
    a.e("s_mov_b32 s52, s61\ns_mov_b32 s53, s62\ns_mov_b32 s54, s60\ns_mov_b32 s61, s50\ns_mov_b32 s62, s51\ns_mov_b32 s60, s49\ns_lshl_b32 s48, s3, 13\ns_waitcnt vmcnt(0)")
    repack_stores(a, name, "a")
    a.e("s_mov_b32 s61, s52\ns_mov_b32 s62, s53\ns_mov_b32 s60, s54\ns_add_u32 s48, s48, 65536\ns_nop 1")
    repack_stores(a, name, "b")
    if merged:
        a.e(f"s_waitcnt lgkmcnt(0)\nv_readfirstlane_b32 s69, v{TAG}\ns_lshl_b32 s68, s33, 3\ns_add_u32 s68, s68, s32\ns_add_u32 s68, s68, 192\ns_branch {name}_p2")
    elif stamp: stamp_end(a, 1, "s3", 3)

def softmax18(a, vals, t, out):
    m, sm = t, t + 1
    a.e(f"v_max3_f32 v{m}, v{vals[0]}, v{vals[1]}, v{vals[2]}")
    a.e(f"v_max3_f32 v{sm}, v{vals[3]}, v{vals[4]}, v{vals[5]}")
    for k in range(6, 18, 4):
        a.e(f"v_max3_f32 v{m}, v{m}, v{vals[k]}, v{vals[k+1]}")
        a.e(f"v_max3_f32 v{sm}, v{sm}, v{vals[k+2]}, v{vals[k+3]}")
    a.e(f"v_max_f32 v{m}, v{m}, v{sm}")
    a.e(f"v_mul_f32 v{m}, s45, v{m}")
    for v in vals: a.e(f"v_fma_f32 v{v}, v{v}, s45, -v{m}")
    for v in vals: a.e(f"v_exp_f32 v{v}, v{v}")
    a.e(f"v_add_f32 v{sm}, v{vals[0]}, v{vals[1]}")
    a.e(f"v_add_f32 v{t+2}, v{vals[2]}, v{vals[3]}")
    for k in range(4, 18, 2):
        a.e(f"v_add_f32 v{sm}, v{sm}, v{vals[k]}")
        a.e(f"v_add_f32 v{t+2}, v{t+2}, v{vals[k+1]}")
    a.e(f"v_add_f32 v{sm}, v{sm}, v{t+2}")
    a.e(f"v_rcp_f32 v{sm}, v{sm}")
    a.e("s_nop 0")
    for v in vals: a.e(f"v_mul_f32 v{v}, v{v}, v{sm}")
    for k in range(9):
        a.e(f"v_cvt_pk_bf16_f32 v{out+k}, v{vals[2*k]}, v{vals[2*k+1]}")
```

```python
import os
from asmlib import *
from sched import Sched
from layout import *
from k3 import srd
from k1common import *
from k1a import softmax18
from k2 import tile_ids

SLOT = 34 * 1024
KVI = 4 * SLOT
OSTG = KVI + 2048
OW = 2560
OIT = int(os.environ.get('OIT', 5))
MF16 = "v_mfma_f32_16x16x32_bf16"

def flag_wait(a, name, vflag, vaddr):
    lp = a.newlabel(name + "_fl"); ok = a.newlabel(name + "_fk")
    a.e("s_mov_b32 s58, 200000")
    a.label(lp)
    a.e(f"""
    v_cmp_ne_u32 vcc, s69, v{vflag}
    s_sub_u32 s58, s58, 1
    s_cmp_eq_u32 s58, 0
    s_cbranch_scc1 {ok}
    s_cmp_eq_u64 vcc, 0
    s_cbranch_scc1 {ok}
    s_sleep {int(os.environ.get('SLP', 6))}
    buffer_load_dword v{vflag}, v{vaddr}, s[20:23], 0 offen sc1
    s_waitcnt vmcnt(0)
    s_branch {lp}
    """)
    a.label(ok)

def flag_store(a, name, base, wave=0, idx='s2'):
    lb = a.newlabel(name + "_fs")
    a.e(f"""
    s_cmp_eq_u32 s3, {wave}
    s_cbranch_scc0 {lb}
    s_lshl_b32 s58, {idx}, 7
    s_add_u32 s58, s58, {base}
    v_mov_b32 v12, s69
    v_mov_b32 v13, s69
    v_mov_b32 v14, s69
    v_mov_b32 v15, s69
    s_mov_b64 exec, 0xff
    buffer_store_dwordx4 v[12:15], v3, s[20:23], s58 offen sc1
    s_mov_b64 exec, -1
    """)
    a.label(lb)

def side_stream(a, name, merged):
    KV = 104; AFR = 104; QR = [120, 128]; P = 136; PT = 232; PH = 120; KA = 232; T = 248; OUT = 152
    def raw(t):
        for l in t.strip().split("\n"): a.add("raw", l.strip())
    def mf(t): a.add("t", t)
    a.addv(f"""
    s_and_b32 s50, s2, 7
    s_lshr_b32 s51, s2, 3               ; head
    """)
    if merged:
        a.addv(f"""
        s_lshr_b32 s52, s51, 3
        s_add_u32 s52, s52, s51
        s_add_u32 s53, s52, 1
        s_lshr_b32 s52, s52, 2
        s_lshr_b32 s53, s53, 2
        s_mul_i32 s54, s52, 43
        s_lshr_b32 s54, s54, 7
        s_add_u32 s52, s52, s54
        s_mul_i32 s54, s53, 43
        s_lshr_b32 s54, s54, 7
        s_add_u32 s53, s53, s54
        s_lshl_b32 s54, s50, 1
        s_lshl_b32 s52, s52, 4
        s_lshl_b32 s53, s53, 4
        s_add_u32 s52, s52, s54
        s_add_u32 s53, s53, s54
        s_lshr_b32 s54, s51, 2
        s_lshl_b32 s54, s54, 3
        s_add_u32 s54, s54, 192
        v_and_b32 v250, 7, v2
        v_add_u32 v250, s54, v250
        v_writelane_b32 v250, s52, 8
        v_writelane_b32 v250, s53, 9
        s_add_u32 s52, s52, 1
        s_add_u32 s53, s53, 1
        v_writelane_b32 v250, s52, 10
        v_writelane_b32 v250, s53, 11
        s_mul_i32 s52, s33, 3
        s_add_u32 s53, s52, 2
        s_lshr_b32 s52, s52, 2
        s_lshr_b32 s53, s53, 2
        s_lshl_b32 s52, s52, 4
        s_lshl_b32 s53, s53, 4
        s_add_u32 s52, s52, s32
        s_add_u32 s53, s53, s32
        v_writelane_b32 v250, s52, 12
        v_writelane_b32 v250, s53, 13
        v_lshlrev_b32 v250, 7, v250
        v_add_u32 v250, {F1}, v250
        """)
        for _ in range(int(os.environ.get("G0", 3))): a.add("gate")
        a.addv("buffer_load_dword v251, v250, s[20:23], 0 offen sc1")
        a.add("gate"); a.add("gate")
        raw("s_waitcnt vmcnt(0)")
        a.add("call", lambda a: flag_wait(a, name, 251, 250))
    a.addv(f"""
    s_mul_i32 s52, s51, 3840
    s_add_u32 s52, s52, {KVP}
    v_lshlrev_b32 v252, 4, v0
    v_cmp_gt_u32 vcc, 3840, v252
    v_mov_b32 v253, {BIG}
    s_lshr_b32 s53, s51, 2
    s_mul_i32 s53, s53, 13
    v_cndmask_b32 v253, v253, v252, vcc
    """)
    for k in range(8):
        a.addv(f"buffer_load_dwordx4 {vr(KV+4*k)}, v253, s[20:23], s52 offen")
        if k < 7: a.addv(f"s_add_u32 s52, s52, {32*3840}")
    a.addv(f"""
    s_and_b32 s54, s51, 3               ; i
    s_lshl_b32 s55, s54, 1
    s_add_u32 s55, s55, s53
    s_lshl_b32 s55, s55, 10
    s_add_u32 s55, s55, {AF}
    s_add_u32 s56, s53, s54
    s_lshl_b32 s56, s56, 10
    s_add_u32 s56, s56, {AF + 8192}
    s_lshl_b32 s57, s50, 3
    s_lshl_b32 s58, s3, 1
    s_add_u32 s57, s57, s58
    s_mul_i32 s58, s57, 36
    s_lshr_b32 s59, s51, 3
    s_add_u32 s59, s59, s51
    s_add_u32 s58, s58, s59
    s_lshl_b32 s58, s58, 10
    s_add_u32 s58, s58, {Q}
    v_lshrrev_b32 v252, 1, v252
    v_add_u32 v252, {KVI}, v252
    s_mov_b32 s45, {f2u(LOG2E)}
    """)
    for _ in range(int(os.environ.get("GW", 2))): a.add("gate")
    raw("s_waitcnt vmcnt(0)")
    for k in range(1, 8):
        for r in range(4): a.addv(f"v_add_f32 v{KV+r}, v{KV+r}, v{KV+4*k+r}")
    a.addv(f"v_cvt_pk_bf16_f32 v{T}, v{KV}, v{KV+1}\nv_cvt_pk_bf16_f32 v{T+1}, v{KV+2}, v{KV+3}\nds_write_b64 v252, v[{T}:{T+1}]")
    for k in range(2):
        a.addv(f"buffer_load_dwordx4 {vr(AFR+4*k)}, v3, s[20:23], s55 offen offset:{k*1024}")
        a.addv(f"buffer_load_dwordx4 {vr(AFR+8+4*k)}, v3, s[20:23], s56 offen offset:{k*1024}")
        a.addv(f"buffer_load_dwordx4 {vr(QR[0]+4*k)}, v3, s[20:23], s58 offen offset:{k*1024}")
    a.addv(f"s_add_u32 s58, s58, {36*1024}")
    for k in range(2): a.addv(f"buffer_load_dwordx4 {vr(QR[1]+4*k)}, v3, s[20:23], s58 offen offset:{k*1024}")
    a.addv(f"""
    v_and_b32 v248, 31, v2
    s_and_b32 s52, s51, 1
    s_lshl_b32 s52, s52, 1
    v_add_u32 v249, s52, v248
    v_min_u32 v249, 23, v249
    v_and_b32 v250, 27, v248
    v_cmp_eq_u32 vcc, 18, v250
    v_mov_b32 v251, 20
    v_lshrrev_b32 v253, 5, v2
    v_cndmask_b32 v249, v249, v251, vcc
    v_mul_u32_u24 v250, 24, v253
    v_add_u32 v249, v249, v250
    v_mul_u32_u24 v249, 40, v249
    v_add_u32 v252, {KVI}, v249
    v_bfe_u32 v254, v2, 4, 1
    v_mul_u32_u24 v254, {90*1024}, v254
    v_and_b32 v255, 15, v2
    v_lshl_add_u32 v254, v255, 4, v254
    v_lshl_add_u32 v255, v253, 8, v254
    v_cmp_gt_u32 vcc, 32, v2
    v_mov_b32 v248, {BIG}
    s_mul_i32 s57, s57, {2*90*1024}
    v_cndmask_b32 v254, v248, v254, vcc
    s_add_u32 s57, s57, {U}
    s_lshr_b32 s52, s51, 1
    s_lshl_b32 s52, s52, 10
    s_and_b32 s53, s51, 1
    s_lshl_b32 s53, s53, 9
    s_add_u32 s52, s52, s53
    s_add_u32 s52, s52, {72*1024}
    s_add_u32 s52, s52, s57
    s_lshr_b32 s53, s51, 4
    s_lshl_b32 s53, s53, 10
    s_bfe_u32 s55, s51, 0x20002
    s_lshl_b32 s55, s55, 8
    s_add_u32 s53, s53, s55
    s_lshl_b32 s55, s54, 2
    s_add_u32 s53, s53, s55
    s_add_u32 s53, s53, {88*1024}
    s_add_u32 s53, s53, s57
    """)
    for _ in range(int(os.environ.get("GW", 2)) - 1): a.add("gate")
    raw("s_waitcnt vmcnt(0)")
    for b in range(2):
        for t in range(2):
            mf(f"{MF32} {vr(P,16)}, {vr(AFR+4*t)}, {vr(QR[b]+4*t)}, " + ("0" if t == 0 else vr(P,16)))
            mf(f"{MF32} {vr(PT,16)}, {vr(AFR+8+4*t)}, {vr(QR[b]+4*t)}, " + ("0" if t == 0 else vr(PT,16)))
        a.add("gate", None, "half")
        for i in range(1, 4):
            a.addv(f"s_cmp_eq_u32 s54, {i}\ns_cselect_b64 vcc, -1, 0")
            a.addv(f"v_cndmask_b32 v{PT}, v{PT}, v{PT+2*i}, vcc\nv_cndmask_b32 v{PT+1}, v{PT+1}, v{PT+2*i+1}, vcc")
        a.addv(f"v_mov_b32 v{OUT+6}, v{PT}\nv_mov_b32 v{OUT+7}, v{PT+1}")
        a.addv(f"""
        ds_read_b64 v[{KA}:{KA+1}], v252
        ds_read_b64 v[{KA+2}:{KA+3}], v252 offset:8
        ds_read_b64 v[{KA+4}:{KA+5}], v252 offset:16
        ds_read_b64 v[{KA+6}:{KA+7}], v252 offset:24
        ds_read_b32 v{KA+8}, v252 offset:32
        v_mov_b32 v{KA+9}, 0
        v_mov_b32 v{KA+10}, 0
        v_mov_b32 v{KA+11}, 0
        """)
        ph = PH if b == 1 else 0
        c = Asm()
        dst = 120 if b == 0 else 120
        softmax18(c, [P + k for k in range(16)] + [OUT + 6, OUT + 7], T, 0)
        PHR = [120 + k for k in range(8)] + [244]
        for l in c.lines:
            l = l.strip()
            if l.startswith("v_cvt_pk"):
                k = int(l.split()[1][1:-1]); l = l.replace(f"v{k},", f"v{PHR[k]},", 1)
            a.addv(l)
        a.addv("v_mov_b32 v245, 0\nv_mov_b32 v246, 0\nv_mov_b32 v247, 0")
        a.add("gate", None, "half")
        for st, r in enumerate((120, 124, 244)):
            mf(f"{MF32} {vr(P,16)}, {vr(KA+4*st)}, {vr(r)}, " + ("0" if st == 0 else vr(P,16)))
        a.add("gate", None, "half")
        a.addv(f"v_add_f32 v{T}, {f2u(1e-6)}, v{P+10}\nv_rcp_f32 v{T}, v{T}\ns_nop 0")
        for k in range(10): a.addv(f"v_mul_f32 v{P+k}, v{P+k}, v{T}")
        for k in range(5): a.addv(f"v_cvt_pk_bf16_f32 v{OUT+k}, v{P+2*k}, v{P+2*k+1}")
        a.addv(f"buffer_store_dwordx4 {vr(OUT)}, v255, s[20:23], s52 offen sc1\nbuffer_store_dword v{OUT+4}, v254, s[20:23], s53 offen sc1")
        if b == 0: a.addv(f"s_add_u32 s52, s52, {2*90*1024}\ns_add_u32 s53, s53, {2*90*1024}")

def gen_loader(name, hi, stamp, merged=False):
    a = Sched(); a.uid = 500 + 100*hi
    LM, LD = 3, 4
    lead = "L" in os.environ.get("ROT", "L")
    fb0 = 5 if hi else 0; fbx = 8 if hi else 4; nrun = 3 if hi else 4
    sid = {}
    def issue(s, part="wz"):
        base = (s % 4) * SLOT
        if lead:
            a.e(f"s_cmp_eq_u32 s62, {s & LM}\ns_cselect_b32 s63, {(s + LD) & 31}, {s}")
        else:
            a.e(f"s_mov_b32 s63, {s}")
        a.e(f"""
        s_lshl_b32 s64, s63, 7
        s_add_u32 s64, s64, s36
        s_add_u32 m0, s39, {base}
        s_mul_i32 s63, s63, {2*144*1024}
        """)
        if "w" in part:
            for i in range(4): a.vm(f"buffer_load_dwordx4 v{4+i}, s[12:15], s64 offen offset:{i*1024} lds")
        if "z" not in part: return
        a.e(f"s_add_u32 m0, s40, {base}\ns_add_u32 s64, s63, s37")
        for i in range(nrun - (1 if ('even' in os.environ.get('ABL2', '') and not hi) else 0)): a.vm(f"buffer_load_dwordx4 v3, s[16:19], s64 offen offset:{i*1024} lds")
        a.e(f"s_add_u32 m0, s41, {base}\ns_add_u32 s64, s63, s38")
        sid[s] = a.vm(f"buffer_load_dwordx4 v3, s[16:19], s64 offen lds")
    a.e(f"""
    s_add_u32 s62, s32, s33
    s_and_b32 s62, s62, {LM}
    s_and_b32 s42, s3, 1
    s_mul_i32 s43, s33, 9
    s_and_b32 s44, s33, 1
    s_add_u32 s45, s43, s44
    s_mul_i32 s46, s42, 144
    s_add_u32 s37, s45, s46
    s_add_u32 s37, s37, {fb0}
    s_lshl_b32 s37, s37, 10
    """)
    if hi:
        a.e("""
        s_cmp_eq_u32 s44, 0
        s_cselect_b32 s47, 8, 0
        s_add_u32 s38, s43, s47             ; g8
        s_add_u32 s38, s38, s46
        s_lshl_b32 s38, s38, 10
        """)
    else:
        a.e("s_add_u32 s38, s37, 4096")
    a.e(f"""
    s_mul_i32 s40, s42, {9*1024}
    s_add_u32 s41, s40, {fbx*1024}
    s_add_u32 s40, s40, {fb0*1024}
    s_lshl_b32 s39, s3, 12
    s_add_u32 s39, s39, {18*1024}
    """)
    if merged:
        a.e(f"""
        s_mul_i32 s58, s33, 3
        s_add_u32 s59, s58, 2
        s_lshr_b32 s58, s58, 2
        s_lshr_b32 s59, s59, 2
        s_sub_u32 s59, s59, s58
        v_bfe_u32 v20, v2, 4, 1
        v_mul_lo_u32 v20, v20, s59
        v_add_u32 v20, s58, v20
        v_and_b32 v21, 15, v2
        v_lshl_add_u32 v20, v20, 4, v21
        v_lshlrev_b32 v20, 7, v20
        v_add_u32 v20, {FZ}, v20
        """)
        a.vm("buffer_load_dword v22, v20, s[20:23], 0 offen sc1", "fz")
        for s in range(3): issue(s, "w")
        lb = a.newlabel(name + "_e1")
        a.e(f"s_cmp_eq_u32 s3, 1\ns_cbranch_scc0 {lb}\ns_waitcnt vmcnt(12)")
        flag_wait(a, name, 22, 20)
        a.label(lb)
        a.e("s_barrier")
        for s in range(3): issue(s, "z")
    else:
        for s in range(3): issue(s)
    for s in range(32):
        need = sid[s]
        if s == 31: need = a.keys["fo"][1]
        a.wait(vm=need)
        a.e("s_barrier")
        if s == 4 + 4*OIT: flag_store(a, name, FO)
        if s == 1 and merged: flag_store(a, name, F1, 0, 's68')
        if os.environ.get("LPRIO"): a.e("s_setprio 3")
        if s + 3 < 32: issue(s + 3)
        if os.environ.get("LPRIO"): a.e("s_setprio 0")
        if s == 24:
            a.e(f"""
            s_lshr_b32 s70, s33, 2              ; kq
            s_and_b32 s71, s33, 3               ; dj
            """)
            a.e(f"""
            s_mul_i32 s72, s33, 9
            s_and_b32 s73, s33, 1
            s_add_u32 s72, s72, s73
            s_lshr_b32 s72, s72, 1              ; st0
            s_mul_i32 s73, s70, 18
            s_sub_u32 s74, s72, s73
            s_mul_i32 s75, s70, 5
            s_cmp_eq_u32 s70, 3
            s_cselect_b32 s75, 14, s75
            s_add_u32 s75, s75, 72
            s_mul_i32 s76, s71, {90*9*1024}
            s_add_u32 s76, s76, {WP + fb0*1024}
            s_lshl_b32 s77, s32, 3
            s_add_u32 s77, s77, {4 if hi else 0}
            s_mul_i32 s77, s77, {90*1024}
            s_add_u32 s77, s77, {U}
            s_lshl_b32 s78, s42, 10
            s_add_u32 s78, s78, {18*1024 + (8192 if hi else 0)}
            v_add_u32 v16, {90*1024 - 2048}, v3
            v_add_u32 v17, {2*90*1024}, v3
            v_add_u32 v18, {3*90*1024 - 2048}, v3
            v_and_b32 v20, 31, v2
            v_lshlrev_b32 v20, 10, v20
            s_lshr_b32 s58, s32, 1
            s_lshl_b32 s58, s58, 7
            s_add_u32 s58, s58, {FO}
            v_add_u32 v20, s58, v20
            v_and_b32 v21, 3, v2
            v_lshlrev_b32 v21, 13, v21
            s_and_b32 s58, s2, 63
            s_lshl_b32 s58, s58, 7
            s_add_u32 s58, s58, {FU}
            v_add_u32 v21, s58, v21
            """)
            if merged:
                a.e(f"""
                v_subrev_u32 v23, 32, v2
                v_add_u32 v24, s73, v23
                v_subrev_u32 v25, 18, v23
                v_add_u32 v25, s75, v25
                v_cmp_gt_u32 vcc, 18, v23
                v_min_u32 v25, 89, v25
                s_nop 0
                v_cndmask_b32 v24, v25, v24, vcc
                v_and_b32 v24, 63, v24
                v_add_u32 v24, 192, v24
                v_lshlrev_b32 v24, 7, v24
                v_add_u32 v24, {F1}, v24
                v_cmp_gt_u32 vcc, 32, v2
                s_nop 1
                v_cndmask_b32 v20, v24, v20, vcc
                """)
        if s == 29:
            a.vm("buffer_load_dword v22, v20, s[20:23], 0 offen sc1", "fo")
    def gstep(i):
        def expr(i, d):
            if i < 4: a.e(f"s_add_u32 {d}, s72, {i}")
            elif i < 8: a.e(f"s_add_u32 {d}, s75, {i - 4}")
            elif i == 8: a.e(f"s_add_u32 {d}, s75, 4\ns_cmp_lt_u32 s70, 2\ns_cselect_b32 {d}, {d}, 100")
            elif i < 23: a.e(f"s_cmp_le_u32 s74, {i - 9}\ns_cselect_b32 {d}, {i - 9 + 4}, {i - 9}\ns_add_u32 {d}, {d}, s73")
            else: a.e(f"s_mov_b32 {d}, 100")
        expr(i, "s63"); expr(i + 1, "s65")
        a.e("s_cmp_eq_u32 s42, 0\ns_cselect_b32 s63, s63, s65")
        if i in (8, 22):
            a.e(f"s_cmp_lt_u32 s63, 90\ns_cselect_b32 s26, {WS_USED}, 0\ns_cselect_b32 s63, s63, 0")
    aid = {}; bid = {}
    def issueA(p):
        base = (p % 4) * SLOT; sr = "s[24:27]" if p in (4, 11) else "s[20:23]"
        gstep(2*p)
        a.e(f"s_mul_i32 s64, s63, {9*1024}\ns_add_u32 s64, s64, s76\ns_add_u32 m0, s40, {base}\ns_nop 0")
        for i in range(nrun): a.vm(f"buffer_load_dwordx4 v3, {sr}, s64 offen offset:{i*1024} lds")
        a.e(f"s_add_u32 m0, s41, {base}\ns_add_u32 s64, s64, {nrun*1024}")
        aid[p] = a.vm(f"buffer_load_dwordx4 v3, {sr}, s64 offen lds")
    def issueB(p):
        base = (p % 4) * SLOT; sr = "s[24:27]" if p in (4, 11) else "s[20:23]"
        gstep(2*p)
        a.e(f"s_lshl_b32 s64, s63, 10\ns_add_u32 s64, s64, s77\ns_add_u32 m0, s78, {base}\ns_nop 0")
        a.vm(f"buffer_load_dwordx4 v3, {sr}, s64 offen lds")
        a.vm(f"buffer_load_dwordx4 v16, {sr}, s64 offen offset:2048 lds")
        a.e(f"s_add_u32 m0, s78, {base + 4096}\ns_nop 0")
        a.vm(f"buffer_load_dwordx4 v17, {sr}, s64 offen lds")
        bid[p] = a.vm(f"buffer_load_dwordx4 v18, {sr}, s64 offen offset:2048 lds")
    a.e("s_mov_b32 s24, s20\ns_mov_b32 s25, s21\ns_mov_b32 s27, 0x20000")
    flag_wait(a, name, 22, 20)
    issueA(0); issueA(1); issueA(2); issueB(2)
    for p in range(12):
        a.wait(vm=max(aid[p], bid.get(p, -1)))
        a.e("s_barrier")
        if p == 2:
            flag_store(a, name, FU)
            issueA(5)
            a.e("buffer_load_dword v22, v21, s[20:23], 0 offen sc1\ns_waitcnt vmcnt(0)"); a.vm_done = a.vm_n - 1
            flag_wait(a, name, 22, 21)
            issueB(4); issueB(5)
        elif p == 1: issueA(4)
        elif p + 3 < 12: issueA(p + 3); issueB(p + 3)
    a.e(f"s_add_u32 s3, s3, 4\ns_branch {name}_final")
    return a.lines

def gen_k2f(name="k2_kernel", stamp=False, merged=False):
    a = Sched()
    ACC = 160; FX, FY = 16, 60
    def acc(fb, tb): r = ACC + (fb*2 + tb)*4; return f"v[{r}:{r+3}]"
    def fa(buf, fb): r = buf + fb*4; return f"v[{r}:{r+3}]"
    def fbr(buf, tb): r = buf + 36 + tb*4; return f"v[{r}:{r+3}]"
    lds = OSTG
    if merged:
        from k1 import gen_k1
        lines, l1 = gen_k1(name, 0 if stamp in (7, 8) else stamp, True, True)
        if stamp in (7, 8):
            b = Asm(); stamp_begin(b); lines = lines[:2] + b.lines + lines[2:]
        a.lines += lines; lds = max(lds, l1); a.uid = 2000
        a.label(f"{name}_p2")
        if stamp == 7: stamp_mid(a, 0)
        a.e(f"""
        s_load_dwordx2 s[4:5], s[0:1], {KA_WS}
        s_load_dwordx2 s[6:7], s[0:1], {KA_WSP}
        s_load_dwordx2 s[8:9], s[0:1], {KA_BSP}
        v_mbcnt_lo_u32_b32 v2, -1, 0
        v_mbcnt_hi_u32_b32 v2, -1, v2
        s_lshl_b32 s10, s3, 6
        v_add_u32 v0, s10, v2
        """)
    else:
        a.e(f"s_cmp_ge_u32 s2, 256\ns_cbranch_scc1 {name}_end")
        if stamp: stamp_begin(a)
        a.e(f"""
        s_load_dwordx2 s[4:5], s[0:1], {KA_WS}
        s_load_dwordx2 s[6:7], s[0:1], {KA_WSP}
        s_load_dwordx2 s[8:9], s[0:1], {KA_BSP}
        v_lshrrev_b32 v1, 6, v0
        v_and_b32 v2, 63, v0
        v_readfirstlane_b32 s3, v1          ; wave
        """)
    tile_ids(a)
    a.e(f"""
    v_lshlrev_b32 v3, 4, v2
    s_waitcnt lgkmcnt(0)
    """)
    if merged: a.e("s_barrier")
    else: a.e(f"""
    s_add_u32 s66, s4, {XST + 4}
    s_addc_u32 s67, s5, 0
    s_load_dword s69, s[66:67], 0
    """)
    srd(a, 12, 6, 7, S*S*2)
    WSB = int(os.environ.get('WSB', 0)) << 20
    srd(a, 16, 4, 5, Z2T_BYTES, Z2T + WSB)
    srd(a, 20, 4, 5, WS_USED, WSB)
    a.e(f"""
    s_cmp_lt_u32 s3, 4
    s_cbranch_scc1 {name}_compute
    s_sub_u32 s3, s3, 4
    v_lshrrev_b32 v8, 3, v2
    v_and_b32 v9, 7, v2
    v_lshrrev_b32 v10, 4, v2
    v_xor_b32 v9, v9, v10
    v_lshlrev_b32 v8, 12, v8
    v_lshl_add_u32 v4, v9, 4, v8
    v_xor_b32 v9, 4, v9
    v_lshl_add_u32 v5, v9, 4, v8
    v_add_u32 v6, {2*(32768-1024)}, v4
    v_add_u32 v7, {3*(32768-1024)}, v5
    v_add_u32 v5, {(32768-1024)}, v5
    s_lshl_b32 s36, s32, 7
    s_lshl_b32 s37, s3, 5
    s_add_u32 s36, s36, s37
    s_lshl_b32 s36, s36, 12
    s_waitcnt lgkmcnt(0)
    s_cmp_ge_u32 s3, 2
    s_cbranch_scc1 {name}_ldhi
    """)
    a.lines += gen_loader(name, False, stamp, merged)
    a.label(f"{name}_ldhi")
    a.lines += gen_loader(name, True, stamp, merged)
    a.label(f"{name}_compute")
    srd(a, 28, 8, 9, S*2)
    a.e(f"""
    v_mov_b32 v4, v3
    v_add_u32 v5, {2*SLOT}, v3
    v_and_b32 v10, 15, v2               ; t
    v_lshrrev_b32 v11, 4, v2            ; kg
    v_lshrrev_b32 v12, 1, v10           ; swz
    v_xor_b32 v12, v12, v11
    v_lshlrev_b32 v12, 4, v12
    v_lshl_add_u32 v6, v10, 7, v12
    s_lshl_b32 s36, s3, 12
    s_add_u32 s36, s36, {18*1024}
    v_add_u32 v6, s36, v6
    v_xor_b32 v7, 64, v6
    v_add_u32 v8, {2*SLOT}, v6
    v_add_u32 v9, {2*SLOT}, v7
    s_lshl_b32 s37, s32, 7
    s_lshl_b32 s38, s3, 5
    s_add_u32 s37, s37, s38
    s_lshl_b32 s38, s37, 1
    v_lshlrev_b32 v12, 1, v10
    buffer_load_ushort v13, v12, s[28:31], s38 offen
    buffer_load_ushort v14, v12, s[28:31], s38 offen offset:32
    s_lshl_b32 s38, s37, 4
    s_add_u32 s38, s38, {XST + 8}
    v_lshlrev_b32 v12, 4, v10
    buffer_load_dword v15, v12, s[20:23], s38 offen sc1
    buffer_load_dword v1, v12, s[20:23], s38 offen offset:256 sc1
    """)
    if merged: a.e("s_barrier")
    if stamp == 7: stamp_mid(a, 1)
    def reads(buf, slot, kh):
        L = []
        sa = (slot & 1) * SLOT
        va = "v4" if slot < 2 else "v5"
        vb = f"v{6 + kh + (0 if slot < 2 else 2)}"
        for tb in range(2): L.append(f"ds_read_b128 {fbr(buf,tb)}, {vb} offset:{sa + tb*2048}")
        for fb in range(9):
            if "halfrd" in os.environ.get("ABL2", "") and fb % 2: continue
            if "nord" in os.environ.get("ABL2", ""): continue
            L.append(f"ds_read_b128 {fa(buf,fb)}, {va} offset:{sa + (kh*9+fb)*1024}")
        return L
    def phase(cbuf, R, skip=False, zero=False):
        R = list(R)
        if skip:
            for r in R: a.e(r)
            return
        if "nomf" in os.environ.get("ABL2", ""):
            for r in R: a.e(r)
            R = []
        for fb in range(9):
            for tb in range(2):
                if R: a.e(R.pop(0))
                if "nomf" in os.environ.get("ABL2", "") and fb: continue
                a.e(f"{MF16} {acc(fb,tb)}, {fa(cbuf,fb)}, {fbr(cbuf,tb)}, " + ("0" if zero else acc(fb,tb)))
                if a.fill and (fb*2 + tb) >= 4: a.pump(SB if not R else SB - 1)
    def stage(slot, first=False, pre="", post=None, nobar=False):
        a.e(pre)
        if not nobar: a.e("s_barrier")
        if post: post()
        a.open_gate(); a.open_gate("half")
        phase(FY, reads(FX, slot, 0), skip=first)
        a.e("s_waitcnt lgkmcnt(0)")
        a.open_gate("half")
        phase(FX, reads(FY, slot, 1), zero=first)
        a.e("s_waitcnt lgkmcnt(0)")
    SB = int(os.environ.get("SB", 2))
    side_stream(a, name, merged)
    if 'noside' in os.environ.get('ABL2', ''): a.fill.clear()
    stage(0, first=True)
    if stamp in (1, 7): stamp_mid(a, 2*(stamp == 7))
    if stamp == 8: stamp_mid(a, 0)
    NU = 4*int(os.environ.get("NU", 6 if merged else 4))
    for u in range(1, NU): stage(u % 4, pre="s_waitcnt vmcnt(0)" if (merged and u == 1) else "")
    assert not a.fill, len(a.fill)
    if NU < 24:
        a.e(f"s_mov_b32 s48, {NU//4 - 1}")
        lp = f"{name}_cl"
        a.label(lp)
        for u in range(4): stage(u)
        a.e(f"s_add_u32 s48, s48, 1\ns_cmp_lt_u32 s48, 5\ns_cbranch_scc1 {lp}")
    ZR = 104
    a.e("s_waitcnt vmcnt(0)")
    a.e(f"""
    s_lshr_b32 s40, s37, 4
    s_mul_i32 s41, s33, 9
    s_and_b32 s42, s33, 1
    s_add_u32 s43, s41, s42
    s_lshr_b32 s43, s43, 1              ; st0
    s_add_u32 s44, s41, 8
    s_cmp_eq_u32 s42, 0
    s_cselect_b32 s44, s44, s41
    s_lshr_b32 s44, s44, 1              ; st8
    s_lshl_b32 s42, s42, 3              ; half*8
    s_mul_i32 s54, s40, 90
    s_add_u32 s55, s54, s44
    s_add_u32 s54, s54, s43
    s_lshl_b32 s54, s54, 10
    s_lshl_b32 s55, s55, 10
    s_add_u32 s55, s55, s42
    s_add_u32 s54, s54, {U}
    s_add_u32 s55, s55, {U}
    s_add_u32 s56, s54, {90*1024}
    s_add_u32 s57, s55, {90*1024}
    """)
    for tb in range(2):
        sm, ss = ("s54", "s55") if tb == 0 else ("s56", "s57")
        for i in range(4):
            r = ZR + tb*18 + i*4
            a.e(f"buffer_load_dwordx4 v[{r}:{r+3}], v3, s[20:23], {sm} offen offset:{i*1024}")
        r = ZR + tb*18 + 16
        a.e(f"buffer_load_dwordx2 v[{r}:{r+1}], v3, s[20:23], {ss} offen sc1")
    for u in range(8): stage(u % 4)
    phase(FY, [])
    if stamp in (1, 7, 8): stamp_mid(a, 3 if stamp == 7 else 1)
    a.e(f"""
    s_waitcnt vmcnt(0)
    v_lshlrev_b32 v13, 16, v13
    v_lshlrev_b32 v14, 16, v14
    v_mul_f32 v13, v13, v15
    v_mul_f32 v14, v14, v1
    v_add_u32 v6, s36, v3
    v_add_u32 v7, 1024, v6
    v_add_u32 v8, {2*SLOT}, v6
    v_add_u32 v9, {2*SLOT}, v7
    s_nop 3
    """)
    T = 16
    for tb in range(2):
        sm, ss = ("s54", "s55") if tb == 0 else ("s56", "s57")
        for i in (4, 0, 1, 2, 3):
            nfb = 2 if i < 4 else 1
            zr = ZR + tb*18 + i*4
            for k in range(nfb):
                ar = ACC + ((2*i + k)*2 + tb)*4
                for p in range(2):
                    z = zr + 2*k + p; t0 = T + 2*((2*k + p) % 4)
                    a.e(f"v_fma_f32 v{ar+2*p}, v{ar+2*p}, v{(15, 1)[tb]}, v{13+tb}")
                    a.e(f"v_fma_f32 v{ar+2*p+1}, v{ar+2*p+1}, v{(15, 1)[tb]}, v{13+tb}")
                    a.e(f"v_lshlrev_b32 v{t0}, 16, v{z}")
                    a.e(f"v_and_b32 v{t0+1}, 0xffff0000, v{z}")
                    a.e(f"v_mul_f32 v{t0}, v{t0}, v{ar+2*p}")
                    a.e(f"v_mul_f32 v{t0+1}, v{t0+1}, v{ar+2*p+1}")
                    a.e(f"v_cvt_pk_bf16_f32 v{z}, v{t0}, v{t0+1}")
            if i < 4:
                a.e(f"buffer_store_dwordx4 v[{zr}:{zr+3}], v3, s[20:23], {sm} offen offset:{i*1024} sc1")
                a.e(f"ds_write_b128 v{6 + (i & 1)}, v[{zr}:{zr+3}] offset:{(i >> 1)*SLOT + tb*2048}")
            else:
                a.e(f"buffer_store_dwordx2 v[{zr}:{zr+1}], v3, s[20:23], {ss} offen sc1")
    if stamp and stamp != 7: stamp_mid(a, {1: 2, 8: 2}.get(stamp, 0))
    stage(0, first=True, pre="s_waitcnt lgkmcnt(0)")
    stage(1)
    stage(2, pre="s_waitcnt vmcnt(0)" + ("\ns_memtime s[82:83]" if stamp == 2 else ""))
    stage(3)
    if stamp == 2: stamp_mid(a, 2)
    a.e("s_mov_b32 s48, 0")
    lp = f"{name}_c3"
    a.label(lp)
    for u in range(4):
        stage(u)
        if stamp == 2 and u == 0: a.e(f"s_cmp_eq_u32 s48, 0\ns_cbranch_scc0 {name}_ns\ns_memtime s[86:87]\n{name}_ns:")
    a.e(f"s_add_u32 s48, s48, 1\ns_cmp_lt_u32 s48, 2\ns_cbranch_scc1 {lp}")
    phase(FY, [])
    if stamp in (1, 3, 8): stamp_mid(a, {1: 3, 8: 3}.get(stamp, 1))
    own = f"{name}_own"
    a.e(f"""
    s_lshr_b32 s70, s33, 2              ; kq
    s_and_b32 s71, s33, 3               ; dj
    s_lshl_b32 s40, s32, 2
    s_add_u32 s40, s40, s71
    s_lshl_b32 s40, s40, 2
    s_add_u32 s40, s40, s3
    s_lshl_b32 s40, s40, 2
    s_add_u32 s40, s40, s70
    s_mul_i32 s40, s40, {9*1024}
    s_add_u32 s40, s40, {PX}
    s_nop 1
    s_cmp_eq_u32 s3, s70
    s_cbranch_scc1 {own}
    """)
    for fb in range(9):
        r = ACC + 8*fb; t = 16 + 4*(fb & 1)
        for k in range(4): a.e(f"v_cvt_pk_bf16_f32 v{t+k}, v{r+2*k}, v{r+2*k+1}")
        if fb % 4 == 0 and fb: a.e("s_add_u32 s40, s40, 4096")
        a.e(f"buffer_store_dwordx4 v[{t}:{t+3}], v3, s[20:23], s40 offen offset:{(fb%4)*1024} sc1")
    a.e(f"s_branch {name}_final")
    a.label(own)
    for c in range(18):
        a.e(f"ds_write_b128 v3, v[{ACC+4*c}:{ACC+4*c+3}] offset:{c*1024}")
    a.label(f"{name}_final")
    a.e(f"""
    s_load_dwordx2 s[6:7], s[0:1], {KA_X}
    s_load_dwordx2 s[8:9], s[0:1], {KA_OUT}
    s_lshl_b32 s46, s32, 7
    s_lshl_b32 s47, s70, 5
    s_add_u32 s46, s46, s47
    s_mul_i32 s46, s46, 1152
    s_mul_i32 s47, s71, 288
    s_add_u32 s46, s46, s47
    s_lshl_b32 s47, s3, 5
    s_add_u32 s46, s46, s47
    v_and_b32 v10, 15, v2
    v_mul_u32_u24 v10, 1152, v10
    v_lshrrev_b32 v11, 4, v2
    v_lshl_add_u32 v10, v11, 3, v10
    v_add_u32 v11, {16*1152}, v10
    v_mov_b32 v9, {BIG}
    s_cmp_eq_u32 s3, 0
    s_cselect_b64 vcc, -1, 0
    v_cndmask_b32 v24, v9, v10, vcc
    v_cndmask_b32 v25, v9, v11, vcc
    v_cndmask_b32 v26, v9, v3, vcc
    s_lshl_b32 s41, s3, 11
    v_add_u32 v27, s41, v3
    s_waitcnt lgkmcnt(0)
    """)
    srd(a, 24, 6, 7, S*D*2)
    srd(a, 28, 8, 9, S*D*2)
    XA = [10, 11, 24, 25]
    for k in range(4):
        a.e(f"buffer_load_dwordx2 v[{64+2*k}:{65+2*k}], v{XA[k]}, s[24:27], s46 offen offset:{256*(k >> 1)}")
    a.e(f"""
    s_lshl_b32 s40, s32, 2
    s_add_u32 s40, s40, s71
    s_lshl_b32 s40, s40, 2
    s_add_u32 s40, s40, s70
    s_mul_i32 s40, s40, {4*9*1024}
    s_lshl_b32 s41, s3, 10
    s_add_u32 s40, s40, s41
    s_add_u32 s40, s40, {PX}
    v_and_b32 v20, 3, v2
    v_lshlrev_b32 v20, 8, v20
    s_andn2_b32 s58, s2, 6
    s_lshl_b32 s58, s58, 7
    s_add_u32 s58, s58, {FP}
    v_add_u32 v20, s58, v20
    s_waitcnt vmcnt(4) lgkmcnt(0)
    s_barrier
    """)
    flag_store(a, name, FP, 7)
    for m in range(3):
        a.e(f"s_add_u32 s{42+m}, s70, {m+1}\ns_and_b32 s{42+m}, s{42+m}, 3\ns_mul_i32 s{42+m}, s{42+m}, {9*1024}\ns_add_u32 s{42+m}, s{42+m}, s40")
    for k in range(4):
        a.e(f"ds_read_b128 {vr(72+4*k)}, v27 offset:{1024*(k & 1) + 16384*(k >> 1)}")
    lbp = f"{name}_pp"
    a.e(f"""
    s_cmp_eq_u32 s3, 7
    s_cbranch_scc0 {lbp}
    buffer_load_dword v22, v20, s[20:23], 0 offen sc1
    s_waitcnt vmcnt(0)
    """)
    flag_wait(a, name, 22, 20)
    a.label(lbp)
    a.e("s_barrier")
    if stamp == 3: stamp_mid(a, 2)
    PR = 32
    for m in range(3):
        a.e(f"buffer_load_dwordx4 {vr(PR+4*m)}, v3, s[20:23], s{42+m} offen sc1")
    for m in range(3):
        a.e(f"s_add_u32 s{42+m}, s{42+m}, 8192\nbuffer_load_dwordx4 {vr(PR+12+4*m)}, v26, s[20:23], s{42+m} offen sc1")
    a.e("s_waitcnt lgkmcnt(0)")
    for k in range(4):
        if k == 0: a.e("s_waitcnt vmcnt(3)")
        if k == 2: a.e("s_waitcnt vmcnt(2)")
        if stamp == 3 and k == 0: stamp_mid(a, 3)
        terms = [64 + 2*k] + [PR + 12*(k >> 1) + 4*m + 2*(k & 1) for m in range(3)]
        for z in terms:
            for p in range(2):
                a.e(f"v_lshlrev_b32 v{16+2*p}, 16, v{z+p}\nv_and_b32 v{17+2*p}, 0xffff0000, v{z+p}")
            for r in range(4): a.e(f"v_add_f32 v{72+4*k+r}, v{72+4*k+r}, v{16+r}")
        a.e(f"v_cvt_pk_bf16_f32 v{64+2*k}, v{72+4*k}, v{73+4*k}\nv_cvt_pk_bf16_f32 v{65+2*k}, v{74+4*k}, v{75+4*k}")
        a.e(f"buffer_store_dwordx2 v[{64+2*k}:{65+2*k}], v{XA[k]}, s[28:31], s46 offen offset:{256*(k >> 1)}")
    if stamp: stamp_end(a, 2, "s3", 4)
    a.label(f"{name}_end")
    a.e("s_endpgm")
    launch = f"; @launch kernel={name} grid=(256,1,1) block=(512,1,1) lds={lds}\n"
    if merged: launch = f"; @launch grid=(256,1,1) block=(512,1,1) lds={lds}\n"
    return launch, kernel_begin(name) + a.text(), kernel_desc(name, 256, 102, 256)
```

```python
import os
from k1common import *
from sched import Sched
XRA = 0
WRA = 98304
PHI = 40960
AFO = 147456
CSA = AFO + 14*1024
WPH = AFO + 10*1024
A_LDS = CSA + 1024
PPH, PV = 328, 152

def gen_attn(a, name, stamp, full=True, merged=False):
    X = 112; ACC = [48, 64, 80, 96]; WF = [24, 28, 32, 36]
    NEGMU, R, TAG = 8, 10, 14

    a.e(f"""
    s_sub_u32 s33, s31, 24
    s_lshl_b32 s32, s35, 2
    s_and_b32 s34, s33, 3
    s_add_u32 s32, s32, s34             ; rt2
    s_lshr_b32 s33, s33, 2
    s_lshl_b32 s34, s30, 1
    s_add_u32 s33, s33, s34             ; G
    s_and_b32 s34, s33, 1               ; G odd
    s_mul_i32 s36, s33, 144
    s_lshl_b32 s37, s34, 4
    s_sub_u32 s37, s36, s37
    s_add_u32 s37, s37, 1152
    s_add_u32 s36, s36, {2304 - 160}
    """)
    def colreg(a, dst, unit, t):
        a.e(f"""
        v_cmp_gt_u32 vcc, 10, v{unit}
        v_mov_b32 v{dst}, s36
        v_mov_b32 v{t}, s37
        v_cndmask_b32 v{dst}, v{dst}, v{t}, vcc
        v_lshl_add_u32 v{dst}, v{unit}, 4, v{dst}
        """)
    a.e(f"""
    v_lshrrev_b32 v28, 3, v2
    v_and_b32 v29, 7, v2
    v_lshrrev_b32 v31, 4, v2
    v_xor_b32 v31, v31, v29
    v_mul_u32_u24 v8, 1152, v28
    v_lshl_add_u32 v8, v31, 4, v8
    v_xor_b32 v9, 64, v8
    v_add_u32 v10, {2*(8*1152-1024)}, v8
    v_add_u32 v11, {3*(8*1152-1024)}, v9
    v_add_u32 v9, {8*1152-1024}, v9
    s_lshl_b32 s43, s32, 8
    s_lshl_b32 s44, s3, 5
    s_add_u32 s43, s43, s44
    s_lshl_b32 s59, s43, 4
    s_add_u32 s59, s59, {XST}
    s_mul_i32 s43, s43, 1152
    s_lshl_b32 s44, s3, 12
    v_and_b32 v26, 3, v2
    v_lshrrev_b32 v30, 2, v2
    v_mul_u32_u24 v30, 3456, v30
    s_lshr_b32 s38, s3, 1
    s_lshl_b32 s38, s38, 2
    v_add_u32 v27, s38, v26
    """)
    colreg(a, 5, 27, 29)
    a.e(f"""
    v_add_u32 v5, v5, v30
    v_add_u32 v6, {16*3456 - 1024}, v5
    s_and_b32 s40, s3, 1
    s_mul_i32 s40, s40, {32*3456}
    s_lshl_b32 s42, s3, 11
    s_add_u32 s42, s42, {WRA}
    """)
    wid = {}; xid = {}; pend = []
    def issue(k):
        if k[0] == "x":
            c, i = k[1], k[2]
            if i == 0: a.e(f"s_add_u32 m0, s44, {XRA + (c%3)*32768}\ns_add_u32 s46, s43, {c*128}")
            xid[c] = a.vm(f"buffer_load_dwordx4 v{8+i}, s[8:11], s46 offen offset:{i*1024} lds")
        elif k[0] == "w":
            c, i = k[1], k[2]
            if i == 0: a.e(f"s_add_u32 m0, s42, {(c%3)*16384}\ns_add_u32 s46, s40, {c*64*3456}")
            wid[c] = a.vm(f"buffer_load_dwordx4 v{5+i}, s[16:19], s46 offen offset:{i*1024} lds")
        else:
            i = k[1]
            a.e(f"s_add_u32 m0, s48, {XRA + i*8192}\ns_add_u32 s46, s41, {i*128*3456}")
            if i < 4:
                wid[("b4", i)] = a.vm(f"buffer_load_dwordx4 v7, s[16:19], s46 offen lds")
            else:
                a.e("v_add_u32 v22, s46, v7")
                wid[("b4", i)] = a.vm(f"buffer_load_dwordx4 v22, s[16:19], 0 offen lds")
    def push(c):
        pend.extend([("x", c, i) for i in range(4)] + [("w", c, 0), ("w", c, 1)])
    def dma(n=1):
        for _ in range(n):
            if pend: issue(pend.pop(0))
    CF = int(os.environ.get('CF', 2))
    if CF != 1: push(0); dma(100)
    a.e(f"""
    s_lshl_b32 s38, s3, 2
    v_add_u32 v27, s38, v26
    """)
    colreg(a, 28, 27, 29)
    a.e(f"""
    v_add_u32 v28, v28, v30
    v_mov_b32 v31, {BIG}
    s_cmp_lt_u32 s3, 5
    s_cselect_b64 vcc, -1, 0
    v_cndmask_b32 v28, v31, v28, vcc
    v_cmp_gt_u32 vcc, 32, v2
    s_mul_i32 s39, s32, {72*3456}
    s_nop 0
    v_cndmask_b32 v29, v31, v28, vcc
    """)
    for i in range(5):
        coop_id = a.vm(f"buffer_load_dwordx4 {vr(216+4*i)}, v{28 if i < 4 else 29}, s[16:19], s39 offen")
        if i < 4: a.e(f"s_add_u32 s39, s39, {16*3456}")
    a.e(f"""
    s_mov_b32 s28, s74
    s_mov_b32 s29, s75
    s_mov_b32 s30, {32*18*18*2}
    s_mov_b32 s31, 0x20000
    s_min_u32 s38, s3, 3
    s_lshl_b32 s38, s38, 10
    s_add_u32 m0, s38, {WPH}
    s_mul_i32 s39, s33, 2592
    s_add_u32 s39, s39, s38
    v_lshlrev_b32 v0, 4, v2
    s_cmp_ge_u32 s3, 3
    s_cselect_b64 vcc, -1, 0
    v_add_u32 v28, s39, v0
    v_cndmask_b32 v28, v28, v31, vcc
    """)
    a.vm("buffer_load_dwordx4 v28, s[28:31], 0 offen lds")
    a.e(f"""
    s_cmp_eq_u32 s3, 0
    s_cselect_b32 s38, 0, {BIG}
    v_mov_b32 v4, s38
    """)
    if CF == 1: push(0)
    push(1); dma(100)
    ep_id = a.vm(f"buffer_load_dword v{TAG}, v4, s[24:27], 0 offen sc1")
    a.e(f"""
    v_add_u32 v27, 16, v26
    """)
    colreg(a, 7, 27, 29)
    a.e(f"""
    v_add_u32 v7, v7, v30               ; B4 panel
    s_mul_i32 s41, s3, {16*3456}
    s_lshl_b32 s48, s3, 10
    v_lshrrev_b32 v24, 5, v2
    v_and_b32 v22, 15, v2
    v_lshrrev_b32 v23, 2, v22           ; r
    v_and_b32 v22, 3, v22               ; c
    v_bfe_u32 v25, v2, 4, 1             ; n half
    v_lshl_add_u32 v12, v24, 3, v23     ; 8h + r
    v_lshlrev_b32 v1, 6, v12
    v_lshl_add_u32 v1, v25, 5, v1
    v_lshl_add_u32 v3, v22, 3, v1
    v_add_u32 v1, {WRA}, v3
    v_and_b32 v32, 31, v2               ; s
    v_bfe_u32 v33, v2, 1, 3
    v_xor_b32 v33, v33, v24
    v_lshlrev_b32 v33, 4, v33
    v_lshl_add_u32 v16, v32, 7, v33
    v_add_u32 v16, s44, v16
    v_xor_b32 v17, 32, v16
    v_xor_b32 v18, 64, v16
    v_xor_b32 v19, 96, v16
    v_lshlrev_b32 v21, 3, v32           ; s*8
    """)
    PG = int(os.environ.get("PG", 0))
    if PG:
        a.e(f"""
        s_load_dwordx2 s[50:51], s[0:1], {KA_WSP}
        s_load_dwordx2 s[52:53], s[0:1], {KA_OUT}
        s_waitcnt lgkmcnt(0)
        s_cmp_eq_u32 s3, 6
        s_cselect_b32 s28, s50, s20
        s_cselect_b32 s29, s51, s21
        s_cselect_b32 s30, {S*S*2}, s22
        s_cselect_b32 s54, 0, s3
        s_cmp_eq_u32 s3, 7
        s_cselect_b32 s28, s52, s28
        s_cselect_b32 s29, s53, s29
        s_cselect_b32 s30, {S*D*2}, s30
        s_cselect_b32 s54, 0, s54
        s_lshl_b32 s54, s54, 6
        v_add_u32 v252, s54, v2
        v_lshlrev_b32 v252, {PG}, v252
        """)
        a.lg_done = a.lg_n - 1
        a.vm("buffer_load_dword v252, v252, s[28:31], 0 offen")
    push(2)
    a.keys["coop"] = ("vm", coop_id)
    b = Sched()
    b.e(f"""
    s_mul_i32 s57, s33, {8*160*8}
    s_add_u32 s57, s57, {CSPA}
    s_mul_i32 s47, s32, {160*8}
    s_add_u32 s47, s47, s57
    s_lshl_b32 s50, s3, 8
    s_add_u32 s47, s47, s50
    v_and_b32 v250, 3, v2
    v_lshlrev_b32 v250, 6, v250
    v_lshrrev_b32 v249, 4, v2
    v_lshl_add_u32 v250, v249, 3, v250
    v_and_b32 v249, 12, v2
    v_cmp_eq_u32 vcc, 0, v249
    s_mov_b32 s62, 0x00003f80
    s_mov_b32 s63, 0x3f800000
    v_mov_b32 v249, {BIG}
    s_cmp_ge_u32 s3, 5
    s_cselect_b64 vcc, 0, vcc
    v_cndmask_b32 v250, v249, v250, vcc
    """)
    a.add_block(b.lines, "x"); b.lines = []
    a.add("w", None, "coop")
    for i in range(5): colsum_add(b, 236, 216 + 4*i, i == 0)
    fold_pairs(b, 236, [4, 8])
    a.add_block(b.lines, "x"); b.lines = []
    a.add("gate")
    a.add("lg", f"ds_read_b32 v{TAG}, v4", "tag")
    a.add("w", None, "tag")
    a.addv(f"v_mov_b32 v237, v{TAG}\nv_mov_b32 v241, v{TAG}")
    a.add("vm", f"buffer_store_dwordx2 v[236:237], v250, s[20:23], s47 offen sc1")
    a.add("vm", f"buffer_store_dwordx2 v[240:241], v250, s[20:23], s47 offen offset:32 sc1")
    a.addv(f"""
    s_mul_i32 s50, s3, 160
    v_and_b32 v22, 7, v2
    v_lshrrev_b32 v23, 3, v2
    v_mul_u32_u24 v23, 1280, v23
    v_lshl_add_u32 v23, v22, 3, v23
    v_add_u32 v23, s50, v23
    v_cmp_gt_u32 vcc, 4, v22
    v_mov_b32 v47, {BIG}
    s_lshr_b32 s50, s50, 1
    v_cndmask_b32 v47, v47, v23, vcc
    s_add_u32 s50, s50, {CSA}
    v_lshl_add_u32 v20, v22, 2, s50
    v_lshlrev_b32 v15, 1, v21
    """)
    a.add("mark", None, "sigready")
    a.addv(f"""
    v_lshrrev_b32 v224, 5, v2           ; h'
    v_bfe_u32 v225, v2, 3, 2            ; g
    v_and_b32 v226, 3, v2               ; r
    v_lshl_add_u32 v225, v225, 2, v226  ; n = 4g + r
    s_lshr_b32 s50, s3, 1               ; i
    s_and_b32 s51, s3, 1
    s_lshl_b32 s51, s51, 4
    s_lshl_b32 s52, s50, 1
    s_sub_u32 s51, s51, s52
    s_lshl_b32 s52, s34, 3
    s_sub_u32 s51, s51, s52             ; D0 = 16t - 2i - 8(G&1)
    v_lshlrev_b32 v227, 2, v224
    v_add_u32 v228, s51, v227
    s_mul_i32 s50, s50, 648
    s_add_u32 s50, s50, {WPH}
    v_lshlrev_b32 v229, 1, v225
    v_add_u32 v229, s50, v229
    v_lshrrev_b32 v230, 1, v225         ; i' = n>>1
    s_lshl_b32 s53, s3, 4
    s_sub_u32 s53, s53, s52
    v_add_u32 v231, s53, v227
    v_mul_u32_u24 v226, 18, v230
    v_sub_u32 v231, v231, v226
    v_cmp_lt_u32 vcc, 7, v225
    v_mov_b32 v227, 1000
    v_mul_u32_u24 v230, 648, v230
    v_cndmask_b32 v231, v231, v227, vcc
    v_and_b32 v226, 1, v225
    v_lshl_add_u32 v230, v226, 1, v230
    v_add_u32 v230, {32 + WPH}, v230
    v_mov_b32 v227, {WPH + 3072}
    """)
    AFL = 232
    for f, (db, vf) in enumerate(((228, 229), (231, 230))):
        for j in range(8):
            a.addv(f"""
            v_add_u32 v226, {8*(j>>2) + (j&3)}, v{db}
            v_cmp_gt_u32 vcc, 18, v226
            v_mul_u32_u24 v226, 36, v226
            v_add_u32 v226, v226, v{vf}
            v_cndmask_b32 v226, v227, v226, vcc
            """)
            a.add("lg", f"ds_read_u16 v{AFL + 8*f + j}, v226", "afl")
    a.addv(f"""
    v_bfe_u32 v224, v2, 2, 1
    v_mov_b32 v225, 0x80008000
    v_mul_lo_u32 v224, v224, v225
    s_add_u32 s50, s48, {AFO}
    v_add_u32 v225, s50, v0
    s_min_u32 s51, s3, 5
    s_lshl_b32 s51, s51, 10
    s_add_u32 s50, s51, {AFO + 8192}
    v_add_u32 v226, s50, v0
    s_mul_i32 s52, s33, {13*1024}
    s_add_u32 s52, s52, {AF}
    s_add_u32 s51, s51, s52
    s_add_u32 s51, s51, 8192
    s_add_u32 s52, s52, s48
    v_mov_b32 v227, {BIG}
    s_cmp_eq_u32 s32, 0
    s_cselect_b64 vcc, -1, 0
    v_cndmask_b32 v228, v227, v0, vcc
    s_cmp_ge_u32 s3, 5
    s_cselect_b64 vcc, 0, vcc
    v_cndmask_b32 v229, v227, v0, vcc
    """)
    a.add("w", None, "afl")
    for f in range(2):
        for k in range(4):
            a.addv(f"v_lshl_or_b32 v{248+4*f+k}, v{AFL+8*f+2*k+1}, 16, v{AFL+8*f+2*k}")
            a.addv(f"v_xor_b32 v{248+4*f+k}, v{248+4*f+k}, v224")
    a.add("gate", None, "af")
    a.add("lg", f"ds_write_b128 v225, {vr(248)}")
    a.add("lg", f"ds_write_b128 v226, {vr(252)}")
    a.add("vm", f"buffer_store_dwordx4 {vr(248)}, v228, s[20:23], s52 offen sc1")
    a.add("vm", f"buffer_store_dwordx4 {vr(252)}, v229, s[20:23], s51 offen sc1")
    a.addv("s_nop 1")
    def barrier(vmid):
        a.wait(vm=vmid, lg=a.lg_n - 1)
        a.e("s_barrier")
    def hand_loads(a, tracked=True):
        f = a.vm if tracked else (lambda t, k=None: a.e(t))
        sc = "" if tracked else " sc1"
        f(f"buffer_load_dwordx4 {vr(NEGMU)}, v15, s[20:23], s59 offen{sc}")
        for k in range(3):
            f(f"buffer_load_dwordx2 {vr(40 + 2*k, 2)}, v{47 if k == 2 else 23}, s[20:23], s57 offen offset:{64*k}{sc}", "csp")
    seq = [(c, j, b) for c in range(9) for j in range(4) for b in range(4)]
    rid = {}
    def rd(n):
        c, j, b = seq[n]
        if b == 0:
            xr = X + (4*c + j)*4
            if c % 3 < 2:
                a.lg(f"ds_read_b128 {vr(xr)}, v{16+j} offset:{(c%3)*32768}")
            else:
                a.e(f"v_add_u32 v13, 65536, v{16+j}")
                a.lg(f"ds_read_b128 {vr(xr)}, v13")
        w = WF[n % 4]
        off = (c % 3)*16384 + b*4096 + j*1024
        a.lg(f"ds_read_b64_tr_b16 {vr(w,2)}, v1 offset:{off}")
        rid[n] = a.lg(f"ds_read_b64_tr_b16 {vr(w+2,2)}, v1 offset:{off+256}")
    AH = 3
    barrier(max(xid[0], wid[0]))
    if stamp: stamp_mid(a, 0)
    for n in range(AH): rd(n)
    b4 = {}
    def rd4(i):
        w = WF[i % 4]
        a.lg(f"ds_read_b64_tr_b16 {vr(w,2)}, v3 offset:{i*1024}")
        b4[i] = a.lg(f"ds_read_b64_tr_b16 {vr(w+2,2)}, v3 offset:{i*1024+256}")
    for n, (c, j, b) in enumerate(seq):
        a.wait(lg=rid[n])
        m = n + AH
        if m < len(seq):
            if m % 16 == 0:
                c1 = m // 16
                dma(100)
                if c1 == 1:
                    a.wait(vm=ep_id)
                    epoch_share(a, name, 0, TAG, 4, CSA + 1020)
                barrier(max(xid[c1], wid[c1]))
                if c1 == 1: a.e(f"v_mov_b32 v4, {CSA + 1020}")
                a.open_gate('af')
                if c1 + 2 < 9: push(c1 + 2)
                if c1 == 7: pend.extend([("b4", i) for i in range(4)])
                if c1 == 8: pend.append(("b4", 4))
                if c1 == 7: hand_loads(a)
            rd(m)
        a.e(f"{MF32} {vr(ACC[b],16)}, {vr(WF[n % 4])}, {vr(X + (4*c+j)*4)}, " + ("0" if n < 4 else vr(ACC[b],16)))
        if n % 2 == 1: dma(1)
        if n + AH >= 16: a.open_gate()
        a.pump(6 if n < 32 else 5)
        if n + AH + 1 == 16*6: assert "sigready" in a.marks
        if n + AH + 1 == 16*7: assert all(k in ('gate', 'lg', 'vm') or t == 's_nop 1' for k, t, _ in a.fill), len(a.fill)
        if n + AH + 1 == 16*8: assert not a.fill
    if stamp: stamp_mid(a, 1)
    dma(100)
    a.wait_key("csp")
    rl = lambda a: hand_loads(a, False)
    tags_retry(a, name, [41, 43, NEGMU + 1, NEGMU + 3], TAG, 4, rl)
    tags_retry(a, name, [45, 45], TAG, 4, rl, 47)
    a.e("v_mov_b32 v41, v42\nv_mov_b32 v42, v44")
    fold8(a, 40, 44, 3)
    a.lg("ds_write_b32 v20, v40")
    a.lg("ds_write_b32 v20, v41 offset:32")
    a.e(f"""
    v_cmp_gt_u32 vcc, {BIG}, v47
    v_mov_b32 v43, {CSA + 1000 - 64}
    s_nop 0
    v_cndmask_b32 v20, v43, v20, vcc
    """)
    a.lg("ds_write_b32 v20, v42 offset:64")
    barrier(wid[("b4", 4)])
    a.e(f"""
    v_lshrrev_b32 v4, 9, v0
    v_lshlrev_b32 v4, 4, v4
    v_add_u32 v4, {CSA}, v4
    v_add_u32 v5, {AFO}, v0
    v_lshrrev_b32 v6, 3, v21
    s_lshl_b32 s38, s3, 5
    v_add_u32 v6, s38, v6
    v_lshrrev_b32 v9, 9, v0             ; h / sign
    v_mul_u32_u24 v7, {PV}, v6
    v_lshl_add_u32 v7, v9, 3, v7
    v_mul_u32_u24 v6, {PPH}, v6
    v_mul_u32_u24 v9, 40, v9
    v_add_u32 v6, v6, v9
    v_add_u32 v6, {PHI}, v6
    """)
    CB = [16, 16]
    def conv(b, acc, emit_now):
        for g in range(4):
            cb = CB[g & 1]; A = acc + 4*g
            a.add("lg", f"ds_read_b128 {vr(cb)}, v4 offset:{b*128 + g*32}", ("cs", b, g))
            a.add("w", None, ("cs", b, g))
            for r in range(4): a.addv(f"v_fmac_f32 v{A+r}, v{NEGMU}, v{cb+r}")
            for r in range(4): a.addv(f"v_mul_f32 v{A+r}, v{R}, v{A+r}")
            a.addv(f"v_cvt_pk_bf16_f32 v{acc+2*g}, v{A}, v{A+1}")
            a.addv(f"v_cvt_pk_bf16_f32 v{acc+2*g+1}, v{A+2}, v{A+3}")
        if emit_now: a.flush()
    if "k1touch" in os.environ.get("OPT", "k1touch"):
        from k1 import touch
        touch(a, 22)
    rd4(0); rd4(1)
    conv(3, ACC[3], True)
    for k in range(8): a.e(f"v_mov_b32 v{40+k}, v{96+k}")
    conv(0, ACC[0], False); conv(1, ACC[1], False); conv(2, ACC[2], False)
    for i in range(36):
        a.wait(lg=b4[i])
        if i + 2 < 36: rd4(i + 2)
        mfma(a, vr(ACC[3],16), vr(WF[i % 4]), vr(X + 4*i), "0" if i == 0 else vr(ACC[3],16))
        a.pump(6)
    a.flush()
    if stamp: stamp_mid(a, 2)
    KB = [48, 52, 64, 68, 80]
    AFR = 112
    P = [164, 180, 196, 212]; PT = 228
    for f in range(13):
        a.lg(f"ds_read_b128 {vr(AFR+4*f)}, v5 offset:{f*1024}", ("af", f))
    for st_ in range(5):
        a.wait_key(("af", 8 + st_))
        a.e(f"{MF32} {vr(PT,16)}, {vr(AFR+4*(8+st_))}, {vr(KB[st_])}, " + ("0" if st_ == 0 else vr(PT,16)))
    for i in range(4):
        for t in range(2):
            a.e(f"{MF32} {vr(P[i],16)}, {vr(AFR+4*(2*i+t))}, {vr(KB[i+t])}, " + ("0" if t == 0 else vr(P[i],16)))
    conv(4, ACC[3], True)
    a.e(f"s_mov_b32 s45, {f2u(LOG2E)}")
    for i in range(4):
        vals = [P[i] + k for k in range(16)] + [PT + 2*i, PT + 2*i + 1]
        softmax18(a, vals, 24, 28)
        for k in range(4):
            a.lg(f"ds_write_b64 v6, {vr(28+2*k,2)} offset:{i*80 + 8*k}")
        a.lg(f"ds_write_b32 v6, v36 offset:{i*80 + 32}")
    a.wait_all(vm=False)
    a.e("s_barrier")
    vq = [(84, 0), (86, 8)] + [(40 + 2*g, 16 + 8*g) for g in range(4)] + [(96 + 2*g, 48 + 8*g) for g in range(3)]
    for reg, cv in vq:
        a.lg(f"ds_write_b64 v7, {vr(reg,2)} offset:{2*cv}")
    a.e(f"""
    v_mov_b32 v24, {ONES}
    v_mov_b32 v25, {ONES}
    v_lshrrev_b32 v26, 9, v0
    v_lshlrev_b32 v26, 3, v26
    v_sub_u32 v26, v7, v26
    """)
    a.lg("ds_write_b64 v26, v[24:25] offset:144")
    a.e(f"""
    s_lshr_b32 s38, s3, 1               ; i
    s_and_b32 s39, s38, 1
    s_mul_i32 s40, s38, 36
    s_lshl_b32 s39, s39, 2
    s_sub_u32 s40, s40, s39
    v_bfe_u32 v24, v0, 4, 2             ; c
    v_bfe_u32 v25, v0, 8, 1             ; n half
    v_lshlrev_b32 v26, 3, v24
    v_lshl_add_u32 v26, v25, 5, v26
    v_add_u32 v27, s40, v26
    v_cmp_eq_u32 vcc, 40, v26
    v_mov_b32 v28, 144
    v_mul_u32_u24 v29, {PV}, v12
    v_cndmask_b32 v27, v27, v28, vcc
    v_add_u32 v27, v27, v29
    v_mul_u32_u24 v29, {PPH}, v12
    v_add_u32 v29, v29, v26
    s_mul_i32 s41, s3, 40
    s_add_u32 s41, s41, {PHI}
    v_add_u32 v29, s41, v29
    v_add_u32 v30, {128*PPH}, v29
    """)
    a.wait_all(vm=False)
    a.e("s_barrier")
    kid = {}
    for ks in range(16):
        r = 112 + 8*ks
        a.lg(f"ds_read_b64_tr_b16 {vr(r,2)}, v27 offset:{16*ks*PV}")
        a.lg(f"ds_read_b64_tr_b16 {vr(r+2,2)}, v27 offset:{(16*ks+4)*PV}")
        vb = 29 + ks // 8; o = (16*(ks % 8))*PPH
        a.lg(f"ds_read_b64_tr_b16 {vr(r+4,2)}, v{vb} offset:{o}")
        kid[ks] = a.lg(f"ds_read_b64_tr_b16 {vr(r+6,2)}, v{vb} offset:{o + 4*PPH}")
        if ks >= 2:
            k2 = ks - 2
            a.wait(lg=kid[k2])
            a.e(f"{MF32} {vr(48,16)}, {vr(112+8*k2)}, {vr(116+8*k2)}, " + ("0" if k2 == 0 else vr(48,16)))
    for k2 in (14, 15):
        a.wait(lg=kid[k2])
        a.e(f"{MF32} {vr(48,16)}, {vr(112+8*k2)}, {vr(116+8*k2)}, {vr(48,16)}")
    a.e(f"""
    s_lshl_b32 s38, s32, 6
    s_lshl_b32 s39, s33, 3
    s_add_u32 s38, s38, s39
    s_add_u32 s38, s38, s3
    s_mul_i32 s38, s38, 1920
    s_add_u32 s38, s38, {KVP}
    v_lshrrev_b32 v24, 9, v0
    v_mul_u32_u24 v24, 320, v24
    v_lshrrev_b32 v25, 1, v21
    v_add_u32 v24, v24, v25
    v_cmp_gt_u32 vcc, 80, v25
    v_mov_b32 v26, {BIG}
    s_nop 0
    v_cndmask_b32 v24, v26, v24, vcc
    s_nop 7
    """)
    for g in range(3):
        for r in range(4):
            a.e(f"buffer_store_dword v{48+4*g+r}, v24, s[20:23], s38 offen offset:{(8*g+r)*80} sc1")
    from k1 import repack_loads, repack_stores
    a.e(f"""
    s_barrier
    s_lshl_b32 s60, s33, 3
    s_add_u32 s60, s60, s32
    s_lshl_b32 s60, s60, 3
    s_add_u32 s60, s60, s3
    s_mov_b32 s49, s60
    """)
    repack_loads(a, name, "a", 0)
    a.e("s_mov_b32 s50, s61\ns_mov_b32 s51, s62\ns_add_u32 s60, s60, 512")
    repack_loads(a, name, "b", 65536)
    a.e("s_mov_b32 s52, s61\ns_mov_b32 s53, s62\ns_mov_b32 s54, s60\ns_mov_b32 s61, s50\ns_mov_b32 s62, s51\ns_mov_b32 s60, s49\ns_lshl_b32 s48, s3, 13\ns_waitcnt vmcnt(0)")
    repack_stores(a, name, "a")
    a.e("s_mov_b32 s61, s52\ns_mov_b32 s62, s53\ns_mov_b32 s60, s54\ns_add_u32 s48, s48, 65536\ns_nop 1")
    repack_stores(a, name, "b")
    if merged:
        a.e(f"s_waitcnt lgkmcnt(0)\nv_readfirstlane_b32 s69, v{TAG}\ns_lshl_b32 s68, s33, 3\ns_add_u32 s68, s68, s32\ns_add_u32 s68, s68, 192\ns_branch {name}_p2")
    elif stamp: stamp_end(a, 1, "s3", 3)

def softmax18(a, vals, t, out):
    m, sm = t, t + 1
    a.e(f"v_max3_f32 v{m}, v{vals[0]}, v{vals[1]}, v{vals[2]}")
    a.e(f"v_max3_f32 v{sm}, v{vals[3]}, v{vals[4]}, v{vals[5]}")
    for k in range(6, 18, 4):
        a.e(f"v_max3_f32 v{m}, v{m}, v{vals[k]}, v{vals[k+1]}")
        a.e(f"v_max3_f32 v{sm}, v{sm}, v{vals[k+2]}, v{vals[k+3]}")
    a.e(f"v_max_f32 v{m}, v{m}, v{sm}")
    a.e(f"v_mul_f32 v{m}, s45, v{m}")
    for v in vals: a.e(f"v_fma_f32 v{v}, v{v}, s45, -v{m}")
    for v in vals: a.e(f"v_exp_f32 v{v}, v{v}")
    a.e(f"v_add_f32 v{sm}, v{vals[0]}, v{vals[1]}")
    a.e(f"v_add_f32 v{t+2}, v{vals[2]}, v{vals[3]}")
    for k in range(4, 18, 2):
        a.e(f"v_add_f32 v{sm}, v{sm}, v{vals[k]}")
        a.e(f"v_add_f32 v{t+2}, v{t+2}, v{vals[k+1]}")
    a.e(f"v_add_f32 v{sm}, v{sm}, v{t+2}")
    a.e(f"v_rcp_f32 v{sm}, v{sm}")
    a.e("s_nop 0")
    for v in vals: a.e(f"v_mul_f32 v{v}, v{v}, v{sm}")
    for k in range(9):
        a.e(f"v_cvt_pk_bf16_f32 v{out+k}, v{vals[2*k]}, v{vals[2*k+1]}")
```

```python
import math, os
from asmlib import *
from sched import Sched
from layout import *
from k1common import *
from k3 import srd
ABL = os.environ.get('ABL', '').split(',')

GK1 = -2.0 * math.sqrt(2.0 / math.pi) * LOG2E
GK2 = GK1 * 0.044715

RING = 0
XR = 98304
SP = 208
CSO = XR + 256*SP
PRM = CSO + 4096
Z_LDS = PRM + 2560
TL0 = int(os.environ.get('TL0', 11))
STATM = int(os.environ.get('STATM', 0)); MPS = int(os.environ.get('MPS', 2))
ZSC = os.environ.get('ZSC', 'sc1')
Z2SC = os.environ.get('Z2SC', 'sc1')
WSB = int(os.environ.get('WSB', 0)) << 20
PER_MFMA = int(os.environ.get('PM', 6))

def gen_zpath(a, name, stamp):
    X = 112; ACC = [64, 80]; WF = [44, 48, 52, 56]
    NEGMU, R, C1, C2, S1, S2, TAG = 108, 12, 14, 15, 61, 62, 60
    CB = [24, 28]; T = 32; PK = 36
    a.e(f"""
    v_lshrrev_b32 v28, 3, v2
    v_and_b32 v29, 7, v2                ; pos
    v_lshrrev_b32 v31, 4, v2
    v_xor_b32 v31, v31, v29
    v_mul_u32_u24 v7, 1152, v28
    v_lshl_add_u32 v7, v31, 4, v7
    v_bfe_u32 v30, v2, 4, 1
    v_lshlrev_b32 v30, 2, v30
    v_xor_b32 v30, v30, v29
    v_lshlrev_b32 v30, 4, v30           ; chunk*16
    v_mul_u32_u24 v5, 9216, v28
    v_add_u32 v5, v5, v30
    v_xor_b32 v8, 64, v7
    v_add_u32 v8, {8*1152-1024}, v8
    s_mul_i32 s41, s33, 384
    s_add_u32 s41, s41, 4608            ; column offset of z2 panel 0
    s_mul_i32 s40, s3, {8*9216}
    s_add_u32 s40, s40, s41
    s_lshl_b32 s42, s3, 10              ; w*1024
    s_lshl_b32 s43, s32, 7
    s_lshl_b32 s44, s3, 4
    s_add_u32 s43, s43, s44
    s_mul_i32 s43, s43, 1152            ; x base
    s_lshl_b32 s44, s3, 11
    s_add_u32 s44, s44, {XR}
    """)
    def pcol(P): return 128*P if P < 3 else 128*(P-3) - 4608
    uid = {}; x_id = {}
    def issue8(u):
        P, c = divmod(u, 9)
        a.e(f"s_add_u32 m0, s42, {RING + (u % 12)*8192}")
        a.e(f"s_add_u32 s46, s40, {c*64*9216 + pcol(P)}")
        uid[u] = a.vm(f"buffer_load_dwordx4 v5, s[12:15], s46 offen lds")
    def issue_x(c):
        a.e(f"s_add_u32 m0, s44, {(c % 3)*16384}")
        a.e(f"s_add_u32 s46, s43, {c*128}")
        a.vm(f"buffer_load_dwordx4 v7, s[8:11], s46 offen lds")
        x_id[c] = a.vm(f"buffer_load_dwordx4 v8, s[8:11], s46 offen offset:1024 lds")
    CF = int(os.environ.get('CF', 2))
    def coop_loads():
        rowstat_loads(a, 2, 80, 32)
        a.e(f"""
        s_cmp_lt_u32 s3, 6
        s_cselect_b32 s28, s12, s16
        s_cselect_b32 s29, s13, s17
        s_cselect_b32 s30, s14, s18
        s_mov_b32 s31, 0x20000
        s_mov_b32 s45, 3456
        s_cselect_b32 s45, 9216, s45
        s_lshl_b32 s39, s3, 7
        s_add_u32 s39, s39, s41
        s_lshl_b32 s47, s34, 7
        s_sub_u32 s48, s39, {4608 + 384}
        s_cmp_lt_u32 s3, 6
        s_cselect_b32 s47, s48, s47
        s_cmp_lt_u32 s3, 3
        s_cselect_b32 s39, s39, s47
        s_cmp_eq_u32 s3, 7
        s_cselect_b32 s30, 0, s30
        s_mul_i32 s38, s32, 36
        s_mul_i32 s38, s38, s45
        s_add_u32 s39, s39, s38
        s_mov_b32 s68, s39
        s_lshl_b32 s38, s45, 3
        v_mul_lo_u32 v26, v28, s45
        v_lshl_add_u32 v26, v29, 4, v26
        v_cmp_gt_u32 vcc, 32, v2
        v_mov_b32 v27, {BIG}
        s_nop 0
        v_cndmask_b32 v27, v27, v26, vcc
        """)
        for i in range(5):
            coop_id = a.vm(f"buffer_load_dwordx4 {vr(92+4*i)}, v{26 if i < 4 else 27}, s[28:31], s39 offen")
            if i < 4: a.e(f"s_add_u32 s39, s39, s38")
        return coop_id
    if CF == 1: coop_id = coop_loads()
    issue_x(0); issue8(0)
    if CF == 2: coop_id = coop_loads()
    issue_x(1); issue8(1)
    a.e(f"""
    s_and_b32 s36, s3, 3                ; rg
    s_lshr_b32 s37, s3, 2               ; p
    v_mul_u32_u24 v13, 3456, v28
    v_add_u32 v13, v13, v30
    v_and_b32 v22, 15, v2
    v_lshrrev_b32 v23, 2, v22           ; r
    v_and_b32 v22, 3, v22               ; c
    v_lshrrev_b32 v24, 5, v2            ; h
    v_bfe_u32 v25, v2, 4, 1             ; n half
    v_lshlrev_b32 v1, 3, v24
    v_add_u32 v1, v1, v23
    v_lshlrev_b32 v1, 7, v1             ; (8h + r)*128
    v_lshrrev_b32 v26, 1, v23
    v_xor_b32 v26, s37, v26
    v_lshl_add_u32 v1, v26, 6, v1
    v_lshl_add_u32 v1, v25, 5, v1
    v_lshl_add_u32 v1, v22, 3, v1
    v_add_u32 v3, 49152, v1
    v_and_b32 v32, 31, v2               ; s
    v_bfe_u32 v33, v2, 1, 3             ; swz
    v_xor_b32 v33, v33, v24
    v_lshlrev_b32 v33, 4, v33
    v_lshl_add_u32 v9, v32, 7, v33
    s_lshl_b32 s38, s36, 12
    s_add_u32 s38, s38, {XR}
    v_add_u32 v9, s38, v9
    v_xor_b32 v10, 32, v9
    v_xor_b32 v11, 64, v9
    v_xor_b32 v12, 96, v9
    v_lshlrev_b32 v21, 3, v32           ; s*8
    v_lshlrev_b32 v0, 4, v2
    """)
    assert Z2T == 0
    def wread(a, buf, u, j):
        pos = u % 12
        bb = (1, 3)[pos // 6]; off = (pos % 6)*8192 + j*2048
        a.lg(f"ds_read_b64_tr_b16 {vr(buf,2)}, v{bb} offset:{off}")
        return a.lg(f"ds_read_b64_tr_b16 {vr(buf+2,2)}, v{bb} offset:{off+512}")
    CSR = [80 + 4*k for k in range(7)] + [24 + 4*k for k in range(9)]
    def xst_load(a, tracked=True):
        (a.vm if tracked else a.e)(f"buffer_load_dwordx4 {vr(NEGMU)}, v21, s[20:23], s59 offen" + ("" if tracked else " sc1"))
    def hand_loads(a, k0=0, k1=16, sc=" sc1"):
        if k0 == 0: a.e("s_mov_b32 s45, s57")
        for k in range(k0, k1):
            if k % 2 == 0 and k: a.e(f"s_add_u32 s45, s45, {2*448*8}")
            a.e(f"buffer_load_dwordx4 {vr(CSR[k])}, v63, s[20:23], s45 offen offset:{(k%2)*448*8}{sc}")
    CONSTS = f"""
    v_mov_b32 v{R}, v110
    v_mul_f32 v{C2}, v{R}, v{R}
    v_mul_f32 v{C1}, {f2u(GK1)}, v{R}
    v_mul_f32 v{C2}, v{C2}, v{R}
    v_mov_b32 v{S1}, 0
    v_mul_f32 v{C2}, {f2u(GK2)}, v{C2}
    v_mov_b32 v{S2}, 0
    v_mov_b32 v7, 0
    v_mov_b32 v8, 0
    v_cvt_pk_bf16_f32 v24, v{NEGMU}, v{NEGMU}
    v_mov_b32 v26, 0
    v_lshlrev_b32 v24, 16, v24
    v_mov_b32 v27, 0
    v_sub_f32 v24, v{NEGMU}, v24
    v_cmp_gt_u32 vcc, 32, v2
    v_cvt_pk_bf16_f32 v24, v{NEGMU}, v24
    v_mov_b32 v30, 0
    v_cndmask_b32 v24, v26, v24, vcc
    v_mov_b32 v31, 0
    v_mov_b32 v25, v24
    """
    rid = {}
    def areads(n):
        c, j = divmod(n, 4)
        a.lg(f"ds_read_b128 {vr(X + 4*n)}, v{9+j} offset:{(c%3)*16384}")
        rid[n] = wread(a, WF[n % 4], c, j)
    a.wait(vm=max(x_id[0], uid[0]))
    a.e("s_barrier")
    if stamp == 1: stamp_mid(a, 0)
    areads(0); areads(1)
    if not CF: coop_id = coop_loads()
    a.e(f"""
    s_cmp_eq_u32 s3, 4
    s_cselect_b32 s38, 0, {BIG}
    v_mov_b32 v4, s38
    """)
    ep_id = a.vm(f"buffer_load_dword v{TAG}, v4, s[24:27], 0 offen sc1")
    issue_x(2); issue8(2)
    a.keys["coop"] = ("vm", coop_id)
    b = Sched()
    b.e(f"""
    s_mul_i32 s57, s33, {16*448*8}
    s_add_u32 s57, s57, {CSP}
    s_mul_i32 s47, s32, {448*8}
    s_add_u32 s47, s47, s57
    s_lshl_b32 s48, s3, 9
    s_add_u32 s47, s47, s48
    v_lshlrev_b32 v40, 6, v29
    v_lshrrev_b32 v41, 4, v2
    v_lshl_add_u32 v40, v41, 3, v40     ; (unit*8 + q)*8
    v_and_b32 v41, 8, v2
    v_cmp_eq_u32 vcc, 0, v41
    v_mov_b32 v41, {BIG}
    s_cmp_eq_u32 s3, 7
    s_cselect_b64 vcc, 0, vcc
    v_cndmask_b32 v42, v41, v40, vcc
    s_mov_b32 s62, 0x00003f80
    s_mov_b32 s63, 0x3f800000
    """)
    rowstat_addr(b, 2, 43, 40)
    a.add_block(b.lines, "x"); b.lines = []
    a.add("gate", None, "c0")
    a.add("w", None, "coop")
    rowstat_compute(b, 80, 36)
    for i in range(5): colsum_add(b, 24, 92 + 4*i, i == 0)
    fold_pairs(b, 24, [8])
    a.add_block(b.lines, "x"); b.lines = []
    a.add("gate")
    a.add("lg", f"ds_read_b32 v{TAG}, v4", "tag")
    a.add("w", None, "tag")
    a.addv(f"v_mov_b32 v37, v{TAG}\nv_mov_b32 v39, v{TAG}\nv_mov_b32 v25, v{TAG}\nv_mov_b32 v29, v{TAG}")
    a.add("vm", f"buffer_store_dwordx4 v[36:39], v43, s[20:23], 0 offen sc1")
    a.add("vm", f"buffer_store_dwordx2 v[24:25], v42, s[20:23], s47 offen sc1")
    a.add("vm", f"buffer_store_dwordx2 v[28:29], v42, s[20:23], s47 offen offset:32 sc1")
    a.addv(f"""
    s_lshl_b32 s49, s37, 8
    s_add_u32 s49, s49, {CSO}
    v_lshrrev_b32 v40, 5, v2
    v_add_u32 v17, s49, v21
    s_mul_i32 s49, s3, {32*SP}
    s_add_u32 s49, s49, {XR}
    v_mul_u32_u24 v19, {SP//8}, v21
    v_lshl_add_u32 v19, v40, 4, v19
    v_add_u32 v19, s49, v19
    v_bfe_u32 v20, v2, 4, 1
    v_mul_u32_u24 v20, {90*1024}, v20
    v_and_b32 v41, 15, v2
    v_lshl_add_u32 v41, v40, 4, v41
    v_lshl_add_u32 v20, v41, 4, v20     ; z1 store
    s_lshl_b32 s49, s36, 10
    v_add_u32 v18, s49, v0
    v_cmp_gt_u32 vcc, {448*8}, v18
    v_mov_b32 v63, {BIG}
    v_lshlrev_b32 v21, 1, v21           ; s*16
    v_cndmask_b32 v63, v63, v18, vcc
    v_add_u32 v18, {CSO}, v18
    """)
    a.addv(f"""
    s_lshl_b32 s47, s32, 3
    s_lshl_b32 s48, s36, 1
    s_add_u32 s47, s47, s48             ; t16
    s_mul_i32 s47, s47, 90
    s_mul_i32 s48, s33, 6
    s_add_u32 s47, s47, s48
    s_add_u32 s47, s47, s37
    s_lshl_b32 s47, s47, 10
    s_add_u32 s50, s47, {Z1B}
    s_add_u32 s51, s50, 2048
    s_add_u32 s52, s50, 4096
    s_lshl_b32 s47, s32, 2
    s_add_u32 s47, s47, s36
    s_lshl_b32 s59, s47, 9
    s_add_u32 s59, s59, {XST}
    s_mul_i32 s48, s47, 36
    s_lshl_b32 s49, s34, 2
    s_add_u32 s48, s48, s49
    s_lshl_b32 s49, s37, 1
    s_add_u32 s48, s48, s49
    s_lshl_b32 s48, s48, 10
    s_add_u32 s53, s48, {Q}
    s_mul_i32 s54, s47, 144
    s_mul_i32 s48, s33, 12
    s_add_u32 s54, s54, s48
    s_add_u32 s54, s54, s49             ; + 2p
    s_lshl_b32 s54, s54, 10             ; z2t soffset (Z2T = 0)
    s_mul_i32 s55, s32, 12
    s_add_u32 s48, s33, s55
    s_lshl_b32 s48, s48, 11
    s_lshl_b32 s49, s36, 9
    s_add_u32 s48, s48, s49
    s_add_u32 s56, s48, {ST}
    s_lshl_b32 s55, s55, 11
    s_add_u32 s55, s55, s49
    s_add_u32 s55, s55, {ST}
    """)
    pend = []; gate_ok = False; HLC = int(os.environ.get('HLC', 4))
    for n in range(36):
        c, j = divmod(n, 4)
        a.wait(lg=rid[n])
        if j == 2:
            for f in pend: f()
            pend = []
            need = [x_id[c+1], uid[c+1]] if c < 8 else [uid[11]]
            if c == 1:
                a.wait(vm=ep_id)
                epoch_share(a, name, 4, TAG, 4, PRM)
            if c == 8: a.flush()
            a.wait(vm=max(need), lg=a.lg_n - 1 if c == 8 else rid[n+1])
            if stamp == 5 and 0 <= (c - TL0) < 8 and (c - TL0) % 2 == 0: stamp_mid(a, (c - TL0) // 2)
            a.e("s_barrier")
            if c == 1:
                a.e(f"v_mov_b32 v4, {PRM}")
                gate_ok = True
            if c == int(os.environ.get("L2C", 99)):
                a.e(f"""
                s_cmp_lt_u32 s3, 6
                s_mov_b32 s45, 3456
                s_cselect_b32 s45, 9216, s45
                s_mul_i32 s38, s45, {8*36}
                s_sub_u32 s39, 0, s38
                s_cmp_lt_u32 s32, 8
                s_cselect_b32 s38, s38, s39
                s_add_u32 s39, s68, s38
                v_min_u32 v40, 35, v2
                v_mul_lo_u32 v40, v40, s45
                """)
                a.vm("buffer_load_dword v41, v40, s[28:31], s39 offen")
            if c == 8:
                assert not a.fill, len(a.fill)
                xst_load(a); a.keys["xst"] = ("vm", a.vm_n - 1)
            if c + 3 < 9: pend.append(lambda c=c: issue_x(c + 3))
            for u in ([c + 3] if c < 6 else range(3*c - 9, 3*c - 6)):
                pend.append(lambda u=u: issue8(u))
        if n + 2 < 36: areads(n + 2)
        a.e(f"{MF32} {vr(ACC[0],16)}, {vr(WF[n % 4])}, {vr(X + 4*n)}, " + ("0" if n == 0 else vr(ACC[0], 16)))
        if pend: pend.pop(0)()
        if n == 33:
            pass
        if gate_ok: a.open_gate()
        if n >= 4: a.open_gate('c0')
        a.pump(28 if n < 12 else 16)
        if n == 34: h0_tail_at = len(a.lines)
    for f in pend: f()
    if stamp in (1, 2): stamp_mid(a, 1 if stamp == 1 else 0)
    a.e(f"""
    s_mul_i32 s40, s36, {16*9216}
    s_add_u32 s40, s40, s41
    s_mul_i32 s41, s36, {16*3456}
    s_lshl_b32 s42, s34, 7
    s_add_u32 s41, s41, s42
    s_lshl_b32 s42, s36, 11
    v_add_u32 v104, {8*9216-1024}, v5
    v_add_u32 v105, {8*3456-1024}, v13
    s_cmp_eq_u32 s37, 0
    s_cbranch_scc0 {name}_p1
    """)
    common = a.snapshot()

    def epilogue(a, P):
        if "nofill" in ABL:
            if P == 2: a.add("vm", f"buffer_store_dwordx2 {vr(T,2)}, v21, s[20:23], s56 offen sc1", "ststore")
            return
        acc = ACC[P % 2]
        kind = "z2" if P < 3 else ("z1" if P < 6 else "q")
        if P == 0 or (P == 1 and a.par == 0):
            a.add("lg", f"ds_read_b64 v[28:29], v17 offset:{P*512}", "cs0")
            a.add("w", None, "cs0")
            a.addv(f"{MF32} {vr(acc,16)}, v[28:31], v[24:27], {vr(acc,16)}\ns_nop 7\ns_nop 3")
        T8 = [T + k for k in range(4)] + [6, 16, 22, 23]
        m = Sched()
        def defer():
            items = list(m.fill); m.fill.clear()
            a.add("call", lambda a_, items=items: a_.mfill.extend(items))
        for gg in range(2):
            A = acc + 8*gg
            if kind == "q":
                for r in range(8): a.addv(f"v_mul_f32 v{A+r}, v{R}, v{A+r}")
            else:
                for r in range(8): a.addv(f"v_mul_f32 v{T8[r]}, v{A+r}, v{A+r}")
                for r in range(8): a.addv(f"v_fma_f32 v{T8[r]}, v{T8[r]}, v{C2}, v{C1}")
                for r in range(8): a.addv(f"v_mul_f32 v{T8[r]}, v{T8[r]}, v{A+r}")
                for r in range(8): a.addv(f"v_exp_f32 v{T8[r]}, v{T8[r]}")
                for r in range(8): a.addv(f"v_add_f32 v{T8[r]}, 1.0, v{T8[r]}")
                for r in range(8): a.addv(f"v_rcp_f32 v{T8[r]}, v{T8[r]}")
                for r in range(8): a.addv(f"v_mul_f32 v{A+r}, v{A+r}, v{T8[r]}")
            for g in (2*gg, 2*gg + 1):
                Ag = acc + 4*g
                pk = PK + 2*g if kind != "z1" else PK + (g & 1)*4 + (g >> 1)*2
                a.addv(f"v_cvt_pk_bf16_f32 v{pk}, v{Ag}, v{Ag+1}")
                a.addv(f"v_cvt_pk_bf16_f32 v{pk+1}, v{Ag+2}, v{Ag+3}")
            if kind == "z2":
                m.add("lg", f"ds_write_b128 v19, {vr(PK + 4*gg)} offset:{P*64 + gg*32}")
                tgt = m if (gg == 0 or STATM == 2) and STATM else a
                for r in range(8):
                    tgt.addv(f"v_add_f32 v{(S1, 7)[r & 1]}, v{(S1, 7)[r & 1]}, v{A+r}")
                    tgt.addv(f"v_fmac_f32 v{(S2, 8)[r & 1]}, v{A+r}, v{A+r}")
            elif kind == "z1" and gg == 1:
                for k in range(2):
                    m.add("vm", f"buffer_store_dwordx4 {vr(PK + k*4)}, v20, s[20:23], s{50 + P - 3} offen offset:{k*512} {ZSC}")
            elif kind == "q":
                m.add("vm", f"buffer_store_dwordx4 {vr(PK + gg*4)}, v0, s[20:23], s53 offen offset:{gg*1024} {ZSC}")
            if P == 2 and gg == 1:
                a.addv(f"""
                v_add_f32 v{S1}, v{S1}, v7
                v_add_f32 v{S2}, v{S2}, v8
                v_mov_b32 v7, v{S1}
                v_mov_b32 v8, v{S2}
                s_nop 1
                v_permlane32_swap_b32 v{S1}, v7
                v_permlane32_swap_b32 v{S2}, v8
                s_nop 1
                v_add_f32 v8, v{S2}, v8
                v_add_f32 v7, v{S1}, v7
                v_mul_f32 v10, v{R}, v8
                v_mul_f32 v8, v{R}, v7
                v_mul_f32 v10, v{R}, v10
                s_lshl_b32 s39, s36, 8
                s_add_u32 s39, s39, {PRM + 1280 - 256}
                v_lshrrev_b32 v63, 1, v21
                v_add_u32 v63, s39, v63
                """)
                if a.par == 0:
                    a.addv("v_mov_b32 v9, v10")
                    a.add("lg", "ds_write_b64 v63, v[8:9] offset:256", "pw")
                    a.add("w", None, "pw")
                else:
                    a.add("lg", "ds_read_b64 v[106:107], v63 offset:256", "pw")
                    a.addv(f"v_mov_b32 v9, v{TAG}\nv_mov_b32 v11, v{TAG}")
                    a.add("w", None, "pw")
                    a.addv("v_add_f32 v8, v8, v106\nv_add_f32 v10, v10, v107")
                    a.add("vm", f"buffer_store_dwordx4 v[8:11], v21, s[20:23], s56 offen sc1")
            defer()
    def issue4(a, u, half, own):
        P, c = divmod(u, 9)
        if half == 0:
            a.e(f"s_add_u32 m0, s42, {RING + (u % 12)*8192}")
            a.e(f"s_add_u32 s46, s40, {(c*64*9216 + pcol(P)) & 0xffffffff}" if P < 6 else f"s_add_u32 s46, s41, {c*64*3456}")
        v = (5, 104)[half] if P < 6 else (13, 105)[half]
        own[u] = a.vm(f"buffer_load_dwordx4 v{v}, s[{12 if P < 6 else 16}:{15 if P < 6 else 19}], s46 offen" + (" offset:1024" if half else "") + " lds")
    AH = int(os.environ.get("AH", 3)); W8 = WF + [96, 100]; NW = 6
    PRIO = int(os.environ.get("PRIO", 1))
    STS = (8, 0)

    class Path:
        def __init__(s, p):
            s.a = Sched(); s.a.uid = 100*(p + 1); s.a.restore(common); s.p = p; s.a.par = p
            s.own = dict(uid); s.hooks = {}; s.pre = {}; s.ahead = None
        def bar(s, H, t, lg=None):
            a = s.a
            if (H, t) in s.pre: s.pre[(H, t)](a)
            k = H // 2 + 1
            if H % 2 == 1 and t < 2: us = range(9*k + 3*t + 3, 9*k + 3*t + 6)
            elif H % 2 == 0 and t == 1: us = range(9*k, 9*k + 3)
            else: us = []
            ids = [s.own[u] for u in us if u in s.own]
            a.wait(vm=max(ids) if ids else None, lg=lg)
            if stamp == 4 and 0 <= 3*H + t - TL0 < 4: stamp_mid(a, 3*H + t - TL0)
            a.e("s_barrier")
            if (H, t) in s.hooks: s.hooks[(H, t)](a)
        def preread(s, P):
            s.ahead = {n: wread(s.a, W8[n], 9*P + n // 4, n % 4) for n in range(AH)}
        def M(s, H, P, N):
            a = s.a; acc = ACC[P % 2]
            if P + 1 >= N: todo = {}
            elif s.p == 0: todo = {0: [(u, h) for u in range(9*P + 9, 9*P + 12) for h in (0, 1)]}
            else: todo = {12*t - AH + 1: [(u, h) for u in range(9*P + 9 + 3*t, 9*P + 12 + 3*t) for h in (0, 1)] for t in (1, 2)}
            q = []
            if PRIO: a.e("s_setprio 1")
            if s.ahead is None: s.preread(P)
            br = dict(s.ahead); s.ahead = None
            for i in range(36):
                a.wait(lg=br[i])
                n = i + AH
                mf = f"{MF32} {vr(acc,16)}, {vr(W8[i % NW])}, {vr(X + 4*i)}, " + ("0" if i == 0 else vr(acc, 16))
                if n in (12, 24):
                    a.e(mf); mf = ""
                    s.bar(H, n // 12 - 1, br[n-1] if s.p == 1 else None)
                if n < 36: br[n] = wread(a, W8[n % NW], 9*P + n // 4, n % 4)
                a.e(mf)
                q += todo.get(i, [])
                if q and (i % (5 if s.p == 0 else 2) == (1 if s.p == 0 else (AH + 1) % 2)): issue4(a, *q.pop(0), s.own)
                elif i % 2 == 0 and i >= 2: a.mpump(2)
                if i == 30 and H > 1: cid = a.lg(f"ds_read_b64 v[28:29], v17 offset:{P*512}")
            assert not q and not a.mfill
            if H > 1:
                a.wait(lg=cid)
                a.e(f"{MF32} {vr(acc,16)}, v[28:31], v[24:27], {vr(acc,16)}")
            if PRIO: a.e("s_setprio 0")
            s.bar(H, 2)
        def V(s, H, nextP, t0=0):
            a = s.a
            tot = a.fill_cost() + (8 if nextP else 0)
            for t in range(t0, 3):
                a.pump(math.ceil(tot / (3 - t0)) if t < 2 else 1 << 30)
                if t == 2 and nextP: s.preread(nextP)
                s.bar(H, t)

    QD = [44, 48, 52, 56, 96, 100, 108, 8]
    def stat_loads(a, k0, k1, tracked=True):
        f = a.vm if tracked else (lambda t, k=None: a.e(t))
        a.e(f"s_add_u32 s45, s55, {k0*2048}")
        for k in range(k0, k1):
            if k % 2 == 0 and k > k0: a.e("s_add_u32 s45, s45, 4096")
            f(f"buffer_load_dwordx4 {vr(QD[k - k0])}, v63, s[20:23], s45 offen offset:{(k%2)*2048}" + ("" if tracked else " sc1"), "stl")
    def stat_take(a, k0, k1):
        a.wait_key("stl")
        tags_retry(a, name, [QD[k] + o for k in range(k1 - k0) for o in (1, 3)], TAG, 106, lambda a: stat_loads(a, k0, k1, False))
        for k in range(k1 - k0):
            if k0 + k == 0: a.e(f"v_mov_b32 v{S1}, v{QD[0]}\nv_mov_b32 v{S2}, v{QD[0]+2}")
            else: a.e(f"v_add_f32 v{S1}, v{S1}, v{QD[k]}\nv_add_f32 v{S2}, v{S2}, v{QD[k]+2}")
    def stat_phase(path, H, nextP):
        a = path.a
        a.e(f"""
        v_lshrrev_b32 v63, 9, v0            ; h
        v_mul_u32_u24 v63, {6*2048}, v63
        v_add_u32 v63, v63, v21
        """)
        stat_loads(a, 0, 6)
        tot = a.fill_cost()
        a.pump(math.ceil(tot * 0.4)); path.bar(H, 0)
        a.pump(math.ceil(tot * 0.42)); path.bar(H, 1)
        a.flush()
        stat_take(a, 0, 6)
        a.e(f"""
        v_mov_b32 v106, v{S1}
        v_mov_b32 v107, v{S2}
        s_lshl_b32 s39, s36, 8
        s_add_u32 s39, s39, {PRM + 256}
        v_permlane32_swap_b32 v{S1}, v106
        v_permlane32_swap_b32 v{S2}, v107
        v_lshrrev_b32 v63, 2, v21
        v_add_u32 v63, s39, v63
        v_add_f32 v{S1}, v{S1}, v106
        v_add_f32 v{S2}, v{S2}, v107
        v_mul_f32 v{S1}, {f2u(1/2304.)}, v{S1}
        v_mul_f32 v{S2}, {f2u(1/2304.)}, v{S2}
        v_fma_f32 v{S2}, -v{S1}, v{S1}, v{S2}
        v_max_f32 v{S2}, 0, v{S2}
        v_add_f32 v{S2}, {f2u(1e-5)}, v{S2}
        v_rsq_f32 v{S2}, v{S2}
        s_nop 0
        v_mul_f32 v106, v{R}, v{S2}
        v_mul_f32 v107, -v{S1}, v{S2}
        """)
        a.lg("ds_write_b32 v63, v106")
        w = a.lg("ds_write_b32 v63, v107 offset:128")
        path.preread(nextP)
        path.bar(H, 2, w)
    def normalise(a):
        a.addv(f"""
        v_lshrrev_b32 v106, 8, v0           ; kg
        v_bfe_u32 v63, v0, 6, 2             ; r
        s_lshl_b32 s39, s36, 8
        s_add_u32 s39, s39, {PRM + 256}
        v_lshl_add_u32 v107, v106, 5, s39
        """)
        for k in range(4): a.add("lg", f"ds_read_b128 {vr(44 + 4*k)}, v107 offset:{(k & 1)*16 + (k >> 1)*128}", "prm")
        a.addv(f"""
        v_lshl_add_u32 v63, v106, 3, v63
        v_mul_u32_u24 v63, {SP}, v63
        v_bfe_u32 v106, v0, 4, 1
        v_lshl_add_u32 v63, v106, 4, v63
        v_bfe_u32 v106, v0, 5, 1
        v_lshl_add_u32 v63, v106, 3, v63
        s_mul_i32 s39, s3, {32*SP}
        s_add_u32 s39, s39, {XR}
        v_add_u32 v63, s39, v63
        """)
        ZQ = [96, 100, 108]
        def rd(b_):
            a.add("lg", f"ds_read_b64_tr_b16 {vr(ZQ[b_ % 3],2)}, v63 offset:{b_*32}")
            a.add("lg", f"ds_read_b64_tr_b16 {vr(ZQ[b_ % 3]+2,2)}, v63 offset:{b_*32 + 4*SP}", ("zt", b_))
        rd(0); rd(1)
        for b_ in range(6):
            a.add("w", None, ("zt", b_))
            for k in range(4):
                z = ZQ[b_ % 3] + k; t = (106, 8)[k & 1]
                a.addv(f"""
                v_lshlrev_b32 v{t}, 16, v{z}
                v_and_b32 v{t+1}, 0xffff0000, v{z}
                v_fma_f32 v{t}, v{t}, v{44+2*k}, v{52+2*k}
                v_fma_f32 v{t+1}, v{t+1}, v{45+2*k}, v{53+2*k}
                v_cvt_pk_bf16_f32 v{z}, v{t}, v{t+1}
                """)
                if k == 1 and b_ + 2 < 6: rd(b_ + 2)
            if b_ % 2 == 0 and b_ > 0: a.addv("s_add_u32 s54, s54, 4096")
            a.add("vm", f"buffer_store_dwordx4 {vr(ZQ[b_ % 3])}, v0, s[20:23], s54 offen offset:{(b_&1)*1024} {Z2SC}", "z2st")
    def zflag(a):
        lb = a.newlabel(name + "_zf")
        a.e(f"""
        s_cmp_eq_u32 s3, 4
        s_cbranch_scc0 {lb}
        s_lshl_b32 s39, s33, 4
        s_add_u32 s39, s39, s32
        s_lshl_b32 s39, s39, 7
        s_add_u32 s39, s39, {FZ}
        v_mov_b32 v8, v{TAG}
        v_mov_b32 v9, v{TAG}
        v_mov_b32 v10, v{TAG}
        v_mov_b32 v11, v{TAG}
        s_mov_b64 exec, 0xff
        buffer_store_dwordx4 v[8:11], v0, s[20:23], s39 offen sc1
        s_mov_b64 exec, -1
        """)
        a.label(lb)
    lt = name + "_ztail"
    for p in (0, 1):
        path = Path(p); b = path.a
        def step(k, N):
            path.M(2*k - 1 + p, k, N)
            if 2*k + p <= 2*(N - 1):
                H = 2*k + p
                if H in (10, 11): normalise(b)
                epilogue(b, k - 1)
                if H == 9: stat_phase(path, H, k + 1)
                else: path.V(H, k + 1 if k + 1 < N else None)
        def xchk(a):
            a.wait_key("xst")
            tags_retry(a, name, [NEGMU + 1, NEGMU + 3], TAG, 61, lambda a: xst_load(a, False))
        if p == 1:
            b.label(f"{name}_p1")
            hand_loads(b, 0, 6, sc="")
            b.e("s_waitcnt vmcnt(10)"); b.vm_done = uid[14]
            path.bar(1, 0)
            hand_loads(b, 6, 16, sc="")
            b.e("s_waitcnt vmcnt(16)"); b.vm_done = b.vm_n - 1
            path.bar(1, 1)
            b.e("s_waitcnt vmcnt(0)")
            xchk(b)
            tags_retry(b, name, [r + o for r in CSR for o in (1, 3)], TAG, 61, hand_loads, 63)
            for st_ in (8, 4, 2, 1):
                for k in range(st_):
                    for o in (0, 2): b.e(f"v_add_f32 v{CSR[k]+o}, v{CSR[k]+o}, v{CSR[k+st_]+o}")
            b.e(f"""
            v_cvt_pk_bf16_f32 v84, v80, v80
            v_cvt_pk_bf16_f32 v86, v82, v82
            v_lshlrev_b32 v85, 16, v84
            v_lshlrev_b32 v87, 16, v86
            v_sub_f32 v80, v80, v85
            v_sub_f32 v82, v82, v87
            v_cvt_pk_bf16_f32 v85, v80, v80
            v_cvt_pk_bf16_f32 v87, v82, v82
            v_add_u32 v104, {8*9216-1024}, v5
            v_add_u32 v105, {8*3456-1024}, v13
            """)
            b.lg("ds_write_b128 v18, v[84:87]")
            wid_ = b.lg_n - 1
            b.e(CONSTS)
            path.preread(1)
            path.bar(1, 2, wid_)
        else:
            b.add("call", xchk); b.addv(CONSTS)
        for k in range(1, 5): step(k, 7)
        lq = f"{name}_noq{p}"
        b.e(f"s_cmp_eq_u32 s18, 0\ns_cbranch_scc1 {lq}")
        snap = b.snapshot(); own_s = dict(path.own); ah_s = path.ahead
        for N in (7, 6):
            if N == 6:
                b.label(lq); b.restore(snap); path.own = dict(own_s); path.ahead = ah_s
            HL = 2*(N - 1)
            path.pre.clear(); path.hooks.clear()
            if N == 7:
                path.pre[(12, 1)] = lambda a: a.wait_key("z2st")
                if p == 1: path.hooks[(12, 1)] = zflag
            for k in range(5, N): step(k, N)
            if stamp == 1: stamp_mid(b, 2)
            b.e("s_nop 7")
            b.mpump(1000)
            if N == 6 and p == 1: normalise(b); b.flush()
            if p == 1: epilogue(b, N - 2); b.flush(); b.mpump(1000)
            epilogue(b, N - 1); b.flush(); b.mpump(1000)
            if N == 6:
                b.wait_key("z2st"); b.e("s_barrier")
                if p == 1: zflag(b)
            if not (p == 1 and N == 6): b.e(f"s_branch {lt}")
        a.lines += b.lines
        if getattr(b, 'forced', 0): print('forced flushes', p, b.forced)
    a.label(lt)
    if stamp == 1: stamp_mid(a, 3)
    if stamp == 3:
        a.e(f"""
        s_add_u32 s84, s20, {STAMP + 8*65536}
        s_addc_u32 s85, s21, 0
        s_mov_b32 s86, 0x200000
        s_mov_b32 s87, 0x20000
        s_lshl_b32 s88, s2, 3
        s_add_u32 s88, s88, s3
        s_lshl_b32 s88, s88, 9
        v_writelane_b32 v18, s92, 0
        v_lshlrev_b32 v1, 2, v2
        buffer_store_dword v18, v1, s[84:87], s88 offen
        buffer_store_dword v61, v1, s[84:87], s88 offen offset:256
        """)

def stat_issue(a, tracked=True):
    f = a.vm if tracked else (lambda t, k=None: a.e(t))
    a.e(f"""
    v_lshrrev_b32 v63, 9, v0            ; h
    v_mul_u32_u24 v63, {12*2048}, v63
    v_add_u32 v63, v63, v21
    s_mov_b32 s45, s55
    """)
    for k in range(12):
        if k % 2 == 0 and k: a.e("s_add_u32 s45, s45, 4096")
        f(f"buffer_load_dwordx4 {vr(112+4*k)}, v63, s[20:23], s45 offen offset:{(k%2)*2048}" + ("" if tracked else " sc1"), "stl")

def touch(a, vt=22):
    a.e(f"""
    s_load_dwordx2 s[62:63], s[0:1], {KA_WSP}
    s_lshl_b32 s38, s32, 3
    s_add_u32 s38, s38, s33
    s_lshl_b32 s38, s38, 3
    s_add_u32 s38, s38, s3              ; 0..511
    s_sub_u32 s39, s38, 324
    s_cmp_lt_u32 s38, 324
    s_cselect_b32 s28, s70, s72
    s_cselect_b32 s29, s71, s73
    s_mov_b32 s30, {D*D*2}
    s_cselect_b32 s30, {F2*D*2}, s30
    s_cselect_b32 s39, s38, s39
    s_mov_b32 s31, 0x20000
    s_lshl_b32 s39, s39, 13
    v_lshlrev_b32 v{vt}, 3, v0
    v_add_u32 v{vt+1}, s39, v{vt}
    """)
    a.vm(f"buffer_load_dword v{vt+1}, v{vt+1}, s[28:31], 0 offen")
    a.e(f"""
    s_waitcnt lgkmcnt(0)
    s_mov_b32 s28, s62
    s_mov_b32 s29, s63
    s_mov_b32 s30, {S*S*2}
    s_lshl_b32 s39, s38, 14
    """)
    a.lg_done = a.lg_n - 1
    a.vm(f"buffer_load_dword v13, v{vt}, s[28:31], s39 offen")
    a.e("s_add_u32 s39, s39, 8192")
    a.vm(f"buffer_load_dword v13, v{vt}, s[28:31], s39 offen")
    for reg in os.environ.get("PRE", "").split(","):
        if not reg: continue
        base, nbytes = {"z": (Z2T, Z2T_BYTES), "p": (PX, 16*4*16*9*1024), "u": (U, U_BYTES), "f": (FU, 6*32768), "q": (Q, Q_BYTES)}[reg]
        n = -(-nbytes // (512*8192))
        a.e(f"s_mul_i32 s39, s38, {n*8192}\ns_add_u32 s39, s39, {base}")
        for i in range(n):
            a.e(f"v_add_u32 v15, s39, v{vt}\nv_min_u32 v15, {base + nbytes - 128}, v15\ns_add_u32 s39, s39, 8192")
            a.vm(f"buffer_load_dword v13, v15, s[20:23], 0 offen")

def repack_loads(a, name, tag, base):
    lb = f"{name}_rp{tag}"
    a.e(f"""
    s_cmp_ge_u32 s60, 720
    s_cbranch_scc1 {lb}
    s_lshr_b32 s61, s60, 3              ; step
    s_and_b32 s62, s60, 7               ; d tile
    s_cmp_lt_u32 s61, 72
    s_cselect_b32 s28, s70, s72
    s_cselect_b32 s29, s71, s73
    s_mov_b32 s30, {D*D*2}
    s_cselect_b32 s30, {F2*D*2}, s30
    s_mov_b32 s31, 0x20000
    s_mov_b32 s63, {8*1152}
    s_cselect_b32 s63, {16*1152}, s63           ; j2 stride
    s_mov_b32 s64, {2*1152}                     ; j1 stride
    s_mov_b32 s65, {18*1152}
    s_cselect_b32 s65, {8*1152}, s65            ; k1 stride
    s_mov_b32 s66, {4*1152}                     ; k0 stride
    s_mul_i32 s67, s61, {32*1152}
    s_sub_u32 s68, s61, 72
    s_mul_i32 s68, s68, {36*1152}
    s_cmp_lt_u32 s61, 72
    s_cselect_b32 s67, s67, s68
    s_sub_u32 s68, s61, 88
    s_mul_i32 s68, s68, {288*1152}
    s_add_u32 s68, s68, {16*1152}
    s_cmp_ge_u32 s61, 88
    s_cselect_b32 s67, s68, s67
    s_cselect_b32 s63, {36*1152}, s63
    s_cselect_b32 s64, {18*1152}, s64
    s_cselect_b32 s65, {144*1152}, s65
    s_cselect_b32 s66, {72*1152}, s66
    s_mul_i32 s68, s62, 144
    s_add_u32 s67, s67, s68
    v_lshrrev_b32 v180, 9, v0
    v_mul_lo_u32 v180, v180, s64
    v_bfe_u32 v181, v0, 8, 1
    v_mul_u32_u24 v181, 1152, v181
    v_add_u32 v180, v180, v181
    v_and_b32 v181, 0xf0, v0
    v_add_u32 v180, v180, v181
    v_mov_b32 v182, {BIG}
    v_cmp_gt_u32 vcc, 144, v181
    s_lshl_b32 s48, s3, 13
    s_add_u32 s48, s48, {base}
    s_nop 0
    v_cndmask_b32 v180, v182, v180, vcc
    """)
    for i in range(8):
        j2, k1, k0 = i >> 2, (i >> 1) & 1, i & 1
        a.e(f"s_add_u32 m0, s48, {i*1024}")
        a.e(f"s_mov_b32 s68, s67")
        if j2: a.e("s_add_u32 s68, s68, s63")
        if k1: a.e("s_add_u32 s68, s68, s65")
        if k0: a.e("s_add_u32 s68, s68, s66")
        a.e(f"buffer_load_dwordx4 v180, s[28:31], s68 offen lds")
    a.label(lb)

def repack_stores(a, name, tag=""):
    lb = f"{name}_rps{tag}"
    a.e(f"""
    s_cmp_ge_u32 s60, 720
    s_cbranch_scc1 {lb}
    v_lshrrev_b32 v181, 6, v0
    v_lshlrev_b32 v181, 8, v181
    v_bfe_u32 v182, v0, 4, 2
    v_lshl_add_u32 v181, v182, 3, v181
    v_add_u32 v181, s48, v181
    s_and_b32 s63, s62, 1
    s_lshl_b32 s64, s63, 4
    v_add_u32 v182, s64, v181
    s_lshl_b32 s64, s63, 7
    s_sub_u32 s65, 128, s64
    v_add_u32 v181, s65, v181
    """)
    for i in range(4):
        a.e(f"ds_read_b64_tr_b16 {vr(160+4*i,2)}, v182 offset:{32*i}")
        a.e(f"ds_read_b64_tr_b16 {vr(162+4*i,2)}, v182 offset:{32*i + 4096}")
    a.e(f"""
    ds_read_b64_tr_b16 v[176:177], v181
    ds_read_b64_tr_b16 v[178:179], v181 offset:4096
    s_lshr_b32 s68, s62, 1
    s_mul_i32 s68, s68, 90
    s_add_u32 s68, s68, s61
    s_mul_i32 s68, s68, {9*1024}
    s_add_u32 s68, s68, {WP}
    s_add_u32 s65, s68, s64
    s_add_u32 s65, s65, 4096
    s_mul_i32 s63, s63, {5*1024}
    s_add_u32 s68, s68, s63
    v_and_b32 v182, 0x80, v0
    v_cmp_eq_u32 vcc, 0, v182
    v_mov_b32 v182, {BIG}
    s_nop 0
    v_cndmask_b32 v181, v182, v0, vcc
    s_waitcnt lgkmcnt(0)
    """)
    for i in range(4):
        a.e(f"buffer_store_dwordx4 v[{160+4*i}:{163+4*i}], v0, s[20:23], s68 offen offset:{1024*i} sc1")
    a.e(f"buffer_store_dwordx4 v[176:179], v181, s[20:23], s65 offen sc1")
    a.label(lb)

def gen_k1(name="k1_kernel", stamp=False, attn=True, merged=False):
    a = Sched()
    a.e(f"""
    s_cmp_ge_u32 s2, 256
    s_cbranch_scc1 {name}_end
    """)
    if stamp: stamp_begin(a)
    a.e(f"""
    s_load_dwordx4 s[4:7], s[0:1], {KA_X}         ; x, wqkv
    s_load_dwordx2 s[74:75], s[0:1], {KA_WPHI}
    s_load_dwordx2 s[72:73], s[0:1], {KA_WO}
    s_load_dwordx2 s[28:29], s[0:1], {KA_WIN}
    s_load_dwordx2 s[70:71], s[0:1], {KA_WOUT}
    s_load_dwordx4 s[64:67], s[0:1], {KA_DBG}
    v_lshrrev_b32 v1, 6, v0
    v_and_b32 v2, 63, v0
    v_readfirstlane_b32 s3, v1
    s_and_b32 s30, s2, 7
    s_lshr_b32 s31, s2, 3               ; l
    s_and_b32 s35, s30, 1
    s_lshr_b32 s30, s30, 1              ; j
    s_waitcnt lgkmcnt(0)
    """)
    srd(a, 24, 64, 65, 256)
    epoch_publish(a, name)
    srd(a, 8, 4, 5, S*D*2)
    srd(a, 16, 6, 7, D*1728*2)
    srd(a, 12, 28, 29, D*4608*2)
    srd(a, 20, 66, 67, WS_USED, WSB)
    NT = int(os.environ.get("NT", 0))
    if NT:
        a.e(f"""
        s_mul_i32 s38, s2, 5
        s_add_u32 s38, s38, s3
        s_sub_u32 s39, s38, 288
        s_sub_u32 s40, s38, {288+243}
        s_cmp_lt_u32 s38, {288+243}
        s_cselect_b32 s76, s16, s12
        s_cselect_b32 s77, s17, s13
        s_cselect_b32 s78, s18, s14
        s_cselect_b32 s39, s39, s40
        s_cmp_lt_u32 s38, 288
        s_cselect_b32 s76, s8, s76
        s_cselect_b32 s77, s9, s77
        s_cselect_b32 s78, s10, s78
        s_cselect_b32 s39, s38, s39
        s_mov_b32 s79, 0x20000
        s_cmp_ge_u32 s3, 5
        s_cselect_b32 s78, 0, s78
        s_lshl_b32 s39, s39, 13
        v_lshlrev_b32 v63, 7, v2
        v_add_u32 v63, s39, v63
        """)
        a.vm("buffer_load_dword v63, v63, s[76:79], 0 offen")
    a.e(f"""
    s_cmp_ge_u32 s31, 24
    s_cbranch_scc1 {name}_attn
    s_lshl_b32 s32, s35, 3
    s_and_b32 s33, s31, 7
    s_add_u32 s32, s32, s33             ; rt
    s_mul_i32 s33, s30, 3
    s_lshr_b32 s34, s31, 3
    s_add_u32 s33, s33, s34             ; zg
    s_lshr_b32 s34, s33, 2
    s_sub_u32 s34, s33, s34             ; qi
    s_and_b32 s36, s33, 3
    s_cmp_eq_u32 s36, 3
    s_cselect_b32 s18, 0, s18
    s_cselect_b32 s34, 0, s34
    s_mul_i32 s60, s33, 16
    s_add_u32 s60, s60, s32
    s_lshl_b32 s60, s60, 2
    s_add_u32 s60, s60, s3
    s_cmp_ge_u32 s3, 4
    s_cselect_b32 s60, 720, s60
    """)
    gen_zpath(a, name, stamp)
    if os.environ.get("ENDINV"): a.e("s_waitcnt vmcnt(0)\n" + os.environ["ENDINV"])
    if merged:
        a.e(f"v_readfirstlane_b32 s69, v60\ns_lshl_b32 s68, s33, 4\ns_add_u32 s68, s68, s32\ns_branch {name}_p2")
    else:
        if stamp: stamp_end(a, 1, "s3", 4)
        a.e("s_endpgm")
    a.label(f"{name}_attn")
    from k1a import gen_attn, A_LDS
    b = Sched(); b.uid = 1000; b.vm_n = 1 if NT else 0
    gen_attn(b, name, stamp, attn, merged)
    a.lines += b.lines
    lds = max(Z_LDS, A_LDS)
    if merged: return a.lines, lds
    a.label(f"{name}_end")
    a.e("s_endpgm")
    launch = f"; @launch kernel={name} grid=(256,1,1) block=(512,1,1) lds={lds}\n"
    return launch, kernel_begin(name) + a.text(), kernel_desc(name, 256, 102, 256)
```

```python
import os
from asmlib import *
from sched import Sched
from layout import *
from k3 import srd
from k1common import *
from k1a import softmax18
from k2 import tile_ids

SLOT = 34 * 1024
KVI = 4 * SLOT
OSTG = KVI + 2048
OW = 2560
OIT = int(os.environ.get('OIT', 5))
YB = int(os.environ.get('YB', 0))
MF16 = "v_mfma_f32_16x16x32_bf16"

def flag_wait(a, name, vflag, vaddr, slp=None):
    lp = a.newlabel(name + "_fl"); ok = a.newlabel(name + "_fk")
    a.e("s_mov_b32 s58, 200000")
    a.label(lp)
    a.e(f"""
    v_cmp_ne_u32 vcc, s69, v{vflag}
    s_sub_u32 s58, s58, 1
    s_cmp_eq_u32 s58, 0
    s_cbranch_scc1 {ok}
    s_cmp_eq_u64 vcc, 0
    s_cbranch_scc1 {ok}
    s_sleep {slp or int(os.environ.get('SLP', 6))}
    buffer_load_dword v{vflag}, v{vaddr}, s[20:23], 0 offen sc1
    s_waitcnt vmcnt(0)
    s_branch {lp}
    """)
    a.label(ok)

def flag_store(a, name, base, wave=0, idx='s2'):
    lb = a.newlabel(name + "_fs")
    a.e(f"""
    s_cmp_eq_u32 s3, {wave}
    s_cbranch_scc0 {lb}
    s_lshl_b32 s58, {idx}, 7
    s_add_u32 s58, s58, {base}
    v_mov_b32 v12, s69
    v_mov_b32 v13, s69
    v_mov_b32 v14, s69
    v_mov_b32 v15, s69
    s_mov_b64 exec, 0xff
    buffer_store_dwordx4 v[12:15], v3, s[20:23], s58 offen sc1
    s_mov_b64 exec, -1
    """)
    a.label(lb)

QA = KVI + 2048
AFL = QA + 16384
SG = int(os.environ.get("SG", 9))

def side_fetch(a, name, merged):
    def flags(a):
        a.e(f"""
        s_lshr_b32 s50, s2, 5
        s_and_b32 s51, s2, 7
        s_lshl_b32 s51, s51, 2
        s_bfe_u32 s59, s2, 0x20003
        s_add_u32 s51, s51, s59
        s_lshr_b32 s52, s51, 3
        s_add_u32 s52, s52, s51
        s_add_u32 s53, s52, 1
        s_lshr_b32 s52, s52, 2
        s_lshr_b32 s53, s53, 2
        s_mul_i32 s54, s52, 43
        s_lshr_b32 s54, s54, 7
        s_add_u32 s52, s52, s54
        s_mul_i32 s54, s53, 43
        s_lshr_b32 s54, s54, 7
        s_add_u32 s53, s53, s54
        s_lshl_b32 s54, s50, 1
        s_lshl_b32 s52, s52, 4
        s_lshl_b32 s53, s53, 4
        s_add_u32 s52, s52, s54
        s_add_u32 s53, s53, s54
        s_lshr_b32 s54, s51, 2
        s_lshl_b32 s54, s54, 3
        s_add_u32 s54, s54, 192
        v_and_b32 v26, 7, v2
        v_add_u32 v26, s54, v26
        v_writelane_b32 v26, s52, 8
        v_writelane_b32 v26, s53, 9
        s_add_u32 s52, s52, 1
        s_add_u32 s53, s53, 1
        v_writelane_b32 v26, s52, 10
        v_writelane_b32 v26, s53, 11
        s_mul_i32 s52, s33, 3
        s_add_u32 s53, s52, 2
        s_lshr_b32 s52, s52, 2
        s_lshr_b32 s53, s53, 2
        s_lshl_b32 s52, s52, 4
        s_lshl_b32 s53, s53, 4
        s_add_u32 s52, s52, s32
        s_add_u32 s53, s53, s32
        v_writelane_b32 v26, s52, 12
        v_writelane_b32 v26, s53, 13
        v_lshlrev_b32 v26, 7, v26
        v_add_u32 v26, {F1}, v26
        """)
        a.vm("buffer_load_dword v27, v26, s[20:23], 0 offen sc1", "sf")
    def loads(a):
        if merged: a.wait_key("sf"); flag_wait(a, name, 27, 26)
        a.e(f"""
        s_lshr_b32 s50, s2, 5
        s_and_b32 s51, s2, 7
        s_lshl_b32 s51, s51, 2
        s_bfe_u32 s59, s2, 0x20003
        s_add_u32 s51, s51, s59
        s_mul_i32 s52, s51, 3840
        s_add_u32 s52, s52, {KVP}
        v_lshlrev_b32 v28, 4, v0
        v_subrev_u32 v28, 4096, v28
        v_cmp_gt_u32 vcc, 3840, v28
        v_mov_b32 v29, {BIG}
        s_lshr_b32 s53, s51, 2
        s_mul_i32 s53, s53, 13
        v_cndmask_b32 v29, v29, v28, vcc
        """)
        for k in range(8):
            a.vm(f"buffer_load_dwordx4 {vr(32+4*k)}, v29, s[20:23], s52 offen", "kvl")
            if k < 7: a.e(f"s_add_u32 s52, s52, {32*3840}")
        a.e(f"""
        s_and_b32 s54, s51, 3               ; i
        s_lshl_b32 s55, s54, 1
        s_add_u32 s56, s54, 6
        s_cmp_lt_u32 s3, 2
        s_cselect_b32 s55, s55, s56
        s_add_u32 s55, s55, s3
        s_add_u32 s55, s55, s53
        s_lshl_b32 s55, s55, 10
        s_add_u32 s55, s55, {AF}
        s_lshl_b32 s56, s3, 10
        s_add_u32 m0, s56, {AFL}
        s_lshl_b32 s57, s50, 3
        """)
        a.vm("buffer_load_dwordx4 v3, s[20:23], s55 offen lds")
        a.e(f"""
        s_lshl_b32 s58, s3, 1
        s_add_u32 s57, s57, s58
        s_mul_i32 s58, s57, 36
        s_lshr_b32 s59, s51, 3
        s_add_u32 s59, s59, s51
        s_add_u32 s58, s58, s59
        s_lshl_b32 s58, s58, 10
        s_add_u32 s58, s58, {Q}
        s_lshl_b32 s56, s3, 12
        s_add_u32 m0, s56, {QA}
        v_add_u32 v30, {36*1024 - 2048}, v3
        """)
        for k in range(4):
            a.vm(f"buffer_load_dwordx4 v{30 if k >= 2 else 3}, s[20:23], s58 offen offset:{k*1024} lds", "ql")
    def kvsum(a):
        a.wait_key("ql")
        for k in range(1, 8):
            for r in range(4): a.e(f"v_add_f32 v{32+r}, v{32+r}, v{32+4*k+r}")
        a.e(f"""
        v_cvt_pk_bf16_f32 v32, v32, v33
        v_cvt_pk_bf16_f32 v33, v34, v35
        v_lshrrev_b32 v28, 1, v28
        v_add_u32 v28, {KVI}, v28
        ds_write_b64 v28, v[32:33]
        s_waitcnt lgkmcnt(0)
        """)
    return {SG - 6: flags if merged else (lambda a: None), SG - 4: loads, SG - 1: kvsum}

def side_stream(a, name, merged):
    AFR = 104; QR = [120, 128]; P = 136; PT = 232; PH = 120; KA = 232; T = 248; OUT = 152
    def raw(t):
        for l in t.strip().split("\n"): a.add("raw", l.strip())
    def mf(t): a.add("t", t)
    a.addv(f"""
    s_lshr_b32 s50, s2, 5
    s_and_b32 s51, s2, 7
    s_lshl_b32 s51, s51, 2
    s_bfe_u32 s59, s2, 0x20003
    s_add_u32 s51, s51, s59
    s_and_b32 s54, s51, 3
    s_lshl_b32 s57, s50, 3
    s_lshl_b32 s58, s3, 1
    s_add_u32 s57, s57, s58
    s_mov_b32 s45, {f2u(LOG2E)}
    s_lshl_b32 s58, s3, 12
    s_add_u32 s58, s58, {QA}
    v_add_u32 v158, s58, v3
    v_add_u32 v159, {AFL}, v3
    """)
    a.addv(f"""
    v_and_b32 v248, 31, v2
    s_and_b32 s52, s51, 1
    s_lshl_b32 s52, s52, 1
    v_add_u32 v249, s52, v248
    v_min_u32 v249, 23, v249
    v_and_b32 v250, 27, v248
    v_cmp_eq_u32 vcc, 18, v250
    v_mov_b32 v251, 20
    v_lshrrev_b32 v253, 5, v2
    v_cndmask_b32 v249, v249, v251, vcc
    v_mul_u32_u24 v250, 24, v253
    v_add_u32 v249, v249, v250
    v_mul_u32_u24 v249, 40, v249
    v_add_u32 v252, {KVI}, v249
    v_bfe_u32 v254, v2, 4, 1
    v_mul_u32_u24 v254, {90*1024}, v254
    v_and_b32 v255, 15, v2
    v_lshl_add_u32 v254, v255, 4, v254
    v_lshl_add_u32 v255, v253, 8, v254
    v_cmp_gt_u32 vcc, 32, v2
    v_mov_b32 v248, {BIG}
    s_mul_i32 s57, s57, {2*90*1024}
    v_cndmask_b32 v254, v248, v254, vcc
    s_add_u32 s57, s57, {U}
    s_lshr_b32 s52, s51, 1
    s_lshl_b32 s52, s52, 10
    s_and_b32 s53, s51, 1
    s_lshl_b32 s53, s53, 9
    s_add_u32 s52, s52, s53
    s_add_u32 s52, s52, {72*1024}
    s_add_u32 s52, s52, s57
    s_lshr_b32 s53, s51, 4
    s_lshl_b32 s53, s53, 10
    s_bfe_u32 s55, s51, 0x20002
    s_lshl_b32 s55, s55, 8
    s_add_u32 s53, s53, s55
    s_lshl_b32 s55, s54, 2
    s_add_u32 s53, s53, s55
    s_add_u32 s53, s53, {88*1024}
    s_add_u32 s53, s53, s57
    """)
    if os.environ.get("OT"):
        a.addv(f"buffer_load_dword v248, v254, s[20:23], s53 offen\ns_add_u32 s55, s53, {2*90*1024}\nbuffer_load_dword v249, v254, s[20:23], s55 offen")
        raw("s_nop 0")
    a.add("gate", None, "go")
    if os.environ.get("OT"): raw("s_waitcnt vmcnt(0)")
    for k in range(4):
        a.addv(f"ds_read_b128 {vr(AFR+4*k)}, v159 offset:{k*1024}\nds_read_b128 {vr(QR[0]+4*k)}, v158 offset:{k*1024}")
    a.add("gate", None, "half")
    for b in range(2):
        for t in range(2):
            mf(f"{MF32} {vr(P,16)}, {vr(AFR+4*t)}, {vr(QR[b]+4*t)}, " + ("0" if t == 0 else vr(P,16)))
            mf(f"{MF32} {vr(PT,16)}, {vr(AFR+8+4*t)}, {vr(QR[b]+4*t)}, " + ("0" if t == 0 else vr(PT,16)))
        a.add("gate", None, "half")
        for i in range(1, 4):
            a.addv(f"s_cmp_eq_u32 s54, {i}\ns_cselect_b64 vcc, -1, 0")
            a.addv(f"v_cndmask_b32 v{PT}, v{PT}, v{PT+2*i}, vcc\nv_cndmask_b32 v{PT+1}, v{PT+1}, v{PT+2*i+1}, vcc")
        a.addv(f"v_mov_b32 v{OUT+6}, v{PT}\nv_mov_b32 v{OUT+7}, v{PT+1}")
        a.addv(f"""
        ds_read_b64 v[{KA}:{KA+1}], v252
        ds_read_b64 v[{KA+2}:{KA+3}], v252 offset:8
        ds_read_b64 v[{KA+4}:{KA+5}], v252 offset:16
        ds_read_b64 v[{KA+6}:{KA+7}], v252 offset:24
        ds_read_b32 v{KA+8}, v252 offset:32
        v_mov_b32 v{KA+9}, 0
        v_mov_b32 v{KA+10}, 0
        v_mov_b32 v{KA+11}, 0
        """)
        ph = PH if b == 1 else 0
        c = Asm()
        dst = 120 if b == 0 else 120
        softmax18(c, [P + k for k in range(16)] + [OUT + 6, OUT + 7], T, 0)
        PHR = [120 + k for k in range(8)] + [244]
        for l in c.lines:
            l = l.strip()
            if l.startswith("v_cvt_pk"):
                k = int(l.split()[1][1:-1]); l = l.replace(f"v{k},", f"v{PHR[k]},", 1)
            a.addv(l)
        a.addv("v_mov_b32 v245, 0\nv_mov_b32 v246, 0\nv_mov_b32 v247, 0")
        a.add("gate", None, "half")
        for st, r in enumerate((120, 124, 244)):
            mf(f"{MF32} {vr(P,16)}, {vr(KA+4*st)}, {vr(r)}, " + ("0" if st == 0 else vr(P,16)))
        a.add("gate", None, "half")
        a.addv(f"v_add_f32 v{T}, {f2u(1e-6)}, v{P+10}\nv_rcp_f32 v{T}, v{T}\ns_nop 0")
        for k in range(10): a.addv(f"v_mul_f32 v{P+k}, v{P+k}, v{T}")
        for k in range(5): a.addv(f"v_cvt_pk_bf16_f32 v{OUT+k}, v{P+2*k}, v{P+2*k+1}")
        a.addv(f"buffer_store_dwordx4 {vr(OUT)}, v255, s[20:23], s52 offen sc1\nbuffer_store_dword v{OUT+4}, v254, s[20:23], s53 offen sc1")
        if b == 0: a.addv(f"s_add_u32 s52, s52, {2*90*1024}\ns_add_u32 s53, s53, {2*90*1024}")

def gen_loader(name, hi, stamp, merged=False):
    a = Sched(); a.uid = 500 + 100*hi
    LM, LD = 3, 4
    lead = "L" in os.environ.get("ROT", "L")
    fb0 = 5 if hi else 0; fbx = 8 if hi else 4; nrun = 3 if hi else 4
    sid = {}
    def issue(s, part="wz"):
        base = (s % 4) * SLOT
        if lead:
            a.e(f"s_cmp_eq_u32 s62, {s & LM}\ns_cselect_b32 s63, {(s + LD) & 31}, {s}")
        else:
            a.e(f"s_mov_b32 s63, {s}")
        a.e(f"""
        s_lshl_b32 s64, s63, 7
        s_add_u32 s64, s64, s36
        s_add_u32 m0, s39, {base}
        s_mul_i32 s63, s63, {2*144*1024}
        """)
        if "w" in part:
            for i in range(4): a.vm(f"buffer_load_dwordx4 v{4+i}, s[12:15], s64 offen offset:{i*1024} lds")
        if "z" not in part: return
        a.e(f"s_add_u32 m0, s40, {base}\ns_add_u32 s64, s63, s37")
        for i in range(nrun - (1 if ('even' in os.environ.get('ABL2', '') and not hi) else 0)): a.vm(f"buffer_load_dwordx4 v3, s[16:19], s64 offen offset:{i*1024} lds")
        a.e(f"s_add_u32 m0, s41, {base}\ns_add_u32 s64, s63, s38")
        sid[s] = a.vm(f"buffer_load_dwordx4 v3, s[16:19], s64 offen lds")
    a.e(f"""
    s_add_u32 s62, s32, s33
    s_and_b32 s62, s62, {LM}
    s_and_b32 s42, s3, 1
    s_mul_i32 s43, s33, 9
    s_and_b32 s44, s33, 1
    s_add_u32 s45, s43, s44
    s_mul_i32 s46, s42, 144
    s_add_u32 s37, s45, s46
    s_add_u32 s37, s37, {fb0}
    s_lshl_b32 s37, s37, 10
    """)
    if hi:
        a.e("""
        s_cmp_eq_u32 s44, 0
        s_cselect_b32 s47, 8, 0
        s_add_u32 s38, s43, s47             ; g8
        s_add_u32 s38, s38, s46
        s_lshl_b32 s38, s38, 10
        """)
    else:
        a.e("s_add_u32 s38, s37, 4096")
    a.e(f"""
    s_mul_i32 s40, s42, {9*1024}
    s_add_u32 s41, s40, {fbx*1024}
    s_add_u32 s40, s40, {fb0*1024}
    s_lshl_b32 s39, s3, 12
    s_add_u32 s39, s39, {18*1024}
    """)
    if merged:
        a.e(f"""
        s_mul_i32 s58, s33, 3
        s_add_u32 s59, s58, 2
        s_lshr_b32 s58, s58, 2
        s_lshr_b32 s59, s59, 2
        s_sub_u32 s59, s59, s58
        v_bfe_u32 v20, v2, 4, 1
        v_mul_lo_u32 v20, v20, s59
        v_add_u32 v20, s58, v20
        v_and_b32 v21, 15, v2
        v_lshl_add_u32 v20, v20, 4, v21
        v_lshlrev_b32 v20, 7, v20
        v_add_u32 v20, {FZ}, v20
        """)
        a.vm("buffer_load_dword v22, v20, s[20:23], 0 offen sc1", "fz")
        for s in range(3): issue(s, "w")
        lb = a.newlabel(name + "_e1")
        a.e(f"s_cmp_eq_u32 s3, 1\ns_cbranch_scc0 {lb}\ns_waitcnt vmcnt(12)")
        flag_wait(a, name, 22, 20, int(os.environ.get("SLZ", 6)))
        a.label(lb)
        a.e("s_barrier")
        for s in range(3): issue(s, "z")
    else:
        for s in range(3): issue(s)
    sf = side_fetch(a, name, merged)
    for s in range(32):
        need = sid[s]
        if s == 31 and not os.environ.get("LW"): need = a.keys["fo"][1]
        a.wait(vm=need)
        a.e("s_barrier")
        if s == 24 + int(os.environ.get('LW', 0)): (a.e('s_lshl_b32 s59, s50, 5\ns_add_u32 s59, s59, s51'), flag_store(a, name, FO, 0, 's59'))
        if s == 1 and merged: flag_store(a, name, F1, 0, 's68')
        if os.environ.get("LPRIO"): a.e("s_setprio 3")
        if s + 3 < 32: issue(s + 3)
        if s in sf: sf[s](a)
        if os.environ.get("LPRIO"): a.e("s_setprio 0")
        if s == 24:
            a.e(f"""
            s_lshr_b32 s70, s33, 2              ; kq
            s_and_b32 s71, s33, 3               ; dj
            """)
            a.e(f"""
            s_mul_i32 s72, s33, 9
            s_and_b32 s73, s33, 1
            s_add_u32 s72, s72, s73
            s_lshr_b32 s72, s72, 1              ; st0
            s_mul_i32 s73, s70, 18
            s_sub_u32 s74, s72, s73
            s_mul_i32 s75, s70, 5
            s_cmp_eq_u32 s70, 3
            s_cselect_b32 s75, 14, s75
            s_add_u32 s75, s75, 72
            s_mul_i32 s76, s71, {90*9*1024}
            s_add_u32 s76, s76, {WP + fb0*1024}
            s_lshl_b32 s77, s32, 3
            s_add_u32 s77, s77, {4 if hi else 0}
            s_mul_i32 s77, s77, {90*1024}
            s_add_u32 s77, s77, {U}
            s_lshl_b32 s78, s42, 10
            s_add_u32 s78, s78, {18*1024 + (8192 if hi else 0)}
            v_add_u32 v16, {90*1024 - 2048}, v3
            v_add_u32 v17, {2*90*1024}, v3
            v_add_u32 v18, {3*90*1024 - 2048}, v3
            v_and_b32 v20, 31, v2
            v_lshlrev_b32 v20, 7, v20
            s_lshr_b32 s58, s32, 1
            s_lshl_b32 s58, s58, 12
            s_add_u32 s58, s58, {FO}
            v_add_u32 v20, s58, v20
            v_and_b32 v21, 3, v2
            v_lshlrev_b32 v21, 13, v21
            s_and_b32 s58, s2, 63
            s_lshl_b32 s58, s58, 7
            s_add_u32 s58, s58, {FU}
            v_add_u32 v21, s58, v21
            """)
            if merged:
                a.e(f"""
                v_subrev_u32 v23, 32, v2
                v_add_u32 v24, s73, v23
                v_subrev_u32 v25, 18, v23
                v_add_u32 v25, s75, v25
                v_cmp_gt_u32 vcc, 18, v23
                v_min_u32 v25, 89, v25
                s_nop 0
                v_cndmask_b32 v24, v25, v24, vcc
                v_and_b32 v24, 63, v24
                v_add_u32 v24, 192, v24
                v_lshlrev_b32 v24, 7, v24
                v_add_u32 v24, {F1}, v24
                v_cmp_gt_u32 vcc, 32, v2
                s_nop 1
                v_cndmask_b32 v20, v24, v20, vcc
                """)
        if s == 29 and not os.environ.get("LW"):
            a.vm("buffer_load_dword v22, v20, s[20:23], 0 offen sc1", "fo")
    def gstep(i):
        def expr(i, d):
            if i < 4: a.e(f"s_add_u32 {d}, s72, {i}")
            elif i < 8: a.e(f"s_add_u32 {d}, s75, {i - 4}")
            elif i == 8: a.e(f"s_add_u32 {d}, s75, 4\ns_cmp_lt_u32 s70, 2\ns_cselect_b32 {d}, {d}, 100")
            elif i < 23: a.e(f"s_cmp_le_u32 s74, {i - 9}\ns_cselect_b32 {d}, {i - 9 + 4}, {i - 9}\ns_add_u32 {d}, {d}, s73")
            else: a.e(f"s_mov_b32 {d}, 100")
        expr(i, "s63"); expr(i + 1, "s65")
        a.e("s_cmp_eq_u32 s42, 0\ns_cselect_b32 s63, s63, s65")
        if i in (8, 22):
            a.e(f"s_cmp_lt_u32 s63, 90\ns_cselect_b32 s26, {WS_USED}, 0\ns_cselect_b32 s63, s63, 0")
    aid = {}; bid = {}
    def issueA(p):
        base = (p % 4) * SLOT; sr = "s[24:27]" if p in (4, 11) else "s[20:23]"
        gstep(2*p)
        a.e(f"s_mul_i32 s64, s63, {9*1024}\ns_add_u32 s64, s64, s76\ns_add_u32 m0, s40, {base}\ns_nop 0")
        for i in range(nrun): a.vm(f"buffer_load_dwordx4 v3, {sr}, s64 offen offset:{i*1024} lds")
        a.e(f"s_add_u32 m0, s41, {base}\ns_add_u32 s64, s64, {nrun*1024}")
        aid[p] = a.vm(f"buffer_load_dwordx4 v3, {sr}, s64 offen lds")
    def issueB(p):
        base = (p % 4) * SLOT; sr = "s[24:27]" if p in (4, 11) else "s[20:23]"
        gstep(2*p)
        a.e(f"s_lshl_b32 s64, s63, 10\ns_add_u32 s64, s64, s77\ns_add_u32 m0, s78, {base}\ns_nop 0")
        a.vm(f"buffer_load_dwordx4 v3, {sr}, s64 offen lds")
        a.vm(f"buffer_load_dwordx4 v16, {sr}, s64 offen offset:2048 lds")
        a.e(f"s_add_u32 m0, s78, {base + 4096}\ns_nop 0")
        a.vm(f"buffer_load_dwordx4 v17, {sr}, s64 offen lds")
        bid[p] = a.vm(f"buffer_load_dwordx4 v18, {sr}, s64 offen offset:2048 lds")
    a.e("s_mov_b32 s24, s20\ns_mov_b32 s25, s21\ns_mov_b32 s27, 0x20000")
    if os.environ.get("LW"):
        a.vm("buffer_load_dword v22, v20, s[20:23], 0 offen sc1", "fo")
        a.wait_key("fo")
        a.e("s_mov_b32 exec_lo, 0"); flag_wait(a, name, 22, 20); a.e("s_mov_b64 exec, -1")
        issueA(0); issueA(1); issueA(2)
        flag_wait(a, name, 22, 20)
        issueB(2)
    else:
        flag_wait(a, name, 22, 20)
        issueA(0); issueA(1); issueA(2); issueB(2)
    for p in range(12):
        a.wait(vm=max(aid[p], bid.get(p, -1)))
        a.e("s_barrier")
        if p == 2:
            flag_store(a, name, FU)
            issueA(5)
            if not YB:
                a.e("buffer_load_dword v22, v21, s[20:23], 0 offen sc1\ns_waitcnt vmcnt(0)"); a.vm_done = a.vm_n - 1
                flag_wait(a, name, 22, 21)
                issueB(4); issueB(5)
        elif p == 1: issueA(4)
        elif p == 3 and YB:
            issueA(6)
            lb = a.newlabel(name + "_y")
            a.e(f"s_cmp_eq_u32 s3, 1\ns_cbranch_scc0 {lb}\ns_sleep {YB}\nbuffer_load_dword v22, v21, s[20:23], 0 offen sc1\ns_waitcnt vmcnt(0)")
            flag_wait(a, name, 22, 21)
            a.label(lb)
            a.e("s_barrier")
            issueB(4); issueB(5); issueB(6)
        elif p + 3 < 12: issueA(p + 3); issueB(p + 3)
    a.e(f"s_add_u32 s3, s3, 4\ns_branch {name}_final")
    return a.lines

def gen_k2f(name="k2_kernel", stamp=False, merged=False):
    a = Sched()
    ACC = 160; FX, FY = 16, 60
    def acc(fb, tb): r = ACC + (fb*2 + tb)*4; return f"v[{r}:{r+3}]"
    def fa(buf, fb): r = buf + fb*4; return f"v[{r}:{r+3}]"
    def fbr(buf, tb): r = buf + 36 + tb*4; return f"v[{r}:{r+3}]"
    lds = AFL + 4096
    if merged:
        from k1 import gen_k1
        lines, l1 = gen_k1(name, 0 if stamp in (7, 8, 9) else stamp, True, True)
        if stamp in (7, 8, 9):
            b = Asm(); stamp_begin(b); lines = lines[:2] + b.lines + lines[2:]
        a.lines += lines; lds = max(lds, l1); a.uid = 2000
        a.label(f"{name}_p2")
        if stamp == 7: stamp_mid(a, 0)
        a.e(f"""
        s_load_dwordx2 s[4:5], s[0:1], {KA_WS}
        s_load_dwordx2 s[6:7], s[0:1], {KA_WSP}
        s_load_dwordx2 s[8:9], s[0:1], {KA_BSP}
        v_mbcnt_lo_u32_b32 v2, -1, 0
        v_mbcnt_hi_u32_b32 v2, -1, v2
        s_lshl_b32 s10, s3, 6
        v_add_u32 v0, s10, v2
        """)
    else:
        a.e(f"s_cmp_ge_u32 s2, 256\ns_cbranch_scc1 {name}_end")
        if stamp: stamp_begin(a)
        a.e(f"""
        s_load_dwordx2 s[4:5], s[0:1], {KA_WS}
        s_load_dwordx2 s[6:7], s[0:1], {KA_WSP}
        s_load_dwordx2 s[8:9], s[0:1], {KA_BSP}
        v_lshrrev_b32 v1, 6, v0
        v_and_b32 v2, 63, v0
        v_readfirstlane_b32 s3, v1          ; wave
        """)
    tile_ids(a)
    a.e(f"""
    v_lshlrev_b32 v3, 4, v2
    s_waitcnt lgkmcnt(0)
    """)
    if merged: a.e("s_barrier")
    else: a.e(f"""
    s_add_u32 s66, s4, {XST + 4}
    s_addc_u32 s67, s5, 0
    s_load_dword s69, s[66:67], 0
    """)
    srd(a, 12, 6, 7, S*S*2)
    WSB = int(os.environ.get('WSB', 0)) << 20
    srd(a, 16, 4, 5, Z2T_BYTES, Z2T + WSB)
    srd(a, 20, 4, 5, WS_USED, WSB)
    a.e(f"""
    s_cmp_lt_u32 s3, 4
    s_cbranch_scc1 {name}_compute
    s_sub_u32 s3, s3, 4
    v_lshrrev_b32 v8, 3, v2
    v_and_b32 v9, 7, v2
    v_lshrrev_b32 v10, 4, v2
    v_xor_b32 v9, v9, v10
    v_lshlrev_b32 v8, 12, v8
    v_lshl_add_u32 v4, v9, 4, v8
    v_xor_b32 v9, 4, v9
    v_lshl_add_u32 v5, v9, 4, v8
    v_add_u32 v6, {2*(32768-1024)}, v4
    v_add_u32 v7, {3*(32768-1024)}, v5
    v_add_u32 v5, {(32768-1024)}, v5
    s_lshl_b32 s36, s32, 7
    s_lshl_b32 s37, s3, 5
    s_add_u32 s36, s36, s37
    s_lshl_b32 s36, s36, 12
    s_waitcnt lgkmcnt(0)
    s_cmp_ge_u32 s3, 2
    s_cbranch_scc1 {name}_ldhi
    """)
    a.lines += gen_loader(name, False, stamp, merged)
    a.label(f"{name}_ldhi")
    a.lines += gen_loader(name, True, stamp, merged)
    a.label(f"{name}_compute")
    srd(a, 28, 8, 9, S*2)
    a.e(f"""
    v_mov_b32 v4, v3
    v_add_u32 v5, {2*SLOT}, v3
    v_and_b32 v10, 15, v2               ; t
    v_lshrrev_b32 v11, 4, v2            ; kg
    v_lshrrev_b32 v12, 1, v10           ; swz
    v_xor_b32 v12, v12, v11
    v_lshlrev_b32 v12, 4, v12
    v_lshl_add_u32 v6, v10, 7, v12
    s_lshl_b32 s36, s3, 12
    s_add_u32 s36, s36, {18*1024}
    v_add_u32 v6, s36, v6
    v_xor_b32 v7, 64, v6
    v_add_u32 v8, {2*SLOT}, v6
    v_add_u32 v9, {2*SLOT}, v7
    s_lshl_b32 s37, s32, 7
    s_lshl_b32 s38, s3, 5
    s_add_u32 s37, s37, s38
    s_lshl_b32 s38, s37, 1
    v_lshlrev_b32 v12, 1, v10
    buffer_load_ushort v13, v12, s[28:31], s38 offen
    buffer_load_ushort v14, v12, s[28:31], s38 offen offset:32
    s_lshl_b32 s38, s37, 4
    s_add_u32 s38, s38, {XST + 8}
    v_lshlrev_b32 v12, 4, v10
    buffer_load_dword v15, v12, s[20:23], s38 offen sc1
    buffer_load_dword v1, v12, s[20:23], s38 offen offset:256 sc1
    """)
    if merged: a.e("s_barrier")
    if stamp == 7: stamp_mid(a, 1)
    def reads(buf, slot, kh):
        L = []
        sa = (slot & 1) * SLOT
        va = "v4" if slot < 2 else "v5"
        vb = f"v{6 + kh + (0 if slot < 2 else 2)}"
        for tb in range(2): L.append(f"ds_read_b128 {fbr(buf,tb)}, {vb} offset:{sa + tb*2048}")
        for fb in range(9):
            if "halfrd" in os.environ.get("ABL2", "") and fb % 2: continue
            if "nord" in os.environ.get("ABL2", ""): continue
            L.append(f"ds_read_b128 {fa(buf,fb)}, {va} offset:{sa + (kh*9+fb)*1024}")
        return L
    def phase(cbuf, R, skip=False, zero=False):
        R = list(R)
        if skip:
            for r in R: a.e(r)
            return
        if "nomf" in os.environ.get("ABL2", ""):
            for r in R: a.e(r)
            R = []
        for fb in range(9):
            for tb in range(2):
                if R: a.e(R.pop(0))
                if "nomf" in os.environ.get("ABL2", "") and fb: continue
                a.e(f"{MF16} {acc(fb,tb)}, {fa(cbuf,fb)}, {fbr(cbuf,tb)}, " + ("0" if zero else acc(fb,tb)))
                if a.fill and (fb*2 + tb) >= 4: a.pump(SB if not R else SB - 1)
    cnt = [0]; TS = [int(x) for x in os.environ.get('TS', '0,4,8,12').split(',')]
    def stage(slot, first=False, pre="", post=None, nobar=False):
        a.e(pre)
        if not nobar: a.e("s_barrier")
        if stamp == 9:
            if cnt[0] in TS: stamp_mid(a, TS.index(cnt[0]))
            cnt[0] += 1
        if post: post()
        a.open_gate(); a.open_gate("half")
        phase(FY, reads(FX, slot, 0), skip=first)
        a.e("s_waitcnt lgkmcnt(0)")
        a.open_gate("half")
        phase(FX, reads(FY, slot, 1), zero=first)
        a.e("s_waitcnt lgkmcnt(0)")
    SB = int(os.environ.get("SB", 2))
    side_stream(a, name, merged)
    if 'noside' in os.environ.get('ABL2', ''): a.fill.clear()
    stage(0, first=True)
    if stamp in (1, 7): stamp_mid(a, 2*(stamp == 7))
    if stamp == 8: stamp_mid(a, 0)
    NU = 4*int(os.environ.get("NU", 5))
    for u in range(1, NU): stage(u % 4, pre="s_waitcnt vmcnt(0)" if (merged and u == 1) else "", post=(lambda: a.open_gate("go")) if u == SG else None)
    assert not a.fill, len(a.fill)
    if NU < 24:
        a.e(f"s_mov_b32 s48, {NU//4 - 1}")
        lp = f"{name}_cl"
        a.label(lp)
        for u in range(4): stage(u)
        a.e(f"s_add_u32 s48, s48, 1\ns_cmp_lt_u32 s48, 5\ns_cbranch_scc1 {lp}")
    ZR = 104
    LW = int(os.environ.get("LW", 0))
    if not LW: a.e("s_waitcnt vmcnt(0)")
    a.e(f"""
    s_lshr_b32 s40, s37, 4
    s_mul_i32 s41, s33, 9
    s_and_b32 s42, s33, 1
    s_add_u32 s43, s41, s42
    s_lshr_b32 s43, s43, 1              ; st0
    s_add_u32 s44, s41, 8
    s_cmp_eq_u32 s42, 0
    s_cselect_b32 s44, s44, s41
    s_lshr_b32 s44, s44, 1              ; st8
    s_lshl_b32 s42, s42, 3              ; half*8
    s_mul_i32 s54, s40, 90
    s_add_u32 s55, s54, s44
    s_add_u32 s54, s54, s43
    s_lshl_b32 s54, s54, 10
    s_lshl_b32 s55, s55, 10
    s_add_u32 s55, s55, s42
    s_add_u32 s54, s54, {U}
    s_add_u32 s55, s55, {U}
    s_add_u32 s56, s54, {90*1024}
    s_add_u32 s57, s55, {90*1024}
    """)
    a.e(f"v_add_u32 v12, {Z1B - U}, v3")
    for tb in range(2):
        sm, ss = ("s54", "s55") if tb == 0 else ("s56", "s57")
        for i in range(4):
            r = ZR + tb*18 + i*4
            a.e(f"buffer_load_dwordx4 v[{r}:{r+3}], v12, s[20:23], {sm} offen offset:{i*1024} {os.environ.get('Z1L', '')}")
        r = ZR + tb*18 + 16
        a.e(f"buffer_load_dwordx2 v[{r}:{r+1}], v12, s[20:23], {ss} offen sc1")
    for u in range(8): stage(u % 4, pre='s_waitcnt vmcnt(10)' if (LW and u == LW) else '')
    phase(FY, [])
    if stamp in (1, 7, 8): stamp_mid(a, 3 if stamp == 7 else 1)
    a.e(f"""
    s_waitcnt vmcnt(0)
    v_lshlrev_b32 v13, 16, v13
    v_lshlrev_b32 v14, 16, v14
    v_mul_f32 v13, v13, v15
    v_mul_f32 v14, v14, v1
    v_add_u32 v6, s36, v3
    v_add_u32 v7, 1024, v6
    v_add_u32 v8, {2*SLOT}, v6
    v_add_u32 v9, {2*SLOT}, v7
    s_nop 3
    """)
    T = 16
    for tb in range(2):
        sm, ss = ("s54", "s55") if tb == 0 else ("s56", "s57")
        for i in (4, 0, 1, 2, 3):
            nfb = 2 if i < 4 else 1
            zr = ZR + tb*18 + i*4
            for k in range(nfb):
                ar = ACC + ((2*i + k)*2 + tb)*4
                for p in range(2):
                    z = zr + 2*k + p; t0 = T + 2*((2*k + p) % 4)
                    a.e(f"v_fma_f32 v{ar+2*p}, v{ar+2*p}, v{(15, 1)[tb]}, v{13+tb}")
                    a.e(f"v_fma_f32 v{ar+2*p+1}, v{ar+2*p+1}, v{(15, 1)[tb]}, v{13+tb}")
                    a.e(f"v_lshlrev_b32 v{t0}, 16, v{z}")
                    a.e(f"v_and_b32 v{t0+1}, 0xffff0000, v{z}")
                    a.e(f"v_mul_f32 v{t0}, v{t0}, v{ar+2*p}")
                    a.e(f"v_mul_f32 v{t0+1}, v{t0+1}, v{ar+2*p+1}")
                    a.e(f"v_cvt_pk_bf16_f32 v{z}, v{t0}, v{t0+1}")
            if i < 4:
                a.e(f"buffer_store_dwordx4 v[{zr}:{zr+3}], v3, s[20:23], {sm} offen offset:{i*1024} sc1")
                a.e(f"ds_write_b128 v{6 + (i & 1)}, v[{zr}:{zr+3}] offset:{(i >> 1)*SLOT + tb*2048}")
            else:
                a.e(f"buffer_store_dwordx2 v[{zr}:{zr+1}], v3, s[20:23], {ss} offen sc1")
    if stamp and stamp not in (7, 9): stamp_mid(a, {1: 2, 8: 2}.get(stamp, 0))
    stage(0, first=True, pre="s_waitcnt lgkmcnt(0)")
    stage(1)
    stage(2, pre="s_waitcnt vmcnt(0)" + ("\ns_memtime s[82:83]" if stamp == 2 else ""))
    stage(3)
    if YB: a.e("s_barrier")
    if stamp == 2: stamp_mid(a, 2)
    a.e("s_mov_b32 s48, 0")
    lp = f"{name}_c3"
    a.label(lp)
    for u in range(4):
        stage(u)
        if stamp == 2 and u == 0: a.e(f"s_cmp_eq_u32 s48, 0\ns_cbranch_scc0 {name}_ns\ns_memtime s[86:87]\n{name}_ns:")
    a.e(f"s_add_u32 s48, s48, 1\ns_cmp_lt_u32 s48, 2\ns_cbranch_scc1 {lp}")
    phase(FY, [])
    if stamp in (1, 3, 8): stamp_mid(a, {1: 3, 8: 3}.get(stamp, 1))
    own = f"{name}_own"
    a.e(f"""
    s_lshr_b32 s70, s33, 2              ; kq
    s_and_b32 s71, s33, 3               ; dj
    s_lshl_b32 s40, s32, 2
    s_add_u32 s40, s40, s71
    s_lshl_b32 s40, s40, 2
    s_add_u32 s40, s40, s3
    s_lshl_b32 s40, s40, 2
    s_add_u32 s40, s40, s70
    s_mul_i32 s40, s40, {9*1024}
    s_add_u32 s40, s40, {PX}
    s_nop 1
    s_cmp_eq_u32 s3, s70
    s_cbranch_scc1 {own}
    """)
    for fb in range(9):
        r = ACC + 8*fb; t = 16 + 4*(fb & 1)
        for k in range(4): a.e(f"v_cvt_pk_bf16_f32 v{t+k}, v{r+2*k}, v{r+2*k+1}")
        if fb % 4 == 0 and fb: a.e("s_add_u32 s40, s40, 4096")
        a.e(f"buffer_store_dwordx4 v[{t}:{t+3}], v3, s[20:23], s40 offen offset:{(fb%4)*1024} sc1")
    a.e(f"s_branch {name}_final")
    a.label(own)
    for c in range(18):
        a.e(f"ds_write_b128 v3, v[{ACC+4*c}:{ACC+4*c+3}] offset:{c*1024}")
    a.label(f"{name}_final")
    a.e(f"""
    s_load_dwordx2 s[6:7], s[0:1], {KA_X}
    s_load_dwordx2 s[8:9], s[0:1], {KA_OUT}
    s_lshl_b32 s46, s32, 7
    s_lshl_b32 s47, s70, 5
    s_add_u32 s46, s46, s47
    s_mul_i32 s46, s46, 1152
    s_mul_i32 s47, s71, 288
    s_add_u32 s46, s46, s47
    s_lshl_b32 s47, s3, 5
    s_add_u32 s46, s46, s47
    v_and_b32 v10, 15, v2
    v_mul_u32_u24 v10, 1152, v10
    v_lshrrev_b32 v11, 4, v2
    v_lshl_add_u32 v10, v11, 3, v10
    v_add_u32 v11, {16*1152}, v10
    v_mov_b32 v9, {BIG}
    s_cmp_eq_u32 s3, 0
    s_cselect_b64 vcc, -1, 0
    v_cndmask_b32 v24, v9, v10, vcc
    v_cndmask_b32 v25, v9, v11, vcc
    v_cndmask_b32 v26, v9, v3, vcc
    s_lshl_b32 s41, s3, 11
    v_add_u32 v27, s41, v3
    s_waitcnt lgkmcnt(0)
    """)
    srd(a, 24, 6, 7, S*D*2)
    srd(a, 28, 8, 9, S*D*2)
    XA = [10, 11, 24, 25]
    for k in range(4):
        a.e(f"buffer_load_dwordx2 v[{64+2*k}:{65+2*k}], v{XA[k]}, s[24:27], s46 offen offset:{256*(k >> 1)}")
    a.e(f"""
    s_lshl_b32 s40, s32, 2
    s_add_u32 s40, s40, s71
    s_lshl_b32 s40, s40, 2
    s_add_u32 s40, s40, s70
    s_mul_i32 s40, s40, {4*9*1024}
    s_lshl_b32 s41, s3, 10
    s_add_u32 s40, s40, s41
    s_add_u32 s40, s40, {PX}
    v_and_b32 v20, 3, v2
    v_lshlrev_b32 v20, 8, v20
    s_andn2_b32 s58, s2, 6
    s_lshl_b32 s58, s58, 7
    s_add_u32 s58, s58, {FP}
    v_add_u32 v20, s58, v20
    s_waitcnt vmcnt(4) lgkmcnt(0)
    s_barrier
    """)
    flag_store(a, name, FP, 7)
    for m in range(3):
        a.e(f"s_add_u32 s{42+m}, s70, {m+1}\ns_and_b32 s{42+m}, s{42+m}, 3\ns_mul_i32 s{42+m}, s{42+m}, {9*1024}\ns_add_u32 s{42+m}, s{42+m}, s40")
    for k in range(4):
        a.e(f"ds_read_b128 {vr(72+4*k)}, v27 offset:{1024*(k & 1) + 16384*(k >> 1)}")
    lbp = f"{name}_pp"
    a.e(f"""
    s_cmp_eq_u32 s3, 7
    s_cbranch_scc0 {lbp}
    s_sleep {int(os.environ.get("PD", 0))}
    buffer_load_dword v22, v20, s[20:23], 0 offen sc1
    s_waitcnt vmcnt(0)
    """)
    flag_wait(a, name, 22, 20)
    a.label(lbp)
    a.e("s_barrier")
    if stamp == 3: stamp_mid(a, 2)
    PR = 32
    for m in range(3):
        a.e(f"buffer_load_dwordx4 {vr(PR+4*m)}, v3, s[20:23], s{42+m} offen sc1")
    for m in range(3):
        a.e(f"s_add_u32 s{42+m}, s{42+m}, 8192\nbuffer_load_dwordx4 {vr(PR+12+4*m)}, v26, s[20:23], s{42+m} offen sc1")
    a.e("s_waitcnt lgkmcnt(0)")
    for k in range(4):
        if k == 0: a.e("s_waitcnt vmcnt(3)")
        if k == 2: a.e("s_waitcnt vmcnt(2)")
        if stamp == 3 and k == 0: stamp_mid(a, 3)
        terms = [64 + 2*k] + [PR + 12*(k >> 1) + 4*m + 2*(k & 1) for m in range(3)]
        for z in terms:
            for p in range(2):
                a.e(f"v_lshlrev_b32 v{16+2*p}, 16, v{z+p}\nv_and_b32 v{17+2*p}, 0xffff0000, v{z+p}")
            for r in range(4): a.e(f"v_add_f32 v{72+4*k+r}, v{72+4*k+r}, v{16+r}")
        a.e(f"v_cvt_pk_bf16_f32 v{64+2*k}, v{72+4*k}, v{73+4*k}\nv_cvt_pk_bf16_f32 v{65+2*k}, v{74+4*k}, v{75+4*k}")
        a.e(f"buffer_store_dwordx2 v[{64+2*k}:{65+2*k}], v{XA[k]}, s[28:31], s46 offen offset:{256*(k >> 1)}")
    if stamp: stamp_end(a, 2, "s3", 4)
    a.label(f"{name}_end")
    a.e("s_endpgm")
    launch = f"; @launch kernel={name} grid=(256,1,1) block=(512,1,1) lds={lds}\n"
    if merged: launch = f"; @launch grid=(256,1,1) block=(512,1,1) lds={lds}\n"
    return launch, kernel_begin(name) + a.text(), kernel_desc(name, 256, 102, 256)
```

```python
S, D, F2, H = 2048, 576, 2304, 32
Z2T = 0x0000000
Z1  = 0x0A00000
U   = 0x1400000
WP  = 0x2000000
Q   = 0x2400000
KVP = 0x2700000
AF  = 0x2800000
ST  = 0x2900000
WS_USED = 0x2B00000
Z2T_BYTES = 64*144*1024
Z1_BYTES = 128*72*1024
U_BYTES = 128*90*1024
WP_BYTES = 8*90*4608
Q_BYTES = 64*36*1024
KVP_BYTES = 8*32*2*24*80
AF_BYTES = 8*13*1024
ST_BYTES = 16*24*128*8
KA_X, KA_WQKV, KA_WPHI, KA_WO, KA_BX, KA_WIN, KA_WSP, KA_BSP, KA_WOUT, KA_OUT, KA_DBG, KA_WS = [8*i for i in range(12)]

def k3_slot_channel(step, kg, j):
    if step < 72:
        return 32*step + 16*(j >> 2) + 4*kg + (j & 3)
    st = step - 72
    if st < 16:
        head = 2*st + (kg >> 1); hh = kg & 1
        return F2 + 18*head + 8*(j >> 2) + 4*hh + (j & 3)
    head = 16*(st - 16) + 4*kg + (j >> 1)
    return F2 + 18*head + 16 + (j & 1)
STAMP = 0x8000000
XST = 0x29E0000
CSP = 0x2A00000
CSPA = CSP + 12*16*448*8
FU = 0x2AD0000
FO = FU + 32768
FP = FO + 32768
F1 = FP + 32768
FZ = F1 + 32768
PX = 0x2B00000
WS_USED = PX + 16*4*16*9*1024

import os as _os
Z1B = (0x3400000 if _os.environ.get("ZSEP") else U)
if _os.environ.get("ZSEP"): WS_USED = Z1B + U_BYTES
```
